```python
import torch

def _softmax(x, axis=-1):
    return torch.softmax(x, dim=axis)
def _gelu(x):
    return torch.nn.functional.gelu(x, approximate="tanh")
def _silu(x):
    return torch.nn.functional.silu(x)
def _sigmoid(x):
    return torch.sigmoid(x)
def _layernorm(x, axis=-1, eps=1e-5):
    m = x.mean(dim=axis, keepdim=True)
    v = x.var(dim=axis, keepdim=True, unbiased=False)
    return (x - m) / torch.sqrt(v + eps)
def _scatter_add(tgt, idx, src, axis=0):
    return tgt.clone().index_add_(axis, idx, src)
def _segment_sum(src, seg, n):
    out = torch.zeros((n,) + src.shape[1:], dtype=src.dtype)
    return out.index_add_(0, seg, src)
def _pad(x, pw):
    flat = tuple(v for pair in reversed(pw) for v in pair)
    return torch.nn.functional.pad(x, flat)

kernel_name = 'recurrent_scan__gqa_block_cached__dense_activation_relu__prompt'

def setup_inputs():

    _w = (lambda a: (lambda t: t.to(torch.bfloat16) if t.is_floating_point() else t)(torch.as_tensor(a)))
    def _A_setup():
        B, Sq, D = 1, 2048, 512
        Hq, Hkv, Sk, Dh = 32, 8, 2048, 128
        assert Hq % Hkv == 0, (Hq, Hkv)
        return {
            "x": _w((lambda *s: torch.randn(*s, dtype=torch.bfloat16) * 0.05)(B, Sq, D)),
            "k_cache": _w((lambda *s: torch.randn(*s, dtype=torch.bfloat16) * 1.6)(B, Hkv, Sk, Dh)),
            "v_cache": _w((lambda *s: torch.randn(*s, dtype=torch.bfloat16) * 0.2)(B, Hkv, Sk, Dh)),
            "wq": _w((lambda *s: torch.randn(*s, dtype=torch.bfloat16) * 1.6)(D, Hq * Dh) * (D ** -0.5)),
            "wo": _w((lambda *s: torch.randn(*s, dtype=torch.bfloat16) * 0.2)(Hq * Dh, D) * ((Hq * Dh) ** -0.5)),
        }
    _A_in = _A_setup()

    def _B_setup():
        B, S, D, Dff = 1, 2048, 512, 1792
        return {
            "x": _w((lambda *s: torch.randn(*s, dtype=torch.bfloat16) * 0.05)(B, S, D)),
            "w1": _w((lambda *s: torch.randn(*s, dtype=torch.bfloat16) * 0.1)(D, Dff)),
            "w2": _w((lambda *s: torch.randn(*s, dtype=torch.bfloat16) * 0.1)(Dff, D)),
        }
    _B_in = _B_setup()

    return {
        "A_x": _A_in["x"],
        "A_k_cache": _A_in["k_cache"],
        "A_v_cache": _A_in["v_cache"],
        "A_wq": _A_in["wq"],
        "A_wo": _A_in["wo"],
        "B_x": _B_in["x"],
        "B_w1": _B_in["w1"],
        "B_w2": _B_in["w2"],
    }

def reference(A_x, A_k_cache, A_v_cache, A_wq, A_wo, B_x, B_w1, B_w2):
    def _A_ref(x, k_cache, v_cache, wq, wo):
        B, Sq, D = x.shape
        Hq, Dh = 32, 128
        Hkv = k_cache.shape[1]
        rep = Hq // Hkv
        q = (lambda x, *d: x.permute(*d))((x @ wq).reshape(B, Sq, Hq, Dh), 0, 2, 1, 3)
        k = (lambda x, n, axis: torch.repeat_interleave(x, n, dim=axis))(k_cache, rep, axis=1)
        v = (lambda x, n, axis: torch.repeat_interleave(x, n, dim=axis))(v_cache, rep, axis=1)
        scores = torch.einsum("bhqd,bhkd->bhqk", q, k) * (Dh ** -0.5)
        p = _softmax(scores, axis=-1)
        o = torch.einsum("bhqk,bhkd->bhqd", p, v)
        return (lambda x, *d: x.permute(*d))(o, 0, 2, 1, 3).reshape(B, Sq, Hq * Dh) @ wo

    def _B_ref(x, w1, w2):
        h = torch.einsum("bsd,df->bsf", x, w1)
        zero = torch.zeros_like(h)
        h = torch.maximum(h, zero)
        return torch.einsum("bsf,fd->bsd", h, w2)

    x = A_x
    xn = _layernorm(x, axis=-1)
    s = _A_ref(xn, A_k_cache, A_v_cache, A_wq, A_wo)
    g = _silu(_B_ref(xn, B_w1, B_w2))
    return x + s * g
```

```python
import re
def regs(tok):
    tok = tok.strip()
    m = re.fullmatch(r'-?\|?([vas])(\d+)\|?', tok)
    if m: return {(m.group(1), int(m.group(2)))}
    m = re.fullmatch(r'-?\|?([vas])\[(\d+):(\d+)\]\|?', tok)
    if m: return {(m.group(1), i) for i in range(int(m.group(2)), int(m.group(3)) + 1)}
    if tok in ('vcc',): return {('s', 106), ('s', 107)}
    if tok == 'm0': return {('s', 124)}
    if tok == 'exec': return {('s', 126), ('s', 127)}
    return set()
TRANS = ('v_exp_f32', 'v_log_f32', 'v_rcp_f32', 'v_rsq_f32', 'v_sqrt_f32', 'v_sin_f32', 'v_cos_f32')
def parse(line):
    line = line.split(';')[0].strip()
    if not line or line.endswith(':') or line.startswith('.'): return None
    parts = line.split(None, 1)
    op = parts[0]
    ops = []
    if len(parts) > 1:
        ops = [x.strip() for x in parts[1].split(',')]
        last = ops[-1].split()
        ops[-1] = last[0]
        mods = last[1:]
    else: mods = []
    d = dict(op=op, ops=ops, mods=mods, line=line, w=set(), r=set(), kind='other')
    R = lambda i: regs(ops[i]) if i < len(ops) else set()
    if op.startswith('v_mfma'):
        d['kind'] = 'mfma'; d['w'] = R(0); d['A'] = R(1); d['B'] = R(2); d['C'] = R(3); d['r'] = R(1) | R(2) | R(3)
        d['passes'] = 8 if '32x32' in op else 4
    elif op.startswith('ds_read'):
        d['kind'] = 'ds'; d['w'] = R(0); d['r'] = R(1)
    elif op.startswith('ds_write'):
        d['kind'] = 'ds'; d['r'] = R(0) | R(1) | R(2)
    elif op.startswith('buffer_load'):
        d['kind'] = 'vm'
        if 'lds' in mods: d['r'] = R(0) | R(1) | R(2) | {('s', 124)}; d['dma'] = True
        else: d['w'] = R(0); d['r'] = R(1) | R(2) | R(3)
    elif op.startswith('buffer_store') or op.startswith('buffer_atomic'):
        d['kind'] = 'vm'; d['r'] = R(0) | R(1) | R(2) | R(3); d['store'] = R(0)
        if op.startswith('buffer_atomic') and 'sc0' in mods: d['w'] = R(0)
    elif op.startswith('buffer_'):
        d['kind'] = 'vm'
    elif op.startswith('v_'):
        d['kind'] = 'valu'
        if op.startswith('v_cmp'):
            d['w'] = R(0); d['r'] = R(1) | R(2)
        elif op.startswith('v_permlane') and 'swap' in op:
            d['w'] = R(0) | R(1); d['r'] = R(0) | R(1); d['perm'] = True
        else:
            d['w'] = R(0); d['r'] = set().union(*[R(i) for i in range(1, len(ops))]) if len(ops) > 1 else set()
            if op.startswith('v_fmac') or op.startswith('v_dot2c') or op.startswith('v_writelane') or 'dpp' in op: d['r'] |= R(0)
            if op.startswith('v_cndmask') and len(ops) == 3: d['r'] |= regs('vcc')
        d['trans'] = any(op.startswith(t) for t in TRANS)
        d['dpp'] = 'dpp' in op
        d['rdlane'] = op.startswith('v_readfirstlane') or op.startswith('v_readlane')
    elif op.startswith('s_'):
        d['kind'] = 'salu'
        if op in ('s_waitcnt', 's_barrier', 's_nop', 's_endpgm', 's_setprio', 's_sleep') or op.startswith('s_cbranch') or op == 's_branch': pass
        elif op.startswith('s_cmp'): d['r'] = R(0) | R(1)
        elif op.startswith('s_load') or op.startswith('s_mem'):
            d['kind'] = 'smem'; d['w'] = R(0); d['r'] = R(1)
        else:
            d['w'] = R(0); d['r'] = set().union(*[R(i) for i in range(1, len(ops))]) if len(ops) > 1 else set()
    return d

def check(lines, name=''):
    ins = [p for p in (parse(l) for l in lines) if p]
    errs = []
    pos = []; t = 0
    for d in ins:
        pos.append(t)
        t += (int(d['ops'][0], 0) + 1) if d['op'] == 's_nop' else 1
    lg = []; vm = []
    for i, d in enumerate(ins):
        if d['op'] == 's_waitcnt':
            m = re.search(r'lgkmcnt\((\d+)\)', d['line'])
            if m:
                n = int(m.group(1))
                if any(x[1] for x in lg) and n != 0: pass
                lg = lg[len(lg) - n:] if n < len(lg) else lg
                if n == 0: lg = []
            m = re.search(r'vmcnt\((\d+)\)', d['line'])
            if m:
                n = int(m.group(1))
                vm = vm[len(vm) - n:] if n < len(vm) else vm
                if n == 0: vm = []
            continue
        touched = d['r'] | d['w']
        for q, nm in ((lg, 'lgkm'), (vm, 'vm')):
            for (w, _, src) in q:
                if w & touched:
                    errs.append(f"{name}: {nm} pending dest {sorted(w & touched)[:3]} of [{src}] touched by [{d['line']}]")
        if d['kind'] in ('ds', 'smem'):
            lg.append((d['w'], d['kind'] == 'smem', d['line']))
            if len(lg) > 15 and False: errs.append(f"{name}: >15 lgkm outstanding at [{d['line']}]")
        if d['kind'] == 'vm':
            vm.append((d['w'], False, d['line']))
            if len(vm) > 63: errs.append(f"{name}: >63 vm outstanding at [{d['line']}]")
        j = i - 1
        while j >= 0 and pos[i] - pos[j] <= 24:
            p = ins[j]; dist = pos[i] - pos[j] - 1
            if p['op'] == 's_nop': j -= 1; continue
            need = 0; why = ''
            def req(n, w):
                nonlocal need, why
                if n > need: need, why = n, w
            if p['kind'] == 'mfma':
                big = {4: 8, 8: 12}[p['passes']]
                if d['kind'] == 'mfma':
                    if p['w'] & (d['A'] | d['B']): req(big, 'mfma D->AB')
                    if p['w'] & d['C'] and p['w'] != d['C']: req({4: 6, 8: 10}[p['passes']], 'mfma D->C overlap')
                    if p['w'] & d['w'] and not (p['w'] == d['C']): req(big, 'mfma WAW')
                elif d['kind'] in ('valu', 'ds', 'vm'):
                    if p['w'] & touched: req(big, 'mfma D->other')
                    if d['kind'] == 'valu' and p['C'] & d['w']: req({4: 3, 8: 7}[p['passes']], 'mfma C WAR')
            if p['kind'] == 'valu':
                vw = {x for x in p['w'] if x[0] != 's'}; sw = {x for x in p['w'] if x[0] == 's'}
                if d['kind'] == 'mfma' and vw & d['r']: req(2, 'valu->mfma')
                if d['kind'] == 'valu':
                    if p['trans'] and not d['trans'] and vw & d['r']: req(1, 'trans->valu')
                    if d.get('perm') and vw & d['r']: req(2, 'valu->permlane')
                    if d['dpp'] and vw & d['r']: req(2, 'valu->dpp')
                    if d['rdlane'] and vw & d['r']: req(1, 'valu->readlane')
                    if sw & d['r']: req(2, 'valu sgpr->valu')
                if d['kind'] == 'vm' and sw & d['r']: req(5, 'valu sgpr->vmem')
                if p['trans'] and d['kind'] in ('ds', 'vm') and vw & d['r']: req(1, 'trans->mem')
            if p['kind'] == 'salu' and ('s', 124) in p['w'] and d.get('dma'): req(1, 'm0->dma')
            if p.get('store') and len(p['store']) >= 3 and p['store'] & d['w']: req(2, 'store data WAR')
            if p['kind'] == 'ds' and p['op'].startswith('ds_write') and d['kind'] == 'valu' and False: pass
            if dist < need:
                errs.append(f"{name}: hazard {why}: need {need} have {dist}: [{p['line']}] -> [{d['line']}]")
            j -= 1
    return errs
```

```python
import sys, math
from asmlib import *
import hazard

NAME = "recurrent_scan__gqa_block_cached__dense_activation_relu__prompt"
OPT = dict(stamps=0, mimic_d=1, nsum=2, force_redo=0)
for x in sys.argv[2:]:
    k, v = x.split('='); OPT[k] = int(v)

a = Asm()
segs = []

S_W, S_G, S_R = 4, 5, 6
S_RET = 8
S_CNT, S_CSLOT, S_PSLOT, S_POFF, S_STA, S_STB = 10, 11, 12, 13, 14, 15
P_X, P_K, P_V, P_WQ, P_WO, P_W1, P_W2, P_WS, P_DBG, P_OUT = 16, 18, 20, 22, 24, 28, 30, 32, 34, 36
S_PLO, S_PHI = 38, 39
SRD_W, SRD_K, SRD_V, SRD_WS, SRD_X = 40, 44, 48, 52, 56
S_KOFF, S_VOFF, S_LOOP, S_KM0, S_VM0, S_PBASE, S_REDO = 60, 61, 62, 63, 64, 65, 66
S_SV_PSLOT, S_SV_POFF, S_KV0 = 67, 68, 69
S_T = 70
S_STAMP = 76

V_ACC, V_A, V_B = 0, 64, 96
V_S, V_P, V_NEGM, V_L, V_LS, V_ONES = 0, 64, 96, 112, 116, 124
V_H = 188
V_PROW, V_PSWZ, V_LANE = 220, 221, 222
V_KA, V_VA, V_KD, V_VD, V_PD, V_AB, V_AA, V_BA, V_L16, V_T0, V_T1 = 224, 228, 236, 240, 242, 244, 248, 252, 253, 254, 255
A_O, A_Q, A_K, A_V = 0, 128, 192, 224
RB = 65536
NS = 6
PART_KIND = 16 << 20
STAMP_OFF = 48 << 20

nstamp = [0]
def stamp():
    if OPT['stamps']:
        i = nstamp[0]; nstamp[0] += 1
        a(f"  s_memtime s[{S_STAMP+2*i}:{S_STAMP+2*i+1}]")

def mf(d, A, B, C, dt='v', at='v', bt='v'):
    c = '0' if C is None else f"{dt}[{C}:{C+3}]"
    return f"  v_mfma_f32_16x16x32_bf16 {dt}[{d}:{d+3}], {at}[{A}:{A+3}], {bt}[{B}:{B+3}], {c}"

def prod_m0():
    return [f"  s_mov_b32 m0, s{S_PSLOT}"]
def prod_dma(n):
    L = [f"  buffer_load_dwordx4 v{V_PD+(n&1)}, s[{SRD_W}:{SRD_W+3}], s{S_POFF} offen offset:{n*1024} lds",
         f"  s_add_u32 s{S_POFF}, s{S_POFF}, s{S_STA if n < 3 else S_STB}"]
    return L
def prod_adv():
    return [f"  s_add_u32 s{S_PSLOT}, s{S_PSLOT}, 16384",
            f"  s_cmp_eq_u32 s{S_PSLOT}, s{S_PHI}",
            f"  s_cselect_b32 s{S_PSLOT}, s{S_PLO}, s{S_PSLOT}"]
def produce_slot():
    for l in prod_m0() + prod_adv(): a(l)
    for n in range(4):
        for l in prod_dma(n): a(l)

def set_stream(kind, half=0):
    if kind == 'null':
        a(f"  s_mov_b32 s{SRD_W+2}, 0"); return
    ptr, size, stride = dict(w1=(P_W1, 512*1792*2, 3584), wq=(P_WQ, 512*4096*2, 8192), w2=(P_W2, 1792*512*2, 1024),
                             wo=(P_WO, 4096*512*2, 1024), v=(P_V, 8*2048*128*2, 0))[kind]
    a(f"  s_mov_b32 s{SRD_W}, s{ptr}")
    a(f"  s_mov_b32 s{SRD_W+1}, s{ptr+1}")
    a(f"  s_mov_b32 s{SRD_W+2}, {size}")
    if kind == 'v':
        a(f"  v_mov_b32 v{V_PD}, v{V_VD}")
        a(f"  v_mov_b32 v{V_PD+1}, v{V_VD+1}")
        a(f"  s_mov_b32 s{S_POFF}, s{S_KV0}")
        a(f"  s_mov_b32 s{S_STA}, 0")
        a(f"  s_mov_b32 s{S_STB}, 16384")
        return
    a(f"  s_mov_b32 s{S_T}, {stride}")
    a(f"  v_mad_u32_u24 v{V_PD}, v{V_PROW}, s{S_T}, v{V_PSWZ}")
    a(f"  s_mov_b32 s{S_STA}, {8*stride-1024}")
    a(f"  s_mov_b32 s{S_STB}, {8*stride+3072}")
    a(f"  v_mov_b32 v{V_PD+1}, v{V_PD}")
    if kind == 'w1':
        a(f"  s_mul_i32 s{S_POFF}, s{S_G}, 448")
        a(f"  s_lshl_b32 s{S_T}, s{S_W}, 7")
        a(f"  s_add_u32 s{S_POFF}, s{S_POFF}, s{S_T}")
    elif kind == 'wq':
        a(f"  s_lshl_b32 s{S_POFF}, s{S_G}, 10")
        a(f"  s_lshl_b32 s{S_T}, s{S_W}, 8")
        a(f"  s_add_u32 s{S_POFF}, s{S_POFF}, s{S_T}")
        if half: a(f"  s_add_u32 s{S_POFF}, s{S_POFF}, 128")
    else:
        rows = 224 if kind == 'w2' else 512
        a(f"  s_mul_i32 s{S_POFF}, s{S_G}, {rows*1024}")
        a(f"  s_lshl_b32 s{S_T}, s{S_W}, 8")
        a(f"  s_add_u32 s{S_POFF}, s{S_POFF}, s{S_T}")
        if half: a(f"  s_add_u32 s{S_POFF}, s{S_POFF}, 128")

def cons_adv():
    return [f"  s_add_u32 s{S_CSLOT}, s{S_CSLOT}, 16384",
            f"  s_cmp_eq_u32 s{S_CSLOT}, {NS*16384}",
            f"  s_cselect_b32 s{S_CSLOT}, 0, s{S_CSLOT}"]
def a_read(par, nt, rd):
    d = V_A + par*16 + nt*4 + rd*2
    return f"  ds_read_b64_tr_b16 v[{d}:{d+1}], v{V_AA+nt} offset:{rd*2048}"
def b_read(par, qt):
    d = V_B + par*16 + qt*4
    return f"  ds_read_b128 v[{d}:{d+3}], v{V_BA} offset:{qt*1024}"
def a_upd(nt):
    return f"  v_add_u32 v{V_AA+nt}, s{S_CSLOT}, v{V_AB+nt}"

def gemm_step(par, first):
    a("  s_waitcnt vmcnt(16) lgkmcnt(0)")
    nx = par ^ 1
    fill = [[] for _ in range(16)]
    for qt in range(4): fill[qt].append(b_read(nx, qt))
    ca = cons_adv()
    fill[0].append(ca[0]); fill[1].append(ca[1]); fill[1].append(ca[2])
    fill[3].append(f"  v_add_u32 v{V_BA}, 4096, v{V_BA}")
    for nt in range(4):
        fill[4+2*nt].append(a_read(nx, nt, 0))
        fill[5+2*nt].append(a_read(nx, nt, 1))
        fill[5+2*nt].append(a_upd(nt))
    fill[4] += prod_m0()
    pa = prod_adv()
    fill[6].append(pa[0]); fill[8].append(pa[1]); fill[8].append(pa[2])
    for n in range(4): fill[12+n] += prod_dma(n)
    for nt in range(4):
        for qt in range(4):
            acc = V_ACC + (nt*4+qt)*4
            a(mf(acc, V_A+par*16+nt*4, V_B+par*16+qt*4, None if first else acc))
            for l in fill[nt*4+qt]: a(l)

gpar = [0]
def gemm_call(n):
    a(f"  s_mov_b32 s{S_CNT}, {n}")
    a(f"  s_call_b64 s[{S_RET}:{S_RET+1}], L_gemm{gpar[0]}")
    gpar[0] ^= (n & 1)
def gemm_first():
    gemm_step(gpar[0], True)
    gpar[0] ^= 1
def b_reload():
    a("  s_waitcnt lgkmcnt(0)")
    a(f"  v_mov_b32 v{V_BA}, v{V_L16}")
    for qt in range(4): a(b_read(gpar[0], qt))
    a(f"  v_add_u32 v{V_BA}, 4096, v{V_BA}")
def a_first():
    for nt in range(4):
        for rd in range(2): a(a_read(gpar[0], nt, rd))
    for l in cons_adv(): a(l)
    for nt in range(4): a(a_upd(nt))

def store_partial(kind, half):
    a("  s_nop 7")
    a(f"  s_add_u32 s{S_T}, s{S_PBASE}, {kind*PART_KIND + half*8192}")
    a(f"  s_add_u32 s{S_T+1}, s{S_T}, 4096")
    for c in range(2):
        for qt in range(4):
            x = V_ACC + ((2*c)*4+qt)*4; y = V_ACC + ((2*c+1)*4+qt)*4
            d = 128 + (c*4+qt)*4
            a(f"  v_cvt_pk_bf16_f32 v{d}, v{x}, v{x+1}")
            a(f"  v_cvt_pk_bf16_f32 v{d+1}, v{x+2}, v{x+3}")
            a(f"  v_cvt_pk_bf16_f32 v{d+2}, v{y}, v{y+1}")
            a(f"  v_cvt_pk_bf16_f32 v{d+3}, v{y+2}, v{y+3}")
            a(f"  buffer_store_dwordx4 v[{d}:{d+3}], v{V_L16}, s[{SRD_WS}:{SRD_WS+3}], s{S_T+c} offen offset:{qt*1024}")

def kslot(t): return (t + 2) & 3
def k_read(unit, kt, ds, dst=A_K):
    off = kslot(unit >> 1)*16384 + (unit & 1)*8192 + kt*4096
    d = dst + (kt*4+ds)*4
    return f"  ds_read_b128 a[{d}:{d+3}], v{V_KA+ds} offset:{off}"
def v_read(unit, dt, rd, dst=A_V):
    off = ((unit >> 1) & 3)*16384 + (unit & 1)*8192 + rd*4096
    d = dst + dt*4 + rd*2
    return f"  ds_read_b64_tr_b16 a[{d}:{d+1}], v{V_VA+dt} offset:{off}"
def k_dma(n):
    return f"  buffer_load_dwordx4 v{V_KD+n}, s[{SRD_K}:{SRD_K+3}], s{S_KOFF} offen offset:{n*1024} lds"
def v_dma(n):
    return f"  buffer_load_dwordx4 v{V_VD+(n&1)}, s[{SRD_V}:{SRD_V+3}], s{S_VOFF} offen offset:{n*1024} lds"
def k_tile_dma(t):
    a(f"  s_add_u32 m0, s{S_KM0}, {kslot(t)*16384}")
    a(f"  s_nop 0")
    for n in range(4): a(k_dma(n))
    a(f"  s_add_u32 s{S_KOFF}, s{S_KOFF}, 16384")
def v_tile_dma(t):
    a(f"  s_add_u32 m0, s{S_VM0}, {(t&3)*16384}")
    a(f"  s_nop 0")
    for n in range(4): a(v_dma(n))
    a(f"  s_add_u32 s{S_VOFF}, s{S_VOFF}, 16384")

NSUM = OPT['nsum']
SUMQT = {0: [], 2: [2, 3], 4: [0, 1, 2, 3]}[NSUM]
TORDER = [(0,0),(0,2),(0,1),(0,3),(1,0),(1,2),(1,1),(1,3)]
def s_reg(b, kt, qt): return V_S + b*32 + (kt*4+qt)*4
def qk_mfmas(b, zero=False):
    L = []
    for kt, qt in TORDER:
        d = s_reg(b, kt, qt)
        for ds in range(4):
            C = d if ds else (None if zero else V_NEGM + qt*4)
            L.append(mf(d, A_K+(kt*4+ds)*4, A_Q+(qt*4+ds)*4, C, 'v', 'a', 'a'))
    return L
def ls_reg(qt):
    return V_LS + SUMQT.index(qt)*4 if NSUM == 2 else 128 + qt*4
def pv_mfmas(b, src=A_V):
    L = []
    for dt in range(8):
        for qt in range(4):
            d = A_O + (dt*4+qt)*4
            L.append(mf(d, src+dt*4, V_P+b*16+qt*4, d, 'a', 'a', 'v'))
    return L
def sum_mfmas(b):
    return [mf(ls_reg(qt), V_ONES, V_P+b*16+qt*4, ls_reg(qt)) for qt in SUMQT]

def period(p, qk=True, pv=True, last=False):
    b = p & 1
    M = (qk_mfmas(b ^ 1) if qk else [None]*32) + ((pv_mfmas(b ^ 1) + sum_mfmas(b ^ 1)) if pv else [None]*(32+NSUM))
    ng = len(M)
    pre = [[] for _ in range(ng)]
    mem = [None]*ng
    cap = [0]*ng
    exps = []
    for kt, qt in TORDER:
        for r in range(4): exps.append((kt, qt, r))
    for g in range(ng):
        cap[g] = 0 if (g < 64 and g % 2 == 0) else 2
    if pv:
        for i in range(16):
            mem[2*i+1] = v_read(p-1, i >> 1, i & 1); cap[2*i+1] = 1
    kpos = [0,1,2,4,5,6,8,9]; dpos = [3,7,11,15]
    if last:
        for i in range(16):
            mem[33+2*i] = v_read(p, i >> 1, i & 1, A_K); cap[33+2*i] = 1
    else:
        for i, j in enumerate(kpos):
            mem[33+2*j] = k_read(p+2, i >> 2, i & 3); cap[33+2*j] = 1
        T = p >> 1
        for n, j in enumerate(dpos):
            mem[33+2*j] = k_dma(n) if b == 0 else v_dma(n); cap[33+2*j] = 0
        if b == 0:
            pre[34].append(f"  s_add_u32 m0, s{S_KM0}, {kslot(T)*16384}")
            pre[ng-1].append(f"  s_add_u32 s{S_KOFF}, s{S_KOFF}, 16384")
        else:
            pre[34].append(f"  s_add_u32 m0, s{S_VM0}, {((T+2)&3)*16384}")
            pre[ng-1].append(f"  s_add_u32 s{S_VOFF}, s{S_VOFF}, 16384")
    if pv:
        if qk:
            pre[30].append("  s_waitcnt lgkmcnt(3)")
            nk = sum(1 for g in range(32, 54) if mem[g] and mem[g].lstrip().startswith('ds_'))
            pre[54].append(f"  s_waitcnt lgkmcnt({nk})")
    q = []
    for g in range(ng):
        if g == 32 and pv and not qk: a("  s_waitcnt lgkmcnt(0)")
        if M[g]: a(M[g])
        for l in pre[g]: a(l)
        if mem[g]: a(mem[g])
        if g < 64 and g % 2 == 0:
            kt, qt, r = exps[g//2]
            s = s_reg(b, kt, qt) + r
            a(f"  v_exp_f32 v{s}, v{s}")
            if not M[g+1] and not mem[g+1] and not pre[g+1] and not q: a("  s_nop 0")
            if qt not in SUMQT: q.append(f"  v_add_f32 v{V_L+qt}, v{V_L+qt}, v{s}")
            if r & 1: q.append(f"  v_cvt_pk_bf16_f32 v{V_P+b*16+qt*4+kt*2+(r>>1)}, v{s-1}, v{s}")
        else:
            n = cap[g] if g < ng-1 else 99
            while n > 0 and q:
                a(q.pop(0)); n -= 1
    assert not q

def barrier_T():
    a("  s_waitcnt vmcnt(8) lgkmcnt(0)")
    a("  s_barrier")

def xlane_reduce(reg, op, tmp):
    a(f"  v_mov_b32 v{tmp}, v{reg}")
    a("  s_nop 1")
    a(f"  v_permlane32_swap_b32 v{reg}, v{tmp}")
    a(f"  {op} v{reg}, v{reg}, v{tmp}")
    a(f"  v_mov_b32 v{tmp}, v{reg}")
    a("  s_nop 1")
    a(f"  v_permlane16_swap_b32 v{reg}, v{tmp}")
    a(f"  {op} v{reg}, v{reg}, v{tmp}")

hdr = open('cdna_kernels/%s.s.ref' % NAME).read().split('\n')
for l in hdr:
    if l.startswith('; Override') or '@launch' in l or l.startswith('; grid=ceil'): continue
    if l.startswith(';'): a(l)
    else: break
a("; @launch kernel=main_kernel grid=(256,1,1) block=(256,1,1) lds=163840")
a("; @launch kernel=final_kernel grid=(256,1,1) block=(256,1,1) lds=0")
a('.amdgcn_target "amdgcn-amd-amdhsa--gfx950"')
a(".text")
a(kernel_header("main_kernel"))
i0 = len(a.lines)
a(f"""
  s_cmp_ge_u32 s2, 256
  s_cbranch_scc1 L_end
  s_load_dwordx16 s[16:31], s[0:1], 0
  s_load_dwordx2 s[{P_WS}:{P_WS+1}], s[0:1], 80
  v_lshrrev_b32 v1, 6, v0
  v_and_b32 v{V_LANE}, 63, v0
  s_and_b32 s{S_G}, s2, 7
  v_readfirstlane_b32 s{S_W}, v1
  s_lshr_b32 s{S_R}, s2, 3
  s_mov_b32 s{S_REDO}, 0
""")
stamp()
L = V_LANE
a(f"""
  v_lshlrev_b32 v{V_L16}, 4, v{L}
  v_lshrrev_b32 v{V_PROW}, 3, v{L}
  v_lshrrev_b32 v1, 4, v{L}            ; G
  v_lshlrev_b32 v2, 1, v1              ; G<<1
  v_and_b32 v3, 7, v{L}
  v_xor_b32 v3, v3, v2
  v_lshlrev_b32 v{V_PSWZ}, 4, v3
  s_lshl_b32 s{S_T}, s{S_R}, 16
  s_lshl_b32 s{S_T+1}, s{S_W}, 14
  s_add_u32 s{S_T}, s{S_T}, s{S_T+1}
  v_lshrrev_b32 v4, 2, v{L}
  v_lshlrev_b32 v4, 10, v4
  v_and_b32 v5, 3, v{L}
  v_lshl_add_u32 v{V_T0}, v5, 4, v4
  s_lshl_b32 s{S_KM0}, s{S_W}, 12
  s_add_u32 s{S_VM0}, s{S_KM0}, {RB}
  s_mov_b32 s{S_PLO}, s{S_VM0}
  s_add_u32 s{S_PHI}, s{S_PLO}, {NS*16384}
  s_add_u32 s{S_PSLOT}, s{S_PLO}, {4*16384}
  s_mov_b32 s{S_CSLOT}, {4*16384}
  s_waitcnt lgkmcnt(0)
  s_mov_b32 s{SRD_X}, s{P_X}
  s_mov_b32 s{SRD_X+1}, s{P_X+1}
  s_mov_b32 s{SRD_X+2}, {2048*512*2}
  s_mov_b32 s{SRD_X+3}, 0x20000
  s_mov_b32 s{SRD_W+3}, 0x20000
""")
for j in range(16):
    a(f"  buffer_load_dwordx4 v[{4*j+64}:{4*j+67}], v{V_T0}, s[{SRD_X}:{SRD_X+3}], s{S_T} offen offset:{j*64}")
set_stream('w1')
a("  s_nop 0")
for s in range(NS): produce_slot()
a(f"""
  s_mov_b32 s{SRD_K}, s{P_K}
  s_mov_b32 s{SRD_K+1}, s{P_K+1}
  s_add_u32 s{S_T}, s{S_G}, 1
  s_lshl_b32 s{SRD_K+2}, s{S_T}, 19
  s_mov_b32 s{SRD_K+3}, 0x20000
  s_mov_b32 s{SRD_V}, s{P_V}
  s_mov_b32 s{SRD_V+1}, s{P_V+1}
  s_mov_b32 s{SRD_V+2}, s{SRD_K+2}
  s_mov_b32 s{SRD_V+3}, 0x20000
  s_mov_b32 s{SRD_WS}, s{P_WS}
  s_mov_b32 s{SRD_WS+1}, s{P_WS+1}
  s_mov_b32 s{SRD_WS+2}, {64<<20}
  s_mov_b32 s{SRD_WS+3}, 0x20000
  s_lshl_b32 s{S_KV0}, s{S_G}, 19
  s_add_u32 s{S_KV0}, s{S_KV0}, s{S_KM0}
  s_mov_b32 s{S_KOFF}, s{S_KV0}
  s_lshl_b32 s{S_PBASE}, s2, 16
  s_lshl_b32 s{S_T}, s{S_W}, 14
  s_add_u32 s{S_PBASE}, s{S_PBASE}, s{S_T}
  ; v1 = G, v6 = i = l&15
  v_and_b32 v6, 15, v{L}
  v_xor_b32 v7, v6, v1
""")
for n in range(4):
    a(f"  v_xor_b32 v8, {4*n}, v7")
    a(f"  v_lshlrev_b32 v8, 4, v8")
    a(f"  v_lshl_add_u32 v{V_KD+n}, v1, 8, v8")
for n in range(2):
    a(f"  v_xor_b32 v8, v6, v2")
    if n: a(f"  v_xor_b32 v8, 8, v8")
    a(f"  v_lshlrev_b32 v8, 4, v8")
    a(f"  v_lshl_add_u32 v{V_VD+n}, v1, 8, v8")
a(f"""
  v_and_b32 v8, 1, v1
  v_lshlrev_b32 v8, 1, v8
  v_lshrrev_b32 v9, 1, v1
  v_or_b32 v8, v8, v9
  v_xor_b32 v8, v8, v6
""")
for ds in range(4):
    a(f"  v_xor_b32 v9, {4*ds}, v8")
    a(f"  v_lshlrev_b32 v9, 4, v9")
    a(f"  v_lshl_add_u32 v{V_KA+ds}, v6, 8, v9")
a(f"""
  v_lshrrev_b32 v8, 2, v6
  v_lshl_add_u32 v8, v1, 2, v8         ; row
  v_and_b32 v9, 3, v6
  v_lshlrev_b32 v9, 3, v9              ; (i&3)*8
  v_lshl_add_u32 v10, v8, 8, v9
  v_add_u32 v10, {RB}, v10
  v_and_b32 v11, 7, v8
""")
for dt in range(8):
    a(f"  v_xor_b32 v12, {dt}, v11")
    a(f"  v_lshl_add_u32 v{V_VA+dt}, v12, 5, v10")
a(f"""
  v_lshl_add_u32 v10, v8, 7, v9
  v_add_u32 v10, s{S_VM0}, v10
  v_bfe_u32 v11, v8, 1, 2
""")
for nt in range(4):
    a(f"  v_xor_b32 v12, {nt}, v11")
    a(f"  v_lshl_add_u32 v{V_AB+nt}, v12, 5, v10")
    a(f"  v_add_u32 v{V_AA+nt}, s{S_CSLOT}, v{V_AB+nt}")
a(f"""
  v_lshrrev_b32 v8, 2, v{L}
  v_and_b32 v9, 1, v{L}
  v_lshl_add_u32 v8, v9, 5, v8
  v_lshlrev_b32 v8, 4, v8
  v_bfe_u32 v9, v{L}, 1, 1
  v_lshl_add_u32 v8, v9, 3, v8
  s_lshl_b32 s{S_T}, s{S_W}, 10
  v_add_u32 v{V_T1}, s{S_T}, v8
""")
def dreg(e): return e if e < 64 else 64 + e
a(f"  s_waitcnt vmcnt({4*NS})")
stamp()
SUM = 192
for i in range(64):
    a(f"  v_lshlrev_b32 v{dreg(2*i)}, 16, v{64+i}")
    a(f"  v_and_b32 v{dreg(2*i+1)}, 0xffff0000, v{64+i}")
for i in range(64):
    e = dreg(2*i)
    if i < 2: a(f"  v_pk_add_f32 v[{SUM+2*i}:{SUM+2*i+1}], v[{e}:{e+1}], v[{dreg(2*i+4)}:{dreg(2*i+4)+1}]")
    elif i >= 4: a(f"  v_pk_add_f32 v[{SUM+2*(i&1)}:{SUM+2*(i&1)+1}], v[{SUM+2*(i&1)}:{SUM+2*(i&1)+1}], v[{e}:{e+1}]")
def quad_reduce(r):
    a(f"  v_add_f32 v{r}, v{r}, v{r+1}")
    a(f"  v_add_f32 v{r+2}, v{r+2}, v{r+3}")
    a(f"  v_add_f32 v{r}, v{r}, v{r+2}")
    a("  s_nop 1")
    a(f"  v_add_f32_dpp v{r}, v{r}, v{r} quad_perm:[1,0,3,2] row_mask:0xf bank_mask:0xf")
    a("  s_nop 1")
    a(f"  v_add_f32_dpp v{r}, v{r}, v{r} quad_perm:[2,3,0,1] row_mask:0xf bank_mask:0xf")
quad_reduce(SUM)
MU, MB, RS = 196, 198, 200
a(f"""
  v_mul_f32 v{MU}, {1.0/512}, v{SUM}
  v_cvt_pk_bf16_f32 v{MB}, v{MU}, v{MU}
  v_and_b32 v{MB}, 0xffff0000, v{MB}
  v_sub_f32 v{MU}, v{MU}, v{MB}
  v_xor_b32 v{MB}, 0x80000000, v{MB}
  v_mov_b32 v{MB+1}, v{MB}
""".replace(str(1.0/512), '0x3b000000'))
for i in range(64):
    e = dreg(2*i)
    a(f"  v_pk_add_f32 v[{e}:{e+1}], v[{e}:{e+1}], v[{MB}:{MB+1}]")
for i in range(64):
    e = dreg(2*i); s = SUM + 2*(i & 1)
    if i < 2: a(f"  v_pk_mul_f32 v[{s}:{s+1}], v[{e}:{e+1}], v[{e}:{e+1}]")
    else: a(f"  v_pk_fma_f32 v[{s}:{s+1}], v[{e}:{e+1}], v[{e}:{e+1}], v[{s}:{s+1}]")
quad_reduce(SUM)
a(f"""
  v_mul_f32 v{SUM}, 0x3b000000, v{SUM}
  v_fma_f32 v{SUM}, -v{MU}, v{MU}, v{SUM}
  v_max_f32 v{SUM}, 0, v{SUM}
  v_cvt_pk_bf16_f32 v{SUM}, v{SUM}, v{SUM}
  v_and_b32 v{SUM}, 0xffff0000, v{SUM}
  v_add_f32 v{SUM}, 0x3727c5ac, v{SUM}
  v_cvt_pk_bf16_f32 v{SUM}, v{SUM}, v{SUM}
  v_and_b32 v{SUM}, 0xffff0000, v{SUM}
  v_sqrt_f32 v{SUM}, v{SUM}
  s_nop 0
  v_cvt_pk_bf16_f32 v{SUM}, v{SUM}, v{SUM}
  v_and_b32 v{SUM}, 0xffff0000, v{SUM}
  v_rcp_f32 v{RS}, v{SUM}
  s_nop 0
  v_mov_b32 v{RS+1}, v{RS}
""")
for j in range(16):
    for k in range(4):
        i = 4*j + k; e = dreg(2*i)
        if OPT['mimic_d']:
            a(f"  v_cvt_pk_bf16_f32 v{64+i}, v{e}, v{e+1}")
            a(f"  v_lshlrev_b32 v{e}, 16, v{64+i}")
            a(f"  v_and_b32 v{e+1}, 0xffff0000, v{64+i}")
        a(f"  v_pk_mul_f32 v[{e}:{e+1}], v[{e}:{e+1}], v[{RS}:{RS+1}]")
        a(f"  v_cvt_pk_bf16_f32 v{64+i}, v{e}, v{e+1}")
    a(f"  ds_write_b64 v{V_T1}, v[{64+4*j}:{65+4*j}] offset:{j*4096}")
    a(f"  ds_write_b64 v{V_T1}, v[{66+4*j}:{67+4*j}] offset:{j*4096+256}")
a(f"  s_waitcnt vmcnt({4*(NS-1)}) lgkmcnt(0)")
a("  s_barrier")
stamp()
a_first()
b_reload()
gemm_first(); gemm_call(9); set_stream('wq', 0); gemm_call(6)
a("  s_nop 7")
for c in range(2):
    for qt in range(4):
        x = V_ACC + ((2*c)*4+qt)*4; y = V_ACC + ((2*c+1)*4+qt)*4
        d = V_H + (c*4+qt)*4
        for k, s in enumerate((x, x+2, y, y+2)):
            a(f"  v_cvt_pk_bf16_f32 v{d+k}, v{s}, v{s+1}")
        for k in range(4):
            a(f"  v_pk_max_i16 v{d+k}, v{d+k}, 0")
stamp()
CS = (128 ** -0.5) * math.log2(math.e)
import struct
CSH = struct.unpack('<I', struct.pack('<f', CS))[0]
for half in range(2):
    b_reload()
    gemm_first(); gemm_call(9)
    if half == 0: set_stream('wq', 1)
    else: set_stream('w2', 0)
    gemm_call(6)
    a("  s_nop 7")
    a(f"  s_mov_b32 s{S_T}, {CSH:#x}")
    for c in range(2):
        for qt in range(4):
            x = V_ACC + ((2*c)*4+qt)*4; y = V_ACC + ((2*c+1)*4+qt)*4
            for s in list(range(x, x+4)) + list(range(y, y+4)):
                a(f"  v_mul_f32 v{s}, s{S_T}, v{s}")
            d = 128 + (c*4+qt)*4
            for k, s in enumerate((x, x+2, y, y+2)):
                a(f"  v_cvt_pk_bf16_f32 v{d+k}, v{s}, v{s+1}")
    a("  s_nop 0")
    for c in range(2):
        for qt in range(4):
            d = 128 + (c*4+qt)*4
            a(f"  v_permlane16_swap_b32 v{d}, v{d+2}")
            a(f"  v_permlane16_swap_b32 v{d+1}, v{d+3}")
    for c in range(2):
        for qt in range(4):
            d = 128 + (c*4+qt)*4
            for k in range(4):
                a(f"  v_accvgpr_write_b32 a{A_Q+(qt*4+2*half+c)*4+k}, v{d+k}")
stamp()
a("  s_waitcnt lgkmcnt(0)")
a("  s_barrier")
a(f"  s_lshl_b32 s{S_T}, s{S_W}, 13")
a(f"  v_add_u32 v{V_T0}, s{S_T}, v{V_L16}")
for c in range(2):
    for qt in range(4):
        d = V_H + (c*4+qt)*4
        a(f"  ds_write_b128 v{V_T0}, v[{d}:{d+3}] offset:{(c*4+qt)*1024}")
k_tile_dma(0); k_tile_dma(1)
a("  s_waitcnt lgkmcnt(0)")
a("  s_barrier")
b_reload()
gemm_first(); set_stream('w2', 1); gemm_call(6)
store_partial(0, 0)
b_reload()
gemm_first(); set_stream('v'); gemm_call(4); set_stream('wo', 0); gemm_call(2)
a(f"  s_mov_b32 s{S_SV_PSLOT}, s{S_PSLOT}")
a(f"  s_mov_b32 s{S_SV_POFF}, s{S_POFF}")
a("  s_waitcnt lgkmcnt(0)")
a("  s_barrier")
k_tile_dma(2); k_tile_dma(3)
for i in range(8): a(k_read(0, i >> 2, i & 3))
store_partial(0, 1)
stamp()
a.label("L_attn")
a(f"  s_add_u32 s{S_VOFF}, s{S_KV0}, {2*16384}")
for i in range(128): a(f"  v_accvgpr_write_b32 a{A_O+i}, 0")
for i in range(12): a(f"  v_mov_b32 v{V_L+i}, 0")
if NSUM == 4:
    for i in range(16): a(f"  v_mov_b32 v{128+i}, 0")
a(f"  v_and_b32 v{V_T0}, 3, v{V_LANE}")
a(f"  v_cmp_eq_u32 vcc, 0, v{V_T0}")
a(f"  v_mov_b32 v{V_T0}, 0x3f803f80")
a("  s_nop 0")
a(f"  v_cndmask_b32 v{V_ONES}, 0, v{V_T0}, vcc")
for i in range(1, 4): a(f"  v_mov_b32 v{V_ONES+i}, v{V_ONES}")
a("  s_waitcnt lgkmcnt(0)")
for l in qk_mfmas(0, zero=True): a(l)
for i in range(8): a(k_read(1, i >> 2, i & 3))
a(f"  s_cmp_lg_u32 s{S_REDO}, 0")
a("  s_cbranch_scc1 L_havemax")
for qt in range(4):
    x = s_reg(0, 0, qt); y = s_reg(0, 1, qt); m = V_NEGM + qt*4
    a(f"  v_max3_f32 v{m}, v{x}, v{x+1}, v{x+2}")
    a(f"  v_max3_f32 v{m+1}, v{x+3}, v{y}, v{y+1}")
    a(f"  v_max3_f32 v{m}, v{m}, v{y+2}, v{y+3}")
    a(f"  v_max_f32 v{m}, v{m}, v{m+1}")
    xlane_reduce(m, 'v_max_f32', m+1)
    a(f"  v_xor_b32 v{m}, 0x80000000, v{m}")
    for k in range(1, 4): a(f"  v_mov_b32 v{m+k}, v{m}")
a.label("L_havemax")
a("  s_nop 7")
for kt in range(2):
    for qt in range(4):
        for r in range(4):
            s = s_reg(0, kt, qt) + r
            a(f"  v_add_f32 v{s}, v{s}, v{V_NEGM+qt*4}")
a("  s_waitcnt lgkmcnt(0)")
a("  s_barrier")
period(0, pv=False)
a(f"  s_mov_b32 s{S_LOOP}, 8")
a("  s_branch L_p1")
segs.append(('pre', i0, len(a.lines)))
a(".p2align 6")
il = len(a.lines)
a.label("L_loop")
for p in range(8, 16):
    if p == 9: a.label("L_p1")
    if p % 2 == 0: barrier_T()
    else: a("  s_waitcnt lgkmcnt(0)")
    period(p)
    if p == 14:
        a(f"  s_sub_u32 s{S_LOOP}, s{S_LOOP}, 1")
        a(f"  s_cmp_eq_u32 s{S_LOOP}, 0")
        a("  s_cbranch_scc1 L_tail")
        itail = len(a.lines)
a("  s_branch L_loop")
segs.append(('loop2', il, len(a.lines)))
it = len(a.lines)
a.label("L_tail")
a("  s_waitcnt lgkmcnt(0)")
produce_slot(); produce_slot()
period(63, qk=False, last=True)
a("  s_waitcnt vmcnt(8) lgkmcnt(0)")
a("  s_barrier")
M = pv_mfmas(1, A_K) + sum_mfmas(1)
fl = prod_m0() + prod_adv()
for n in range(4): fl += prod_dma(n)
for g, l in enumerate(M):
    a(l)
    if g < len(fl): a(fl[g])
stamp()
for qt in range(4):
    if qt in SUMQT: continue
    xlane_reduce(V_L+qt, 'v_add_f32', V_T0)
a("  s_nop 7")
for qt in SUMQT: a(f"  v_mov_b32 v{V_L+qt}, v{ls_reg(qt)}")
a(f"  s_mov_b32 s{S_T}, {0x53800000 if not OPT['force_redo'] else 0x3f000000:#x}")
a(f"  v_cmp_ngt_f32 vcc, s{S_T}, v{V_L}")
for qt in range(1, 4):
    a(f"  v_cmp_ngt_f32 s[{S_T+2}:{S_T+3}], s{S_T}, v{V_L+qt}")
    a(f"  s_or_b64 vcc, vcc, s[{S_T+2}:{S_T+3}]")
a(f"  s_cmp_lg_u64 vcc, 0")
a(f"  s_cselect_b32 s{S_T}, 1, 0")
a(f"  s_lshl_b32 s{S_T+1}, s{S_W}, 2")
a(f"  s_add_u32 s{S_T+1}, s{S_T+1}, {RB+3*16384}")
a(f"  v_and_b32 v{V_T0}, 3, v{V_LANE}")
a(f"  v_lshlrev_b32 v{V_T0}, 12, v{V_T0}")
a(f"  v_add_u32 v{V_T0}, s{S_T+1}, v{V_T0}")
a(f"  v_mov_b32 v{V_T1}, s{S_T}")
a(f"  ds_write_b32 v{V_T0}, v{V_T1}")
for qt in range(4):
    a(f"  v_rcp_f32 v{V_NEGM+2*qt}, v{V_L+qt}")
a("  s_nop 0")
for qt in range(4):
    a(f"  v_mov_b32 v{V_NEGM+2*qt+1}, v{V_NEGM+2*qt}")
a(f"  s_lshl_b32 s{S_T}, s{S_W}, 14")
a(f"  v_add_u32 v{V_T0}, s{S_T}, v{V_L16}")
for c in range(4):
    for qt in range(4):
        t = ((c*4+qt) & 3) * 12
        for k in range(4): a(f"  v_accvgpr_read_b32 v{t+k}, a{A_O+((2*c)*4+qt)*4+k}")
        for k in range(4): a(f"  v_accvgpr_read_b32 v{t+4+k}, a{A_O+((2*c+1)*4+qt)*4+k}")
        for k in range(4): a(f"  v_pk_mul_f32 v[{t+2*k}:{t+2*k+1}], v[{t+2*k}:{t+2*k+1}], v[{V_NEGM+2*qt}:{V_NEGM+2*qt+1}]")
        for k in range(4): a(f"  v_cvt_pk_bf16_f32 v{t+8+k}, v{t+2*k}, v{t+2*k+1}")
        a(f"  ds_write_b128 v{V_T0}, v[{t+8}:{t+11}] offset:{(c*4+qt)*1024}")
a("  s_waitcnt lgkmcnt(0)")
a("  s_barrier")
a(f"  s_add_u32 s{S_T}, s{S_VM0}, {3*16384}")
a(f"  v_mov_b32 v{V_T0}, s{S_T}")
a(f"  ds_read_b128 v[0:3], v{V_T0}")
a(f"  s_mov_b32 s{S_CSLOT}, {4*16384}")
for nt in range(4): a(a_upd(nt))
gpar[0] = 0
a_first()
a("  s_waitcnt lgkmcnt(8)")
a("  v_or_b32 v0, v0, v1")
a("  v_or3_b32 v0, v0, v2, v3")
a("  s_nop 0")
a(f"  v_readfirstlane_b32 s{S_T}, v0")
a(f"  s_andn2_b32 s{S_T}, s{S_T}, s{S_REDO}")
a("  s_cbranch_scc1 L_redo")
produce_slot()
stamp()
b_reload()
gemm_first(); gemm_call(9); set_stream('wo', 1); gemm_call(6)
store_partial(1, 0)
b_reload()
gemm_first(); gemm_call(9); set_stream('null'); gemm_call(6)
store_partial(1, 1)
stamp()
if OPT['stamps']:
    a("  s_waitcnt vmcnt(0)")
    stamp()
    a(f"  s_memrealtime s[{S_T}:{S_T+1}]")
    a("  s_waitcnt lgkmcnt(0)")
    n = nstamp[0]
    for i in range(n):
        a(f"  v_writelane_b32 v0, s{S_STAMP+2*i}, {i}")
    a(f"  v_writelane_b32 v0, s{S_T}, 15")
    a(f"  s_lshl_b32 s{S_T}, s2, 2")
    a(f"  s_add_u32 s{S_T}, s{S_T}, s{S_W}")
    a(f"  s_lshl_b32 s{S_T}, s{S_T}, 6")
    a(f"  s_add_u32 s{S_T}, s{S_T}, {STAMP_OFF}")
    a(f"  v_lshlrev_b32 v1, 2, v{V_LANE}")
    a(f"  v_cmp_gt_u32 vcc, 16, v{V_LANE}")
    a(f"  s_and_saveexec_b64 s[{S_T+2}:{S_T+3}], vcc")
    a(f"  buffer_store_dword v0, v1, s[{SRD_WS}:{SRD_WS+3}], s{S_T} offen")
a.label("L_end")
a("  s_endpgm")
segs.append(('tail', 'tailjoin', (il, itail, it, len(a.lines))))
ir = len(a.lines)
a.label("L_redo")
a(f"  s_mov_b32 s{S_REDO}, 1")
a(f"  s_mov_b32 s{S_KOFF}, s{S_KV0}")
a(f"  s_mov_b32 s{S_LOOP}, 32")
a(f"  v_mov_b32 v{V_T0}, 0xff800000")
for qt in range(4): a(f"  v_mov_b32 v{V_NEGM+qt*4}, v{V_T0}")
a.label("L_redo_loop")
a("  s_waitcnt vmcnt(0) lgkmcnt(0)")
a("  s_barrier")
k_tile_dma(0)
a("  s_waitcnt vmcnt(0)")
a("  s_barrier")
for u in range(2):
    for i in range(8): a(k_read(u, i >> 2, i & 3))
    a("  s_waitcnt lgkmcnt(0)")
    for l in qk_mfmas(0, zero=True): a(l)
    a("  s_nop 7")
    for qt in range(4):
        m = V_NEGM + qt*4
        for kt in range(2):
            x = s_reg(0, kt, qt)
            a(f"  v_max3_f32 v{m}, v{x}, v{x+1}, v{m}")
            a(f"  v_max3_f32 v{m}, v{x+2}, v{x+3}, v{m}")
a(f"  s_sub_u32 s{S_LOOP}, s{S_LOOP}, 1")
a(f"  s_cmp_lg_u32 s{S_LOOP}, 0")
a("  s_cbranch_scc1 L_redo_loop")
for qt in range(4):
    m = V_NEGM + qt*4
    xlane_reduce(m, 'v_max_f32', m+1)
    a(f"  v_xor_b32 v{m}, 0x80000000, v{m}")
    for k in range(1, 4): a(f"  v_mov_b32 v{m+k}, v{m}")
a("  s_barrier")
a(f"  s_mov_b32 s{S_KOFF}, s{S_KV0}")
a(f"  s_mov_b32 s{S_VOFF}, s{S_KV0}")
for t in range(4): k_tile_dma(t)
for t in range(2): v_tile_dma(t)
a(f"  s_mov_b32 s{S_PSLOT}, s{S_SV_PSLOT}")
a(f"  s_mov_b32 s{S_POFF}, s{S_SV_POFF}")
a("  s_waitcnt vmcnt(0)")
a("  s_barrier")
for i in range(8): a(k_read(0, i >> 2, i & 3))
a("  s_branch L_attn")
segs.append(('redo', ir, len(a.lines)))
a(".p2align 6")
ig = len(a.lines)
for par in range(2):
    a.label(f"L_gemm{par}")
    gemm_step(par, False)
    a(f"  s_sub_u32 s{S_CNT}, s{S_CNT}, 1")
    a(f"  s_cmp_eq_u32 s{S_CNT}, 0")
    if par == 0: a("  s_cbranch_scc1 L_gemm_ret")
    else: a("  s_cbranch_scc0 L_gemm0")
a.label("L_gemm_ret")
a(f"  s_setpc_b64 s[{S_RET}:{S_RET+1}]")
segs.append(('gemm2', ig, len(a.lines)))

a(kernel_header("final_kernel"))
if_ = len(a.lines)
a(f"""
  s_cmp_ge_u32 s2, 256
  s_cbranch_scc1 L_fend
  s_load_dwordx2 s[4:5], s[0:1], 0
  s_load_dwordx2 s[6:7], s[0:1], 64
  s_load_dwordx2 s[8:9], s[0:1], 80
  s_and_b32 s3, s2, 7            ; gd
  s_lshr_b32 s10, s2, 3          ; r
  v_lshlrev_b32 v1, 4, v0
  s_lshl_b32 s11, s10, 19
  s_lshl_b32 s24, s3, 13
  s_add_u32 s11, s11, s24        ; r*512K + gd*8K
  v_lshrrev_b32 v2, 6, v0
  v_and_b32 v3, 15, v0
  v_lshl_add_u32 v2, v2, 4, v3
  v_lshlrev_b32 v2, 10, v2
  v_bfe_u32 v3, v0, 4, 2
  v_lshl_add_u32 v2, v3, 3, v2
  s_lshl_b32 s25, s10, 16
  s_lshl_b32 s24, s3, 7
  s_add_u32 s25, s25, s24
  s_waitcnt lgkmcnt(0)
  s_mov_b32 s12, s8
  s_mov_b32 s13, s9
  s_mov_b32 s14, {64<<20}
  s_mov_b32 s15, 0x20000
  s_mov_b32 s16, s4
  s_mov_b32 s17, s5
  s_mov_b32 s18, {2048*512*2}
  s_mov_b32 s19, 0x20000
  s_mov_b32 s20, s6
  s_mov_b32 s21, s7
  s_mov_b32 s22, {2048*512*2}
  s_mov_b32 s23, 0x20000
""")
for i in range(2):
    for k in range(2):
        for s in range(8):
            a(f"  s_add_u32 s26, s11, {k*PART_KIND + s*65536 + i*4096}")
            d = 16 + ((i*2+k)*8+s)*4
            a(f"  buffer_load_dwordx4 v[{d}:{d+3}], v1, s[12:15], s26 offen")
    a(f"  buffer_load_dwordx2 v[{4+4*i}:{5+4*i}], v2, s[16:19], s25 offen offset:{i*64}")
    a(f"  buffer_load_dwordx2 v[{6+4*i}:{7+4*i}], v2, s[16:19], s25 offen offset:{i*64+32}")
ACC = 144
T = 160
for i in range(2):
    a(f"  s_waitcnt vmcnt({18 if i == 0 else 2})")
    for k in range(2):
        for s in range(8):
            d = 16 + ((i*2+k)*8+s)*4
            for j in range(4):
                lo, hi = ACC+k*8+2*j, ACC+k*8+2*j+1
                if s == 0:
                    a(f"  v_lshlrev_b32 v{lo}, 16, v{d+j}")
                    a(f"  v_and_b32 v{hi}, 0xffff0000, v{d+j}")
                else:
                    a(f"  v_lshlrev_b32 v{T}, 16, v{d+j}")
                    a(f"  v_and_b32 v{T+1}, 0xffff0000, v{d+j}")
                    a(f"  v_pk_add_f32 v[{lo}:{hi}], v[{lo}:{hi}], v[{T}:{T+1}]")
    def rnd(r):
        a(f"  v_cvt_pk_bf16_f32 v{T}, v{r}, v{r+1}")
        a(f"  v_lshlrev_b32 v{r}, 16, v{T}")
        a(f"  v_and_b32 v{r+1}, 0xffff0000, v{T}")
    for j in range(8): rnd(ACC+2*j)
    for e in range(8):
        gq = ACC + e
        a(f"  v_mul_f32 v{T+2+e}, 0xbfb8aa3b, v{gq}")
    for e in range(8): a(f"  v_exp_f32 v{T+2+e}, v{T+2+e}")
    for e in range(8): a(f"  v_add_f32 v{T+2+e}, 1.0, v{T+2+e}")
    for e in range(8): a(f"  v_rcp_f32 v{T+2+e}, v{T+2+e}")
    for e in range(8): a(f"  v_mul_f32 v{ACC+e}, v{ACC+e}, v{T+2+e}")
    for j in range(4): rnd(ACC+2*j)
    for e in range(8): a(f"  v_mul_f32 v{ACC+e}, v{ACC+e}, v{ACC+8+e}")
    for j in range(4): rnd(ACC+2*j)
    for j in range(4):
        xr = 4 + 4*i + j
        a(f"  v_lshlrev_b32 v{T}, 16, v{xr}")
        a(f"  v_and_b32 v{T+1}, 0xffff0000, v{xr}")
        a(f"  v_add_f32 v{T}, v{T}, v{ACC+2*j}")
        a(f"  v_add_f32 v{T+1}, v{T+1}, v{ACC+2*j+1}")
        a(f"  v_cvt_pk_bf16_f32 v{xr}, v{T}, v{T+1}")
    a(f"  buffer_store_dwordx2 v[{4+4*i}:{5+4*i}], v2, s[20:23], s25 offen offset:{i*64}")
    a(f"  buffer_store_dwordx2 v[{6+4*i}:{7+4*i}], v2, s[20:23], s25 offen offset:{i*64+32}")
a.label("L_fend")
a("  s_endpgm")
segs.append(('final', if_, len(a.lines)))

a('.section .rodata,"a"')
a(".p2align 6")
a(kernel_desc("main_kernel", 512, 102, 256))
a(".p2align 6")
a(kernel_desc("final_kernel", 176, 32, 176))

errs = []
for s in segs:
    if s[1] == 'tailjoin':
        il_, itail_, it_, end_ = s[2]
        errs += hazard.check(a.lines[il_:itail_] + a.lines[it_:end_], 'tail')
    elif s[0].endswith('2'):
        errs += hazard.check(a.lines[s[1]:s[2]] * 2, s[0])
    else:
        errs += hazard.check(a.lines[s[1]:s[2]], s[0])
for e in errs[:40]: print("HAZ", e)
open(sys.argv[1], 'w').write(a.text())
print("written", sys.argv[1], len(a.lines), "lines;", len(errs), "hazard msgs")
```

```python
import sys, math
from asmlib import *
import hazard

NAME = "recurrent_scan__gqa_block_cached__dense_activation_relu__prompt"
OPT = dict(stamps=0, mimic_d=1, nsum=2, force_redo=0, pf=4, ng=2, rot=1, late=4, tlb=0, spin=200000)
for x in sys.argv[2:]:
    k, v = x.split('='); OPT[k] = int(v)

a = Asm()
segs = []

S_W, S_G, S_R = 4, 5, 6
S_RET = 8
S_CNT, S_CSLOT, S_PSLOT, S_POFF, S_STA, S_STB = 10, 11, 12, 13, 14, 15
P_X, P_K, P_V, P_WQ, P_WO, P_W1, P_W2, P_WS, P_DBG, P_OUT = 16, 18, 20, 22, 24, 28, 30, 32, 34, 36
S_PLO, S_PHI = 38, 39
S_BOFF, S_BEND, S_PEND, S_PLEN, S_ROT16, S_ROT7, S_WG = 3, 7, 26, 27, 100, 101, 2
SRD_W, SRD_K, SRD_V, SRD_WS, SRD_X = 40, 44, 48, 52, 56
S_KOFF, S_VOFF, S_LOOP, S_KM0, S_VM0, S_PBASE, S_REDO = 60, 61, 62, 63, 64, 65, 66
S_SV_PSLOT, S_SV_POFF, S_KV0 = 67, 68, 69
S_T = 70
S_STAMP = 76

V_ACC, V_A, V_B = 0, 64, 96
V_S, V_P, V_NEGM, V_L, V_LS, V_ONES = 0, 64, 96, 112, 116, 124
V_H = 176
V_PROW, V_PSWZ, V_LANE, V_L16, V_T0, V_T1, V_BA = 208, 209, 210, 211, 212, 213, 214
V_KA, V_VA, V_KD, V_VD, V_PD, V_AA = 216, 220, 228, 232, 236, 240
A_O, A_Q, A_K, A_V = 0, 128, 192, 224
RB = 65536
NS = 6
PART_KIND = 16 << 20
STAMP_OFF = 48 << 20
MBOX = 40 << 20
SRD_D = 96
S_FB, S_XO = 11, 12
V_XO = 215
V_POLL = 234

nstamp = [0]
def stamp(lvl=1):
    if OPT['stamps'] == lvl or (OPT['stamps'] and lvl == 0):
        i = nstamp[0]; nstamp[0] += 1
        a(f"  s_memtime s[{S_STAMP+2*i}:{S_STAMP+2*i+1}]")

def mf(d, A, B, C, dt='v', at='v', bt='v'):
    c = '0' if C is None else f"{dt}[{C}:{C+3}]"
    return f"  v_mfma_f32_16x16x32_bf16 {dt}[{d}:{d+3}], {at}[{A}:{A+3}], {bt}[{B}:{B+3}], {c}"

def prod_m0(pos):
    return [f"  s_add_u32 m0, s{S_VM0}, {pos*16384}"]
def prod_dma(n):
    return f"  buffer_load_dwordx4 v{V_PD+n}, s[{SRD_W}:{SRD_W+3}], s{S_POFF} offen offset:{n*1024} lds"
def prod_adv():
    return [f"  s_add_u32 s{S_POFF}, s{S_POFF}, s{S_STA}",
            f"  s_cmp_eq_u32 s{S_POFF}, s{S_PLEN}",
            f"  s_cselect_b32 s{S_POFF}, 0, s{S_POFF}"]
def produce_list(pos):
    return prod_m0(pos) + prod_adv() + [prod_dma(n) for n in range(4)]
def produce_slot(pos):
    for l in produce_list(pos): a(l)

def set_stream(kind, half=0):
    if kind == 'null':
        a(f"  s_mov_b32 s{SRD_W+2}, 0"); return
    if half == 1:
        for n in range(4): a(f"  v_add_u32 v{V_PD+n}, 128, v{V_PD+n}")
        return
    ptr, size, stride = dict(w1=(P_W1, 512*1792*2, 3584), wq=(P_WQ, 512*4096*2, 8192), w2=(P_W2, 1792*512*2, 1024),
                             wo=(P_WO, 4096*512*2, 1024), v=(P_V, 8*2048*128*2, 0))[kind]
    a(f"  s_mov_b32 s{SRD_W}, s{ptr}")
    a(f"  s_mov_b32 s{SRD_W+1}, s{ptr+1}")
    a(f"  s_mov_b32 s{SRD_W+2}, {size}")
    if kind == 'v':
        for n in range(4): a(f"  v_mov_b32 v{V_PD+n}, v{V_VD+(n&1)}")
        a(f"  s_sub_u32 s{S_POFF}, s{S_KV0}, 16384")
        a(f"  s_mov_b32 s{S_STA}, 16384")
        a(f"  s_mov_b32 s{S_PLEN}, -1")
        return
    a(f"  s_mov_b32 s{S_T}, {stride}")
    a(f"  v_mad_u32_u24 v{V_PD}, v{V_PROW}, s{S_T}, v{V_PSWZ}")
    gm, wsft = dict(w1=(448, 7), wq=(1024, 8), w2=(224*1024, 8), wo=(512*1024, 8))[kind]
    a(f"  s_mul_i32 s{S_T}, s{S_G}, {gm}")
    a(f"  s_lshl_b32 s{S_T+1}, s{S_W}, {wsft}")
    a(f"  s_add_u32 s{S_T}, s{S_T}, s{S_T+1}")
    a(f"  v_add_u32 v{V_PD}, s{S_T}, v{V_PD}")
    for n in range(1, 4): a(f"  v_add_u32 v{V_PD+n}, {n*(8*stride-1024)}, v{V_PD}")
    nst = 7 if kind == 'w2' else 16
    a(f"  s_mov_b32 s{S_STA}, {32*stride}")
    a(f"  s_mov_b32 s{S_PLEN}, {nst*32*stride}")
    a(f"  s_mul_i32 s{S_POFF}, s{S_ROT7 if nst == 7 else S_ROT16}, {32*stride}")
    a(f"  s_sub_u32 s{S_POFF}, s{S_POFF}, s{S_STA}")

def b_adv():
    return [f"  s_add_u32 s{S_BOFF}, s{S_BOFF}, 4096",
            f"  s_cmp_eq_u32 s{S_BOFF}, s{S_BEND}",
            f"  s_cselect_b32 s{S_BOFF}, 0, s{S_BOFF}",
            f"  v_add_u32 v{V_BA}, s{S_BOFF}, v{V_L16}"]
def a_read(slot, nt, rd):
    d = V_A + (slot & 1)*16 + nt*4 + rd*2
    return f"  ds_read_b64_tr_b16 v[{d}:{d+1}], v{V_AA+nt+4*(slot//3)} offset:{(slot%3)*16384+rd*2048}"
def b_read(par, qt):
    d = V_B + par*16 + qt*4
    return f"  ds_read_b128 v[{d}:{d+3}], v{V_BA} offset:{qt*1024}"

def gemm_step(pos, first, loop=False, vm=None, vmw=16, noread=False):
    a(f"  s_waitcnt vmcnt({vmw}) lgkmcnt(0)")
    par = pos & 1; nx = (pos + 1) % NS
    mem = [b_read(par ^ 1, qt) for qt in range(4)] + [a_read(nx, nt, rd) for nt in range(4) for rd in range(2)] + [prod_dma(n) for n in range(4)]
    ex = [[] for _ in range(16)]
    ba = b_adv(); pa = prod_adv()
    for i in range(4): ex[i].append(ba[i])
    if vm is None:
        for i in range(3): ex[4+i].append(pa[i])
        ex[7] += prod_m0(pos)
    else:
        for i in range(4):
            mem[12+i] = vm[i][-1] if i < len(vm) else ""
            if i < len(vm): ex[11+i] += vm[i][:-1]
    if noread:
        for i in range(12): mem[i] = ""; ex[i] = []
    if loop: ex[11].append(f"  s_sub_u32 s{S_CNT}, s{S_CNT}, 1")
    for nt in range(4):
        for qt in range(4):
            acc = V_ACC + (nt*4+qt)*4
            a(mf(acc, V_A+par*16+nt*4, V_B+par*16+qt*4, None if first else acc))
            a(mem[nt*4+qt])
            for l in ex[nt*4+qt]: a(l)

gpos = [4]
def gemm_call(n):
    a(f"  s_mov_b32 s{S_CNT}, {n-1}")
    a(f"  s_call_b64 s[{S_RET}:{S_RET+1}], L_gemm{gpos[0]}")
    gpos[0] = (gpos[0] + n) % NS
def gemm_first():
    gemm_step(gpos[0], True)
    gpos[0] = (gpos[0] + 1) % NS
def b_reload(nst):
    a("  s_waitcnt lgkmcnt(0)")
    a(f"  s_lshl_b32 s{S_BOFF}, s{S_ROT7 if nst == 7 else S_ROT16}, 12")
    a(f"  s_mov_b32 s{S_BEND}, {nst*4096}")
    a(f"  v_add_u32 v{V_BA}, s{S_BOFF}, v{V_L16}")
    for qt in range(4): a(b_read(gpos[0] & 1, qt))
    for l in b_adv(): a(l)
def a_first():
    for nt in range(4):
        for rd in range(2): a(a_read(gpos[0], nt, rd))

def store_partial(kind, half, dst=None, defer=False):
    a("  s_nop 7")
    a(f"  s_add_u32 s{S_T}, s{S_PBASE}, {kind*PART_KIND + half*8192}")
    a(f"  s_add_u32 s{S_T+1}, s{S_T}, 4096")
    st = []
    for c in range(2):
        for qt in range(4):
            x = V_ACC + ((2*c)*4+qt)*4; y = V_ACC + ((2*c+1)*4+qt)*4
            d = x if dst is None else dst + (c*4+qt)*4
            a(f"  v_cvt_pk_bf16_f32 v{d}, v{x}, v{x+1}")
            a(f"  v_cvt_pk_bf16_f32 v{d+1}, v{x+2}, v{x+3}")
            a(f"  v_cvt_pk_bf16_f32 v{d+2}, v{y}, v{y+1}")
            a(f"  v_cvt_pk_bf16_f32 v{d+3}, v{y+2}, v{y+3}")
            l = f"  buffer_store_dwordx4 v[{d}:{d+3}], v{V_L16}, s[{SRD_WS}:{SRD_WS+3}], s{S_T+c} offen offset:{qt*1024} sc1"
            if defer: st.append(l)
            else: a(l)
    if not defer: a("  s_nop 1")
    return st

def spin(label, srd, voff, soff, target):
    a(f"  s_mov_b32 s{S_T+1}, {OPT['spin']}")
    a.label(label)
    a(f"  buffer_load_dword v{V_POLL}, v{voff}, s[{srd}:{srd+3}], {soff} offen sc1")
    a("  s_waitcnt vmcnt(0)")
    a(f"  v_readfirstlane_b32 s{S_T}, v{V_POLL}")
    a(f"  s_sub_u32 s{S_T+1}, s{S_T+1}, 1")
    a(f"  s_cbranch_scc1 {label}_done")
    a(f"  s_cmp_lt_u32 s{S_T}, {target}")
    a(f"  s_cbranch_scc1 {label}")
    a.label(label + "_done")

def part_load(kind, i, src, d):
    return [f"  s_add_u32 s{S_T+2}, s{S_FB}, {kind*PART_KIND + src*65536 + i*4096}",
            f"  buffer_load_dwordx4 v[{d}:{d+3}], v{V_L16}, s[{SRD_WS}:{SRD_WS+3}], s{S_T+2} offen sc1"]
def part_sum(base, acc, T):
    for s_ in range(8):
        d = base + s_*4
        for j in range(4):
            lo, hi = acc+2*j, acc+2*j+1
            if s_ == 0:
                a(f"  v_lshlrev_b32 v{lo}, 16, v{d+j}")
                a(f"  v_and_b32 v{hi}, 0xffff0000, v{d+j}")
            else:
                t = T + 2*(j & 1)
                a(f"  v_lshlrev_b32 v{t}, 16, v{d+j}")
                a(f"  v_and_b32 v{t+1}, 0xffff0000, v{d+j}")
                a(f"  v_pk_add_f32 v[{lo}:{hi}], v[{lo}:{hi}], v[{t}:{t+1}]")
def rnd_pair(r, T):
    a(f"  v_cvt_pk_bf16_f32 v{T}, v{r}, v{r+1}")
    a(f"  v_lshlrev_b32 v{r}, 16, v{T}")
    a(f"  v_and_b32 v{r+1}, 0xffff0000, v{T}")

def kslot(t): return (t + 2) & 3
def k_read(unit, kt, ds, dst=A_K):
    off = kslot(unit >> 1)*16384 + (unit & 1)*8192 + kt*4096
    d = dst + (kt*4+ds)*4
    return f"  ds_read_b128 a[{d}:{d+3}], v{V_KA+ds} offset:{off}"
def v_read(unit, dt, rd, dst=A_V):
    off = ((unit >> 1) & 3)*16384 + (unit & 1)*8192 + rd*4096
    d = dst + dt*4 + rd*2
    return f"  ds_read_b64_tr_b16 a[{d}:{d+1}], v{V_VA+dt} offset:{off}"
def k_dma(n):
    return f"  buffer_load_dwordx4 v{V_KD+n}, s[{SRD_K}:{SRD_K+3}], s{S_KOFF} offen offset:{n*1024} lds"
def v_dma(n):
    return f"  buffer_load_dwordx4 v{V_VD+(n&1)}, s[{SRD_V}:{SRD_V+3}], s{S_VOFF} offen offset:{n*1024} lds"
def k_tile_dma(t):
    a(f"  s_add_u32 m0, s{S_KM0}, {kslot(t)*16384}")
    a(f"  s_nop 0")
    for n in range(4): a(k_dma(n))
    a(f"  s_add_u32 s{S_KOFF}, s{S_KOFF}, 16384")
def v_tile_dma(t):
    a(f"  s_add_u32 m0, s{S_VM0}, {(t&3)*16384}")
    a(f"  s_nop 0")
    for n in range(4): a(v_dma(n))
    a(f"  s_add_u32 s{S_VOFF}, s{S_VOFF}, 16384")

NSUM = OPT['nsum']
SUMQT = {0: [], 2: [2, 3], 4: [0, 1, 2, 3]}[NSUM]
TORDER = [(0,0),(0,2),(0,1),(0,3),(1,0),(1,2),(1,1),(1,3)]
def s_reg(b, kt, qt): return V_S + b*32 + (kt*4+qt)*4
def qk_mfmas(b, zero=False):
    L = []
    for kt, qt in TORDER:
        d = s_reg(b, kt, qt)
        for ds in range(4):
            C = d if ds else (None if zero else V_NEGM + qt*4)
            L.append(mf(d, A_K+(kt*4+ds)*4, A_Q+(qt*4+ds)*4, C, 'v', 'a', 'a'))
    return L
def ls_reg(qt):
    return V_LS + SUMQT.index(qt)*4 if NSUM == 2 else 128 + qt*4
def pv_mfmas(b, src=A_V):
    L = []
    for dt in range(8):
        for qt in range(4):
            d = A_O + (dt*4+qt)*4
            L.append(mf(d, src+dt*4, V_P+b*16+qt*4, d, 'a', 'a', 'v'))
    return L
def sum_mfmas(b):
    return [mf(ls_reg(qt), V_ONES, V_P+b*16+qt*4, ls_reg(qt)) for qt in SUMQT]

def period(p, qk=True, pv=True, last=False, extra=None):
    b = p & 1
    M = (qk_mfmas(b ^ 1) if qk else [None]*32) + ((pv_mfmas(b ^ 1) + sum_mfmas(b ^ 1)) if pv else [None]*(32+NSUM))
    ng = len(M)
    pre = [[] for _ in range(ng)]
    mem = [None]*ng
    cap = [0]*ng
    exps = []
    for kt, qt in TORDER:
        for r in range(4): exps.append((kt, qt, r))
    for g in range(ng):
        cap[g] = 0 if (g < 64 and g % 2 == 0) else 2
    if pv:
        for i in range(16):
            mem[2*i+1] = v_read(p-1, i >> 1, i & 1); cap[2*i+1] = 1
    kpos = [0,1,2,4,5,6,8,9]; dpos = [3,7,11,15]
    if last:
        for i in range(16):
            mem[33+2*i] = v_read(p, i >> 1, i & 1, A_K); cap[33+2*i] = 1
    else:
        for i, j in enumerate(kpos):
            mem[33+2*j] = k_read(p+2, i >> 2, i & 3); cap[33+2*j] = 1
        T = p >> 1
        for n, j in enumerate(dpos):
            mem[33+2*j] = k_dma(n) if b == 0 else v_dma(n); cap[33+2*j] = 0
        if b == 0:
            pre[34].append(f"  s_add_u32 m0, s{S_KM0}, {kslot(T)*16384}")
            pre[ng-1].append(f"  s_add_u32 s{S_KOFF}, s{S_KOFF}, 16384")
        else:
            pre[34].append(f"  s_add_u32 m0, s{S_VM0}, {((T+2)&3)*16384}")
            pre[ng-1].append(f"  s_add_u32 s{S_VOFF}, s{S_VOFF}, 16384")
    if extra:
        for k, l in enumerate(extra): pre[32+2*k].append(l)
    if pv:
        if qk:
            pre[30].append("  s_waitcnt lgkmcnt(3)")
            nk = sum(1 for g in range(32, 54) if mem[g] and mem[g].lstrip().startswith('ds_'))
            pre[54].append(f"  s_waitcnt lgkmcnt({nk})")
    q = []
    for g in range(ng):
        if g == 32 and pv and not qk: a("  s_waitcnt lgkmcnt(0)")
        if M[g]: a(M[g])
        for l in pre[g]: a(l)
        if mem[g]: a(mem[g])
        if g < 64 and g % 2 == 0:
            kt, qt, r = exps[g//2]
            s = s_reg(b, kt, qt) + r
            a(f"  v_exp_f32 v{s}, v{s}")
            if not M[g+1] and not mem[g+1] and not pre[g+1] and not q: a("  s_nop 0")
            if qt not in SUMQT: q.append(f"  v_add_f32 v{V_L+qt}, v{V_L+qt}, v{s}")
            if r & 1: q.append(f"  v_cvt_pk_bf16_f32 v{V_P+b*16+qt*4+kt*2+(r>>1)}, v{s-1}, v{s}")
        else:
            n = cap[g] if g < ng-1 else 99
            while n > 0 and q:
                a(q.pop(0)); n -= 1
    assert not q

def barrier_T():
    a("  s_waitcnt vmcnt(8) lgkmcnt(0)")
    a("  s_barrier")

def xlane_reduce(reg, op, tmp):
    a(f"  v_mov_b32 v{tmp}, v{reg}")
    a("  s_nop 1")
    a(f"  v_permlane32_swap_b32 v{reg}, v{tmp}")
    a(f"  {op} v{reg}, v{reg}, v{tmp}")
    a(f"  v_mov_b32 v{tmp}, v{reg}")
    a("  s_nop 1")
    a(f"  v_permlane16_swap_b32 v{reg}, v{tmp}")
    a(f"  {op} v{reg}, v{reg}, v{tmp}")

def prefetch_groups():
    J, O = S_T+4, S_T
    X = SRD_X
    cnt = [0]
    def srd(ptr, size):
        return [f"  s_mov_b32 s{X}, s{ptr}", f"  s_mov_b32 s{X+1}, s{ptr+1}", f"  s_mov_b32 s{X+2}, {size}"]
    def ld(v, off=0):
        cnt[0] += 1
        return [f"  buffer_load_dword a{A_K+cnt[0]}, v{v}, s[{X}:{X+3}], s{O} offen offset:{off}"]
    NG = OPT['ng']; NW = 128 // NG
    G = {}
    C = SRD_V; Q = S_T+2
    G['code'] = [f"  s_lshr_b32 s{Q}, s2, 3", f"  s_lshl_b32 s{Q}, s{Q}, 2", f"  s_add_u32 s{Q}, s{Q}, s{S_W}", f"  s_lshl_b32 s{Q}, s{Q}, 9",
                 f"  s_getpc_b64 s[{C}:{C+1}]", "L_pc:", f"  s_mov_b32 s{C+2}, L_code_end-L_pc", f"  s_mov_b32 s{C+3}, 0x20000", f"  v_lshlrev_b32 v248, 3, v{V_LANE}",
                 f"  buffer_load_dword a{A_K}, v248, s[{C}:{C+3}], s{Q} offen"]
    jj = [f"  s_and_b32 s{O}, s{S_R}, {32//NG-1}", f"  s_lshl_b32 s{O}, s{O}, 2", f"  s_add_u32 s{O}, s{O}, s{S_W}"]
    rows = 4*NG
    L = jj + [f"  s_mul_i32 s{O}, s{O}, {rows*8192}", f"  s_lshl_b32 s{O+1}, s{S_G}, 10", f"  s_add_u32 s{O}, s{O}, s{O+1}",
              f"  v_and_b32 v249, 7, v{V_LANE}", f"  v_lshlrev_b32 v249, 7, v249", f"  v_lshl_add_u32 v249, v{V_PROW}, 13, v249"] + srd(P_WQ, 512*4096*2) + ld(249)
    for k in range(1, (rows + 7)//8):
        L += [f"  s_add_u32 s{O}, s{O}, {8*8192}"] + ld(249)
    G['wq'] = L
    G['w2'] = jj + [f"  s_mul_i32 s{O}, s{O}, {1792*NG}", f"  s_mul_i32 s{O+1}, s{S_G}, {224*1024}", f"  s_add_u32 s{O}, s{O}, s{O+1}",
                    f"  v_mul_u32_u24 v250, {32*NG}, v{V_LANE}"] + srd(P_W2, 512*1792*2) + ld(250)
    L = [f"  v_lshlrev_b32 v251, 6, v{V_LANE}", f"  s_and_b32 s{O}, s{S_R}, 3", f"  s_lshl_b32 s{O}, s{O}, 14", f"  s_add_u32 s{O}, s{O}, s{S_KV0}"]
    G['kv'] = L + srd(P_K, 4 << 20) + ld(251) + srd(P_V, 4 << 20) + ld(251)
    G['ws'] = [f"  v_and_b32 v252, 1, v{V_LANE}", f"  v_lshlrev_b32 v252, 24, v252", f"  s_mov_b32 s{O}, s{S_PBASE}"] + srd(P_WS, 64 << 20) + ld(252)
    G['mb'] = [f"  v_and_b32 v255, 31, v{V_LANE}", f"  v_lshlrev_b32 v255, 2, v255", f"  v_mov_b32 v{V_POLL}, 0",
               f"  s_lshr_b32 s{O}, s{S_PBASE}, 16", f"  s_lshl_b32 s{O}, s{O}, 7", f"  s_add_u32 s{O}, s{O}, {MBOX}",
               f"  buffer_store_dword v{V_POLL}, v255, s[{SRD_WS}:{SRD_WS+3}], s{O} offen sc1"]
    L = jj + [f"  s_mul_i32 s{O}, s{O}, {4096*NG}", f"  s_lshl_b32 s{O+1}, s{S_G}, 19", f"  s_add_u32 s{O}, s{O}, s{O+1}",
              f"  v_lshlrev_b32 v253, {6 if NG == 1 else 7}, v{V_LANE}"] + srd(P_WO, 4 << 20)
    L += [f"  buffer_load_dword v254, v253, s[{X}:{X+3}], s{O} offen"]
    if NG == 4: L += [f"  s_add_u32 s{O}, s{O}, 8192", f"  buffer_load_dword v254, v253, s[{X}:{X+3}], s{O} offen"]
    G['wo'] = L
    return G
def nloads(L): return sum(1 for l in L if l.lstrip().startswith('buffer_'))

hdr = open('cdna_kernels/%s.s.ref' % NAME).read().split('\n')
for l in hdr:
    if l.startswith('; Override') or '@launch' in l or l.startswith('; grid=ceil'): continue
    if l.startswith(';'): a(l)
    else: break
a("; @launch grid=(256,1,1) block=(256,1,1) lds=163840")
a('.amdgcn_target "amdgcn-amd-amdhsa--gfx950"')
a(".text")
a(kernel_header(NAME + "_kernel"))
i0 = len(a.lines)
a(f"""
  s_cmp_ge_u32 s2, 256
  s_cbranch_scc1 L_end
  s_load_dwordx16 s[16:31], s[0:1], 0
  s_load_dwordx2 s[{P_WS}:{P_WS+1}], s[0:1], 80
  s_load_dwordx2 s[{P_DBG}:{P_DBG+1}], s[0:1], 72
  s_load_dwordx2 s[{P_OUT}:{P_OUT+1}], s[0:1], 64
  v_lshrrev_b32 v1, 6, v0
  v_and_b32 v{V_LANE}, 63, v0
  s_nop 0
  v_readfirstlane_b32 s{S_W}, v1
  s_mov_b32 s{S_REDO}, 0
""")
NG = OPT['ng']; LG = {1: 0, 2: 1, 4: 2, 8: 3}[NG]
a(f"""
  s_and_b32 s{S_T}, s2, {8//NG-1}
  s_lshl_b32 s{S_G}, s{S_T}, {LG}
  s_lshr_b32 s{S_T+1}, s2, 3
  s_and_b32 s{S_T}, s{S_T+1}, {NG-1}
  s_add_u32 s{S_G}, s{S_G}, s{S_T}
  s_lshr_b32 s{S_R}, s{S_T+1}, {LG}
  s_lshl_b32 s{S_ROT16}, s{S_R}, {max(LG-1,0)}
  s_and_b32 s{S_ROT16}, s{S_ROT16}, {15 if OPT['rot'] else 0}
  s_mul_i32 s{S_T}, s{S_R}, 37
  s_lshr_b32 s{S_T}, s{S_T}, 8
  s_mul_i32 s{S_T}, s{S_T}, 7
  s_sub_u32 s{S_ROT7}, s{S_R}, s{S_T}
  s_and_b32 s{S_ROT7}, s{S_ROT7}, {7 if OPT['rot'] else 0}
  s_and_b32 s{S_T}, s2, 7
  s_lshr_b32 s{S_T}, s{S_T}, {3-LG}
  s_lshl_b32 s{S_T}, s{S_T}, {5-LG}
  s_add_u32 s{S_R}, s{S_R}, s{S_T}
""")
stamp(0)
if OPT['stamps']: a("  s_memrealtime s[74:75]")
L = V_LANE
a(f"""
  v_lshlrev_b32 v{V_L16}, 4, v{L}
  v_lshrrev_b32 v{V_PROW}, 3, v{L}
  v_lshrrev_b32 v1, 4, v{L}            ; G
  v_lshlrev_b32 v2, 1, v1              ; G<<1
  v_and_b32 v3, 7, v{L}
  v_xor_b32 v3, v3, v2
  v_lshlrev_b32 v{V_PSWZ}, 4, v3
  s_lshl_b32 s{S_T}, s{S_R}, 16
  s_lshl_b32 s{S_T+1}, s{S_W}, 14
  s_add_u32 s{S_T}, s{S_T}, s{S_T+1}
  v_lshrrev_b32 v4, 2, v{L}
  v_lshlrev_b32 v4, 10, v4
  v_and_b32 v5, 3, v{L}
  v_lshl_add_u32 v{V_T0}, v5, 4, v4
  s_lshl_b32 s{S_KM0}, s{S_W}, 12
  s_add_u32 s{S_VM0}, s{S_KM0}, {RB}
  s_waitcnt lgkmcnt(0)
  s_mov_b32 s{SRD_X}, s{P_X}
  s_mov_b32 s{SRD_X+1}, s{P_X+1}
  s_mov_b32 s{SRD_X+2}, {2048*512*2}
  s_mov_b32 s{SRD_X+3}, 0x20000
  s_mov_b32 s{SRD_W+3}, 0x20000
""")
PFG = prefetch_groups()
if OPT['pf']:
    for l in PFG['code']: a(l)
for j in range(16):
    a(f"  buffer_load_dwordx4 v[{4*j+64}:{4*j+67}], v{V_T0}, s[{SRD_X}:{SRD_X+3}], s{S_T} offen offset:{j*64}")
set_stream('w1')
a(f"""
  s_mov_b32 s{SRD_K}, s{P_K}
  s_mov_b32 s{SRD_K+1}, s{P_K+1}
  s_add_u32 s{S_T}, s{S_G}, 1
  s_lshl_b32 s{SRD_K+2}, s{S_T}, 19
  s_mov_b32 s{SRD_K+3}, 0x20000
  s_mov_b32 s{SRD_V}, s{P_V}
  s_mov_b32 s{SRD_V+1}, s{P_V+1}
  s_mov_b32 s{SRD_V+2}, s{SRD_K+2}
  s_mov_b32 s{SRD_V+3}, 0x20000
  s_mov_b32 s{SRD_WS}, s{P_WS}
  s_mov_b32 s{SRD_WS+1}, s{P_WS+1}
  s_mov_b32 s{SRD_WS+2}, {64<<20}
  s_mov_b32 s{SRD_WS+3}, 0x20000
  s_lshl_b32 s{S_KV0}, s{S_G}, 19
  s_add_u32 s{S_KV0}, s{S_KV0}, s{S_KM0}
  s_mov_b32 s{S_KOFF}, s{S_KV0}
  s_lshl_b32 s{S_PBASE}, s{S_R}, 3
  s_add_u32 s{S_PBASE}, s{S_PBASE}, s{S_G}
  s_lshl_b32 s{S_PBASE}, s{S_PBASE}, 16
  s_lshl_b32 s{S_T}, s{S_W}, 14
  s_add_u32 s{S_PBASE}, s{S_PBASE}, s{S_T}
  ; v1 = G, v6 = i = l&15
  v_and_b32 v6, 15, v{L}
  v_xor_b32 v7, v6, v1
""")
for n in range(4):
    a(f"  v_xor_b32 v8, {4*n}, v7")
    a(f"  v_lshlrev_b32 v8, 4, v8")
    a(f"  v_lshl_add_u32 v{V_KD+n}, v1, 8, v8")
for n in range(2):
    a(f"  v_xor_b32 v8, v6, v2")
    if n: a(f"  v_xor_b32 v8, 8, v8")
    a(f"  v_lshlrev_b32 v8, 4, v8")
    a(f"  v_lshl_add_u32 v{V_VD+n}, v1, 8, v8")
a(f"""
  v_and_b32 v8, 1, v1
  v_lshlrev_b32 v8, 1, v8
  v_lshrrev_b32 v9, 1, v1
  v_or_b32 v8, v8, v9
  v_xor_b32 v8, v8, v6
""")
for ds in range(4):
    a(f"  v_xor_b32 v9, {4*ds}, v8")
    a(f"  v_lshlrev_b32 v9, 4, v9")
    a(f"  v_lshl_add_u32 v{V_KA+ds}, v6, 8, v9")
a(f"""
  v_lshrrev_b32 v8, 2, v6
  v_lshl_add_u32 v8, v1, 2, v8         ; row
  v_and_b32 v9, 3, v6
  v_lshlrev_b32 v9, 3, v9              ; (i&3)*8
  v_lshl_add_u32 v10, v8, 8, v9
  v_add_u32 v10, {RB}, v10
  v_and_b32 v11, 7, v8
""")
for dt in range(8):
    a(f"  v_xor_b32 v12, {dt}, v11")
    a(f"  v_lshl_add_u32 v{V_VA+dt}, v12, 5, v10")
a(f"""
  v_lshl_add_u32 v10, v8, 7, v9
  v_add_u32 v10, s{S_VM0}, v10
  v_bfe_u32 v11, v8, 1, 2
""")
for nt in range(4):
    a(f"  v_xor_b32 v12, {nt}, v11")
    a(f"  v_lshl_add_u32 v{V_AA+nt}, v12, 5, v10")
    a(f"  v_add_u32 v{V_AA+4+nt}, {3*16384}, v{V_AA+nt}")
a(f"""
  v_lshrrev_b32 v8, 2, v{L}
  v_and_b32 v9, 1, v{L}
  v_lshl_add_u32 v8, v9, 5, v8
  v_lshlrev_b32 v8, 4, v8
  v_bfe_u32 v9, v{L}, 1, 1
  v_lshl_add_u32 v8, v9, 3, v8
  s_lshl_b32 s{S_T}, s{S_W}, 10
  v_add_u32 v{V_T1}, s{S_T}, v8
""")
a(f"""
  s_mov_b32 s{SRD_D}, s{P_DBG}
  s_mov_b32 s{SRD_D+1}, s{P_DBG+1}
  s_lshl_b32 s{SRD_D+2}, s{S_R}, 2
  s_add_u32 s{SRD_D+2}, s{SRD_D+2}, 4
  s_mov_b32 s{SRD_D+3}, 0x20000
  s_lshl_b32 s{S_FB}, s{S_R}, 19
  s_lshl_b32 s{S_T}, s{S_G}, 13
  s_add_u32 s{S_FB}, s{S_FB}, s{S_T}
  s_lshl_b32 s{S_T}, s{S_W}, 10
  s_add_u32 s{S_FB}, s{S_FB}, s{S_T}
  s_lshl_b32 s{S_XO}, s{S_R}, 16
  s_lshl_b32 s{S_T}, s{S_W}, 14
  s_add_u32 s{S_XO}, s{S_XO}, s{S_T}
  s_lshl_b32 s{S_T}, s{S_G}, 7
  s_add_u32 s{S_XO}, s{S_XO}, s{S_T}
  v_lshlrev_b32 v8, 10, v6
  v_lshl_add_u32 v{V_XO}, v1, 3, v8
""")
def zero_o():
    for i in range(128): a(f"  v_accvgpr_write_b32 a{A_O+i}, 0")
zero_o()
def dreg(e): return e if e < 64 else 64 + e
pfsel = {0: [], 2: ['kv', 'ws'], 3: ['wq', 'w2', 'kv', 'ws'], 4: ['w2', 'kv', 'ws']}[OPT['pf']] + ['mb']
groups = []
for s_ in range(NS):
    pl = produce_list((4+s_) % NS)
    groups += [pl[:5], [pl[5]], [pl[6]], [pl[7]]]
for k in pfsel: groups.append(PFG[k])
NPF = sum(nloads(PFG[k]) for k in pfsel)
SUM = 192
for j in range(16):
    a(f"  s_waitcnt vmcnt(15)")
    if j in (0, 4, 8, 12, 15): stamp(3)
    for l in groups[j]: a(l)
    for i in range(4*j, 4*j+4):
        a(f"  v_lshlrev_b32 v{dreg(2*i)}, 16, v{64+i}")
        a(f"  v_and_b32 v{dreg(2*i+1)}, 0xffff0000, v{64+i}")
    for i in range(4*j, 4*j+4):
        e = dreg(2*i)
        if i < 2: a(f"  v_pk_add_f32 v[{SUM+2*i}:{SUM+2*i+1}], v[{e}:{e+1}], v[{dreg(2*i+4)}:{dreg(2*i+4)+1}]")
        elif i >= 4: a(f"  v_pk_add_f32 v[{SUM+2*(i&1)}:{SUM+2*(i&1)+1}], v[{SUM+2*(i&1)}:{SUM+2*(i&1)+1}], v[{e}:{e+1}]")
sprinkle = groups[16:]
stamp(3)
def quad_reduce(r):
    a(f"  v_add_f32 v{r}, v{r}, v{r+1}")
    a(f"  v_add_f32 v{r+2}, v{r+2}, v{r+3}")
    a(f"  v_add_f32 v{r}, v{r}, v{r+2}")
    a("  s_nop 1")
    a(f"  v_add_f32_dpp v{r}, v{r}, v{r} quad_perm:[1,0,3,2] row_mask:0xf bank_mask:0xf")
    a("  s_nop 1")
    a(f"  v_add_f32_dpp v{r}, v{r}, v{r} quad_perm:[2,3,0,1] row_mask:0xf bank_mask:0xf")
quad_reduce(SUM)
MU, MB, RS = 196, 198, 200
a(f"""
  v_mul_f32 v{MU}, {1.0/512}, v{SUM}
  v_cvt_pk_bf16_f32 v{MB}, v{MU}, v{MU}
  v_and_b32 v{MB}, 0xffff0000, v{MB}
  v_sub_f32 v{MU}, v{MU}, v{MB}
  v_xor_b32 v{MB}, 0x80000000, v{MB}
  v_mov_b32 v{MB+1}, v{MB}
""".replace(str(1.0/512), '0x3b000000'))
for i in range(64):
    e = dreg(2*i)
    a(f"  v_pk_add_f32 v[{e}:{e+1}], v[{e}:{e+1}], v[{MB}:{MB+1}]")
for i in range(64):
    e = dreg(2*i); s = SUM + 2*(i & 1)
    if i < 2: a(f"  v_pk_mul_f32 v[{s}:{s+1}], v[{e}:{e+1}], v[{e}:{e+1}]")
    else: a(f"  v_pk_fma_f32 v[{s}:{s+1}], v[{e}:{e+1}], v[{e}:{e+1}], v[{s}:{s+1}]")
quad_reduce(SUM)
a(f"""
  v_mul_f32 v{SUM}, 0x3b000000, v{SUM}
  v_fma_f32 v{SUM}, -v{MU}, v{MU}, v{SUM}
  v_max_f32 v{SUM}, 0, v{SUM}
  v_cvt_pk_bf16_f32 v{SUM}, v{SUM}, v{SUM}
  v_and_b32 v{SUM}, 0xffff0000, v{SUM}
  v_add_f32 v{SUM}, 0x3727c5ac, v{SUM}
  v_cvt_pk_bf16_f32 v{SUM}, v{SUM}, v{SUM}
  v_and_b32 v{SUM}, 0xffff0000, v{SUM}
  v_sqrt_f32 v{SUM}, v{SUM}
  s_nop 0
  v_cvt_pk_bf16_f32 v{SUM}, v{SUM}, v{SUM}
  v_and_b32 v{SUM}, 0xffff0000, v{SUM}
  v_rcp_f32 v{RS}, v{SUM}
  s_nop 0
  v_mov_b32 v{RS+1}, v{RS}
""")
for j in range(16):
    if j in (0, 4, 10): stamp(3)
    if j >= OPT['late'] and sprinkle:
        for l in sprinkle.pop(0): a(l)
    for k in range(4):
        i = 4*j + k; e = dreg(2*i)
        if OPT['mimic_d']:
            a(f"  v_cvt_pk_bf16_f32 v{64+i}, v{e}, v{e+1}")
            a(f"  v_lshlrev_b32 v{e}, 16, v{64+i}")
            a(f"  v_and_b32 v{e+1}, 0xffff0000, v{64+i}")
        a(f"  v_pk_mul_f32 v[{e}:{e+1}], v[{e}:{e+1}], v[{RS}:{RS+1}]")
        a(f"  v_cvt_pk_bf16_f32 v{64+i}, v{e}, v{e+1}")
    a(f"  ds_write_b64 v{V_T1}, v[{64+4*j}:{65+4*j}] offset:{j*4096}")
    a(f"  ds_write_b64 v{V_T1}, v[{66+4*j}:{67+4*j}] offset:{j*4096+256}")
for g_ in sprinkle:
    for l in g_: a(l)
stamp(3)
a(f"  s_waitcnt vmcnt({4*(NS-1)+NPF}) lgkmcnt(0)")
a("  s_barrier")
stamp(3)
stamp()
a_first()
b_reload(16)
gemm_first(); gemm_call(9); set_stream('wq', 0); gemm_call(6)
a("  s_nop 7")
for c in range(2):
    for qt in range(4):
        x = V_ACC + ((2*c)*4+qt)*4; y = V_ACC + ((2*c+1)*4+qt)*4
        d = V_H + (c*4+qt)*4
        for k, s in enumerate((x, x+2, y, y+2)):
            a(f"  v_cvt_pk_bf16_f32 v{d+k}, v{s}, v{s+1}")
        for k in range(4):
            a(f"  v_pk_max_i16 v{d+k}, v{d+k}, 0")
CS = (128 ** -0.5) * math.log2(math.e)
import struct
CSH = struct.unpack('<I', struct.pack('<f', CS))[0]
for half in range(2):
    gemm_first(); gemm_call(9)
    if half == 0: set_stream('wq', 1)
    else: set_stream('w2', 0)
    gemm_call(6)
    a("  s_nop 7")
    a(f"  s_mov_b32 s{S_T}, {CSH:#x}")
    for c in range(2):
        for qt in range(4):
            x = V_ACC + ((2*c)*4+qt)*4; y = V_ACC + ((2*c+1)*4+qt)*4
            for s in list(range(x, x+4)) + list(range(y, y+4)):
                a(f"  v_mul_f32 v{s}, s{S_T}, v{s}")
            d = 128 + (c*4+qt)*4
            for k, s in enumerate((x, x+2, y, y+2)):
                a(f"  v_cvt_pk_bf16_f32 v{d+k}, v{s}, v{s+1}")
    a("  s_nop 0")
    for c in range(2):
        for qt in range(4):
            d = 128 + (c*4+qt)*4
            a(f"  v_permlane16_swap_b32 v{d}, v{d+2}")
            a(f"  v_permlane16_swap_b32 v{d+1}, v{d+3}")
    for c in range(2):
        for qt in range(4):
            d = 128 + (c*4+qt)*4
            for k in range(4):
                a(f"  v_accvgpr_write_b32 a{A_Q+(qt*4+2*half+c)*4+k}, v{d+k}")
stamp()
stamp(2)
a("  s_waitcnt lgkmcnt(0)")
a("  s_barrier")
stamp(2)
a(f"  s_lshl_b32 s{S_T}, s{S_W}, 13")
a(f"  v_add_u32 v{V_T0}, s{S_T}, v{V_L16}")
for c in range(2):
    for qt in range(4):
        d = V_H + (c*4+qt)*4
        a(f"  ds_write_b128 v{V_T0}, v[{d}:{d+3}] offset:{(c*4+qt)*1024}")
k_tile_dma(0); k_tile_dma(1)
a("  s_waitcnt lgkmcnt(0)")
a("  s_barrier")
stamp(2)
b_reload(7)
gemm_first(); stamp(2); set_stream('w2', 1); gemm_call(6)
stamp(2)
store_partial(0, 0)
stamp(2)
gemm_first(); stamp(2); set_stream('v'); gemm_call(2); stamp(2); set_stream('null'); gemm_call(4)
stamp(2)
a("  s_waitcnt lgkmcnt(0)")
a("  s_barrier")
for i in range(8): a(k_read(0, i >> 2, i & 3))
stamp(2)
st = store_partial(0, 1, dst=128, defer=True)
fl = [[x] for x in st]
for t in (2, 3):
    fl.append([f"  s_add_u32 m0, s{S_KM0}, {kslot(t)*16384}"])
    fl += [[k_dma(n)] for n in range(3)] + [[k_dma(3), f"  s_add_u32 s{S_KOFF}, s{S_KOFF}, 16384"]]
if OPT['pf'] >= 3: fl.append(PFG['wo'])
stamp(2)
stamp()
def attn_init():
    L = [f"  s_add_u32 s{S_VOFF}, s{S_KV0}, {2*16384}"]
    L += [f"  v_mov_b32 v{V_L+i}, 0" for i in range(12)]
    L += [f"  v_and_b32 v{V_T0}, 3, v{V_LANE}", f"  v_cmp_eq_u32 vcc, 0, v{V_T0}", f"  v_mov_b32 v{V_T0}, 0x3f803f80", "  s_nop 0",
          f"  v_cndmask_b32 v{V_ONES}, 0, v{V_T0}, vcc"] + [f"  v_mov_b32 v{V_ONES+i}, v{V_ONES}" for i in range(1, 4)]
    return L
ai = attn_init()
fl += [ai[k:k+2] for k in range(0, len(ai), 2)]
assert len(fl) <= 32
a("  s_waitcnt lgkmcnt(0)")
for g, l in enumerate(qk_mfmas(0, zero=True)):
    a(l)
    if g < len(fl):
        for x in fl[g]: a(x)
set_stream('wo', 0)
a(f"  s_mov_b32 s{S_SV_POFF}, s{S_POFF}")
a.label("L_attn")
for i in range(8): a(k_read(1, i >> 2, i & 3))
a(f"  s_cmp_lg_u32 s{S_REDO}, 0")
a("  s_cbranch_scc1 L_havemax")
for qt in range(4):
    x = s_reg(0, 0, qt); y = s_reg(0, 1, qt); m = V_NEGM + qt*4
    a(f"  v_max3_f32 v{m}, v{x}, v{x+1}, v{x+2}")
    a(f"  v_max3_f32 v{m+1}, v{x+3}, v{y}, v{y+1}")
    a(f"  v_max3_f32 v{m}, v{m}, v{y+2}, v{y+3}")
    a(f"  v_max_f32 v{m}, v{m}, v{m+1}")
    xlane_reduce(m, 'v_max_f32', m+1)
    a(f"  v_xor_b32 v{m}, 0x80000000, v{m}")
    for k in range(1, 4): a(f"  v_mov_b32 v{m+k}, v{m}")
a.label("L_havemax")
a("  s_nop 7")
for kt in range(2):
    for qt in range(4):
        for r in range(4):
            s = s_reg(0, kt, qt) + r
            a(f"  v_add_f32 v{s}, v{s}, v{V_NEGM+qt*4}")
a("  s_waitcnt lgkmcnt(0)")
a("  s_barrier")
period(0, pv=False)
a(f"  s_mov_b32 s{S_LOOP}, 8")
a("  s_branch L_p1")
segs.append(('pre', i0, len(a.lines)))
a(".p2align 6")
il = len(a.lines)
a.label("L_loop")
for p in range(8, 16):
    if p == 9: a.label("L_p1")
    if p % 2 == 0: barrier_T()
    else: a("  s_waitcnt lgkmcnt(0)")
    period(p)
    if p == 14:
        a(f"  s_sub_u32 s{S_LOOP}, s{S_LOOP}, 1")
        a(f"  s_cmp_eq_u32 s{S_LOOP}, 0")
        a("  s_cbranch_scc1 L_tail")
        itail = len(a.lines)
a(f"  s_lshl_b32 s{S_T}, s{S_W}, 4")
a(f"  s_or_b32 s{S_T}, s{S_T}, s{S_LOOP}")
a(f"  s_or_b32 s{S_T}, s{S_T}, s{S_REDO}")
a(f"  s_cmp_lg_u32 s{S_T}, 6")
a("  s_cbranch_scc1 L_loop")
a(f"  v_mov_b32 v{V_T0}, 1")
a(f"  v_lshlrev_b32 v{V_T1}, 2, v{V_LANE}")
a(f"  s_lshl_b32 s{S_T}, s{S_R}, 2")
a(f"  buffer_atomic_add v{V_T0}, v{V_T1}, s[{SRD_D}:{SRD_D+3}], s{S_T} offen sc1")
a("  s_branch L_loop")
segs.append(('loop2', il, len(a.lines)))
it = len(a.lines)
a.label("L_tail")
a("  s_waitcnt lgkmcnt(0)")
a(f"  v_mov_b32 v{V_T0}, 0")
a(f"  s_lshl_b32 s{S_T}, s{S_R}, 2")
a(f"  buffer_load_dword v{V_POLL}, v{V_T0}, s[{SRD_D}:{SRD_D+3}], s{S_T} offen sc1")
produce_slot(4); produce_slot(5)
period(63, qk=False, last=True, extra=produce_list(0) + produce_list(1))
a("  s_waitcnt vmcnt(16) lgkmcnt(0)")
a("  s_barrier")
M = pv_mfmas(1, A_K) + sum_mfmas(1)
fl = produce_list(2)
for g, l in enumerate(M):
    a(l)
    if g % 2 == 0 and g//2 < len(fl): a(fl[g//2])
stamp()
for qt in range(4):
    if qt in SUMQT: continue
    xlane_reduce(V_L+qt, 'v_add_f32', V_T0)
a("  s_nop 7")
for qt in SUMQT: a(f"  v_mov_b32 v{V_L+qt}, v{ls_reg(qt)}")
a(f"  s_mov_b32 s{S_T}, {0x53800000 if not OPT['force_redo'] else 0x3f000000:#x}")
a(f"  v_cmp_ngt_f32 vcc, s{S_T}, v{V_L}")
for qt in range(1, 4):
    a(f"  v_cmp_ngt_f32 s[{S_T+2}:{S_T+3}], s{S_T}, v{V_L+qt}")
    a(f"  s_or_b64 vcc, vcc, s[{S_T+2}:{S_T+3}]")
a(f"  s_cmp_lg_u64 vcc, 0")
a(f"  s_cselect_b32 s{S_T}, 1, 0")
a(f"  s_lshl_b32 s{S_T+1}, s{S_W}, 2")
a(f"  s_add_u32 s{S_T+1}, s{S_T+1}, {RB+3*16384}")
a(f"  v_and_b32 v{V_T0}, 3, v{V_LANE}")
a(f"  v_lshlrev_b32 v{V_T0}, 12, v{V_T0}")
a(f"  v_add_u32 v{V_T0}, s{S_T+1}, v{V_T0}")
a(f"  v_mov_b32 v{V_T1}, s{S_T}")
a(f"  ds_write_b32 v{V_T0}, v{V_T1}")
for qt in range(4):
    a(f"  v_rcp_f32 v{V_NEGM+2*qt}, v{V_L+qt}")
a("  s_nop 0")
for qt in range(4):
    a(f"  v_mov_b32 v{V_NEGM+2*qt+1}, v{V_NEGM+2*qt}")
a(f"  s_lshl_b32 s{S_T}, s{S_W}, 14")
a(f"  v_add_u32 v{V_T0}, s{S_T}, v{V_L16}")
for c in range(4):
    for qt in range(4):
        t = ((c*4+qt) & 3) * 12
        for k in range(4): a(f"  v_accvgpr_read_b32 v{t+k}, a{A_O+((2*c)*4+qt)*4+k}")
        for k in range(4): a(f"  v_accvgpr_read_b32 v{t+4+k}, a{A_O+((2*c+1)*4+qt)*4+k}")
        for k in range(4): a(f"  v_pk_mul_f32 v[{t+2*k}:{t+2*k+1}], v[{t+2*k}:{t+2*k+1}], v[{V_NEGM+2*qt}:{V_NEGM+2*qt+1}]")
        for k in range(4): a(f"  v_cvt_pk_bf16_f32 v{t+8+k}, v{t+2*k}, v{t+2*k+1}")
        a(f"  ds_write_b128 v{V_T0}, v[{t+8}:{t+11}] offset:{(c*4+qt)*1024}")
a("  s_waitcnt lgkmcnt(0)")
a("  s_barrier")
a(f"  s_add_u32 s{S_T}, s{S_VM0}, {3*16384}")
a(f"  v_mov_b32 v{V_T0}, s{S_T}")
a(f"  ds_read_b128 v[0:3], v{V_T0}")
gpos[0] = 4
a("  s_waitcnt vmcnt(16)")
a_first()
a("  s_waitcnt lgkmcnt(8)")
a("  v_or_b32 v0, v0, v1")
a("  v_or3_b32 v0, v0, v2, v3")
a("  s_nop 0")
a(f"  v_readfirstlane_b32 s{S_T}, v0")
a(f"  s_andn2_b32 s{S_T}, s{S_T}, s{S_REDO}")
a("  s_cbranch_scc1 L_redo")
produce_slot(3)
stamp()
b_reload(16)
gemm_first(); gemm_call(9); set_stream('wo', 1); gemm_call(6)
store_partial(1, 0)
gemm_first(); gemm_call(9)
a(f"  v_readfirstlane_b32 s{S_T}, v{V_POLL}")
a("  s_nop 3")
a(f"  s_cmp_ge_u32 s{S_T}, 8")
a("  s_cbranch_scc1 L_spin1_done")
a(f"  v_mov_b32 v{V_T0}, 0")
a(f"  s_lshl_b32 s{S_T+2}, s{S_R}, 2")
spin("L_spin1", SRD_D, V_T0, f"s{S_T+2}", 8)
a(f"  s_mov_b32 s{SRD_X}, s{P_X}")
a(f"  s_mov_b32 s{SRD_X+1}, s{P_X+1}")
a(f"  s_mov_b32 s{SRD_X+2}, {2048*512*2}")
GL, XL, SL = 128, 192, 64
lds_ = [part_load(0, i, s_, GL + (i*8+s_)*4) for i in range(2) for s_ in range(8)]
lds_ += [[f"  buffer_load_dwordx2 v[{XL+2*k}:{XL+2*k+1}], v{V_XO}, s[{SRD_X}:{SRD_X+3}], s{S_XO} offen offset:{k*32}"] for k in range(4)]
for k in range(6):
    gemm_step(gpos[0], False, vm=lds_[4*k:4*k+4], vmw=16 if k < 5 else 63, noread=(k == 5))
    gpos[0] = (gpos[0] + 1) % NS
store_partial(1, 1)
stamp()
a("  s_waitcnt vmcnt(8)")
GA, T = 32, 48
GA, T = 16, 48
for i in range(2):
    acc = GA + 8*i
    part_sum(GL + i*32, acc, T)
    for j in range(4): rnd_pair(acc+2*j, T)
    for e in range(8): a(f"  v_mul_f32 v{T+4+e}, 0xbfb8aa3b, v{acc+e}")
    for e in range(8): a(f"  v_exp_f32 v{T+4+e}, v{T+4+e}")
    for e in range(8): a(f"  v_add_f32 v{T+4+e}, 1.0, v{T+4+e}")
    for e in range(8): a(f"  v_rcp_f32 v{T+4+e}, v{T+4+e}")
    for e in range(8): a(f"  v_mul_f32 v{acc+e}, v{acc+e}, v{T+4+e}")
    for j in range(4): rnd_pair(acc+2*j, T)
    if i == 0:
        a("  s_waitcnt vmcnt(0)")
        a("  s_barrier")
        a(f"  s_cmp_lg_u32 s{S_W}, 0")
        a("  s_cbranch_scc1 L_nosig")
        a(f"  s_mov_b32 s{SRD_D}, s{P_WS}")
        a(f"  s_mov_b32 s{SRD_D+1}, s{P_WS+1}")
        a(f"  s_lshl_b32 s{S_T}, s{S_R}, 10")
        a(f"  s_add_u32 s{S_T}, s{S_T}, {MBOX}")
        a(f"  s_add_u32 s{SRD_D+2}, s{S_T}, 1024")
        a(f"  v_mov_b32 v{V_T0}, 1")
        a(f"  v_lshlrev_b32 v{V_T1}, 7, v{V_LANE}")
        a(f"  buffer_atomic_add v{V_T0}, v{V_T1}, s[{SRD_D}:{SRD_D+3}], s{S_T} offen sc1")
        a.label("L_nosig")
stamp()
a(f"  s_lshr_b32 s{S_T+2}, s{S_PBASE}, 16")
a(f"  s_lshl_b32 s{S_T+2}, s{S_T+2}, 7")
a(f"  s_add_u32 s{S_T+2}, s{S_T+2}, {MBOX}")
a(f"  v_mov_b32 v{V_T0}, 0")
spin("L_spin2", SRD_WS, V_T0, f"s{S_T+2}", 8)
stamp()
for i in range(2):
    for s_ in range(8):
        for l in part_load(1, i, s_, SL + (i*8+s_)*4): a(l)
a(f"  s_mov_b32 s{SRD_D}, s{P_OUT}")
a(f"  s_mov_b32 s{SRD_D+1}, s{P_OUT+1}")
a(f"  s_mov_b32 s{SRD_D+2}, {2048*512*2}")
SA = 0
for i in range(2):
    a(f"  s_waitcnt vmcnt({8 if i == 0 else 2})")
    part_sum(SL + i*32, SA, T)
    for j in range(4): rnd_pair(SA+2*j, T)
    for e in range(8): a(f"  v_mul_f32 v{SA+e}, v{SA+e}, v{GA+8*i+e}")
    for j in range(4): rnd_pair(SA+2*j, T)
    for j in range(4):
        xr = XL + 4*i + j
        a(f"  v_lshlrev_b32 v{T}, 16, v{xr}")
        a(f"  v_and_b32 v{T+1}, 0xffff0000, v{xr}")
        a(f"  v_pk_add_f32 v[{T}:{T+1}], v[{T}:{T+1}], v[{SA+2*j}:{SA+2*j+1}]")
        a(f"  v_cvt_pk_bf16_f32 v{xr}, v{T}, v{T+1}")
    for k in range(2):
        a(f"  buffer_store_dwordx2 v[{XL+4*i+2*k}:{XL+4*i+2*k+1}], v{V_XO}, s[{SRD_D}:{SRD_D+3}], s{S_XO} offen offset:{(2*i+k)*32}")
if OPT['stamps']:
    a("  s_waitcnt vmcnt(0)")
    stamp()
    a(f"  s_memrealtime s[{S_T}:{S_T+1}]")
    a("  s_waitcnt lgkmcnt(0)")
    n = nstamp[0]
    for i in range(n):
        a(f"  v_writelane_b32 v0, s{S_STAMP+2*i}, {i}")
    a(f"  v_writelane_b32 v0, s{S_T}, 15")
    a(f"  v_writelane_b32 v0, s74, 14")
    a(f"  s_lshl_b32 s{S_T}, s2, 2")
    a(f"  s_add_u32 s{S_T}, s{S_T}, s{S_W}")
    a(f"  s_lshl_b32 s{S_T}, s{S_T}, 6")
    a(f"  s_add_u32 s{S_T}, s{S_T}, {STAMP_OFF}")
    a(f"  v_lshlrev_b32 v1, 2, v{V_LANE}")
    a(f"  v_cmp_gt_u32 vcc, 16, v{V_LANE}")
    a(f"  s_and_saveexec_b64 s[{S_T+2}:{S_T+3}], vcc")
    a(f"  buffer_store_dword v0, v1, s[{SRD_WS}:{SRD_WS+3}], s{S_T} offen")
a.label("L_end")
a("  s_endpgm")
segs.append(('tail', 'tailjoin', (il, itail, it, len(a.lines))))
ir = len(a.lines)
a.label("L_redo")
a(f"  s_mov_b32 s{S_REDO}, 1")
a(f"  s_mov_b32 s{S_KOFF}, s{S_KV0}")
a(f"  s_mov_b32 s{S_LOOP}, 32")
a(f"  v_mov_b32 v{V_T0}, 0xff800000")
for qt in range(4): a(f"  v_mov_b32 v{V_NEGM+qt*4}, v{V_T0}")
a.label("L_redo_loop")
a("  s_waitcnt vmcnt(0) lgkmcnt(0)")
a("  s_barrier")
k_tile_dma(0)
a("  s_waitcnt vmcnt(0)")
a("  s_barrier")
for u in range(2):
    for i in range(8): a(k_read(u, i >> 2, i & 3))
    a("  s_waitcnt lgkmcnt(0)")
    for l in qk_mfmas(0, zero=True): a(l)
    a("  s_nop 7")
    for qt in range(4):
        m = V_NEGM + qt*4
        for kt in range(2):
            x = s_reg(0, kt, qt)
            a(f"  v_max3_f32 v{m}, v{x}, v{x+1}, v{m}")
            a(f"  v_max3_f32 v{m}, v{x+2}, v{x+3}, v{m}")
a(f"  s_sub_u32 s{S_LOOP}, s{S_LOOP}, 1")
a(f"  s_cmp_lg_u32 s{S_LOOP}, 0")
a("  s_cbranch_scc1 L_redo_loop")
for qt in range(4):
    m = V_NEGM + qt*4
    xlane_reduce(m, 'v_max_f32', m+1)
    a(f"  v_xor_b32 v{m}, 0x80000000, v{m}")
    for k in range(1, 4): a(f"  v_mov_b32 v{m+k}, v{m}")
a("  s_barrier")
a(f"  s_mov_b32 s{S_KOFF}, s{S_KV0}")
a(f"  s_mov_b32 s{S_VOFF}, s{S_KV0}")
for t in range(4): k_tile_dma(t)
for t in range(2): v_tile_dma(t)
a(f"  s_mov_b32 s{S_POFF}, s{S_SV_POFF}")
a("  s_waitcnt vmcnt(0)")
a("  s_barrier")
for i in range(8): a(k_read(0, i >> 2, i & 3))
zero_o()
for l in attn_init(): a(l)
a("  s_waitcnt lgkmcnt(0)")
for l in qk_mfmas(0, zero=True): a(l)
a("  s_branch L_attn")
segs.append(('redo', ir, len(a.lines)))
a(".p2align 6")
ig = len(a.lines)
for pos in range(NS):
    a.label(f"L_gemm{pos}")
    gemm_step(pos, False, True)
    if pos < NS-1: a("  s_cbranch_scc1 L_gemm_ret")
    else: a("  s_cbranch_scc0 L_gemm0")
a.label("L_gemm_ret")
a(f"  s_setpc_b64 s[{S_RET}:{S_RET+1}]")
segs.append(('gemm2', ig, len(a.lines)))
a.label("L_code_end")

a('.section .rodata,"a"')
a(".p2align 6")
a(kernel_desc(NAME + "_kernel", 512, 102, 256))

errs = []
for s in segs:
    if s[1] == 'tailjoin':
        il_, itail_, it_, end_ = s[2]
        errs += hazard.check(a.lines[il_:itail_] + a.lines[it_:end_], 'tail')
    elif s[0].endswith('2'):
        errs += hazard.check(a.lines[s[1]:s[2]] * 2, s[0])
    else:
        errs += hazard.check(a.lines[s[1]:s[2]], s[0])
for e in errs[:40]: print("HAZ", e)
open(sys.argv[1], 'w').write(a.text())
print("written", sys.argv[1], len(a.lines), "lines;", len(errs), "hazard msgs")
```

```python
import re
import hazard
SCC = ('s', 200)
SCC_W = ('s_add', 's_sub', 's_cmp', 's_and', 's_or', 's_xor', 's_lshl', 's_lshr', 's_bitcmp', 's_bfe', 's_min', 's_max', 's_andn2', 's_not')
SCC_R = ('s_cselect', 's_addc', 's_cbranch')
def info(line):
    d = hazard.parse(line)
    op = d['op']
    d['r'] = set(d['r']); d['w'] = set(d['w'])
    if op.startswith('s_bitcmp'):
        d['r'] |= d['w']; d['w'] = set()
    if any(op.startswith(x) for x in SCC_W): d['w'].add(SCC)
    if any(op.startswith(x) for x in SCC_R): d['r'].add(SCC)
    d['fence'] = op in ('s_barrier', 's_waitcnt')
    k = d['kind']
    if k == 'mfma': d['cost'] = 8
    elif k == 'valu': d['cost'] = 8 if d['trans'] else (5 if 'cvt_pk' in op else 4)
    elif k == 'ds': d['cost'] = 8
    elif k == 'vm': d['cost'] = 16
    else: d['cost'] = 4
    return d
def need(p, d):
    raw = p['w'] & d['r']; waw = p['w'] & d['w']; war = p['r'] & d['w']
    dep = bool(raw or waw or war)
    mem = lambda x: x['kind'] in ('ds', 'vm')
    if p['kind'] == d['kind'] and mem(p): dep = True
    if (p['fence'] and (mem(d) or d['fence'])) or (d['fence'] and mem(p)): dep = True
    if not dep: return None
    n = 0
    t = d['r'] | d['w']
    if p['kind'] == 'mfma':
        if d['kind'] == 'mfma':
            if p['w'] & (d['A'] | d['B']): n = 8
            if (p['w'] & d['C'] and p['w'] != d['C']) or (p['w'] & d['w'] and p['w'] != d['C']): n = 8
        elif d['kind'] in ('valu', 'ds', 'vm'):
            if p['w'] & t: n = 8
            if d['kind'] == 'valu' and p['C'] & d['w']: n = max(n, 3)
    if p['kind'] == 'valu':
        vw = {x for x in p['w'] if x[0] != 's'}; sw = {x for x in p['w'] if x[0] == 's'}
        if d['kind'] == 'mfma' and vw & d['r']: n = 2
        if d['kind'] == 'valu':
            if p['trans'] and not d['trans'] and vw & d['r']: n = max(n, 1)
            if (d.get('perm') or d['dpp']) and vw & d['r']: n = max(n, 2)
            if d['rdlane'] and vw & d['r']: n = max(n, 1)
            if sw & d['r']: n = max(n, 2)
        if d['kind'] == 'vm' and sw & d['r']: n = max(n, 5)
        if d['kind'] == 'salu' and sw & d['r']: n = max(n, 3)
        if p['trans'] and d['kind'] in ('ds', 'vm') and vw & d['r']: n = max(n, 1)
    if p['kind'] == 'salu' and ('s', 124) in p['w'] and d.get('dma'): n = max(n, 1)
    if p.get('store') and len(p['store']) >= 3 and p['store'] & d['w']: n = max(n, 2)
    return n

def schedule(prog, lds_lat=140, pend=0, window=2000, vmgap=64, dswgap=48):
    I = [info(l) for l in prog if l.strip()]
    n = len(I)
    preds = [[] for _ in range(n)]
    for j in range(n):
        for i in range(max(0, j - window), j):
            k = need(I[i], I[j])
            if k is not None: preds[j].append((i, k))
    done = [None]*n
    out = []; slot = 0; t = 0; last_m = -100; after_m = False
    dsq = []
    rem = list(range(n))
    def ready(j):
        nops = 0; w = None; rt = 0
        for i, k in preds[j]:
            if done[i] is None: return (False, 0, None, 0)
            nops = max(nops, k - (slot - done[i][0] - 1))
            if I[i]['kind'] == 'ds' and i in dsq and ((I[i]['w'] & (I[j]['r'] | I[j]['w'])) or I[j]['op'] == 's_barrier'):
                w = i if w is None or dsq.index(i) > dsq.index(w) else w
                rt = max(rt, done[i][1] + lds_lat)
            if I[i]['kind'] == 'mfma' and k >= 8: rt = max(rt, done[i][1] + 36)
            if I[i]['kind'] == 'vm' and I[j]['kind'] == 'vm': rt = max(rt, done[i][1] + vmgap)
        return (True, nops, w, rt)
    def emit(j, nops, w):
        nonlocal slot, t, last_m, after_m, dsq
        if w is not None:
            idx = dsq.index(w)
            while idx + 1 < len(dsq) and done[dsq[idx+1]][1] + lds_lat <= t: idx += 1
            left = len(dsq) - idx - 1
            out.append(f"  s_waitcnt lgkmcnt({min(left, 15)})"); slot += 1; nops -= 1
            t = max(t + (0 if after_m else 4), done[w][1] + lds_lat)
            dsq = dsq[idx+1:]
        if nops > 0:
            out.append(f"  s_nop {nops-1}"); slot += nops; t += 4*nops
        d = I[j]
        if d['kind'] == 'mfma':
            t = max(t, last_m + 16); last_m = t
        done[j] = (slot, t)
        out.append("  " + d['line']); slot += 1
        c = d['cost']
        if after_m and d['kind'] not in ('valu', 'mfma'): c -= 4
        elif d['kind'] == 'ds' : c += 4
        t += c
        after_m = d['kind'] == 'mfma'
        if d['kind'] == 'ds': dsq.append(j)
        if d['op'] == 's_waitcnt' and 'lgkmcnt(0)' in d['line']: dsq = []
        rem.remove(j)
    while rem:
        cand = []
        for j in rem[:160]:
            ok, nops, w, rt = ready(j)
            if ok: cand.append((j, nops, w, rt))
        mf = next((c for c in cand if I[c[0]]['kind'] == 'mfma' and c[0] == next(x for x in rem if I[x]['kind'] == 'mfma')), None)
        free = [c for c in cand if I[c[0]]['kind'] != 'mfma' and c[1] <= 0 and c[3] <= t]
        mready = mf is not None and mf[1] <= 0 and mf[3] <= max(t, last_m + 16)
        budget = last_m + 16 - t
        pick = None
        if mready:
            if after_m:
                pick = next((c for c in free if I[c[0]]['kind'] in ('ds', 'vm')), None) or next((c for c in free if I[c[0]]['kind'] != 'valu'), None)
            if pick is None and budget > 0:
                pick = next((c for c in free if I[c[0]]['kind'] in ('valu', 'salu', 'other') and I[c[0]]['cost'] <= budget + 1), None)
            if pick is None: pick = mf
        else:
            if after_m: pick = next((c for c in free if I[c[0]]['kind'] in ('ds', 'vm')), None)
            if pick is None and free: pick = free[0]
            if pick is None: pick = min(cand, key=lambda c: (max(c[3], t + 4*c[1]), c[0]))
        emit(pick[0], pick[1], pick[2])
    return out, t
```

```python
import sys, math
from asmlib import *
import hazard
from sched import schedule

NAME = "recurrent_scan__gqa_block_cached__dense_activation_relu__prompt"
OPT = dict(stamps=0, mimic_d=1, nsum=2, force_redo=0, pf=4, ng=2, rot=1, late=8, tlb=0, spin=200000, dot=1, xnobar=0, xnodma=0, xnost=0, noredo=0, pol=0, cpos=0, n1=12, w1pf=0)
for x in sys.argv[2:]:
    k, v = x.split('='); OPT[k] = int(v)

POL = {0: '', 1: ' nt', 2: ' sc1', 3: ' sc0', 4: ' sc0 sc1', 5: ' sc1 nt'}[OPT['pol']]
a = Asm()
segs = []

S_W, S_G, S_R = 4, 5, 6
S_RET = 8
S_CNT, S_CSLOT, S_PSLOT, S_POFF, S_STA, S_STB = 10, 11, 12, 13, 14, 15
P_X, P_K, P_V, P_WQ, P_WO, P_W1, P_W2, P_WS, P_DBG, P_OUT = 16, 18, 20, 22, 24, 28, 30, 36, 34, 32
S_PLO, S_PHI = 38, 39
S_BOFF, S_BEND, S_PEND, S_PLEN, S_ROT16, S_ROT7, S_WG = 3, 7, 26, 27, 100, 101, 2
SRD_W, SRD_K, SRD_V, SRD_WS, SRD_X = 40, 44, 48, 52, 56
S_KOFF, S_VOFF, S_LOOP, S_KM0, S_VM0, S_PBASE, S_REDO = 60, 61, 62, 63, 64, 65, 66
S_SV_POFF, S_KV0 = 68, 69
S_SP = 94
S_T = 70
S_STAMP = 76

V_ACC, V_A, V_B = 0, 64, 96
V_S, V_P, V_NEGM, V_L, V_LS, V_ONES = 0, 64, 96, 112, 116, 124
V_H = 176
V_PROW, V_PSWZ, V_LANE, V_L16, V_T0, V_T1, V_BA = 208, 209, 210, 211, 212, 213, 214
V_KA, V_VA, V_KD, V_VD, V_PD, V_AA = 216, 220, 228, 232, 236, 240
A_O, A_Q, A_K, A_V = 0, 128, 192, 224
RB = 65536
NS = 6
PART_KIND = 16 << 20
STAMP_OFF = 48 << 20
MBOX = 40 << 20
SRD_D = 96
S_FB, S_XO = 11, 12
V_XO = 215
V_POLL = 234
V_RSO, V_RS = 235, 160
import struct
CSH = struct.unpack('<I', struct.pack('<f', (128 ** -0.5) * math.log2(math.e)))[0]
V_ONE_LO, V_ONE_HI, V_ZERO = 232, 233, 209

nstamp = [0]
def stamp(lvl=1):
    if OPT['stamps'] == lvl or (OPT['stamps'] and lvl == 0):
        i = nstamp[0]
        if i >= 9: return
        nstamp[0] += 1
        a(f"  s_memtime s[{S_STAMP+2*i}:{S_STAMP+2*i+1}]")

def capture(fn):
    i = len(a.lines); fn(); L = a.lines[i:]; del a.lines[i:]
    return [l for l in L if l.strip() and not l.strip().startswith('s_nop') and not l.strip().startswith(';')]
def emit_sched(prog, name):
    out, t = schedule(prog)
    for l in out: a(l)
    print(f"  sched {name}: {len(out)} instrs, est {t} cycles")
def mf(d, A, B, C, dt='v', at='v', bt='v'):
    c = '0' if C is None else f"{dt}[{C}:{C+3}]"
    return f"  v_mfma_f32_16x16x32_bf16 {dt}[{d}:{d+3}], {at}[{A}:{A+3}], {bt}[{B}:{B+3}], {c}"

def prod_m0(pos):
    return [f"  s_add_u32 m0, s{S_VM0}, {pos*16384}"]
def prod_dma(n):
    return f"  buffer_load_dwordx4 v{V_PD+n}, s[{SRD_W}:{SRD_W+3}], s{S_POFF} offen offset:{n*1024}{POL} lds"
def prod_adv():
    return [f"  s_add_u32 s{S_POFF}, s{S_POFF}, s{S_STA}",
            f"  s_cmp_eq_u32 s{S_POFF}, s{S_PLEN}",
            f"  s_cselect_b32 s{S_POFF}, 0, s{S_POFF}"]
def produce_list(pos):
    return prod_m0(pos) + prod_adv() + [prod_dma(n) for n in range(4)]
def produce_slot(pos):
    for l in produce_list(pos): a(l)

def set_stream(kind, half=0):
    if kind == 'null':
        a(f"  s_mov_b32 s{SRD_W+2}, 0"); return
    if half == 1:
        for n in range(4): a(f"  v_add_u32 v{V_PD+n}, 128, v{V_PD+n}")
        return
    ptr, size, stride = dict(w1=(P_W1, 512*1792*2, 3584), wq=(P_WQ, 512*4096*2, 8192), w2=(P_W2, 1792*512*2, 1024),
                             wo=(P_WO, 4096*512*2, 1024), v=(P_V, 8*2048*128*2, 0))[kind]
    a(f"  s_mov_b32 s{SRD_W}, s{ptr}")
    a(f"  s_mov_b32 s{SRD_W+1}, s{ptr+1}")
    a(f"  s_mov_b32 s{SRD_W+2}, {size}")
    if kind == 'v':
        for n in range(4): a(f"  v_mov_b32 v{V_PD+n}, v{V_VD+(n&1)}")
        a(f"  s_sub_u32 s{S_POFF}, s{S_KV0}, 16384")
        a(f"  s_mov_b32 s{S_STA}, 16384")
        a(f"  s_mov_b32 s{S_PLEN}, -1")
        return
    a(f"  s_mov_b32 s{S_T}, {stride}")
    a(f"  v_mad_u32_u24 v{V_PD}, v{V_PROW}, s{S_T}, v{V_PSWZ}")
    gm, wsft = dict(w1=(448, 7), wq=(1024, 8), w2=(224*1024, 8), wo=(512*1024, 8))[kind]
    a(f"  s_mul_i32 s{S_T}, s{S_G}, {gm}")
    a(f"  s_lshl_b32 s{S_T+1}, s{S_W}, {wsft}")
    a(f"  s_add_u32 s{S_T}, s{S_T}, s{S_T+1}")
    a(f"  v_add_u32 v{V_PD}, s{S_T}, v{V_PD}")
    for n in range(1, 4): a(f"  v_add_u32 v{V_PD+n}, {n*(8*stride-1024)}, v{V_PD}")
    nst = 7 if kind == 'w2' else 16
    a(f"  s_mov_b32 s{S_STA}, {32*stride}")
    a(f"  s_mov_b32 s{S_PLEN}, {nst*32*stride}")
    a(f"  s_mul_i32 s{S_POFF}, s{S_ROT7 if nst == 7 else S_ROT16}, {32*stride}")
    a(f"  s_sub_u32 s{S_POFF}, s{S_POFF}, s{S_STA}")

def b_adv():
    return [f"  s_add_u32 s{S_BOFF}, s{S_BOFF}, 4096",
            f"  s_cmp_eq_u32 s{S_BOFF}, s{S_BEND}",
            f"  s_cselect_b32 s{S_BOFF}, 0, s{S_BOFF}",
            f"  v_add_u32 v{V_BA}, s{S_BOFF}, v{V_L16}"]
def a_read(slot, nt, rd):
    d = V_A + (slot & 1)*16 + nt*4 + rd*2
    return f"  ds_read_b64_tr_b16 v[{d}:{d+1}], v{V_AA+nt+4*(slot//3)} offset:{(slot%3)*16384+rd*2048}"
def b_read(par, qt):
    d = V_B + par*16 + qt*4
    return f"  ds_read_b128 v[{d}:{d+3}], v{V_BA} offset:{qt*1024}"

def gemm_step(pos, first, loop=False, vm=None, vmw=16, noread=False, fillv=None, xvm=None):
    a(f"  s_waitcnt vmcnt({vmw}) lgkmcnt(0)")
    par = pos & 1; nx = (pos + 1) % NS
    mem = [b_read(par ^ 1, qt) for qt in range(4)] + [a_read(nx, nt, rd) for nt in range(4) for rd in range(2)] + [prod_dma(n) for n in range(4)]
    ex = [[] for _ in range(16)]
    ba = b_adv(); pa = prod_adv()
    for i in range(4): ex[i].append(ba[i])
    if vm is None:
        for i in range(3): ex[4+i].append(pa[i])
        ex[7] += prod_m0(pos)
    else:
        for i in range(4):
            mem[12+i] = vm[i][-1] if i < len(vm) else ""
            if i < len(vm): ex[11+i] += vm[i][:-1]
    if noread:
        for i in range(12): mem[i] = ""
        for i in range(11): ex[i] = []
    if xvm:
        for g_, l in xvm: ex[g_].append(l)
    if fillv:
        for i, l in enumerate(fillv): ex[i].append(l)
    if loop: ex[11].append(f"  s_sub_u32 s{S_CNT}, s{S_CNT}, 1")
    for nt in range(4):
        for qt in range(4):
            acc = V_ACC + (nt*4+qt)*4
            a(mf(acc, V_A+par*16+nt*4, V_B+par*16+qt*4, None if first else acc))
            a(mem[nt*4+qt])
            for l in ex[nt*4+qt]: a(l)

gpos = [4]
def gemm_call(n):
    a(f"  s_mov_b32 s{S_CNT}, {n-1}")
    a(f"  s_call_b64 s[{S_RET}:{S_RET+1}], L_gemm{gpos[0]}")
    gpos[0] = (gpos[0] + n) % NS
def gemm_first():
    gemm_step(gpos[0], True)
    gpos[0] = (gpos[0] + 1) % NS
def b_reload(nst, wait=True):
    if wait: a("  s_waitcnt lgkmcnt(0)")
    a(f"  s_lshl_b32 s{S_BOFF}, s{S_ROT7 if nst == 7 else S_ROT16}, 12")
    a(f"  s_mov_b32 s{S_BEND}, {nst*4096}")
    a(f"  v_add_u32 v{V_BA}, s{S_BOFF}, v{V_L16}")
    for qt in range(4): a(b_read(gpos[0] & 1, qt))
    for l in b_adv(): a(l)
def a_first():
    for nt in range(4):
        for rd in range(2): a(a_read(gpos[0], nt, rd))

def store_partial(kind, half, dst=None, defer=False, sreg=S_T):
    a("  s_nop 5")
    a(f"  s_add_u32 s{sreg}, s{S_PBASE}, {kind*PART_KIND + half*8192}")
    a(f"  s_add_u32 s{sreg+1}, s{sreg}, 4096")
    st = []
    for c in range(2):
        for qt in range(4):
            x = V_ACC + ((2*c)*4+qt)*4; y = V_ACC + ((2*c+1)*4+qt)*4
            d = x if dst is None else (dst[c*4+qt] if isinstance(dst, list) else dst + (c*4+qt)*4)
            a(f"  v_cvt_pk_bf16_f32 v{d}, v{x}, v{x+1}")
            a(f"  v_cvt_pk_bf16_f32 v{d+1}, v{x+2}, v{x+3}")
            a(f"  v_cvt_pk_bf16_f32 v{d+2}, v{y}, v{y+1}")
            a(f"  v_cvt_pk_bf16_f32 v{d+3}, v{y+2}, v{y+3}")
            l = f"  buffer_store_dwordx4 v[{d}:{d+3}], v{V_L16}, s[{SRD_WS}:{SRD_WS+3}], s{sreg+c} offen offset:{qt*1024} sc1"
            if defer: st.append(l)
            else: a(l)
    if not defer: a("  s_nop 1")
    return st

def spin(label, srd, voff, soff, target):
    a(f"  s_mov_b32 s{S_T+1}, {OPT['spin']}")
    a.label(label)
    a(f"  buffer_load_dword v{V_POLL}, v{voff}, s[{srd}:{srd+3}], {soff} offen sc1")
    a("  s_waitcnt vmcnt(0)")
    a(f"  v_readfirstlane_b32 s{S_T}, v{V_POLL}")
    a(f"  s_sub_u32 s{S_T+1}, s{S_T+1}, 1")
    a(f"  s_cbranch_scc1 {label}_done")
    a(f"  s_cmp_lt_u32 s{S_T}, {target}")
    a(f"  s_cbranch_scc1 {label}")
    a.label(label + "_done")

def part_load(kind, i, src, d, t='v'):
    return [f"  s_add_u32 s{S_T+2}, s{S_FB}, {kind*PART_KIND + src*65536 + i*8192}",
            f"  buffer_load_dwordx4 {t}[{d}:{d+3}], v{V_L16}, s[{SRD_WS}:{SRD_WS+3}], s{S_T+2} offen sc1"]
def part_sum(base, acc, T, vm0=None):
    for s_ in range(8):
        if vm0 is not None and s_ % 2 == 0: a(f"  s_waitcnt vmcnt({vm0-s_-1})")
        d = base + s_*4
        for j in range(4):
            lo, hi = acc+2*j, acc+2*j+1
            if s_ == 0:
                a(f"  v_lshlrev_b32 v{lo}, 16, v{d+j}")
                a(f"  v_and_b32 v{hi}, 0xffff0000, v{d+j}")
            elif OPT['dot']:
                a(f"  v_dot2c_f32_bf16 v{lo}, v{d+j}, v{V_ONE_LO}")
                a(f"  v_dot2c_f32_bf16 v{hi}, v{d+j}, v{V_ONE_HI}")
            else:
                t = T + 2*(j & 1)
                a(f"  v_lshlrev_b32 v{t}, 16, v{d+j}")
                a(f"  v_and_b32 v{t+1}, 0xffff0000, v{d+j}")
                a(f"  v_pk_add_f32 v[{lo}:{hi}], v[{lo}:{hi}], v[{t}:{t+1}]")
    if OPT['dot']: a("  s_nop 2")
def rnd_pair(r, T):
    a(f"  v_cvt_pk_bf16_f32 v{T}, v{r}, v{r+1}")
    a(f"  v_lshlrev_b32 v{r}, 16, v{T}")
    a(f"  v_and_b32 v{r+1}, 0xffff0000, v{T}")

def kslot(t): return (t + 2) & 3
def k_read(unit, kt, ds, dst=A_K):
    off = kslot(unit >> 1)*16384 + (unit & 1)*8192 + kt*4096
    d = dst + (kt*4+ds)*4
    return f"  ds_read_b128 a[{d}:{d+3}], v{V_KA+ds} offset:{off}"
def v_read(unit, dt, rd, dst=A_V):
    off = ((unit >> 1) & 3)*16384 + (unit & 1)*8192 + rd*4096
    d = dst + dt*4 + rd*2
    return f"  ds_read_b64_tr_b16 a[{d}:{d+1}], v{V_VA+dt} offset:{off}"
def k_dma(n):
    return f"  buffer_load_dwordx4 v{V_KD+n}, s[{SRD_K}:{SRD_K+3}], s{S_KOFF} offen offset:{n*1024}{POL} lds"
def v_dma(n):
    return f"  buffer_load_dwordx4 v{V_VD+(n&1)}, s[{SRD_V}:{SRD_V+3}], s{S_VOFF} offen offset:{n*1024}{POL} lds"
def k_tile_dma(t):
    a(f"  s_add_u32 m0, s{S_KM0}, {kslot(t)*16384}")
    a(f"  s_nop 0")
    for n in range(4): a(k_dma(n))
    a(f"  s_add_u32 s{S_KOFF}, s{S_KOFF}, 16384")
def v_tile_dma(t):
    a(f"  s_add_u32 m0, s{S_VM0}, {(t&3)*16384}")
    a(f"  s_nop 0")
    for n in range(4): a(v_dma(n))
    a(f"  s_add_u32 s{S_VOFF}, s{S_VOFF}, 16384")

NSUM = OPT['nsum']
SUMQT = {0: [], 2: [2, 3], 4: [0, 1, 2, 3]}[NSUM]
TORDER = [(0,0),(0,2),(0,1),(0,3),(1,0),(1,2),(1,1),(1,3)]
def s_reg(b, kt, qt): return V_S + b*32 + (kt*4+qt)*4
def qk_mfmas(b, zero=False, order=None, src=A_K):
    L = []
    for kt, qt in (order or TORDER):
        d = s_reg(b, kt, qt)
        for ds in range(4):
            C = d if ds else (None if zero else V_NEGM + qt*4)
            L.append(mf(d, src+(kt*4+ds)*4, A_Q+(qt*4+ds)*4, C, 'v', 'a', 'a'))
    return L
def ls_reg(qt):
    return V_LS + SUMQT.index(qt)*4 if NSUM == 2 else 160 + qt*4
def pv_mfmas(b, src=A_V, zero=False):
    L = []
    for dt in range(8):
        for qt in range(4):
            d = A_O + (dt*4+qt)*4
            L.append(mf(d, src+dt*4, V_P+b*16+qt*4, None if zero else d, 'a', 'a', 'v'))
    return L
def sm_ops(b, qt):
    L = []
    for kt in range(2):
        for r in range(4):
            s_ = s_reg(b, kt, qt) + r
            L.append(f"  v_exp_f32 v{s_}, v{s_}")
            if qt not in SUMQT: L.append(f"  v_add_f32 v{V_L+qt}, v{V_L+qt}, v{s_}")
            if r & 1: L.append(f"  v_cvt_pk_bf16_f32 v{V_P+b*16+qt*4+kt*2+(r>>1)}, v{s_-1}, v{s_}")
    return L
def sum_mfmas(b):
    return [mf(ls_reg(qt), V_ONES, V_P+b*16+qt*4, ls_reg(qt)) for qt in SUMQT]

def period(p, qk=True, pv=True, last=False, extra=None, dma=None, tailvm=None, zero=False):
    b = p & 1
    M = (qk_mfmas(b ^ 1) if qk else [None]*32) + ((pv_mfmas(b ^ 1, zero=zero) + sum_mfmas(b ^ 1)) if pv else [None]*(32+NSUM))
    ng = len(M)
    pre = [[] for _ in range(ng)]
    post = [[] for _ in range(ng)]
    mem = [None]*ng
    cap = [0]*ng
    exps = []
    for kt, qt in TORDER:
        for r in range(4): exps.append((kt, qt, r))
    for g in range(ng):
        cap[g] = 0 if (g < 64 and g % 2 == 0) else 2
    if pv:
        for i in range(16):
            mem[2*i+1] = v_read(p-1, i >> 1, i & 1); cap[2*i+1] = 1
    kpos = [0,1,2,4,5,6,8,9]; dpos = [3,7,11,15]
    if last:
        for i in range(16):
            mem[33+2*i] = v_read(p, i >> 1, i & 1, A_K); cap[33+2*i] = 1
    else:
        for i, j in enumerate(kpos):
            mem[33+2*j] = k_read(p+2, i >> 2, i & 3); cap[33+2*j] = 1
        T = p >> 1
        for n, j in enumerate(dpos):
            mem[33+2*j] = (k_dma(n) if b == 0 else v_dma(n)) if not OPT['xnodma'] else None; cap[33+2*j] = 0
        if dma is not None:
            for n, j in enumerate(dpos):
                mem[33+2*j] = dma[n][-1]; pre[32+2*j] += dma[n][:-1]
        elif b == 0:
            pre[34].append(f"  s_add_u32 m0, s{S_KM0}, {kslot(T)*16384}")
            (pre if NSUM else post)[ng-1].append(f"  s_add_u32 s{S_KOFF}, s{S_KOFF}, 16384")
        else:
            pre[34].append(f"  s_add_u32 m0, s{S_VM0}, {((T+2)&3)*16384}")
            (pre if NSUM else post)[ng-1].append(f"  s_add_u32 s{S_VOFF}, s{S_VOFF}, 16384")
    if extra:
        for k, l in enumerate(extra): pre[2*k] += l
    if tailvm:
        for g_, l in zip((65, 64, 61), tailvm):
            pre[58] += l[:-1]; post[g_].append(l[-1])
    if pv:
        if qk:
            pre[30].append("  s_waitcnt lgkmcnt(3)")
            nk = sum(1 for g in range(32, 54) if mem[g] and mem[g].lstrip().startswith('ds_'))
            pre[54].append(f"  s_waitcnt lgkmcnt({nk})")
    q = []
    for g in range(ng):
        if g == 32 and pv and not qk: a("  s_waitcnt lgkmcnt(0)")
        if M[g]: a(M[g])
        for l in pre[g]: a(l)
        if mem[g]: a(mem[g])
        for l in post[g]: a(l)
        if g < 64 and g % 2 == 0:
            kt, qt, r = exps[g//2]
            s = s_reg(b, kt, qt) + r
            a(f"  v_exp_f32 v{s}, v{s}")
            if not M[g+1] and not mem[g+1] and not pre[g+1] and not q: a("  s_nop 0")
            if qt not in SUMQT: q.append(f"  v_add_f32 v{V_L+qt}, v{V_L+qt}, v{s}")
            if r & 1: q.append(f"  v_cvt_pk_bf16_f32 v{V_P+b*16+qt*4+kt*2+(r>>1)}, v{s-1}, v{s}")
        else:
            n = cap[g] if g < ng-1 else 99
            if NSUM == 0 and len(q) > 1: n = max(n, len(q) - 1) if cap[g] else 0
            if g == ng-1: n = 99
            while n > 0 and q:
                a(q.pop(0)); n -= 1
    assert not q

def barrier_T(n=8):
    a(f"  s_waitcnt vmcnt({n}) lgkmcnt(0)")
    if not OPT['xnobar']: a("  s_barrier")

def xlane_reduce(reg, op, tmp):
    a(f"  v_mov_b32 v{tmp}, v{reg}")
    a("  s_nop 1")
    a(f"  v_permlane32_swap_b32 v{reg}, v{tmp}")
    a(f"  {op} v{reg}, v{reg}, v{tmp}")
    a(f"  v_mov_b32 v{tmp}, v{reg}")
    a("  s_nop 1")
    a(f"  v_permlane16_swap_b32 v{reg}, v{tmp}")
    a(f"  {op} v{reg}, v{reg}, v{tmp}")

def prefetch_groups():
    J, O = S_T+4, S_T
    X = SRD_X
    cnt = [0]
    def srd(ptr, size):
        return [f"  s_mov_b32 s{X}, s{ptr}", f"  s_mov_b32 s{X+1}, s{ptr+1}", f"  s_mov_b32 s{X+2}, {size}"]
    def ld(v, off=0):
        cnt[0] += 1
        return [f"  buffer_load_dword a{A_K+cnt[0]}, v{v}, s[{X}:{X+3}], s{O} offen offset:{off}"]
    NG = OPT['ng']; NW = 128 // NG
    G = {}
    jj = [f"  s_and_b32 s{O}, s{S_R}, {32//NG-1}", f"  s_lshl_b32 s{O}, s{O}, 2", f"  s_add_u32 s{O}, s{O}, s{S_W}"]
    rows = 4*NG
    L = jj + [f"  s_mul_i32 s{O}, s{O}, {rows*8192}", f"  s_lshl_b32 s{O+1}, s{S_G}, 10", f"  s_add_u32 s{O}, s{O}, s{O+1}",
              f"  v_and_b32 v249, 7, v{V_LANE}", f"  v_lshlrev_b32 v249, 7, v249", f"  v_lshl_add_u32 v249, v{V_PROW}, 13, v249"] + srd(P_WQ, 512*4096*2) + ld(249)
    for k in range(1, (rows + 7)//8):
        L += [f"  s_add_u32 s{O}, s{O}, {8*8192}"] + ld(249)
    G['wq'] = L
    G['w2'] = jj + [f"  s_mul_i32 s{O}, s{O}, {1792*NG}", f"  s_mul_i32 s{O+1}, s{S_G}, {224*1024}", f"  s_add_u32 s{O}, s{O}, s{O+1}",
                    f"  v_mul_u32_u24 v250, {32*NG}, v{V_LANE}"] + srd(P_W2, 512*1792*2) + ld(250)
    L = [f"  v_lshlrev_b32 v251, 6, v{V_LANE}", f"  s_and_b32 s{O}, s{S_R}, 3", f"  s_lshl_b32 s{O}, s{O}, 14", f"  s_add_u32 s{O}, s{O}, s{S_KV0}"]
    G['kv'] = L + srd(P_K, 4 << 20) + ld(251) + srd(P_V, 4 << 20) + ld(251)
    G['ws'] = [f"  v_and_b32 v252, 1, v{V_LANE}", f"  v_lshlrev_b32 v252, 24, v252", f"  s_mov_b32 s{O}, s{S_PBASE}"] + srd(P_WS, 64 << 20) + ld(252)
    G['mb'] = [f"  v_and_b32 v255, 31, v{V_LANE}", f"  v_lshlrev_b32 v255, 2, v255", f"  v_mov_b32 v{V_POLL}, 0",
               f"  s_lshr_b32 s{O}, s{S_PBASE}, 16", f"  s_lshl_b32 s{O}, s{O}, 7", f"  s_add_u32 s{O}, s{O}, {MBOX}",
               f"  buffer_store_dword v{V_POLL}, v255, s[{SRD_WS}:{SRD_WS+3}], s{O} offen sc1"]
    L = jj + [f"  s_mul_i32 s{O}, s{O}, {4096*NG}", f"  s_lshl_b32 s{O+1}, s{S_G}, 19", f"  s_add_u32 s{O}, s{O}, s{O+1}",
              f"  v_lshlrev_b32 v253, {6 if NG == 1 else 7}, v{V_LANE}"] + srd(P_WO, 4 << 20)
    L += [f"  buffer_load_dword v254, v253, s[{X}:{X+3}], s{O} offen"]
    if NG == 4: L += [f"  s_add_u32 s{O}, s{O}, 8192", f"  buffer_load_dword v255, v253, s[{X}:{X+3}], s{O} offen"]
    G['wo'] = L
    return G
def nloads(L): return sum(1 for l in L if l.lstrip().startswith('buffer_'))

hdr = open('cdna_kernels/%s.s.ref' % NAME).read().split('\n')
for l in hdr:
    if l.startswith('; Override') or '@launch' in l or l.startswith('; grid=ceil'): continue
    if l.startswith(';'): a(l)
    else: break
a("; @launch grid=(256,1,1) block=(256,1,1) lds=163840")
a('.amdgcn_target "amdgcn-amd-amdhsa--gfx950"')
a(".text")
a(kernel_header(NAME + "_kernel"))
i0 = len(a.lines)
NG = OPT['ng']; LG = {1: 0, 2: 1, 4: 2, 8: 3}[NG]
L = V_LANE
C_ = SRD_V
a(f"""
  s_cmp_ge_u32 s2, 256
  s_cbranch_scc1 L_end
  s_load_dwordx16 s[16:31], s[0:1], 0
  s_load_dwordx2 s[{P_WS}:{P_WS+1}], s[0:1], 80
  s_load_dwordx4 s[{P_OUT}:{P_OUT+3}], s[0:1], 64
  s_getpc_b64 s[{C_}:{C_+1}]
L_pc:
  s_lshr_b32 s{S_T+1}, s2, 3
  s_mov_b32 s{C_+2}, L_code_end-L_pc
  s_mov_b32 s{C_+3}, 0x20000
  s_lshl_b32 s{S_T+2}, s{S_T+1}, 11
  v_lshlrev_b32 v2, 3, v0
""")
CPF = f"  buffer_load_dword a{A_K}, v2, s[{C_}:{C_+3}], s{S_T+2} offen"
if OPT['cpos'] == 0: a(CPF)
stamp(0)
if OPT['stamps']: a("  s_memrealtime s[74:75]")
a(f"""
  s_lshr_b32 s{S_ROT16}, s{S_T+1}, {LG}
  s_bfe_u32 s{S_T}, s2, {(LG << 16) | (3-LG)}
  s_lshl_b32 s{S_T}, s{S_T}, {5-LG}
  s_add_u32 s{S_R}, s{S_ROT16}, s{S_T}
  s_lshl_b32 s{S_T}, s{S_R}, 16
  v_lshrrev_b32 v4, 2, v0
  v_lshlrev_b32 v4, 10, v4
  v_and_b32 v5, 3, v0
  v_lshl_add_u32 v{V_T0}, v5, 4, v4
  s_mov_b32 s{SRD_X+2}, {2048*512*2}
  s_mov_b32 s{SRD_X+3}, 0x20000
  s_and_b32 s{S_G}, s2, {8//NG-1}
  s_lshl_b32 s{S_G}, s{S_G}, {LG}
  s_and_b32 s{S_T+3}, s{S_T+1}, {NG-1}
  s_add_u32 s{S_G}, s{S_G}, s{S_T+3}
  s_mov_b32 s{SRD_W+2}, {512*1792*2}
  s_mov_b32 s{SRD_W+3}, 0x20000
  s_mul_i32 s{S_T+3}, s{S_ROT16}, {16*NG*3584}
  s_mul_i32 s{S_CNT}, s{S_G}, 448
  s_add_u32 s{S_T+3}, s{S_T+3}, s{S_CNT}
  s_movk_i32 s{S_CNT}, 3584
  v_lshrrev_b32 v4, {4-LG}, v0
  v_and_b32 v5, {(16>>LG)-1}, v0
  v_lshlrev_b32 v5, {5+LG}, v5
  v_mad_u32_u24 v3, v4, s{S_CNT}, v5
  s_waitcnt lgkmcnt(0)
  s_mov_b32 s{SRD_W}, s{P_W1}
  s_mov_b32 s{SRD_W+1}, s{P_W1+1}
  s_mov_b32 s{SRD_X}, s{P_X}
  s_mov_b32 s{SRD_X+1}, s{P_X+1}
""")
W1PF = f"  buffer_load_dword a{A_V}, v3, s[{SRD_W}:{SRD_W+3}], s{S_T+3} offen"
def tlb_touch():
    a(f"  s_and_b32 s{S_CNT}, s{S_T+1}, 7")
    tl = [(P_W1, 0), (P_WQ, 0), (P_WQ, 1 << 21), (P_W2, 0), (P_K, 'g'), (P_V, 'g'), (P_WO, 'g'), (P_WS, MBOX)]
    a(f"  s_lshl_b32 s60, s{S_G}, 19")
    for k, (p, off) in enumerate(tl):
        a(f"  s_cmp_eq_u32 s{S_CNT}, {k}")
        if k == 0:
            a(f"  s_mov_b64 s[62:63], s[{p}:{p+1}]"); a("  s_mov_b32 s61, 0")
        else:
            a(f"  s_cselect_b64 s[62:63], s[{p}:{p+1}], s[62:63]")
            a(f"  s_cselect_b32 s61, {'s60' if off == 'g' else off}, s61")
    a(f"  s_load_dword s67, s[62:63], s61")
if OPT['w1pf'] == 1: a(W1PF)
for j in range(16):
    a(f"  buffer_load_dwordx4 v[{4*j+64}:{4*j+67}], v{V_T0}, s[{SRD_X}:{SRD_X+3}], s{S_T} offen offset:{j*64}")
    if j == 1 and OPT['tlb']: tlb_touch()
if OPT['cpos'] == 1: a(CPF)
if OPT['w1pf'] == 2: a(W1PF)
a(f"""
  v_lshrrev_b32 v1, 6, v0
  v_and_b32 v{V_LANE}, 63, v0
  s_mov_b32 s{S_REDO}, 0
  v_readfirstlane_b32 s{S_W}, v1
  s_mul_i32 s{S_T}, s{S_ROT16}, 37
  s_lshr_b32 s{S_T}, s{S_T}, 8
  s_mul_i32 s{S_T}, s{S_T}, 7
  s_sub_u32 s{S_ROT7}, s{S_ROT16}, s{S_T}
  s_lshl_b32 s{S_ROT16}, s{S_ROT16}, {max(LG-1,0)}
  s_and_b32 s{S_ROT16}, s{S_ROT16}, 15
  v_lshlrev_b32 v{V_L16}, 4, v{L}
  v_lshrrev_b32 v{V_PROW}, 3, v{L}
  v_lshrrev_b32 v1, 4, v{L}            ; G
  v_lshlrev_b32 v2, 1, v1              ; G<<1
  v_and_b32 v3, 7, v{L}
  v_xor_b32 v3, v3, v2
  v_lshlrev_b32 v{V_PSWZ}, 4, v3
  s_lshl_b32 s{S_KM0}, s{S_W}, 12
  s_add_u32 s{S_VM0}, s{S_KM0}, {RB}
""")
PFG = prefetch_groups()
set_stream('w1')
a(f"""
  s_mov_b32 s{SRD_K}, s{P_K}
  s_mov_b32 s{SRD_K+1}, s{P_K+1}
  s_add_u32 s{S_T}, s{S_G}, 1
  s_lshl_b32 s{SRD_K+2}, s{S_T}, 19
  s_mov_b32 s{SRD_K+3}, 0x20000
  s_mov_b32 s{SRD_V}, s{P_V}
  s_mov_b32 s{SRD_V+1}, s{P_V+1}
  s_mov_b32 s{SRD_V+2}, s{SRD_K+2}
  s_mov_b32 s{SRD_V+3}, 0x20000
  s_mov_b32 s{SRD_WS}, s{P_WS}
  s_mov_b32 s{SRD_WS+1}, s{P_WS+1}
  s_mov_b32 s{SRD_WS+2}, {64<<20}
  s_mov_b32 s{SRD_WS+3}, 0x20000
  s_lshl_b32 s{S_KV0}, s{S_G}, 19
  s_add_u32 s{S_KV0}, s{S_KV0}, s{S_KM0}
  s_mov_b32 s{S_KOFF}, s{S_KV0}
  s_lshl_b32 s{S_PBASE}, s{S_R}, 3
  s_add_u32 s{S_PBASE}, s{S_PBASE}, s{S_G}
  s_lshl_b32 s{S_PBASE}, s{S_PBASE}, 16
  s_lshl_b32 s{S_T}, s{S_W}, 14
  s_add_u32 s{S_PBASE}, s{S_PBASE}, s{S_T}
  ; v1 = G, v6 = i = l&15
  v_and_b32 v6, 15, v{L}
  v_xor_b32 v7, v6, v1
""")
for n in range(4):
    a(f"  v_xor_b32 v8, {4*n}, v7")
    a(f"  v_lshlrev_b32 v8, 4, v8")
    a(f"  v_lshl_add_u32 v{V_KD+n}, v1, 8, v8")
for n in range(2):
    a(f"  v_xor_b32 v8, v6, v2")
    if n: a(f"  v_xor_b32 v8, 8, v8")
    a(f"  v_lshlrev_b32 v8, 4, v8")
    a(f"  v_lshl_add_u32 v{V_VD+n}, v1, 8, v8")
a(f"""
  v_and_b32 v8, 1, v1
  v_lshlrev_b32 v8, 1, v8
  v_lshrrev_b32 v9, 1, v1
  v_or_b32 v8, v8, v9
  v_xor_b32 v8, v8, v6
""")
for ds in range(4):
    a(f"  v_xor_b32 v9, {4*ds}, v8")
    a(f"  v_lshlrev_b32 v9, 4, v9")
    a(f"  v_lshl_add_u32 v{V_KA+ds}, v6, 8, v9")
a(f"""
  v_lshrrev_b32 v8, 2, v6
  v_lshl_add_u32 v8, v1, 2, v8         ; row
  v_and_b32 v9, 3, v6
  v_lshlrev_b32 v9, 3, v9              ; (i&3)*8
  v_lshl_add_u32 v10, v8, 8, v9
  v_add_u32 v10, {RB}, v10
  v_and_b32 v11, 7, v8
""")
for dt in range(8):
    a(f"  v_xor_b32 v12, {dt}, v11")
    a(f"  v_lshl_add_u32 v{V_VA+dt}, v12, 5, v10")
a(f"""
  v_lshl_add_u32 v10, v8, 7, v9
  v_add_u32 v10, s{S_VM0}, v10
  v_bfe_u32 v11, v8, 1, 2
""")
for nt in range(4):
    a(f"  v_xor_b32 v12, {nt}, v11")
    a(f"  v_lshl_add_u32 v{V_AA+nt}, v12, 5, v10")
    a(f"  v_add_u32 v{V_AA+4+nt}, {3*16384}, v{V_AA+nt}")
a(f"""
  v_lshrrev_b32 v8, 2, v{L}
  v_and_b32 v9, 1, v{L}
  v_lshl_add_u32 v8, v9, 5, v8
  v_lshlrev_b32 v8, 4, v8
  v_bfe_u32 v9, v{L}, 1, 1
  v_lshl_add_u32 v8, v9, 3, v8
  s_lshl_b32 s{S_T}, s{S_W}, 10
  v_add_u32 v{V_T1}, s{S_T}, v8
""")
a(f"""
  s_mov_b32 s{SRD_D}, s{P_DBG}
  s_mov_b32 s{SRD_D+1}, s{P_DBG+1}
  s_lshl_b32 s{SRD_D+2}, s{S_R}, 2
  s_add_u32 s{SRD_D+2}, s{SRD_D+2}, 4
  s_mov_b32 s{SRD_D+3}, 0x20000
  s_lshl_b32 s{S_FB}, s{S_R}, 19
  s_lshr_b32 s{S_T}, s{S_G}, 1
  s_lshl_b32 s{S_T}, s{S_T}, 14
  s_add_u32 s{S_FB}, s{S_FB}, s{S_T}
  s_and_b32 s{S_T+1}, s{S_G}, 1
  s_lshl_b32 s{S_T}, s{S_T+1}, 12
  s_add_u32 s{S_FB}, s{S_FB}, s{S_T}
  s_lshl_b32 s{S_T}, s{S_W}, 10
  s_add_u32 s{S_FB}, s{S_FB}, s{S_T}
  s_lshl_b32 s{S_XO}, s{S_R}, 16
  s_lshl_b32 s{S_T}, s{S_W}, 14
  s_add_u32 s{S_XO}, s{S_XO}, s{S_T}
  s_lshr_b32 s{S_T}, s{S_G}, 1
  s_lshl_b32 s{S_T}, s{S_T}, 8
  s_add_u32 s{S_XO}, s{S_XO}, s{S_T}
  s_lshl_b32 s{S_T}, s{S_T+1}, 6
  s_add_u32 s{S_XO}, s{S_XO}, s{S_T}
  v_lshlrev_b32 v8, 10, v6
  v_lshl_add_u32 v{V_XO}, v1, 3, v8
""")
def zero_o():
    for i in range(4): a(f"  v_mov_b32 v{204+i}, 0")
    a("  s_nop 1")
    for i in range(8): a(f"  v_mfma_f32_32x32x16_bf16 a[{A_O+16*i}:{A_O+16*i+15}], v[204:207], v[204:207], 0")
zero_o()
def dreg(e): return e if e < 64 else 64 + e
pfsel = {0: [], 2: ['kv', 'ws'], 3: ['wq', 'w2', 'kv', 'ws'], 4: ['w2', 'kv', 'ws'], 5: [], 6: ['w2', 'kv', 'ws'], 7: []}[OPT['pf']] + (['mb'] if OPT['pf'] not in (5, 7) else [])
groups = []
for s_ in range(NS-1):
    pl = produce_list((4+s_) % NS)
    groups += [pl[:5], [pl[5]], [pl[6]], [pl[7]]]
for k in pfsel: groups.append(PFG[k])
NPF = sum(nloads(PFG[k]) for k in pfsel)
SUM, SQ = 192, 196
MU, MB = 200, 202
a(f"  v_and_b32 v8, 3, v{L}")
a(f"  v_and_b32 v9, 60, v{L}")
a(f"  v_lshl_add_u32 v8, v8, 12, v9")
a(f"  s_lshl_b32 s{S_T}, s{S_W}, 6")
a(f"  s_add_u32 s{S_T}, s{S_T}, {RB+3*16384}")
a(f"  v_add_u32 v{V_BA}, s{S_T}, v8")
a(f"  s_add_u32 s{S_T}, s{S_VM0}, {3*16384}")
a(f"  v_lshl_add_u32 v{V_RSO}, v6, 2, s{S_T}")
for j in range(16):
    a(f"  s_waitcnt vmcnt({15 - j + min(j, OPT['n1']) + OPT['cpos'] + (OPT['w1pf'] == 2)})")
    if j in (0, 8, 15): stamp(3)
    if j < OPT['n1']:
        for l in groups[j]: a(l)
    for i in range(4*j, 4*j+4):
        a(f"  v_lshlrev_b32 v{dreg(2*i)}, 16, v{64+i}")
        a(f"  v_and_b32 v{dreg(2*i+1)}, 0xffff0000, v{64+i}")
    for i in range(4*j, 4*j+4):
        e = dreg(2*i); t = SUM + 2*(i & 1); q = SQ + 2*(i & 1)
        if i < 2: a(f"  v_pk_add_f32 v[{t}:{t+1}], v[{e}:{e+1}], v[{dreg(2*i+4)}:{dreg(2*i+4)+1}]")
        elif i >= 4: a(f"  v_pk_add_f32 v[{t}:{t+1}], v[{t}:{t+1}], v[{e}:{e+1}]")
        if i < 2: a(f"  v_pk_mul_f32 v[{q}:{q+1}], v[{e}:{e+1}], v[{e}:{e+1}]")
        else: a(f"  v_pk_fma_f32 v[{q}:{q+1}], v[{e}:{e+1}], v[{e}:{e+1}], v[{q}:{q+1}]")
sprinkle = groups[OPT['n1']:]
stamp(3)
for r in (SUM, SQ): a(f"  v_pk_add_f32 v[{r}:{r+1}], v[{r}:{r+1}], v[{r+2}:{r+3}]")
for r in (SUM, SQ): a(f"  v_add_f32 v{r}, v{r}, v{r+1}")
a("  s_nop 0")
for qp in ("[1,0,3,2]", "[2,3,0,1]"):
    for r in (SUM, SQ): a(f"  v_add_f32_dpp v{r}, v{r}, v{r} quad_perm:{qp} row_mask:0xf bank_mask:0xf")
    a("  s_nop 0")
a(f"""
  v_mul_f32 v{MU}, 0x3b000000, v{SUM}
  v_cvt_pk_bf16_f32 v{MB}, v{MU}, v{MU}
  v_and_b32 v{MB}, 0xffff0000, v{MB}
""")
stats = f"""  v_mul_f32 v{SQ}, 0x3b000000, v{SQ}
  v_fma_f32 v{SQ}, -v{MU}, v{MU}, v{SQ}
  v_max_f32 v{SQ}, 0, v{SQ}
  v_cvt_pk_bf16_f32 v{SQ}, v{SQ}, v{SQ}
  v_and_b32 v{SQ}, 0xffff0000, v{SQ}
  v_add_f32 v{SQ}, 0x3727c5ac, v{SQ}
  v_cvt_pk_bf16_f32 v{SQ}, v{SQ}, v{SQ}
  v_and_b32 v{SQ}, 0xffff0000, v{SQ}
  v_sqrt_f32 v{SQ}, v{SQ}
  v_cvt_pk_bf16_f32 v{SQ}, v{SQ}, v{SQ}
  v_and_b32 v{SQ}, 0xffff0000, v{SQ}
  v_rcp_f32 v{SQ}, v{SQ}
  ds_write_b32 v{V_BA}, v{SQ}""".split('\n')
for j in range(16):
    if j in (0, 8): stamp(3)
    if j >= OPT['late'] and sprinkle:
        for l in sprinkle.pop(0): a(l)
    for k in range(4):
        e = dreg(2*(4*j+k))
        a(f"  v_pk_add_f32 v[{e}:{e+1}], v[{e}:{e+1}], v[{MB}:{MB+1}] op_sel_hi:[1,0] neg_lo:[0,1] neg_hi:[0,1]")
    if j < len(stats): a(stats[j])
    for k in range(4):
        i = 4*j + k; e = dreg(2*i)
        a(f"  v_cvt_pk_bf16_f32 v{64+i}, v{e}, v{e+1}")
    a(f"  ds_write_b64 v{V_T1}, v[{64+4*j}:{65+4*j}] offset:{j*4096}")
    a(f"  ds_write_b64 v{V_T1}, v[{66+4*j}:{67+4*j}] offset:{j*4096+256}")
for g_ in sprinkle:
    for l in g_: a(l)
stamp(3)
a(f"  s_waitcnt vmcnt({4*(NS-2)+NPF}) lgkmcnt(0)")
a("  s_barrier")
stamp(3)
stamp()
for qt in range(4): a(f"  ds_read_b32 v{V_RS+qt}, v{V_RSO} offset:{qt*64}")
a(f"  s_lshl_b32 s{S_T}, s{S_W}, 6")
a(f"  v_add_u32 v{V_RSO}, s{S_T}, v{V_RSO}")
a(f"  ds_read_b32 v{V_RSO}, v{V_RSO}")
b_reload(16)
a_first()
produce_slot(3)
a(f"  s_mov_b32 s{S_T}, {CSH:#x}")
for qt in range(4): a(f"  v_mul_f32 v{V_RS+qt}, s{S_T}, v{V_RS+qt}")
gemm_first()
if OPT['pf'] in (5, 6):
    for l in PFG['wq']: a(l)
gemm_call(9); set_stream('wq', 0); gemm_call(6)
a("  s_nop 7")
for c in range(2):
    for qt in range(4):
        x = V_ACC + ((2*c)*4+qt)*4; y = V_ACC + ((2*c+1)*4+qt)*4
        d = V_H + (c*4+qt)*4
        for k, s in enumerate((x, x+2, y, y+2)):
            a(f"  v_cvt_pk_bf16_f32 v{d+k}, v{s}, v{s+1}")
        for k in range(4):
            a(f"  v_pk_max_i16 v{d+k}, v{d+k}, 0")
for half in range(2):
    gemm_first()
    if OPT['pf'] in (5, 7):
        for k in (('w2', 'kv') if half == 0 else ('ws', 'mb')):
            for l in PFG[k]: a(l)
    gemm_call(9)
    if half == 0: set_stream('wq', 1)
    else: set_stream('w2', 0)
    gemm_call(6)
    a("  s_nop 7")
    for c in range(2):
        for qt in range(4):
            x = V_ACC + ((2*c)*4+qt)*4; y = V_ACC + ((2*c+1)*4+qt)*4
            rp = V_RS + (qt & 2); md = "op_sel:[0,1] op_sel_hi:[1,1]" if qt & 1 else "op_sel_hi:[1,0]"
            for s in (x, x+2, y, y+2):
                a(f"  v_pk_mul_f32 v[{s}:{s+1}], v[{s}:{s+1}], v[{rp}:{rp+1}] {md}")
            d = 128 + (c*4+qt)*4
            for k, s in enumerate((x, x+2, y, y+2)):
                a(f"  v_cvt_pk_bf16_f32 v{d+k}, v{s}, v{s+1}")
    a("  s_nop 0")
    for c in range(2):
        for qt in range(4):
            d = 128 + (c*4+qt)*4
            a(f"  v_permlane16_swap_b32 v{d}, v{d+2}")
            a(f"  v_permlane16_swap_b32 v{d+1}, v{d+3}")
    for c in range(2):
        for qt in range(4):
            d = 128 + (c*4+qt)*4
            for k in range(4):
                a(f"  v_accvgpr_write_b32 a{A_Q+(qt*4+2*half+c)*4+k}, v{d+k}")
stamp()
a("  s_waitcnt lgkmcnt(0)")
a("  s_barrier")
a(f"  s_lshl_b32 s{S_T}, s{S_W}, 13")
a(f"  v_add_u32 v{V_T0}, s{S_T}, v{V_L16}")
for c in range(2):
    for qt in range(4):
        d = V_H + (c*4+qt)*4
        a(f"  ds_write_b128 v{V_T0}, v[{d}:{d+3}] offset:{(c*4+qt)*1024}")
k_tile_dma(0); k_tile_dma(1)
a("  s_waitcnt lgkmcnt(0)")
a("  s_barrier")
stamp(2)
b_reload(7)
gemm_first(); stamp(2); set_stream('w2', 1); gemm_call(6)
stamp(2)
st0 = store_partial(0, 0, dst=128, defer=True, sreg=S_SP)
stamp(2)
gemm_first(); stamp(2); set_stream('v'); gemm_call(2); stamp(2)
for k, w_ in enumerate((16, 12, 8, 4)):
    gemm_step(gpos[0], False, vm=[], vmw=w_, noread=(k == 3))
    gpos[0] = (gpos[0] + 1) % NS
stamp(2)
a("  s_waitcnt lgkmcnt(0)")
a("  s_barrier")
stamp(2)
stamp(); stamp(4)
if OPT['stamps']:
    a("  s_memrealtime s[38:39]")
    a("  s_waitcnt lgkmcnt(0)")
def attn_init():
    L = [f"  s_add_u32 s{S_VOFF}, s{S_KV0}, {2*16384}"]
    L += [f"  v_mov_b32 v{V_L+i}, 0" for i in range(12)]
    L += [f"  v_and_b32 v{V_T0}, 3, v{V_LANE}", f"  v_cmp_eq_u32 vcc, 0, v{V_T0}", f"  v_mov_b32 v{V_T0}, 0x3f803f80", "  s_nop 0",
          f"  v_cndmask_b32 v{V_ONES}, 0, v{V_T0}, vcc"] + [f"  v_mov_b32 v{V_ONES+i}, v{V_ONES}" for i in range(1, 4)]
    return L
QORD = [(kt, qt) for qt in range(4) for kt in range(2)]
def maxq(qt):
    x = s_reg(0, 0, qt); y = s_reg(0, 1, qt); m = V_NEGM + qt*4
    a(f"  v_max3_f32 v{m}, v{x}, v{x+1}, v{x+2}")
    a(f"  v_max3_f32 v{m+1}, v{x+3}, v{y}, v{y+1}")
    a(f"  v_max3_f32 v{m}, v{m}, v{y+2}, v{y+3}")
    a(f"  v_max_f32 v{m}, v{m}, v{m+1}")
    xlane_reduce(m, 'v_max_f32', m+1)
    for k in range(3, -1, -1): a(f"  v_sub_f32 v{m+k}, 0, v{m}")
    for kt in range(2):
        for r in range(4):
            s_ = s_reg(0, kt, qt) + r
            a(f"  v_add_f32 v{s_}, v{s_}, v{m}")
def head_common():
    L = qk_mfmas(1, order=QORD, src=A_V)
    for qt in range(4): L += sm_ops(0, qt)
    L += [k_read(2, i >> 2, i & 3) for i in range(8)] + capture(lambda: k_tile_dma(4))
    return L
KR01 = [k_read(0, i >> 2, i & 3) for i in range(8)] + [k_read(1, i >> 2, i & 3, A_V) for i in range(8)]
prog = KR01 + capture(lambda: store_partial(0, 1, dst=160, defer=True, sreg=S_SP))
prog += capture(lambda: (k_tile_dma(2), k_tile_dma(3))) + (PFG['wo'] if OPT['pf'] >= 3 else []) + ["  s_barrier"]
prog += qk_mfmas(0, zero=True, order=QORD)
prog += [l for l in attn_init() if 's_nop' not in l]
for qt in range(4): prog += capture(lambda: maxq(qt))
prog += head_common()
prog += capture(lambda: set_stream('wo', 0)) + [f"  s_mov_b32 s{S_SV_POFF}, s{S_POFF}"]
emit_sched(prog, 'head')
stamp(4)
a(f"  s_mov_b32 s{S_LOOP}, 7")
a("  s_branch L_p1")
segs.append(('pre', i0, len(a.lines)))
a(".p2align 6")
il = len(a.lines)
a.label("L_loop")
for p in range(8, 16):
    if p == 9: a.label("L_p1")
    if p % 2 == 0: barrier_T()
    else: a("  s_waitcnt lgkmcnt(0)")
    period(p)
a(f"  s_sub_u32 s{S_LOOP}, s{S_LOOP}, 1")
a(f"  s_cmp_eq_u32 s{S_LOOP}, 0")
a("  s_cbranch_scc1 L_tail")
itail = len(a.lines)
a(f"  s_cmp_lg_u32 s{S_REDO}, 0")
a("  s_cbranch_scc1 L_loop")
for k in range(4):
    a(f"  s_cmp_lg_u32 s{S_LOOP}, {6-k}")
    a(f"  s_cbranch_scc1 L_bk{k}")
    a(f"  s_add_u32 s{S_T}, s{S_PBASE}, {k*4096}")
    for qt in range(4):
        d = 128 + (k*4+qt)*4
        a(f"  buffer_store_dwordx4 v[{d}:{d+3}], v{V_L16}, s[{SRD_WS}:{SRD_WS+3}], s{S_T} offen offset:{qt*1024} sc1")
    a("  s_branch L_loop")
    a.label(f"L_bk{k}")
a(f"  s_lshl_b32 s{S_T}, s{S_R}, 2")
a(f"  s_cmp_lg_u32 s{S_LOOP}, 1")
a("  s_cbranch_scc1 L_bk4")
a(f"  v_mov_b32 v{V_T0}, 0")
a(f"  buffer_load_dword v{V_POLL}, v{V_T0}, s[{SRD_D}:{SRD_D+3}], s{S_T} offen sc1")
a("  s_branch L_loop")
a.label("L_bk4")
a(f"  s_lshl_b32 s{S_T+1}, s{S_W}, 4")
a(f"  s_or_b32 s{S_T+1}, s{S_T+1}, s{S_LOOP}")
a(f"  s_cmp_lg_u32 s{S_T+1}, 2")
a("  s_cbranch_scc1 L_loop")
a(f"  v_mov_b32 v{V_T0}, 1")
a(f"  v_lshlrev_b32 v{V_T1}, 2, v{V_LANE}")
a(f"  buffer_atomic_add v{V_T0}, v{V_T1}, s[{SRD_D}:{SRD_D+3}], s{S_T} offen sc1")
a("  s_branch L_loop")
segs.append(('loop2', il, len(a.lines)))
it = len(a.lines)
a.label("L_tail")
stamp(4)
a(f"  v_readfirstlane_b32 s{S_T}, v{V_POLL}")
a("  s_nop 3")
a(f"  s_cmp_ge_u32 s{S_T}, 8")
a("  s_cbranch_scc1 L_spin1_done")
a(f"  v_mov_b32 v{V_T0}, 0")
a(f"  s_lshl_b32 s{S_T+2}, s{S_R}, 2")
spin("L_spin1", SRD_D, V_T0, f"s{S_T+2}", 8)
gl = [part_load(0, b_ >> 3, b_ & 7, 128 + 4*b_) for b_ in range(16)]
for p in range(56, 63):
    if p % 2 == 0: barrier_T()
    else: a("  s_waitcnt lgkmcnt(0)")
    if p in (56, 58, 60, 61): period(p, dma=[gl.pop(0) for _ in range(4)])
    elif p == 62:
        ex = []
        for pos in (4, 5):
            pl = produce_list(pos); ex += [pl[:4], [pl[4]], [], [pl[5]], [], [pl[6]], [], [pl[7]]]
        period(p, last=True, extra=[[]]*16 + ex)
    else: period(p)
stamp(4)
a("  s_waitcnt lgkmcnt(0)")
prog = [v_read(63, i >> 1, i & 1) for i in range(16)] + produce_list(0) + produce_list(1) + ["  s_barrier"] + produce_list(2)
prog += pv_mfmas(0, A_K) + sum_mfmas(0)
pv = pv_mfmas(1); sm = sum_mfmas(1)
THR = 0x53800000 if not OPT['force_redo'] else 0x3f000000
prog += [f"  s_mov_b32 s{S_T}, {THR:#x}", f"  s_mov_b64 vcc, 0"]
for qt in (2, 3, 0, 1): prog += sm_ops(1, qt)
for qt in (2, 3, 0, 1):
    if qt in SUMQT: prog.append(sm[SUMQT.index(qt)])
    prog += [pv[dt*4+qt] for dt in range(8)]
for qt in (2, 3, 0, 1):
    lr = ls_reg(qt) if qt in SUMQT else V_L + qt
    if qt not in SUMQT: prog += capture(lambda: xlane_reduce(V_L+qt, 'v_add_f32', V_L+2+qt))
    prog += [f"  v_cmp_ngt_f32 s[{S_T+2}:{S_T+3}], s{S_T}, v{lr}", f"  s_or_b64 vcc, vcc, s[{S_T+2}:{S_T+3}]",
             f"  v_rcp_f32 v{V_NEGM+2*qt}, v{lr}"]
emit_sched(prog, 'tail')
stamp(); stamp(4)
if OPT['stamps']:
    a(f"  s_memrealtime s[{S_RET}:{S_RET+1}]")
    a("  s_waitcnt lgkmcnt(0)")
    a(f"  s_mov_b32 s39, s{S_RET}")
a(f"  s_cmp_lg_u64 vcc, 0")
a(f"  s_cselect_b32 s{S_T}, 1, 0")
a(f"  s_lshl_b32 s{S_T+1}, s{S_W}, 2")
a(f"  s_add_u32 s{S_T+1}, s{S_T+1}, {RB+3*16384}")
a(f"  v_and_b32 v{V_T0}, 3, v{V_LANE}")
a(f"  v_lshlrev_b32 v{V_T0}, 12, v{V_T0}")
a(f"  v_add_u32 v{V_T0}, s{S_T+1}, v{V_T0}")
a(f"  v_mov_b32 v{V_T1}, s{S_T}")
a(f"  ds_write_b32 v{V_T0}, v{V_T1}")
a(f"  s_lshl_b32 s{S_T}, s{S_W}, 14")
a(f"  v_add_u32 v{V_T0}, s{S_T}, v{V_L16}")
gpos[0] = 4
a("  s_waitcnt vmcnt(16)")
a_first()
for qt in (2, 3, 0, 1):
    for c in range(4):
        t = c * 12
        for k in range(4): a(f"  v_accvgpr_read_b32 v{t+k}, a{A_O+((2*c)*4+qt)*4+k}")
        for k in range(4): a(f"  v_accvgpr_read_b32 v{t+4+k}, a{A_O+((2*c+1)*4+qt)*4+k}")
        for k in range(4): a(f"  v_pk_mul_f32 v[{t+2*k}:{t+2*k+1}], v[{t+2*k}:{t+2*k+1}], v[{V_NEGM+2*qt}:{V_NEGM+2*qt+1}] op_sel_hi:[1,0]")
        for k in range(4): a(f"  v_cvt_pk_bf16_f32 v{t+8+k}, v{t+2*k}, v{t+2*k+1}")
        a(f"  ds_write_b128 v{V_T0}, v[{t+8}:{t+11}] offset:{(c*4+qt)*1024}")
a("  s_waitcnt lgkmcnt(0)")
a("  s_barrier")
a(f"  s_add_u32 s{S_T}, s{S_VM0}, {3*16384}")
a(f"  v_mov_b32 v{V_T0}, s{S_T}")
a(f"  ds_read_b128 v[0:3], v{V_T0}")
b_reload(16, wait=False)
a("  s_waitcnt lgkmcnt(4)")
a("  v_or_b32 v0, v0, v1")
a("  v_or3_b32 v0, v0, v2, v3")
a("  s_nop 0")
a(f"  v_readfirstlane_b32 s{S_T}, v0")
a(f"  s_andn2_b32 s{S_T}, s{S_T}, s{S_REDO}")
if not OPT['noredo']: a("  s_cbranch_scc1 L_redo")
produce_slot(3)
stamp()
gemm_first(); gemm_call(9); set_stream('wo', 1); gemm_call(6)
st0 = store_partial(1, 0, dst=[192, 196, 200, 204, 216, 220, 224, 228], defer=True, sreg=S_SP)
a(f"  s_mov_b32 s{SRD_X}, s{P_X}")
a(f"  s_mov_b32 s{SRD_X+1}, s{P_X+1}")
a(f"  s_mov_b32 s{SRD_X+2}, {2048*512*2}")
GL, XL, SL = 128, 248, 64
S_MB, S_DONE, S_M, S_NEW = S_KOFF, S_VOFF, S_LOOP, S_KM0
a(f"  s_lshr_b32 s{S_MB}, s{S_PBASE}, 16")
a(f"  s_lshl_b32 s{S_MB}, s{S_MB}, 7")
a(f"  s_add_u32 s{S_MB}, s{S_MB}, {MBOX}")
a(f"  v_mov_b32 v{V_ZERO}, 0")
POLL = f"  buffer_load_dword v{V_POLL}, v{V_ZERO}, s[{SRD_WS}:{SRD_WS+3}], s{S_MB} offen sc1"
XLD = [f"  buffer_load_dwordx2 v[{XL+2*k}:{XL+2*k+1}], v{V_XO}, s[{SRD_X}:{SRD_X+3}], s{S_XO} offen offset:{(k>>1)*128+(k&1)*32}" for k in range(4)]
S_SIG = S_KV0
a(f"  s_mov_b32 s{SRD_D}, s{P_WS}")
a(f"  s_mov_b32 s{SRD_D+1}, s{P_WS+1}")
a(f"  s_lshl_b32 s{S_SIG}, s{S_R}, 10")
a(f"  s_add_u32 s{S_SIG}, s{S_SIG}, {MBOX}")
a(f"  s_add_u32 s{S_T}, s{S_SIG}, 1024")
a(f"  s_cmp_eq_u32 s{S_W}, 0")
a(f"  s_cselect_b32 s{SRD_D+2}, s{S_T}, 0")
a(f"  s_lshl_b32 s{S_M}, 1, s{S_G}")
a(f"  v_mov_b32 v{V_T0}, s{S_M}")
a(f"  v_lshlrev_b32 v{V_T1}, 7, v{V_LANE}")
SIG = f"  buffer_atomic_add v{V_T0}, v{V_T1}, s[{SRD_D}:{SRD_D+3}], s{S_SIG} offen sc1"
SEL = 236
sel = [f"  v_lshrrev_b32 v{V_ONE_LO}, 4, v{V_LANE}", f"  v_bfe_u32 v{V_ONE_HI}, v{V_LANE}, 2, 2",
       f"  v_cmp_eq_u32 vcc, v{V_ONE_LO}, v{V_ONE_HI}", f"  v_and_b32 v{V_ONE_LO}, 1, v{V_LANE}", f"  v_lshlrev_b32 v{V_ONE_LO}, 4, v{V_ONE_LO}",
       f"  v_mov_b32 v{V_ONE_HI}, 0x3f80", f"  v_lshlrev_b32 v{V_ONE_HI}, v{V_ONE_LO}, v{V_ONE_HI}", f"  v_cndmask_b32 v{V_ONE_HI}, 0, v{V_ONE_HI}, vcc",
       f"  v_and_b32 v{V_ONE_LO}, 2, v{V_LANE}", f"  v_cmp_eq_u32 vcc, 0, v{V_ONE_LO}", f"  v_mov_b32 v{SEL}, 0", f"  v_mov_b32 v{SEL+1}, 0",
       f"  v_cndmask_b32 v{SEL+2}, 0, v{V_ONE_HI}, vcc", f"  v_cndmask_b32 v{SEL+3}, v{V_ONE_HI}, v{SEL}, vcc", f"  v_mov_b32 v{SEL+4}, 0", f"  v_mov_b32 v{SEL+5}, 0"]
def msum(base, acc, bt='v'):
    return [mf(acc + 4*h, SEL + 2 - 2*h, base + 4*s_, None if s_ == 0 else acc + 4*h, 'v', 'v', bt) for s_ in range(8) for h in range(2)]
SL = 0
def redirect(b_):
    return [f"  s_bitcmp1_b32 s{S_NEW}, {b_}", f"  s_cselect_b32 s{S_T+1}, s{S_FB}, 0x40000000",
            f"  s_add_u32 s{S_T+2}, s{S_T+1}, {PART_KIND + (b_ & 7)*65536 + (b_ >> 3)*8192}",
            f"  buffer_load_dwordx4 a[{SL+4*b_}:{SL+4*b_+3}], v{V_L16}, s[{SRD_WS}:{SRD_WS+3}], s{S_T+2} offen sc1"]
gemm_first(); gemm_call(9)
vq = [f"slot{k}" for k in range(16) for _ in range(4)]
def younger(tag): return len(vq) - 1 - max(i for i, t in enumerate(vq) if t == tag)
for j in range(10, 16):
    xv = []; vm = []; tags = []
    w_ = younger(f"slot{j+1}") if j < 15 else 63
    if j in (10, 11): vm = [[x] for x in st0[4*(j-10):4*(j-10)+4]]; tags = ['st']*4
    if j == 12: vm = [[x] for x in XLD]; tags = ['x']*4
    if j == 14: vm = [[POLL]]; tags = ['poll']
    gemm_step(gpos[0], False, vm=vm, vmw=w_, noread=(j == 15), fillv=(sel if j == 15 else None), xvm=xv)
    vq += tags
    gpos[0] = (gpos[0] + 1) % NS
store_partial(1, 1)
stamp(); stamp(5)
GA, T = 16, 48
a("  s_waitcnt vmcnt(8)")
a("  s_barrier")
a(SIG)
a(f"  v_readfirstlane_b32 s{S_NEW}, v{V_POLL}")
a(f"  v_lshlrev_b32 v{V_T0}, 8, v{V_T0}")
a(f"  s_mul_i32 s{S_M}, s{S_M}, 0x101")
a("  s_nop 1")
a(f"  s_or_b32 s{S_M}, s{S_M}, s{S_NEW}")
a(f"  s_and_b32 s{S_NEW}, s{S_M}, 0x7f")
a(f"  s_mov_b32 s{S_DONE}, s{S_NEW}")
fl = []
for s_ in range(7):
    r_ = redirect(s_); fl += [r_[:2], r_[2:]]
def silu(acc):
    L = [f"  v_mul_f32 v{acc+e}, v{acc+e}, v{V_RSO}" for e in range(8)]
    def rp(r): return [f"  v_cvt_pk_bf16_f32 v{T+(r&2)//2}, v{r}, v{r+1}", f"  v_lshlrev_b32 v{r}, 16, v{T+(r&2)//2}", f"  v_and_b32 v{r+1}, 0xffff0000, v{T+(r&2)//2}"]
    for j in range(4): L += rp(acc+2*j)
    L += [f"  v_mul_f32 v{T+4+e}, 0xbfb8aa3b, v{acc+e}" for e in range(8)]
    L += [f"  v_exp_f32 v{T+4+e}, v{T+4+e}" for e in range(8)]
    L += [f"  v_add_f32 v{T+4+e}, 1.0, v{T+4+e}" for e in range(8)]
    L += [f"  v_rcp_f32 v{T+4+e}, v{T+4+e}" for e in range(8)]
    L += [f"  v_mul_f32 v{acc+e}, v{acc+e}, v{T+4+e}" for e in range(8)]
    for j in range(4): L += rp(acc+2*j)
    return L
s0 = silu(GA)
for g, l in enumerate(msum(GL, GA) + msum(GL + 32, GA + 8)):
    a(l)
    if g < len(fl):
        for x in fl[g]: a(x)
    if g >= 23:
        a(s0.pop(0)); a(s0.pop(0))
stamp(5)
a("  s_waitcnt vmcnt(8)")
a("  s_barrier")
a(SIG)
stamp(5)
def fround(first=False):
    if not first:
        a("  s_waitcnt vmcnt(0)")
        a(f"  v_readfirstlane_b32 s{S_M}, v{V_POLL}")
        a("  s_nop 3")
    a(f"  s_call_b64 s[{S_RET}:{S_RET+1}], L_round")
fround(True)
for l in s0 + silu(GA + 8): a(l)
a(f"  s_mov_b32 s{SRD_D}, s{P_OUT}")
a(f"  s_mov_b32 s{SRD_D+1}, s{P_OUT+1}")
a(f"  s_mov_b32 s{SRD_D+2}, {2048*512*2}")
a(f"  s_mov_b32 s{S_CNT}, {OPT['spin']}")
SA = 0
for i in range(2):
    a.label(f"L_sp{i}")
    a(f"  s_bfe_u32 s{S_T+3}, s{S_DONE}, {(8 << 16) | (8*i)}")
    fround()
    a(f"  s_cmp_eq_u32 s{S_T+3}, 0xff")
    a(f"  s_cbranch_scc1 L_sp{i}_done")
    a(f"  s_sub_u32 s{S_CNT}, s{S_CNT}, 1")
    a(f"  s_cbranch_scc0 L_sp{i}")
    a(f"  s_mov_b32 s{S_CNT}, 0")
    a.label(f"L_sp{i}_done")
    stamp(5)
    if i == 1: stamp()
    xu = []
    for j in range(4):
        xr = XL + 4*i + j
        xu += [f"  v_lshlrev_b32 v{T+4+2*j}, 16, v{xr}", f"  v_and_b32 v{T+5+2*j}, 0xffff0000, v{xr}"]
    def ost(i, k): return f"  buffer_store_dwordx2 v[{XL+4*i+2*k}:{XL+4*i+2*k+1}], v{V_XO}, s[{SRD_D}:{SRD_D+3}], s{S_XO} offen offset:{i*128+k*32}"
    if i == 1: xu += [ost(0, 0), ost(0, 1)]
    for g, l in enumerate(msum(SL + i*32, SA, 'a')):
        a(l)
        if g < len(xu): a(xu[g])
    a("  s_nop 6")
    for j in range(4): rnd_pair(SA+2*j, T + (j & 1))
    for e in range(8): a(f"  v_mul_f32 v{SA+e}, v{SA+e}, v{GA+8*i+e}")
    for j in range(4): rnd_pair(SA+2*j, T + (j & 1))
    for e in range(8): a(f"  v_add_f32 v{SA+e}, v{SA+e}, v{T+4+e}")
    for j in range(4): a(f"  v_cvt_pk_bf16_f32 v{XL+4*i+j}, v{SA+2*j}, v{SA+2*j+1}")
    if i == 1:
        a(ost(1, 0)); a(ost(1, 1))
    if i == 0: stamp(5)
if OPT['stamps']:
    a("  s_waitcnt vmcnt(0)")
    stamp(0)
    a(f"  s_memrealtime s[{S_T}:{S_T+1}]")
    a("  s_waitcnt lgkmcnt(0)")
    n = nstamp[0]
    for i in range(n):
        a(f"  v_writelane_b32 v0, s{S_STAMP+2*i}, {i}")
    a(f"  v_writelane_b32 v0, s{S_T}, 15")
    a(f"  v_writelane_b32 v0, s74, 14")
    a(f"  v_writelane_b32 v0, s38, 12")
    a(f"  v_writelane_b32 v0, s39, 13")
    a(f"  s_lshl_b32 s{S_T}, s2, 2")
    a(f"  s_add_u32 s{S_T}, s{S_T}, s{S_W}")
    a(f"  s_lshl_b32 s{S_T}, s{S_T}, 6")
    a(f"  s_add_u32 s{S_T}, s{S_T}, {STAMP_OFF}")
    a(f"  v_lshlrev_b32 v1, 2, v{V_LANE}")
    a(f"  v_cmp_gt_u32 vcc, 16, v{V_LANE}")
    a(f"  s_and_saveexec_b64 s[{S_T+2}:{S_T+3}], vcc")
    a(f"  buffer_store_dword v0, v1, s[{SRD_WS}:{SRD_WS+3}], s{S_T} offen")
a.label("L_end")
a("  s_endpgm")
segs.append(('tail', 'tailjoin', (il, itail, it, len(a.lines))))
ir = len(a.lines)
a.label("L_redo")
a(f"  s_mov_b32 s{S_REDO}, 1")
a(f"  s_mov_b32 s{S_KOFF}, s{S_KV0}")
a(f"  s_mov_b32 s{S_LOOP}, 32")
a(f"  v_mov_b32 v{V_T0}, 0xff800000")
for qt in range(4): a(f"  v_mov_b32 v{V_NEGM+qt*4}, v{V_T0}")
a.label("L_redo_loop")
a("  s_waitcnt vmcnt(0) lgkmcnt(0)")
a("  s_barrier")
k_tile_dma(0)
a("  s_waitcnt vmcnt(0)")
a("  s_barrier")
for u in range(2):
    for i in range(8): a(k_read(u, i >> 2, i & 3))
    a("  s_waitcnt lgkmcnt(0)")
    for l in qk_mfmas(0, zero=True): a(l)
    a("  s_nop 7")
    for qt in range(4):
        m = V_NEGM + qt*4
        for kt in range(2):
            x = s_reg(0, kt, qt)
            a(f"  v_max3_f32 v{m}, v{x}, v{x+1}, v{m}")
            a(f"  v_max3_f32 v{m}, v{x+2}, v{x+3}, v{m}")
a(f"  s_sub_u32 s{S_LOOP}, s{S_LOOP}, 1")
a(f"  s_cmp_lg_u32 s{S_LOOP}, 0")
a("  s_cbranch_scc1 L_redo_loop")
for qt in range(4):
    m = V_NEGM + qt*4
    xlane_reduce(m, 'v_max_f32', m+1)
    a(f"  v_xor_b32 v{m}, 0x80000000, v{m}")
    for k in range(1, 4): a(f"  v_mov_b32 v{m+k}, v{m}")
a("  s_barrier")
a(f"  s_mov_b32 s{S_KOFF}, s{S_KV0}")
a(f"  s_mov_b32 s{S_VOFF}, s{S_KV0}")
for t in range(4): k_tile_dma(t)
for t in range(2): v_tile_dma(t)
a(f"  s_mov_b32 s{S_POFF}, s{S_SV_POFF}")
a("  s_waitcnt vmcnt(0)")
a("  s_barrier")
zero_o()
for l in attn_init(): a(l)
emit_sched(KR01 + ["  s_barrier"] + qk_mfmas(0, order=QORD) + head_common(), 'redo head')
a(f"  s_mov_b32 s{S_LOOP}, 7")
a("  s_branch L_p1")
segs.append(('redo', ir, len(a.lines)))
a.label("L_round")
a(f"  s_andn2_b32 s{S_NEW}, s{S_M}, s{S_DONE}")
a(f"  s_or_b32 s{S_DONE}, s{S_DONE}, s{S_M}")
for h in range(4):
    a(f"  s_and_b32 s{S_T}, s{S_NEW}, {0xf << (4*h)}")
    a(f"  s_cbranch_scc0 L_rs{h}")
    for b_ in range(4*h, 4*h+4):
        pl = part_load(1, b_ >> 3, b_ & 7, SL + b_*4, 'a')
        a(pl[0])
        a(f"  s_bitcmp1_b32 s{S_NEW}, {b_}")
        a(f"  s_cselect_b64 exec, -1, 0")
        a(pl[1])
    a("  s_mov_b64 exec, -1")
    a.label(f"L_rs{h}")
a(f"  s_cmp_eq_u32 s{S_DONE}, 0xffff")
a("  s_cbranch_scc1 L_rret")
a(POLL)
a.label("L_rret")
a(f"  s_setpc_b64 s[{S_RET}:{S_RET+1}]")
a(".p2align 6")
ig = len(a.lines)
for pos in range(NS):
    a.label(f"L_gemm{pos}")
    gemm_step(pos, False, True)
    if pos < NS-1: a("  s_cbranch_scc1 L_gemm_ret")
    else: a("  s_cbranch_scc0 L_gemm0")
a.label("L_gemm_ret")
a(f"  s_setpc_b64 s[{S_RET}:{S_RET+1}]")
segs.append(('gemm2', ig, len(a.lines)))
a.label("L_code_end")

a('.section .rodata,"a"')
a(".p2align 6")
a(kernel_desc(NAME + "_kernel", 512, 102, 256))

errs = []
for s in segs:
    if s[1] == 'tailjoin':
        il_, itail_, it_, end_ = s[2]
        errs += hazard.check(a.lines[il_:itail_] + a.lines[it_:end_], 'tail')
    elif s[0].endswith('2'):
        errs += hazard.check(a.lines[s[1]:s[2]] * 2, s[0])
    else:
        errs += hazard.check(a.lines[s[1]:s[2]], s[0])
for e in errs[:40]: print("HAZ", e)
open(sys.argv[1], 'w').write(a.text())
print("written", sys.argv[1], len(a.lines), "lines;", len(errs), "hazard msgs")
```

```python
import sys, math
from asmlib import *
import hazard
from sched import schedule

NAME = "recurrent_scan__gqa_block_cached__dense_activation_relu__prompt"
OPT = dict(stamps=0, mimic_d=1, nsum=2, force_redo=0, pf=0, ng=2, rot=1, late=4, tlb=0, spin=200000, dot=1, xnobar=0, xnodma=0, xnost=0, noredo=0, pol=0, cpos=0, n1=8, w1pf=0, slp=0, xk=0, xv=0, xe=0, xa=0, xs=16, snake=1, nov=4, flip=0, early=0, ilv=0, stf=0, mbl=1)
for x in sys.argv[2:]:
    k, v = x.split('='); OPT[k] = int(v)

POL = {0: '', 1: ' nt', 2: ' sc1', 3: ' sc0', 4: ' sc0 sc1', 5: ' sc1 nt'}[OPT['pol']]
a = Asm()
segs = []

S_W, S_G, S_R = 4, 5, 6
S_RET = 8
S_CNT, S_CSLOT, S_PSLOT, S_POFF, S_STA, S_STB = 10, 11, 12, 13, 14, 15
P_X, P_K, P_V, P_WQ, P_WO, P_W1, P_W2, P_WS, P_DBG, P_OUT = 16, 18, 20, 22, 24, 28, 30, 36, 34, 32
S_PLO, S_PHI = 38, 39
S_BOFF, S_BEND, S_FOFF, S_PLEN, S_ROT16, S_ROT7, S_ODD = 3, 7, 26, 27, 100, 101, 15
SRD_W, SRD_K, SRD_V, SRD_WS, SRD_X = 40, 44, 48, 52, 56
S_KOFF, S_VOFF, S_LOOP, S_KM0, S_VM0, S_PBASE, S_REDO = 60, 61, 62, 63, 64, 65, 66
S_SV_POFF, S_KV0 = 68, 69
S_SP = 94
S_T = 70
S_STAMP = 76

V_ACC, V_A, V_B = 0, 64, 96
V_S, V_P, V_NEGM, V_L, V_LS, V_ONES = 0, 64, 96, 112, 116, 124
V_H = 176
V_PROW, V_PSWZ, V_BA, V_LANE, V_L16, V_T0, V_T1 = 208, 209, 210, 212, 213, 214, 215
V_KA, V_VA, V_KD, V_VD, V_PD, V_AA = 216, 220, 228, 232, 236, 240
A_O, A_Q, A_K, A_V = 0, 128, 192, 224
RB = 65536
NS = 6
PART_KIND = 16 << 20
STAMP_OFF = 48 << 20
MBOX = 40 << 20
SRD_D = 96
S_FB, S_XO = 11, 12
V_XO = 211
PBUF = [[64, 68, 72, 76], [80, 84, 88, 92], [192, 196, 200, 204], [208, 244, 248, 252]]
V_POLL = 234
V_RSO, V_RS = 235, 160
import struct
CSH = struct.unpack('<I', struct.pack('<f', (128 ** -0.5) * math.log2(math.e)))[0]
V_ONE_LO, V_ONE_HI, V_ZERO = 232, 233, 209

nstamp = [0]
def stamp(lvl=1):
    if OPT['stamps'] == lvl or (OPT['stamps'] and lvl == 0):
        i = nstamp[0]
        if i >= 9: return
        nstamp[0] += 1
        a(f"  s_memtime s[{S_STAMP+2*i}:{S_STAMP+2*i+1}]")

def capture(fn):
    i = len(a.lines); fn(); L = a.lines[i:]; del a.lines[i:]
    return [l for l in L if l.strip() and not l.strip().startswith('s_nop') and not l.strip().startswith(';')]
def emit_sched(prog, name):
    out, t = schedule(prog)
    for l in out: a(l)
    print(f"  sched {name}: {len(out)} instrs, est {t} cycles")
def mf(d, A, B, C, dt='v', at='v', bt='v'):
    c = '0' if C is None else f"{dt}[{C}:{C+3}]"
    return f"  v_mfma_f32_16x16x32_bf16 {dt}[{d}:{d+3}], {at}[{A}:{A+3}], {bt}[{B}:{B+3}], {c}"

def prod_m0(pos):
    return [f"  s_add_u32 m0, s{S_VM0}, {pos*16384}"]
def prod_dma(n):
    return f"  buffer_load_dwordx4 v{V_PD+n}, s[{SRD_W}:{SRD_W+3}], s{S_POFF} offen offset:{n*1024}{POL} lds"
def prod_adv():
    return [f"  s_add_u32 s{S_POFF}, s{S_POFF}, s{S_STA}",
            f"  s_cmp_eq_u32 s{S_POFF}, s{S_PLEN}",
            f"  s_cselect_b32 s{S_POFF}, 0, s{S_POFF}"]
def produce_list(pos):
    return prod_m0(pos) + prod_adv() + [prod_dma(n) for n in range(4)]
def produce_slot(pos):
    for l in produce_list(pos): a(l)

def set_stream(kind, half=0):
    if kind == 'null':
        a(f"  s_mov_b32 s{SRD_W+2}, 0"); return
    if half == 1:
        for n in range(4): a(f"  v_add_u32 v{V_PD+n}, 128, v{V_PD+n}")
        return
    ptr, size, stride = dict(w1=(P_W1, 512*1792*2, 3584), wq=(P_WQ, 512*4096*2, 8192), w2=(P_W2, 1792*512*2, 1024),
                             wo=(P_WO, 4096*512*2, 1024), v=(P_V, 8*2048*128*2, 0))[kind]
    a(f"  s_mov_b32 s{SRD_W}, s{ptr}")
    a(f"  s_mov_b32 s{SRD_W+1}, s{ptr+1}")
    a(f"  s_mov_b32 s{SRD_W+2}, {size}")
    a(f"  s_mov_b32 s{S_T}, {stride}")
    a(f"  v_mad_u32_u24 v{V_PD}, v{V_PROW}, s{S_T}, v{V_PSWZ}")
    src, gsft, wsft = dict(w1=(S_FOFF, 1, 7), wq=(S_G, 10, 8), w2=(S_FOFF, 10, 8), wo=(S_G, 19, 8))[kind]
    a(f"  s_lshl_b32 s{S_T}, s{src}, {gsft}")
    a(f"  s_lshl_b32 s{S_T+1}, s{S_W}, {wsft}")
    a(f"  s_add_u32 s{S_T}, s{S_T}, s{S_T+1}")
    a(f"  v_add_u32 v{V_PD}, s{S_T}, v{V_PD}")
    for n in range(1, 4): a(f"  v_add_u32 v{V_PD+n}, {n*(8*stride-1024)}, v{V_PD}")
    a(f"  s_mov_b32 s{S_STA}, {32*stride}")
    if kind == 'w1':
        a(f"  s_lshl_b32 s{S_T}, s{S_ODD}, 2")
        a(f"  s_or_b32 s{S_T}, s{S_T}, s{S_W}")
        a(f"  s_cmp_eq_u32 s{S_T}, 7")
        a(f"  s_cselect_b32 s{SRD_W+2}, 0, s{SRD_W+2}")
    if kind == 'w2':
        a(f"  s_lshl_b32 s{S_T}, s{S_ODD}, 16")
        a(f"  s_sub_u32 s{S_PLEN}, {8*32*stride}, s{S_T}")
    else: a(f"  s_mov_b32 s{S_PLEN}, {16*32*stride}")
    a(f"  s_mul_i32 s{S_POFF}, s{S_ROT7 if kind == 'w2' else S_ROT16}, {32*stride}")
    a(f"  s_sub_u32 s{S_POFF}, s{S_POFF}, s{S_STA}")

def b_adv():
    return [f"  s_add_u32 s{S_BOFF}, s{S_BOFF}, 4096",
            f"  s_cmp_eq_u32 s{S_BOFF}, s{S_BEND}",
            f"  s_cselect_b32 s{S_BOFF}, 0, s{S_BOFF}",
            f"  v_add_u32 v{V_BA}, s{S_BOFF}, v{V_L16}"]
def rpos(i): return (2 + i) % NS
def fA(k): return ('v', V_A + 16*k) if k < 2 else ('a', A_K + 16*(k-2))
def fB(k): return ('v', V_B + 16*k) if k < 2 else ('a', A_V + 16*(k-2))
def a_read(i, nt, rd):
    t, b = fA(i & 3); d = b + nt*4 + rd*2; slot = rpos(i)
    return f"  ds_read_b64_tr_b16 {t}[{d}:{d+1}], v{V_AA+nt+4*(slot//3)} offset:{(slot%3)*16384+rd*2048}"
def b_read(i, qt):
    t, b = fB(i & 3); d = b + qt*4
    return f"  ds_read_b128 {t}[{d}:{d+3}], v{V_BA} offset:{qt*1024}"

def gemm_step(i, first=False, loop=False, vm=None, vmw=16, noread=False, fillv=None, xvm=None):
    a(f"  s_waitcnt vmcnt({vmw}) lgkmcnt(0)")
    mem = [b_read(i+2, qt) for qt in range(4)] + [a_read(i+2, nt, rd) for nt in range(4) for rd in range(2)] + [prod_dma(n) for n in range(4)]
    ex = [[] for _ in range(16)]
    ba = b_adv(); pa = prod_adv()
    for k in range(4): ex[k].append(ba[k])
    if vm is None:
        for k in range(3): ex[4+k].append(pa[k])
        ex[7] += prod_m0(rpos(i+1))
    else:
        for k in range(4):
            mem[12+k] = vm[k][-1] if k < len(vm) else ""
            if k < len(vm): ex[11+k-(1 if k == 0 else 0)] += vm[k][:-1]
    if noread:
        for k in range(12): mem[k] = ""
        for k in range(4): ex[k] = []
    if xvm:
        for g_, l in xvm: ex[g_].append(l)
    if fillv:
        for k, l in enumerate(fillv): ex[k].append(l)
    if loop: ex[11].append(f"  s_sub_u32 s{S_CNT}, s{S_CNT}, 1")
    g = 0; s0 = i & 2
    for nt in (2*(i & 1), 2*(i & 1) + 1):
        for q_ in range(4):
            qt = 3 - q_ if nt & 1 else q_
            acc = V_ACC + (nt*4+qt)*4
            for u_ in range(2):
                u = u_ ^ (q_ & 1)
                (ta, ba_), (tb, bb) = fA(s0+u), fB(s0+u)
                a(mf(acc, ba_+nt*4, bb+qt*4, None if (first and u_ == 0) else acc, 'v', ta, tb))
                a(mem[g])
                for l in ex[g]: a(l)
                g += 1

gpos = [0]
def gemm_call(n):
    a(f"  s_mov_b32 s{S_CNT}, {n-1}")
    a(f"  s_call_b64 s[{S_RET}:{S_RET+1}], L_gemm{gpos[0] % 12}")
    gpos[0] += n
def gemm_inl(**kw):
    gemm_step(gpos[0] % 12, **kw); gpos[0] += 1
def gemm_first():
    gemm_inl(first=True); gemm_inl(first=True)
def b_reload(ffn2, wait=True):
    if wait: a("  s_waitcnt lgkmcnt(0)")
    a(f"  s_lshl_b32 s{S_BOFF}, s{S_ROT7 if ffn2 else S_ROT16}, 12")
    if ffn2: a(f"  s_lshr_b32 s{S_BEND}, s{S_PLEN}, 3")
    else: a(f"  s_mov_b32 s{S_BEND}, {16*4096}")
    a(f"  v_add_u32 v{V_BA}, s{S_BOFF}, v{V_L16}")
    for k in range(2):
        for qt in range(4): a(b_read(gpos[0] + k, qt))
        for l in b_adv(): a(l)
def a_first():
    for k in range(2):
        for nt in range(4):
            for rd in range(2): a(a_read(gpos[0] + k, nt, rd))

def store_partial(kind, half, dst=None, defer=False, sreg=S_T):
    a("  s_nop 5")
    a(f"  s_add_u32 s{sreg}, s{S_PBASE}, {kind*PART_KIND + half*8192}")
    a(f"  s_add_u32 s{sreg+1}, s{sreg}, 4096")
    st = []
    for c in range(2):
        for qt in range(4):
            x = V_ACC + ((2*c)*4+qt)*4; y = V_ACC + ((2*c+1)*4+qt)*4
            d = x if dst is None else (dst[c*4+qt] if isinstance(dst, list) else dst + (c*4+qt)*4)
            a(f"  v_cvt_pk_bf16_f32 v{d}, v{x}, v{x+1}")
            a(f"  v_cvt_pk_bf16_f32 v{d+1}, v{x+2}, v{x+3}")
            a(f"  v_cvt_pk_bf16_f32 v{d+2}, v{y}, v{y+1}")
            a(f"  v_cvt_pk_bf16_f32 v{d+3}, v{y+2}, v{y+3}")
            l = f"  buffer_store_dwordx4 v[{d}:{d+3}], v{V_L16}, s[{SRD_WS}:{SRD_WS+3}], s{sreg+c} offen offset:{qt*1024} {['sc1', 'sc0 sc1', 'sc1 nt'][OPT['stf']]}"
            if defer: st.append(l)
            else: a(l)
    if not defer: a("  s_nop 1")
    return st

def spin(label, srd, voff, soff, target):
    a(f"  s_mov_b32 s{S_T+1}, {OPT['spin']}")
    a.label(label)
    a(f"  buffer_load_dword v{V_POLL}, v{voff}, s[{srd}:{srd+3}], {soff} offen sc1")
    a("  s_waitcnt vmcnt(0)")
    a(f"  v_readfirstlane_b32 s{S_T}, v{V_POLL}")
    a(f"  s_sub_u32 s{S_T+1}, s{S_T+1}, 1")
    a(f"  s_cbranch_scc1 {label}_done")
    a(f"  s_cmp_lt_u32 s{S_T}, {target}")
    a(f"  s_cbranch_scc1 {label}")
    a.label(label + "_done")

def part_load(kind, i, src, d, t='v'):
    return [f"  s_add_u32 s{S_T+2}, s{S_FB}, {kind*PART_KIND + src*65536 + i*8192}",
            f"  buffer_load_dwordx4 {t}[{d}:{d+3}], v{V_L16}, s[{SRD_WS}:{SRD_WS+3}], s{S_T+2} offen sc1"]
def part_sum(base, acc, T, vm0=None):
    for s_ in range(8):
        if vm0 is not None and s_ % 2 == 0: a(f"  s_waitcnt vmcnt({vm0-s_-1})")
        d = base + s_*4
        for j in range(4):
            lo, hi = acc+2*j, acc+2*j+1
            if s_ == 0:
                a(f"  v_lshlrev_b32 v{lo}, 16, v{d+j}")
                a(f"  v_and_b32 v{hi}, 0xffff0000, v{d+j}")
            elif OPT['dot']:
                a(f"  v_dot2c_f32_bf16 v{lo}, v{d+j}, v{V_ONE_LO}")
                a(f"  v_dot2c_f32_bf16 v{hi}, v{d+j}, v{V_ONE_HI}")
            else:
                t = T + 2*(j & 1)
                a(f"  v_lshlrev_b32 v{t}, 16, v{d+j}")
                a(f"  v_and_b32 v{t+1}, 0xffff0000, v{d+j}")
                a(f"  v_pk_add_f32 v[{lo}:{hi}], v[{lo}:{hi}], v[{t}:{t+1}]")
    if OPT['dot']: a("  s_nop 2")
def rnd_pair(r, T):
    a(f"  v_cvt_pk_bf16_f32 v{T}, v{r}, v{r+1}")
    a(f"  v_lshlrev_b32 v{r}, 16, v{T}")
    a(f"  v_and_b32 v{r+1}, 0xffff0000, v{T}")

def kslot(t): return (t + 2) & 3
def k_read(unit, kt, ds, dst=A_K):
    off = kslot(unit >> 1)*16384 + (unit & 1)*8192 + kt*4096
    d = dst + (kt*4+ds)*4
    return f"  ds_read_b128 a[{d}:{d+3}], v{V_KA+ds} offset:{off}"
def v_read(unit, dt, rd, dst=A_V):
    off = ((unit >> 1) & 3)*16384 + (unit & 1)*8192 + rd*4096
    d = dst + dt*4 + rd*2
    return f"  ds_read_b64_tr_b16 a[{d}:{d+1}], v{V_VA+dt} offset:{off}"
def k_dma(n):
    return f"  buffer_load_dwordx4 v{V_KD+n}, s[{SRD_K}:{SRD_K+3}], s{S_KOFF} offen offset:{n*1024}{POL} lds"
def v_dma(n):
    return f"  buffer_load_dwordx4 v{V_VD+(n&1)}, s[{SRD_V}:{SRD_V+3}], s{S_VOFF} offen offset:{n*1024}{POL} lds"
def k_tile_dma(t):
    a(f"  s_add_u32 m0, s{S_KM0}, {kslot(t)*16384}")
    a(f"  s_nop 0")
    for n in range(4): a(k_dma(n))
    a(f"  s_add_u32 s{S_KOFF}, s{S_KOFF}, 16384")
def v_tile_dma(t):
    a(f"  s_add_u32 m0, s{S_VM0}, {(t&3)*16384}")
    a(f"  s_nop 0")
    for n in range(4): a(v_dma(n))
    a(f"  s_add_u32 s{S_VOFF}, s{S_VOFF}, 16384")

NSUM = OPT['nsum']
SUMQT = {0: [], 2: [2, 3], 4: [0, 1, 2, 3]}[NSUM]
TORDER = [(0,0),(0,2),(0,1),(0,3),(1,0),(1,2),(1,1),(1,3)]
def s_reg(b, kt, qt): return V_S + b*32 + (kt*4+qt)*4
def qk_mfmas(b, zero=False, order=None, src=A_K):
    L = []
    QKO = [(0,0),(0,1),(0,2),(0,3),(1,3),(1,2),(1,1),(1,0)] if OPT['snake'] else TORDER
    for ti, (kt, qt) in enumerate(order or QKO):
        d = s_reg(b, kt, qt)
        for i_ in range(4):
            ds = 3 - i_ if (OPT['snake'] and ti & 1) else i_
            C = d if i_ else (None if zero else V_NEGM + qt*4)
            L.append(mf(d, src+(kt*4+ds)*4, A_Q+(qt*4+ds)*4, C, 'v', 'a', 'a'))
    return L
def ls_reg(qt):
    return V_LS + SUMQT.index(qt)*4 if NSUM == 2 else 160 + qt*4
def pv_half(T, h, src=A_V):
    L = []; k = 0
    for d_ in range(4):
        dt = 4*h + d_
        for qt in (range(3, -1, -1) if d_ % 2 == 0 else range(4)):
            d = A_O + (dt*4+qt)*4
            for u in ((0, 1) if k % 2 == 0 else (1, 0)):
                L.append(mf(d, src+(d_*2+u)*4, PBUF[(2*T+u) & 3][qt], d, 'a', 'a', 'v'))
            k += 1
    return L
def v_half(T, h, dst=A_V):
    L = []
    for f in range(8):
        dt = 4*h + (f >> 1); u = f & 1
        for rd in range(2):
            off = (T & 3)*16384 + u*8192 + rd*4096
            d = dst + f*4 + rd*2
            L.append(f"  ds_read_b64_tr_b16 a[{d}:{d+1}], v{V_VA+dt} offset:{off}")
    return L
def sum_pair(T, qt):
    return [mf(ls_reg(qt), V_ONES, PBUF[(2*T+u) & 3][qt], ls_reg(qt)) for u in range(2)]
def sm_ops(p, qt):
    L = []
    for kt in range(2):
        for r in range(4):
            s_ = s_reg(p & 1, kt, qt) + r
            L.append(f"  v_exp_f32 v{s_}, v{s_}")
            if qt not in SUMQT: L.append(f"  v_add_f32 v{V_L+qt}, v{V_L+qt}, v{s_}")
            if r & 1: L.append(f"  v_cvt_pk_bf16_f32 v{PBUF[p & 3][qt]+kt*2+(r>>1)}, v{s_-1}, v{s_}")
    return L

def period(p, last=False, extra=None, dma=None):
    b = p & 1; T = p >> 1
    M = qk_mfmas(b ^ 1) + pv_half(T-1, b) + sum_pair(T-1, SUMQT[1-b])
    ng = len(M)
    pre = [[] for _ in range(ng)]
    mem = [None]*ng
    cap = [0 if (g < 64 and g % 2 == 0) else 2 for g in range(ng)]
    exps = [(kt, qt, r) for kt, qt in TORDER for r in range(4)]
    for i, l in enumerate(v_half(T-1, b)):
        mem[2*i+1] = l; cap[2*i+1] = 1
    kpos = [0,1,2,4,5,6,8,9]; dpos = [3,7,11,15]
    if last:
        for i, l in enumerate(v_half(T-1, 1, A_K)):
            mem[33+2*i] = l; cap[33+2*i] = 1
    else:
        for i, j in enumerate(kpos):
            mem[33+2*j] = k_read(p+2, i >> 2, i & 3); cap[33+2*j] = 1
        for n, j in enumerate(dpos):
            mem[33+2*j] = k_dma(n) if b == 0 else v_dma(n); cap[33+2*j] = 0
        if dma is not None:
            for n, j in enumerate(dpos):
                mem[33+2*j] = dma[n][-1]; pre[32+2*j] += dma[n][:-1]
        elif b == 0:
            pre[34].append(f"  s_add_u32 m0, s{S_KM0}, {kslot(T)*16384}")
            pre[ng-2].append(f"  s_add_u32 s{S_KOFF}, s{S_KOFF}, 16384")
        else:
            pre[34].append(f"  s_add_u32 m0, s{S_VM0}, {((T+2)&3)*16384}")
            pre[ng-2].append(f"  s_add_u32 s{S_VOFF}, s{S_VOFF}, 16384")
    if extra:
        for k, l in enumerate(extra): pre[2*k] += l
    pre[30].append("  s_waitcnt lgkmcnt(3)")
    nk = sum(1 for g in range(32, 54) if mem[g] and mem[g].lstrip().startswith('ds_'))
    pre[54].append(f"  s_waitcnt lgkmcnt({nk})")
    q = []
    for g in range(ng):
        a(M[g])
        for l in pre[g]: a(l)
        if mem[g]: a(mem[g])
        if g < 64 and g % 2 == 0:
            kt, qt, r = exps[g//2]
            s = s_reg(b, kt, qt) + r
            a(f"  v_exp_f32 v{s}, v{s}")
            if qt not in SUMQT: q.append(f"  v_add_f32 v{V_L+qt}, v{V_L+qt}, v{s}")
            if r & 1: q.append(f"  v_cvt_pk_bf16_f32 v{PBUF[p & 3][qt]+kt*2+(r>>1)}, v{s-1}, v{s}")
        else:
            n = cap[g] if g < ng-1 else 99
            while n > 0 and q:
                a(q.pop(0)); n -= 1
    assert not q

def barrier_T(n=8):
    a(f"  s_waitcnt vmcnt({n}) lgkmcnt(0)")
    if not OPT['xnobar']: a("  s_barrier")

def xlane_reduce(reg, op, tmp):
    a(f"  v_mov_b32 v{tmp}, v{reg}")
    a("  s_nop 1")
    a(f"  v_permlane32_swap_b32 v{reg}, v{tmp}")
    a(f"  {op} v{reg}, v{reg}, v{tmp}")
    a(f"  v_mov_b32 v{tmp}, v{reg}")
    a("  s_nop 1")
    a(f"  v_permlane16_swap_b32 v{reg}, v{tmp}")
    a(f"  {op} v{reg}, v{reg}, v{tmp}")

def prefetch_groups():
    J, O = S_T+4, S_T
    X = SRD_X
    cnt = [0]
    def srd(ptr, size):
        return [f"  s_mov_b32 s{X}, s{ptr}", f"  s_mov_b32 s{X+1}, s{ptr+1}", f"  s_mov_b32 s{X+2}, {size}"]
    def ld(v, off=0):
        cnt[0] += 1
        return [f"  buffer_load_dword a{A_Q+cnt[0]}, v{v}, s[{X}:{X+3}], s{O} offen offset:{off}"]
    NG = OPT['ng']; NW = 128 // NG
    G = {}
    jj = [f"  s_and_b32 s{O}, s{S_R}, {32//NG-1}", f"  s_lshl_b32 s{O}, s{O}, 2", f"  s_add_u32 s{O}, s{O}, s{S_W}"]
    rows = 4*NG
    L = jj + [f"  s_mul_i32 s{O}, s{O}, {rows*8192}", f"  s_lshl_b32 s{O+1}, s{S_G}, 10", f"  s_add_u32 s{O}, s{O}, s{O+1}",
              f"  v_and_b32 v249, 7, v{V_LANE}", f"  v_lshlrev_b32 v249, 7, v249", f"  v_lshl_add_u32 v249, v{V_PROW}, 13, v249"] + srd(P_WQ, 512*4096*2) + ld(249)
    for k in range(1, (rows + 7)//8):
        L += [f"  s_add_u32 s{O}, s{O}, {8*8192}"] + ld(249)
    G['wq'] = L
    G['w2'] = jj + [f"  s_mul_i32 s{O}, s{O}, {2048*NG}", f"  s_lshl_b32 s{O+1}, s{S_FOFF}, 10", f"  s_add_u32 s{O}, s{O}, s{O+1}",
                    f"  v_mul_u32_u24 v250, {32*NG}, v{V_LANE}"] + srd(P_W2, 512*1792*2) + ld(250)
    L = [f"  v_lshlrev_b32 v251, 6, v{V_LANE}", f"  s_and_b32 s{O}, s{S_R}, 3", f"  s_lshl_b32 s{O}, s{O}, 14", f"  s_add_u32 s{O}, s{O}, s{S_KV0}"]
    G['kv'] = L + srd(P_K, 4 << 20) + ld(251) + srd(P_V, 4 << 20) + ld(251)
    G['ws'] = [f"  v_and_b32 v252, 1, v{V_LANE}", f"  v_lshlrev_b32 v252, 24, v252", f"  s_mov_b32 s{O}, s{S_PBASE}"] + srd(P_WS, 64 << 20) + ld(252)
    G['mb'] = [f"  v_and_b32 v255, 31, v{V_LANE}", f"  v_lshlrev_b32 v255, 2, v255", f"  v_mov_b32 v{V_POLL}, 0",
               f"  s_lshr_b32 s{O}, s{S_PBASE}, 16", f"  s_lshl_b32 s{O}, s{O}, 7", f"  s_add_u32 s{O}, s{O}, {MBOX}",
               f"  buffer_store_dword v{V_POLL}, v255, s[{SRD_WS}:{SRD_WS+3}], s{O} offen sc1"]
    L = jj + [f"  s_mul_i32 s{O}, s{O}, {4096*NG}", f"  s_lshl_b32 s{O+1}, s{S_G}, 19", f"  s_add_u32 s{O}, s{O}, s{O+1}",
              f"  v_lshlrev_b32 v253, {6 if NG == 1 else 7}, v{V_LANE}"] + srd(P_WO, 4 << 20)
    L += [f"  buffer_load_dword v254, v253, s[{X}:{X+3}], s{O} offen"]
    if NG == 4: L += [f"  s_add_u32 s{O}, s{O}, 8192", f"  buffer_load_dword v255, v253, s[{X}:{X+3}], s{O} offen"]
    G['wo'] = L
    return G
def nloads(L): return sum(1 for l in L if l.lstrip().startswith('buffer_'))

hdr = open('cdna_kernels/%s.s.ref' % NAME).read().split('\n')
for l in hdr:
    if l.startswith('; Override') or '@launch' in l or l.startswith('; grid=ceil'): continue
    if l.startswith(';'): a(l)
    else: break
a("; @launch grid=(256,1,1) block=(256,1,1) lds=163840")
a('.amdgcn_target "amdgcn-amd-amdhsa--gfx950"')
a(".text")
a(kernel_header(NAME + "_kernel"))
i0 = len(a.lines)
NG = OPT['ng']; LG = {1: 0, 2: 1, 4: 2, 8: 3}[NG]
L = V_LANE
C_ = SRD_V
a(f"""
  s_cmp_ge_u32 s2, 256
  s_cbranch_scc1 L_end
  s_load_dwordx16 s[16:31], s[0:1], 0
  s_load_dwordx2 s[{P_WS}:{P_WS+1}], s[0:1], 80
  s_load_dwordx4 s[{P_OUT}:{P_OUT+3}], s[0:1], 64
  s_getpc_b64 s[{C_}:{C_+1}]
L_pc:
  s_lshr_b32 s{S_T+1}, s2, 3
  s_mov_b32 s{C_+2}, L_code_end-L_pc
  s_mov_b32 s{C_+3}, 0x20000
  s_lshl_b32 s{S_T+2}, s{S_T+1}, 11
  v_lshlrev_b32 v2, 3, v0
""")
CPF = f"  buffer_load_dword a{A_Q}, v2, s[{C_}:{C_+3}], s{S_T+2} offen"
a(CPF)
stamp(0)
if OPT['stamps']: a("  s_memrealtime s[74:75]")
a(f"""
  s_lshr_b32 s{S_ROT16}, s{S_T+1}, {LG}
  s_bfe_u32 s{S_T}, s2, {(LG << 16) | (3-LG)}
  s_lshl_b32 s{S_T}, s{S_T}, {5-LG}
  s_add_u32 s{S_R}, s{S_ROT16}, s{S_T}
  s_lshl_b32 s{S_SP}, s{S_R}, 16
  v_lshrrev_b32 v4, 2, v0
  v_lshlrev_b32 v4, 10, v4
  v_and_b32 v5, 3, v0
  v_lshl_add_u32 v{V_T0}, v5, 4, v4
  s_mov_b32 s{SRD_X+2}, {2048*512*2}
  s_mov_b32 s{SRD_X+3}, 0x20000
  s_and_b32 s{S_G}, s2, {8//NG-1}
  s_lshl_b32 s{S_G}, s{S_G}, {LG}
  s_and_b32 s{S_T+3}, s{S_T+1}, {NG-1}
  s_add_u32 s{S_G}, s{S_G}, s{S_T+3}
  s_mov_b32 s{SRD_W+3}, 0x20000
""")
def xloads(j0, j1):
    for j in range(j0, j1):
        a(f"  buffer_load_dwordx4 v[{4*j+64}:{4*j+67}], v{V_T0}, s[{SRD_X}:{SRD_X+3}], s{S_SP} offen offset:{j*64}")
def xfirst():
    a("  s_waitcnt lgkmcnt(0)")
    a(f"  s_mov_b32 s{SRD_X}, s{P_X}")
    a(f"  s_mov_b32 s{SRD_X+1}, s{P_X+1}")
    stamp(7)
    xloads(0, OPT['xs'])
    stamp(7)
a(f"""
  v_lshrrev_b32 v1, 6, v0
  v_and_b32 v{V_LANE}, 63, v0
  s_mov_b32 s{S_REDO}, 0
  v_readfirstlane_b32 s{S_W}, v1
  s_bfe_u32 s{S_ODD}, s{S_G}, 0x10001
  s_xor_b32 s{S_ODD}, s{S_ODD}, {OPT['flip']}
  s_mul_i32 s{S_T}, s{S_ROT16}, 43
  s_lshr_b32 s{S_T}, s{S_T}, 8
  s_mul_i32 s{S_T}, s{S_T}, 6
  s_sub_u32 s{S_T}, s{S_ROT16}, s{S_T}
  s_and_b32 s{S_ROT7}, s{S_ROT16}, 7
  s_cmp_lg_u32 s{S_ODD}, 0
  s_cselect_b32 s{S_ROT7}, s{S_T}, s{S_ROT7}
  s_lshl_b32 s{S_ROT16}, s{S_ROT16}, {max(LG-1,0)}
  s_and_b32 s{S_ROT16}, s{S_ROT16}, 15
  v_lshlrev_b32 v{V_L16}, 4, v{L}
  v_lshrrev_b32 v{V_PROW}, 3, v{L}
  v_lshrrev_b32 v1, 4, v{L}            ; G
  v_lshlrev_b32 v2, 1, v1              ; G<<1
  v_and_b32 v3, 7, v{L}
  v_xor_b32 v3, v3, v2
  v_lshlrev_b32 v{V_PSWZ}, 4, v3
  s_lshl_b32 s{S_KM0}, s{S_W}, 12
  s_add_u32 s{S_VM0}, s{S_KM0}, {RB}
""")
xfirst()
a(f"""
  s_lshr_b32 s{S_T}, s{S_G}, 2
  s_mul_i32 s{S_FOFF}, s{S_T}, 896
  s_lshl_b32 s{S_T}, s{S_ODD}, 9
  s_add_u32 s{S_FOFF}, s{S_FOFF}, s{S_T}
  s_lshl_b32 s{S_T}, s{S_ODD}, 6
  s_sub_u32 s{S_T}, 256, s{S_T}
  s_and_b32 s{S_T+1}, s{S_G}, 1
  s_mul_i32 s{S_T}, s{S_T}, s{S_T+1}
  s_add_u32 s{S_FOFF}, s{S_FOFF}, s{S_T}
""")
PFG = prefetch_groups()
set_stream('w1')
a(f"""
  s_mov_b32 s{SRD_K}, s{P_K}
  s_mov_b32 s{SRD_K+1}, s{P_K+1}
  s_add_u32 s{S_T}, s{S_G}, 1
  s_lshl_b32 s{SRD_K+2}, s{S_T}, 19
  s_mov_b32 s{SRD_K+3}, 0x20000
  s_mov_b32 s{SRD_V}, s{P_V}
  s_mov_b32 s{SRD_V+1}, s{P_V+1}
  s_mov_b32 s{SRD_V+2}, s{SRD_K+2}
  s_mov_b32 s{SRD_V+3}, 0x20000
  s_mov_b32 s{SRD_WS}, s{P_WS}
  s_mov_b32 s{SRD_WS+1}, s{P_WS+1}
  s_mov_b32 s{SRD_WS+2}, {64<<20}
  s_mov_b32 s{SRD_WS+3}, 0x20000
  s_lshl_b32 s{S_KV0}, s{S_G}, 19
  s_add_u32 s{S_KV0}, s{S_KV0}, s{S_KM0}
  s_mov_b32 s{S_KOFF}, s{S_KV0}
  s_lshl_b32 s{S_PBASE}, s{S_R}, 3
  s_add_u32 s{S_PBASE}, s{S_PBASE}, s{S_G}
  s_lshl_b32 s{S_PBASE}, s{S_PBASE}, 16
  s_lshl_b32 s{S_T}, s{S_W}, 14
  s_add_u32 s{S_PBASE}, s{S_PBASE}, s{S_T}
  ; v1 = G, v6 = i = l&15
  v_and_b32 v6, 15, v{L}
  v_xor_b32 v7, v6, v1
""")
for n in range(4):
    a(f"  v_xor_b32 v8, {4*n}, v7")
    a(f"  v_lshlrev_b32 v8, 4, v8")
    a(f"  v_lshl_add_u32 v{V_KD+n}, v1, 8, v8")
for n in range(2):
    a(f"  v_xor_b32 v8, v6, v2")
    if n: a(f"  v_xor_b32 v8, 8, v8")
    a(f"  v_lshlrev_b32 v8, 4, v8")
    a(f"  v_lshl_add_u32 v{V_VD+n}, v1, 8, v8")
a(f"""
  v_and_b32 v8, 1, v1
  v_lshlrev_b32 v8, 1, v8
  v_lshrrev_b32 v9, 1, v1
  v_or_b32 v8, v8, v9
  v_xor_b32 v8, v8, v6
""")
for ds in range(4):
    a(f"  v_xor_b32 v9, {4*ds}, v8")
    a(f"  v_lshlrev_b32 v9, 4, v9")
    a(f"  v_lshl_add_u32 v{V_KA+ds}, v6, 8, v9")
a(f"""
  v_lshrrev_b32 v8, 2, v6
  v_lshl_add_u32 v8, v1, 2, v8         ; row
  v_and_b32 v9, 3, v6
  v_lshlrev_b32 v9, 3, v9              ; (i&3)*8
  v_lshl_add_u32 v10, v8, 8, v9
  v_add_u32 v10, {RB}, v10
  v_and_b32 v11, 7, v8
""")
for dt in range(8):
    a(f"  v_xor_b32 v12, {dt}, v11")
    a(f"  v_lshl_add_u32 v{V_VA+dt}, v12, 5, v10")
a(f"""
  v_lshl_add_u32 v10, v8, 7, v9
  v_add_u32 v10, s{S_VM0}, v10
  v_bfe_u32 v11, v8, 1, 2
""")
for nt in range(4):
    a(f"  v_xor_b32 v12, {nt}, v11")
    a(f"  v_lshl_add_u32 v{V_AA+nt}, v12, 5, v10")
    a(f"  v_add_u32 v{V_AA+4+nt}, {3*16384}, v{V_AA+nt}")
a(f"""
  v_lshrrev_b32 v8, 2, v{L}
  v_and_b32 v9, 1, v{L}
  v_lshl_add_u32 v8, v9, 5, v8
  v_lshlrev_b32 v8, 4, v8
  v_bfe_u32 v9, v{L}, 1, 1
  v_lshl_add_u32 v8, v9, 3, v8
  s_lshl_b32 s{S_T}, s{S_W}, 10
  v_add_u32 v{V_T1}, s{S_T}, v8
""")
a(f"""
  s_mov_b32 s{SRD_D}, s{P_DBG}
  s_mov_b32 s{SRD_D+1}, s{P_DBG+1}
  s_lshl_b32 s{SRD_D+2}, s{S_R}, 2
  s_add_u32 s{SRD_D+2}, s{SRD_D+2}, 4
  s_mov_b32 s{SRD_D+3}, 0x20000
  s_lshl_b32 s{S_FB}, s{S_R}, 19
  s_lshr_b32 s{S_T}, s{S_G}, 1
  s_lshl_b32 s{S_T}, s{S_T}, 14
  s_add_u32 s{S_FB}, s{S_FB}, s{S_T}
  s_and_b32 s{S_T+1}, s{S_G}, 1
  s_lshl_b32 s{S_T}, s{S_T+1}, 12
  s_add_u32 s{S_FB}, s{S_FB}, s{S_T}
  s_lshl_b32 s{S_T}, s{S_W}, 10
  s_add_u32 s{S_FB}, s{S_FB}, s{S_T}
  s_lshl_b32 s{S_XO}, s{S_R}, 16
  s_lshl_b32 s{S_T}, s{S_W}, 14
  s_add_u32 s{S_XO}, s{S_XO}, s{S_T}
  s_lshr_b32 s{S_T}, s{S_G}, 1
  s_lshl_b32 s{S_T}, s{S_T}, 8
  s_add_u32 s{S_XO}, s{S_XO}, s{S_T}
  s_lshl_b32 s{S_T}, s{S_T+1}, 6
  s_add_u32 s{S_XO}, s{S_XO}, s{S_T}
""")
def zero_o():
    for i in range(4): a(f"  v_mov_b32 v{204+i}, 0")
    a("  s_nop 1")
    for i in range(8): a(f"  v_mfma_f32_32x32x16_bf16 a[{A_O+16*i}:{A_O+16*i+15}], v[204:207], v[204:207], 0")
zero_o()
def dreg(e): return e if e < 64 else 64 + e
pfsel = [k for b_, k in ((1, 'w2'), (2, 'kv'), (4, 'ws')) if OPT['pf'] & b_] + ([] if OPT['mbl'] else ['mb'])
groups = []
for s_ in range(NS-1):
    pl = produce_list(rpos(s_))
    groups += [pl[:5], [pl[5]], [pl[6]], [pl[7]]]
for k in pfsel: groups.append(PFG[k])
NPF = sum(nloads(PFG[k]) for k in pfsel)
SUM, SQ = 192, 196
MU, MB = 200, 202
a(f"  v_and_b32 v8, 3, v{L}")
a(f"  v_and_b32 v9, 60, v{L}")
a(f"  v_lshl_add_u32 v8, v8, 12, v9")
a(f"  s_lshl_b32 s{S_T}, s{S_W}, 6")
a(f"  s_add_u32 s{S_T}, s{S_T}, {RB+1*16384}")
a(f"  v_add_u32 v{V_BA}, s{S_T}, v8")
a(f"  s_add_u32 s{S_T}, s{S_VM0}, {1*16384}")
a(f"  v_lshl_add_u32 v{V_RSO}, v6, 2, s{S_T}")
stamp(7)
xloads(OPT['xs'], 16)
stamp(7)
if OPT['stamps'] == 7:
    for k in (16, 15, 8, 0):
        a(f"  s_waitcnt vmcnt({k})"); stamp(7)
for j in range(16):
    a(f"  s_waitcnt vmcnt({15 - j + min(j, OPT['n1'])})")
    if j in (0, 8, 15): stamp(3)
    if j < OPT['n1']:
        for l in groups[j]: a(l)
    for i in range(4*j, 4*j+4):
        a(f"  v_lshlrev_b32 v{dreg(2*i)}, 16, v{64+i}")
        a(f"  v_and_b32 v{dreg(2*i+1)}, 0xffff0000, v{64+i}")
    for i in range(4*j, 4*j+4):
        e = dreg(2*i); t = SUM + 2*(i & 1); q = SQ + 2*(i & 1)
        if i < 2: a(f"  v_pk_add_f32 v[{t}:{t+1}], v[{e}:{e+1}], v[{dreg(2*i+4)}:{dreg(2*i+4)+1}]")
        elif i >= 4: a(f"  v_pk_add_f32 v[{t}:{t+1}], v[{t}:{t+1}], v[{e}:{e+1}]")
        if i < 2: a(f"  v_pk_mul_f32 v[{q}:{q+1}], v[{e}:{e+1}], v[{e}:{e+1}]")
        else: a(f"  v_pk_fma_f32 v[{q}:{q+1}], v[{e}:{e+1}], v[{e}:{e+1}], v[{q}:{q+1}]")
sprinkle = groups[OPT['n1']:]
stamp(3)
for r in (SUM, SQ): a(f"  v_pk_add_f32 v[{r}:{r+1}], v[{r}:{r+1}], v[{r+2}:{r+3}]")
for r in (SUM, SQ): a(f"  v_add_f32 v{r}, v{r}, v{r+1}")
a("  s_nop 0")
for qp in ("[1,0,3,2]", "[2,3,0,1]"):
    for r in (SUM, SQ): a(f"  v_add_f32_dpp v{r}, v{r}, v{r} quad_perm:{qp} row_mask:0xf bank_mask:0xf")
    a("  s_nop 0")
a(f"""
  v_mul_f32 v{MU}, 0x3b000000, v{SUM}
  v_cvt_pk_bf16_f32 v{MB}, v{MU}, v{MU}
  v_and_b32 v{MB}, 0xffff0000, v{MB}
""")
stats = f"""  v_mul_f32 v{SQ}, 0x3b000000, v{SQ}
  v_fma_f32 v{SQ}, -v{MU}, v{MU}, v{SQ}
  v_max_f32 v{SQ}, 0, v{SQ}
  v_cvt_pk_bf16_f32 v{SQ}, v{SQ}, v{SQ}
  v_and_b32 v{SQ}, 0xffff0000, v{SQ}
  v_add_f32 v{SQ}, 0x3727c5ac, v{SQ}
  v_cvt_pk_bf16_f32 v{SQ}, v{SQ}, v{SQ}
  v_and_b32 v{SQ}, 0xffff0000, v{SQ}
  v_sqrt_f32 v{SQ}, v{SQ}
  v_cvt_pk_bf16_f32 v{SQ}, v{SQ}, v{SQ}
  v_and_b32 v{SQ}, 0xffff0000, v{SQ}
  v_rcp_f32 v{SQ}, v{SQ}
  ds_write_b32 v{V_BA}, v{SQ}""".split('\n')
for j in range(16):
    if j in (0, 8): stamp(3)
    if j >= OPT['late'] and sprinkle:
        for l in sprinkle.pop(0): a(l)
    for k in range(4):
        e = dreg(2*(4*j+k))
        a(f"  v_pk_add_f32 v[{e}:{e+1}], v[{e}:{e+1}], v[{MB}:{MB+1}] op_sel_hi:[1,0] neg_lo:[0,1] neg_hi:[0,1]")
    if j < len(stats): a(stats[j])
    for k in range(4):
        i = 4*j + k; e = dreg(2*i)
        a(f"  v_cvt_pk_bf16_f32 v{64+i}, v{e}, v{e+1}")
    a(f"  ds_write_b64 v{V_T1}, v[{64+4*j}:{65+4*j}] offset:{j*4096}")
    a(f"  ds_write_b64 v{V_T1}, v[{66+4*j}:{67+4*j}] offset:{j*4096+256}")
for g_ in sprinkle:
    for l in g_: a(l)
stamp(3)
a(f"  s_waitcnt vmcnt({4*(NS-3)+NPF}) lgkmcnt(0)")
a_first()
a("  s_barrier")
stamp(3)
stamp()
for qt in range(4): a(f"  ds_read_b32 v{V_RS+qt}, v{V_RSO} offset:{qt*64}")
a(f"  s_lshl_b32 s{S_T}, s{S_W}, 6")
a(f"  v_add_u32 v{V_RSO}, s{S_T}, v{V_RSO}")
a(f"  ds_read_b32 v{V_RSO}, v{V_RSO}")
b_reload(False, wait=False)
a("  s_waitcnt lgkmcnt(8)")
produce_slot(rpos(5)); produce_slot(rpos(6))
a(f"  s_mov_b32 s{S_T}, {CSH:#x}")
for qt in range(4): a(f"  v_mul_f32 v{V_RS+qt}, s{S_T}, v{V_RS+qt}")
gemm_first(); gemm_call(7); set_stream('wq', 0); gemm_call(7)
a("  s_nop 7")
for c in range(2):
    for qt in range(4):
        x = V_ACC + ((2*c)*4+qt)*4; y = V_ACC + ((2*c+1)*4+qt)*4
        d = V_H + (c*4+qt)*4
        for k, s in enumerate((x, x+2, y, y+2)):
            a(f"  v_cvt_pk_bf16_f32 v{d+k}, v{s}, v{s+1}")
        for k in range(4):
            a(f"  v_pk_max_i16 v{d+k}, v{d+k}, 0")
for half in range(2):
    gemm_first(); gemm_call(7)
    if half == 0:
        set_stream('wq', 1); gemm_call(7)
    else:
        set_stream('w2', 0); gemm_call(6)
        a(f"  s_lshl_b32 s{S_T}, s{S_ODD}, 7")
        for n in range(4): a(f"  v_add_u32 v{V_PD+n}, s{S_T}, v{V_PD+n}")
        gemm_call(1)
    a("  s_nop 7")
    for c in range(2):
        for qt in range(4):
            x = V_ACC + ((2*c)*4+qt)*4; y = V_ACC + ((2*c+1)*4+qt)*4
            rp = V_RS + (qt & 2); md = "op_sel:[0,1] op_sel_hi:[1,1]" if qt & 1 else "op_sel_hi:[1,0]"
            for s in (x, x+2, y, y+2):
                a(f"  v_pk_mul_f32 v[{s}:{s+1}], v[{s}:{s+1}], v[{rp}:{rp+1}] {md}")
            d = 128 + (c*4+qt)*4
            for k, s in enumerate((x, x+2, y, y+2)):
                a(f"  v_cvt_pk_bf16_f32 v{d+k}, v{s}, v{s+1}")
    a("  s_nop 0")
    for c in range(2):
        for qt in range(4):
            d = 128 + (c*4+qt)*4
            a(f"  v_permlane16_swap_b32 v{d}, v{d+2}")
            a(f"  v_permlane16_swap_b32 v{d+1}, v{d+3}")
    for c in range(2):
        for qt in range(4):
            d = 128 + (c*4+qt)*4
            for k in range(4):
                a(f"  v_accvgpr_write_b32 a{A_Q+(qt*4+2*half+c)*4+k}, v{d+k}")
stamp()
a("  s_waitcnt lgkmcnt(0)")
a("  s_barrier")
a(f"  s_lshl_b32 s{S_T}, s{S_W}, 13")
a(f"  v_add_u32 v{V_T0}, s{S_T}, v{V_L16}")
for c in range(2):
    for qt in range(4):
        d = V_H + (c*4+qt)*4
        a(f"  ds_write_b128 v{V_T0}, v[{d}:{d+3}] offset:{(c*4+qt)*1024}")
k_tile_dma(0); k_tile_dma(1)
a("  s_waitcnt lgkmcnt(0)")
a("  s_barrier")
stamp(2)
b_reload(True, wait=False)
a(f"  s_mov_b32 s{S_VOFF}, s{S_KV0}")
a(f"  s_cmp_lg_u32 s{S_ODD}, 0")
a("  s_cbranch_scc1 L_ffn2_odd")
def ffn2(nf):
    gpos[0] = 48; N = 48 + 2*nf
    vq = [f"S{k}" for k in range(49, 55) for _ in range(4)] + ['K']*8
    def yg(tag): return len(vq) - 1 - max(i for i, t in enumerate(vq) if t == tag)
    st0 = None
    stj = (59, 60) if nf == 8 else (55, 56)
    j = 48
    while j < N:
        if j == 48 + nf: st0 = store_partial(0, 0, dst=128, defer=True, sreg=S_SP)
        if nf == 8 and j == 49: set_stream('w2', 1)
        if j == 50:
            n = 6 if nf == 8 else 3
            gemm_call(n)
            for k in range(n): vq.extend([f"S{j+k+7}"]*4)
            j += n; continue
        kw = dict(first=(j - 48) % nf < 2, vmw=(yg(f"S{j+2}") if j + 2 < N else 63), noread=(j + 2 >= N))
        if j + 7 < N: tags = [f"S{j+7}"]*4
        elif j in (57, 58):
            kw['vm'] = [[f"  s_add_u32 m0, s{S_VM0}, {(j-57)*16384}", v_dma(0)], [v_dma(1)], [v_dma(2)], [v_dma(3)]]
            if j == 58: kw['xvm'] = [(5, f"  s_add_u32 s{S_VOFF}, s{S_VOFF}, 16384")]
            tags = ['V']*4
        elif j in stj and OPT['early']:
            kw['vm'] = [[x] for x in st0[4*(j-stj[0]):4*(j-stj[0])+4]]; tags = ['st']*4
        else: kw['vm'] = []; tags = []
        gemm_inl(**kw); vq.extend(tags); j += 1
ffn2(8)
a("  s_branch L_ffn2_done")
iodd = len(a.lines)
a.label("L_ffn2_odd")
ffn2(6)
a.label("L_ffn2_done")
stamp(2)
a("  s_waitcnt lgkmcnt(0)")
a("  s_barrier")
stamp(2)
stamp(); stamp(4)
if OPT['stamps']:
    a("  s_memrealtime s[38:39]")
    a("  s_waitcnt lgkmcnt(0)")
def attn_init():
    L = [f"  s_add_u32 s{S_VOFF}, s{S_KV0}, {2*16384}"]
    L += [f"  v_mov_b32 v{V_L+i}, 0" for i in range(12)]
    L += [f"  v_and_b32 v{V_T0}, 3, v{V_LANE}", f"  v_cmp_eq_u32 vcc, 0, v{V_T0}", f"  v_mov_b32 v{V_T0}, 0x3f803f80", "  s_nop 0",
          f"  v_cndmask_b32 v{V_ONES}, 0, v{V_T0}, vcc"] + [f"  v_mov_b32 v{V_ONES+i}, v{V_ONES}" for i in range(1, 4)]
    return L
QORD = [(kt, qt) for qt in range(4) for kt in range(2)]
def maxq(qt):
    x = s_reg(0, 0, qt); y = s_reg(0, 1, qt); m = V_NEGM + qt*4
    a(f"  v_max3_f32 v{m}, v{x}, v{x+1}, v{x+2}")
    a(f"  v_max3_f32 v{m+1}, v{x+3}, v{y}, v{y+1}")
    a(f"  v_max3_f32 v{m}, v{m}, v{y+2}, v{y+3}")
    a(f"  v_max_f32 v{m}, v{m}, v{m+1}")
    xlane_reduce(m, 'v_max_f32', m+1)
    for k in range(3, -1, -1): a(f"  v_sub_f32 v{m+k}, 0, v{m}")
    for kt in range(2):
        for r in range(4):
            s_ = s_reg(0, kt, qt) + r
            a(f"  v_add_f32 v{s_}, v{s_}, v{m}")
def head_common():
    L = qk_mfmas(1, order=QORD, src=A_V)
    for qt in range(4): L += sm_ops(0, qt)
    L += [k_read(2, i >> 2, i & 3) for i in range(8)] + capture(lambda: k_tile_dma(4))
    L += qk_mfmas(0, order=QORD)
    for qt in range(4): L += sm_ops(1, qt)
    L += [k_read(3, i >> 2, i & 3) for i in range(8)] + capture(lambda: v_tile_dma(2))
    return L
KR01 = [k_read(0, i >> 2, i & 3) for i in range(8)] + [k_read(1, i >> 2, i & 3, A_V) for i in range(8)]
prog = KR01 + capture(lambda: store_partial(0, 1, dst=160, defer=True, sreg=S_SP))
prog += capture(lambda: (k_tile_dma(2), k_tile_dma(3))) + (PFG['wo'] if OPT['pf'] & 8 else []) + ["  s_barrier"]
prog += qk_mfmas(0, zero=True, order=QORD)
prog += [l for l in attn_init() if 's_nop' not in l]
for qt in range(4): prog += capture(lambda: maxq(qt))
prog += head_common()
prog += capture(lambda: set_stream('wo', 0)) + [f"  s_mov_b32 s{S_SV_POFF}, s{S_POFF}"]
emit_sched(prog, 'head')
stamp(4)
a(f"  s_mov_b32 s{S_LOOP}, 7")
a("  s_waitcnt vmcnt(12)")
a("  s_branch L_p2")
segs.append(('pre', i0, len(a.lines)))
a(".p2align 6")
il = len(a.lines)
a.label("L_loop")
for p in range(8, 16):
    if p == 10: a.label("L_p2")
    if p % 2 == 0: barrier_T(16)
    else: a("  s_waitcnt lgkmcnt(0)")
    period(p)
a(f"  s_sub_u32 s{S_LOOP}, s{S_LOOP}, 1")
a(f"  s_cmp_eq_u32 s{S_LOOP}, 0")
a("  s_cbranch_scc1 L_tail")
itail = len(a.lines)
a(f"  s_cmp_lg_u32 s{S_REDO}, 0")
a("  s_cbranch_scc1 L_loop")
for k in range(2 if OPT['early'] else 0, 4):
    a(f"  s_cmp_lg_u32 s{S_LOOP}, {6-k}")
    a(f"  s_cbranch_scc1 L_bk{k}")
    if k == 3 and OPT['mbl']:
        for l in PFG['mb']: a(l.replace('v255', f'v{V_T0}'))
    a(f"  s_add_u32 s{S_T}, s{S_PBASE}, {k*4096}")
    for qt in range(4):
        d = 128 + (k*4+qt)*4
        a(f"  buffer_store_dwordx4 v[{d}:{d+3}], v{V_L16}, s[{SRD_WS}:{SRD_WS+3}], s{S_T} offen offset:{qt*1024} sc1")
    a("  s_branch L_loop")
    a.label(f"L_bk{k}")
a(f"  s_lshl_b32 s{S_T}, s{S_R}, 2")
a(f"  s_cmp_lg_u32 s{S_LOOP}, 1")
a("  s_cbranch_scc1 L_bk4")
a(f"  v_mov_b32 v{V_T0}, 0")
a(f"  buffer_load_dword v{V_POLL}, v{V_T0}, s[{SRD_D}:{SRD_D+3}], s{S_T} offen sc1")
a("  s_branch L_loop")
a.label("L_bk4")
a(f"  s_lshl_b32 s{S_T+1}, s{S_W}, 4")
a(f"  s_or_b32 s{S_T+1}, s{S_T+1}, s{S_LOOP}")
a(f"  s_cmp_lg_u32 s{S_T+1}, 2")
a("  s_cbranch_scc1 L_loop")
a(f"  v_mov_b32 v{V_T0}, 1")
a(f"  v_lshlrev_b32 v{V_T1}, 2, v{V_LANE}")
a(f"  buffer_atomic_add v{V_T0}, v{V_T1}, s[{SRD_D}:{SRD_D+3}], s{S_T} offen sc1")
a("  s_branch L_loop")
segs.append(('loop2', il, len(a.lines)))
it = len(a.lines)
a.label("L_tail")
stamp(4)
a(f"  v_readfirstlane_b32 s{S_T}, v{V_POLL}")
a("  s_nop 3")
a(f"  s_cmp_ge_u32 s{S_T}, 8")
a("  s_cbranch_scc1 L_spin1_done")
a(f"  v_mov_b32 v{V_T0}, 0")
a(f"  s_lshl_b32 s{S_T+2}, s{S_R}, 2")
spin("L_spin1", SRD_D, V_T0, f"s{S_T+2}", 8)
gl = [part_load(0, b_ >> 3, b_ & 7, 128 + 4*b_) for b_ in range(16)]
for p in range(56, 63):
    if p % 2 == 0: barrier_T()
    else: a("  s_waitcnt lgkmcnt(0)")
    if p in (56, 58, 60, 61): period(p, dma=[gl.pop(0) for _ in range(4)])
    elif p == 62:
        ex = []
        for pos in (4, 5):
            pl = produce_list(pos); ex += [pl[:4], [pl[4]], [], [pl[5]], [], [pl[6]], [], [pl[7]]]
        period(p, last=True, extra=[[]]*16 + ex)
    else: period(p)
stamp(4)
a("  s_waitcnt lgkmcnt(0)")
THR = 0x53800000 if not OPT['force_redo'] else 0x3f000000
prog = v_half(31, 0) + produce_list(0) + produce_list(1)
prog += pv_half(30, 1, A_K) + sum_pair(30, SUMQT[0])
prog += [f"  s_mov_b32 s{S_SP}, {THR:#x}", f"  s_mov_b64 vcc, 0"]
for qt in (3, 2, 1, 0): prog += sm_ops(63, qt)
prog += v_half(31, 1, A_K) + ["  s_barrier"] + produce_list(2)
prog += sum_pair(31, 3) + sum_pair(31, 2)
for qt in (1, 0, 3, 2):
    lr = ls_reg(qt) if qt in SUMQT else V_L + qt
    if qt not in SUMQT: prog += capture(lambda: xlane_reduce(V_L+qt, 'v_add_f32', V_L+2+qt))
    prog += [f"  v_cmp_ngt_f32 s[{S_T+2}:{S_T+3}], s{S_SP}, v{lr}", f"  s_or_b64 vcc, vcc, s[{S_T+2}:{S_T+3}]",
             f"  v_rcp_f32 v{V_NEGM+2*qt}, v{lr}"]
prog += [f"  s_cmp_lg_u64 vcc, 0", f"  s_cselect_b32 s{S_T}, 1, 0", f"  s_lshl_b32 s{S_T+1}, s{S_W}, 2", f"  s_add_u32 s{S_T+1}, s{S_T+1}, {RB+3*16384}",
         f"  v_and_b32 v{V_T0}, 3, v{V_LANE}", f"  v_lshlrev_b32 v{V_T0}, 12, v{V_T0}", f"  v_add_u32 v{V_T0}, s{S_T+1}, v{V_T0}",
         f"  v_mov_b32 v{V_T1}, s{S_T}", f"  ds_write_b32 v{V_T0}, v{V_T1}",
         f"  s_lshl_b32 s{S_T}, s{S_W}, 14", f"  v_add_u32 v{V_T0}, s{S_T}, v{V_L16}"]
prog += pv_half(31, 0) + pv_half(31, 1, A_K)
def norm(c, qt, pk):
    t = qt * 12; L = []
    L += [f"  v_accvgpr_read_b32 v{t+k}, a{A_O+((2*c)*4+qt)*4+k}" for k in range(4)]
    L += [f"  v_accvgpr_read_b32 v{t+4+k}, a{A_O+((2*c+1)*4+qt)*4+k}" for k in range(4)]
    if pk: L += [f"  v_pk_mul_f32 v[{t+2*k}:{t+2*k+1}], v[{t+2*k}:{t+2*k+1}], v[{V_NEGM+2*qt}:{V_NEGM+2*qt+1}] op_sel_hi:[1,0]" for k in range(4)]
    else: L += [f"  v_mul_f32 v{t+k}, v{t+k}, v{V_NEGM+2*qt}" for k in range(8)]
    L += [f"  v_cvt_pk_bf16_f32 v{t+8+k}, v{t+2*k}, v{t+2*k+1}" for k in range(4)]
    L += [f"  ds_write_b128 v{V_T0}, v[{t+8}:{t+11}] offset:{(c*4+qt)*1024}"]
    return L
NOV = OPT['nov']
todo = [(c, qt) for c in range(4) for qt in range(4)]
for c, qt in todo[:NOV]: prog += norm(c, qt, False)
emit_sched(prog, 'tail')
stamp(); stamp(4)
if OPT['stamps']:
    a(f"  s_memrealtime s[{S_RET}:{S_RET+1}]")
    a("  s_waitcnt lgkmcnt(0)")
    a(f"  s_mov_b32 s39, s{S_RET}")
gpos[0] = 8
for nt in range(4): a(f"  v_add_u32 v{V_AA+4+nt}, {3*16384}, v{V_AA+nt}")
a("  s_waitcnt vmcnt(12)")
a_first()
for c, qt in todo[NOV:]:
    for l in norm(c, qt, True): a(l)
a("  s_waitcnt lgkmcnt(0)")
a("  s_barrier")
a(f"  s_add_u32 s{S_T}, s{S_VM0}, {3*16384}")
a(f"  v_mov_b32 v{V_T0}, s{S_T}")
a(f"  ds_read_b128 v[0:3], v{V_T0}")
b_reload(False, wait=False)
a("  s_waitcnt lgkmcnt(8)")
a("  v_or_b32 v0, v0, v1")
a("  v_or3_b32 v0, v0, v2, v3")
a("  s_nop 0")
a(f"  v_readfirstlane_b32 s{S_T}, v0")
a(f"  s_andn2_b32 s{S_T}, s{S_T}, s{S_REDO}")
if not OPT['noredo']: a("  s_cbranch_scc1 L_redo")
produce_slot(3); produce_slot(4)
stamp()
gemm_first(); gemm_call(7); set_stream('wo', 1); gemm_call(7)
st0 = store_partial(1, 0, dst=[192, 196, 200, 204, 216, 220, 224, 228], defer=True, sreg=S_SP)
a(f"  s_mov_b32 s{SRD_X}, s{P_X}")
a(f"  s_mov_b32 s{SRD_X+1}, s{P_X+1}")
a(f"  s_mov_b32 s{SRD_X+2}, {2048*512*2}")
GL, XL, SL = 128, 248, 64
S_MB, S_DONE, S_M, S_NEW = S_KOFF, S_VOFF, S_LOOP, S_KM0
a(f"  s_lshr_b32 s{S_MB}, s{S_PBASE}, 16")
a(f"  s_lshl_b32 s{S_MB}, s{S_MB}, 7")
a(f"  s_add_u32 s{S_MB}, s{S_MB}, {MBOX}")
a(f"  v_mov_b32 v{V_ZERO}, 0")
a(f"  v_and_b32 v{V_T0}, 15, v{V_LANE}")
a(f"  v_lshlrev_b32 v{V_T0}, 10, v{V_T0}")
a(f"  v_lshrrev_b32 v{V_T1}, 4, v{V_LANE}")
a(f"  v_lshl_add_u32 v{V_XO}, v{V_T1}, 3, v{V_T0}")
POLL = f"  buffer_load_dword v{V_POLL}, v{V_ZERO}, s[{SRD_WS}:{SRD_WS+3}], s{S_MB} offen sc1"
XLD = [f"  buffer_load_dwordx2 v[{XL+2*k}:{XL+2*k+1}], v{V_XO}, s[{SRD_X}:{SRD_X+3}], s{S_XO} offen offset:{(k>>1)*128+(k&1)*32}" for k in range(4)]
S_SIG = S_KV0
a(f"  s_mov_b32 s{SRD_D}, s{P_WS}")
a(f"  s_mov_b32 s{SRD_D+1}, s{P_WS+1}")
a(f"  s_lshl_b32 s{S_SIG}, s{S_R}, 10")
a(f"  s_add_u32 s{S_SIG}, s{S_SIG}, {MBOX}")
a(f"  s_add_u32 s{S_T}, s{S_SIG}, 1024")
a(f"  s_cmp_eq_u32 s{S_W}, 0")
a(f"  s_cselect_b32 s{SRD_D+2}, s{S_T}, 0")
a(f"  s_lshl_b32 s{S_M}, 1, s{S_G}")
a(f"  v_mov_b32 v{V_T0}, s{S_M}")
a(f"  v_lshlrev_b32 v{V_T1}, 7, v{V_LANE}")
SIG = f"  buffer_atomic_add v{V_T0}, v{V_T1}, s[{SRD_D}:{SRD_D+3}], s{S_SIG} offen sc1"
SEL = 236
sel = [f"  v_lshrrev_b32 v{V_ONE_LO}, 4, v{V_LANE}", f"  v_bfe_u32 v{V_ONE_HI}, v{V_LANE}, 2, 2",
       f"  v_cmp_eq_u32 vcc, v{V_ONE_LO}, v{V_ONE_HI}", f"  v_and_b32 v{V_ONE_LO}, 1, v{V_LANE}", f"  v_lshlrev_b32 v{V_ONE_LO}, 4, v{V_ONE_LO}",
       f"  v_mov_b32 v{V_ONE_HI}, 0x3f80", f"  v_lshlrev_b32 v{V_ONE_HI}, v{V_ONE_LO}, v{V_ONE_HI}", f"  v_cndmask_b32 v{V_ONE_HI}, 0, v{V_ONE_HI}, vcc",
       f"  v_and_b32 v{V_ONE_LO}, 2, v{V_LANE}", f"  v_cmp_eq_u32 vcc, 0, v{V_ONE_LO}", f"  v_mov_b32 v{SEL}, 0", f"  v_mov_b32 v{SEL+1}, 0",
       f"  v_cndmask_b32 v{SEL+2}, 0, v{V_ONE_HI}, vcc", f"  v_cndmask_b32 v{SEL+3}, v{V_ONE_HI}, v{SEL}, vcc", f"  v_mov_b32 v{SEL+4}, 0", f"  v_mov_b32 v{SEL+5}, 0"]
def msum(base, acc, bt='v'):
    return [mf(acc + 4*h, SEL + 2 - 2*h, base + 4*s_, None if s_ == 0 else acc + 4*h, 'v', 'v', bt) for s_ in range(8) for h in range(2)]
SL = 0
def redirect(b_):
    return [f"  s_bitcmp1_b32 s{S_NEW}, {b_}", f"  s_cselect_b32 s{S_T+1}, s{S_FB}, 0x40000000",
            f"  s_add_u32 s{S_T+2}, s{S_T+1}, {PART_KIND + (b_ & 7)*65536 + (b_ >> 3)*8192}",
            f"  buffer_load_dwordx4 a[{SL+4*b_}:{SL+4*b_+3}], v{V_L16}, s[{SRD_WS}:{SRD_WS+3}], s{S_T+2} offen sc1"]
gemm_first(); gemm_call(7)
vq = [f"slot{k}" for k in range(16) for _ in range(4)]
def younger(tag): return len(vq) - 1 - max(i for i, t in enumerate(vq) if t == tag)
for j in range(9, 16):
    vm = []; tags = []
    w_ = younger(f"slot{j+2}") if j < 14 else 63
    if j in (9, 10): vm = [[x] for x in st0[4*(j-9):4*(j-9)+4]]; tags = ['st']*4
    if j == 11: vm = [[x] for x in XLD]; tags = ['x']*4
    if j == 14: vm = [[POLL]]; tags = ['poll']
    if j == 15 and OPT['ilv']:
        prog = capture(lambda: (gemm_inl(vm=[], vmw=63, noread=True), store_partial(1, 1)))
        prog = [l for l in prog if 's_waitcnt' not in l]
        a("  s_nop 3")
        out, t = schedule(prog, vmgap=40)
        for l in out: a(l)
        a("  s_nop 1")
        break
    gemm_inl(vm=vm, vmw=w_, noread=(j >= 14), fillv=(sel if j == 14 else None))
    vq += tags
if not OPT['ilv']: store_partial(1, 1)
stamp(); stamp(5)
GA, T = 16, 48
a("  s_waitcnt vmcnt(8)")
a("  s_barrier")
a(SIG)
a(f"  v_readfirstlane_b32 s{S_NEW}, v{V_POLL}")
a(f"  v_lshlrev_b32 v{V_T0}, 8, v{V_T0}")
a(f"  s_mul_i32 s{S_M}, s{S_M}, 0x101")
a("  s_nop 1")
a(f"  s_or_b32 s{S_M}, s{S_M}, s{S_NEW}")
a(f"  s_and_b32 s{S_NEW}, s{S_M}, 0x7f")
a(f"  s_mov_b32 s{S_DONE}, s{S_NEW}")
fl = []
for s_ in range(7):
    r_ = redirect(s_); fl += [r_[:2], r_[2:]]
def silu(acc):
    L = [f"  v_mul_f32 v{acc+e}, v{acc+e}, v{V_RSO}" for e in range(8)]
    def rp(r): return [f"  v_cvt_pk_bf16_f32 v{T+(r&2)//2}, v{r}, v{r+1}", f"  v_lshlrev_b32 v{r}, 16, v{T+(r&2)//2}", f"  v_and_b32 v{r+1}, 0xffff0000, v{T+(r&2)//2}"]
    for j in range(4): L += rp(acc+2*j)
    L += [f"  v_mul_f32 v{T+4+e}, 0xbfb8aa3b, v{acc+e}" for e in range(8)]
    L += [f"  v_exp_f32 v{T+4+e}, v{T+4+e}" for e in range(8)]
    L += [f"  v_add_f32 v{T+4+e}, 1.0, v{T+4+e}" for e in range(8)]
    L += [f"  v_rcp_f32 v{T+4+e}, v{T+4+e}" for e in range(8)]
    L += [f"  v_mul_f32 v{acc+e}, v{acc+e}, v{T+4+e}" for e in range(8)]
    for j in range(4): L += rp(acc+2*j)
    return L
s0 = silu(GA)
for g, l in enumerate(msum(GL, GA) + msum(GL + 32, GA + 8)):
    a(l)
    if g < len(fl):
        for x in fl[g]: a(x)
    if g >= 23:
        a(s0.pop(0)); a(s0.pop(0))
stamp(5)
a("  s_waitcnt vmcnt(8)")
a("  s_barrier")
a(SIG)
stamp(5)
def fround(first=False):
    if not first:
        a(POLL)
        a("  s_waitcnt vmcnt(0)")
        a(f"  v_readfirstlane_b32 s{S_M}, v{V_POLL}")
        a("  s_nop 3")
    a(f"  s_call_b64 s[{S_RET}:{S_RET+1}], L_round")
fround(True)
for l in s0 + silu(GA + 8): a(l)
if OPT['slp']: a(f"  s_sleep {OPT['slp']}")
a(f"  s_mov_b32 s{SRD_D}, s{P_OUT}")
a(f"  s_mov_b32 s{SRD_D+1}, s{P_OUT+1}")
a(f"  s_mov_b32 s{SRD_D+2}, {2048*512*2}")
a(f"  s_mov_b32 s{S_CNT}, {OPT['spin']}")
SA = 0
for i in range(2):
    a.label(f"L_sp{i}")
    a(f"  s_cmp_lg_u32 s{S_DONE}, 0xffff")
    a(f"  s_cbranch_scc1 L_sp{i}_go")
    a("  s_waitcnt vmcnt(0)")
    a(f"  s_branch L_sp{i}_done")
    a.label(f"L_sp{i}_go")
    a(f"  s_bfe_u32 s{S_T+3}, s{S_DONE}, {(8 << 16) | (8*i)}")
    fround()
    a(f"  s_cmp_eq_u32 s{S_T+3}, 0xff")
    a(f"  s_cbranch_scc1 L_sp{i}_done")
    a(f"  s_sub_u32 s{S_CNT}, s{S_CNT}, 1")
    a(f"  s_cbranch_scc0 L_sp{i}")
    a(f"  s_mov_b32 s{S_CNT}, 0")
    a.label(f"L_sp{i}_done")
    stamp(5)
    if i == 1: stamp()
    xu = []
    for j in range(4):
        xr = XL + 4*i + j
        xu += [f"  v_lshlrev_b32 v{T+4+2*j}, 16, v{xr}", f"  v_and_b32 v{T+5+2*j}, 0xffff0000, v{xr}"]
    def ost(i, k): return f"  buffer_store_dwordx2 v[{XL+4*i+2*k}:{XL+4*i+2*k+1}], v{V_XO}, s[{SRD_D}:{SRD_D+3}], s{S_XO} offen offset:{i*128+k*32}"
    if i == 1: xu += [ost(0, 0), ost(0, 1)]
    for g, l in enumerate(msum(SL + i*32, SA, 'a')):
        a(l)
        if g < len(xu): a(xu[g])
    a("  s_nop 6")
    for j in range(4): rnd_pair(SA+2*j, T + (j & 1))
    for e in range(8): a(f"  v_mul_f32 v{SA+e}, v{SA+e}, v{GA+8*i+e}")
    for j in range(4): rnd_pair(SA+2*j, T + (j & 1))
    for e in range(8): a(f"  v_add_f32 v{SA+e}, v{SA+e}, v{T+4+e}")
    for j in range(4): a(f"  v_cvt_pk_bf16_f32 v{XL+4*i+j}, v{SA+2*j}, v{SA+2*j+1}")
    if i == 1:
        a(ost(1, 0)); a(ost(1, 1))
    if i == 0: stamp(5)
if OPT['stamps']:
    a("  s_waitcnt vmcnt(0)")
    stamp(0)
    a(f"  s_memrealtime s[{S_T}:{S_T+1}]")
    a("  s_waitcnt lgkmcnt(0)")
    n = nstamp[0]
    for i in range(n):
        a(f"  v_writelane_b32 v0, s{S_STAMP+2*i}, {i}")
    a(f"  v_writelane_b32 v0, s{S_T}, 15")
    a(f"  v_writelane_b32 v0, s74, 14")
    a(f"  v_writelane_b32 v0, s38, 12")
    a(f"  v_writelane_b32 v0, s39, 13")
    a(f"  s_lshl_b32 s{S_T}, s2, 2")
    a(f"  s_add_u32 s{S_T}, s{S_T}, s{S_W}")
    a(f"  s_lshl_b32 s{S_T}, s{S_T}, 6")
    a(f"  s_add_u32 s{S_T}, s{S_T}, {STAMP_OFF}")
    a(f"  v_lshlrev_b32 v1, 2, v{V_LANE}")
    a(f"  v_cmp_gt_u32 vcc, 16, v{V_LANE}")
    a(f"  s_and_saveexec_b64 s[{S_T+2}:{S_T+3}], vcc")
    a(f"  buffer_store_dword v0, v1, s[{SRD_WS}:{SRD_WS+3}], s{S_T} offen")
a.label("L_end")
a("  s_endpgm")
segs.append(('tail', 'tailjoin', (il, itail, it, len(a.lines))))
ir = len(a.lines)
a.label("L_redo")
a("  s_waitcnt lgkmcnt(0)")
a(f"  s_mov_b32 s{S_REDO}, 1")
a(f"  s_mov_b32 s{S_KOFF}, s{S_KV0}")
a(f"  s_mov_b32 s{S_LOOP}, 32")
a(f"  v_mov_b32 v{V_T0}, 0xff800000")
for qt in range(4): a(f"  v_mov_b32 v{V_NEGM+qt*4}, v{V_T0}")
a.label("L_redo_loop")
a("  s_waitcnt vmcnt(0) lgkmcnt(0)")
a("  s_barrier")
k_tile_dma(0)
a("  s_waitcnt vmcnt(0)")
a("  s_barrier")
for u in range(2):
    for i in range(8): a(k_read(u, i >> 2, i & 3))
    a("  s_waitcnt lgkmcnt(0)")
    for l in qk_mfmas(0, zero=True): a(l)
    a("  s_nop 7")
    for qt in range(4):
        m = V_NEGM + qt*4
        for kt in range(2):
            x = s_reg(0, kt, qt)
            a(f"  v_max3_f32 v{m}, v{x}, v{x+1}, v{m}")
            a(f"  v_max3_f32 v{m}, v{x+2}, v{x+3}, v{m}")
a(f"  s_sub_u32 s{S_LOOP}, s{S_LOOP}, 1")
a(f"  s_cmp_lg_u32 s{S_LOOP}, 0")
a("  s_cbranch_scc1 L_redo_loop")
for qt in range(4):
    m = V_NEGM + qt*4
    xlane_reduce(m, 'v_max_f32', m+1)
    a(f"  v_xor_b32 v{m}, 0x80000000, v{m}")
    for k in range(1, 4): a(f"  v_mov_b32 v{m+k}, v{m}")
a("  s_barrier")
a(f"  s_mov_b32 s{S_KOFF}, s{S_KV0}")
a(f"  s_mov_b32 s{S_VOFF}, s{S_KV0}")
for t in range(4): k_tile_dma(t)
for t in range(2): v_tile_dma(t)
a(f"  s_mov_b32 s{S_POFF}, s{S_SV_POFF}")
a("  s_waitcnt vmcnt(0)")
a("  s_barrier")
zero_o()
for l in attn_init(): a(l)
emit_sched(KR01 + ["  s_barrier"] + qk_mfmas(0, order=QORD) + head_common(), 'redo head')
a(f"  s_mov_b32 s{S_LOOP}, 7")
a("  s_branch L_p2")
segs.append(('redo', ir, len(a.lines)))
a.label("L_round")
a(f"  s_andn2_b32 s{S_NEW}, s{S_M}, s{S_DONE}")
a(f"  s_or_b32 s{S_DONE}, s{S_DONE}, s{S_M}")
for h in range(4):
    a(f"  s_and_b32 s{S_T}, s{S_NEW}, {0xf << (4*h)}")
    a(f"  s_cbranch_scc0 L_rs{h}")
    for b_ in range(4*h, 4*h+4):
        pl = part_load(1, b_ >> 3, b_ & 7, SL + b_*4, 'a')
        a(pl[0])
        a(f"  s_bitcmp1_b32 s{S_NEW}, {b_}")
        a(f"  s_cselect_b64 exec, -1, 0")
        a(pl[1])
    a("  s_mov_b64 exec, -1")
    a.label(f"L_rs{h}")
a(f"  s_setpc_b64 s[{S_RET}:{S_RET+1}]")
a(".p2align 6")
ig = len(a.lines)
for pos in range(12):
    a.label(f"L_gemm{pos}")
    gemm_step(pos, False, True)
    if pos < 11: a("  s_cbranch_scc1 L_gemm_ret")
    else: a("  s_cbranch_scc0 L_gemm0")
a.label("L_gemm_ret")
a(f"  s_setpc_b64 s[{S_RET}:{S_RET+1}]")
segs.append(('gemm2', ig, len(a.lines)))
a.label("L_code_end")

a('.section .rodata,"a"')
a(".p2align 6")
a(kernel_desc(NAME + "_kernel", 512, 102, 256))

errs = []
for s in segs:
    if s[1] == 'tailjoin':
        il_, itail_, it_, end_ = s[2]
        errs += hazard.check(a.lines[il_:itail_] + a.lines[it_:end_], 'tail')
    elif s[0].endswith('2'):
        errs += hazard.check(a.lines[s[1]:s[2]] * 2, s[0])
    else:
        errs += hazard.check(a.lines[s[1]:s[2]], s[0])
for e in errs[:40]: print("HAZ", e)
open(sys.argv[1], 'w').write(a.text())
print("written", sys.argv[1], len(a.lines), "lines;", len(errs), "hazard msgs")
```

```python
import sys, math
from asmlib import *
import hazard
from sched import schedule

NAME = "recurrent_scan__gqa_block_cached__dense_activation_relu__prompt"
OPT = dict(stamps=0, mimic_d=1, nsum=2, force_redo=0, pf=0, ng=2, rot=1, late=4, tlb=0, spin=200000, dot=1, xnobar=0, xnodma=0, xnost=0, noredo=0, pol=0, cpos=0, n1=8, w1pf=0, slp=0, xk=0, xv=0, xe=0, xa=0, xs=16, snake=1, nov=6, flip=0, early=0, ilv=0, stf=0, mbl=1, e64=0, xl=0, cp2=2, cp3=0, hsw=0, hx=1, o4=1, klate=1, rt=0, trk=0, e1=0, r2=0, own=1, pt=0, sib=0)
for x in sys.argv[2:]:
    k, v = x.split('='); OPT[k] = int(v)

POL = {0: '', 1: ' nt', 2: ' sc1', 3: ' sc0', 4: ' sc0 sc1', 5: ' sc1 nt'}[OPT['pol']]
a = Asm()
segs = []

S_W, S_G, S_R = 4, 5, 6
S_RET = 8
S_CNT, S_CSLOT, S_PSLOT, S_POFF, S_STA, S_STB = 10, 11, 12, 13, 14, 15
P_X, P_K, P_V, P_WQ, P_WO, P_W1, P_W2, P_WS, P_DBG, P_OUT = 16, 18, 20, 22, 24, 28, 30, 36, 34, 32
S_PLO, S_PHI = 38, 39
S_BOFF, S_BEND, S_FOFF, S_PLEN, S_ROT16, S_ROT7, S_ODD = 3, 7, 26, 27, 100, 101, 15
SRD_W, SRD_K, SRD_V, SRD_WS, SRD_X = 40, 44, 48, 52, 56
S_KOFF, S_VOFF, S_LOOP, S_KM0, S_VM0, S_PBASE, S_REDO = 60, 61, 62, 63, 64, 65, 66
S_SV_POFF, S_KV0 = 68, 69
S_SP = 94
S_OWN = 68
S_SIB = 15
S_HSW = 67
S_T = 70
S_STAMP = 76

V_ACC, V_A, V_B = 0, 64, 96
V_S, V_P, V_NEGM, V_L, V_LS, V_ONES = 0, 64, 96, 112, 116, 124
V_H = 176
V_PROW, V_PSWZ, V_BA, V_LANE, V_L16, V_T0, V_T1 = 208, 209, 210, 212, 213, 214, 215
V_KA, V_VA, V_KD, V_VD, V_PD, V_AA = 216, 220, 228, 232, 236, 240
A_O, A_Q, A_K, A_V = 0, 128, 192, 224
RB = 65536
NS = 6
PART_KIND = 16 << 20
STAMP_OFF = 48 << 20
MBOX = 40 << 20
SRD_D = 96
S_FB, S_XO = 11, 12
V_XO = 211
PBUF = [[64, 68, 72, 76], [80, 84, 88, 92], [192, 196, 200, 204], [208, 244, 248, 252]]
V_POLL = 234
V_RSO, V_RS = 235, 160
import struct
CSH = struct.unpack('<I', struct.pack('<f', (128 ** -0.5) * math.log2(math.e)))[0]
V_ONE_LO, V_ONE_HI, V_ZERO = 232, 233, 209

nstamp = [0]
def stamp(lvl=1):
    if OPT['stamps'] == lvl or (OPT['stamps'] and lvl == 0):
        i = nstamp[0]
        if i >= 9: return
        nstamp[0] += 1
        a(f"  s_mem{'real' if OPT['rt'] else ''}time s[{S_STAMP+2*i}:{S_STAMP+2*i+1}]")

def capture(fn):
    i = len(a.lines); fn(); L = a.lines[i:]; del a.lines[i:]
    return [l for l in L if l.strip() and not l.strip().startswith('s_nop') and not l.strip().startswith(';')]
def emit_sched(prog, name):
    out, t = schedule(prog)
    for l in out: a(l)
    print(f"  sched {name}: {len(out)} instrs, est {t} cycles")
def mf(d, A, B, C, dt='v', at='v', bt='v'):
    c = '0' if C is None else f"{dt}[{C}:{C+3}]"
    return f"  v_mfma_f32_16x16x32_bf16 {dt}[{d}:{d+3}], {at}[{A}:{A+3}], {bt}[{B}:{B+3}], {c}"

def prod_m0(pos):
    return [f"  s_add_u32 m0, s{S_VM0}, {pos*16384}"]
def prod_dma(n):
    return f"  buffer_load_dwordx4 v{V_PD+n}, s[{SRD_W}:{SRD_W+3}], s{S_POFF} offen offset:{n*1024}{POL} lds"
def prod_adv():
    return [f"  s_add_u32 s{S_POFF}, s{S_POFF}, s{S_STA}",
            f"  s_cmp_eq_u32 s{S_POFF}, s{S_PLEN}",
            f"  s_cselect_b32 s{S_POFF}, 0, s{S_POFF}"]
def produce_list(pos):
    return prod_m0(pos) + prod_adv() + [prod_dma(n) for n in range(4)]
def produce_slot(pos):
    for l in produce_list(pos): a(l)

def set_stream(kind, half=0):
    if kind == 'null':
        a(f"  s_mov_b32 s{SRD_W+2}, 0"); return
    if half == 1:
        for n in range(4): a(f"  v_xor_b32 v{V_PD+n}, 128, v{V_PD+n}")
        return
    ptr, size, stride = dict(w1=(P_W1, 512*1792*2, 3584), wq=(P_WQ, 512*4096*2, 8192), w2=(P_W2, 1792*512*2, 1024),
                             wo=(P_WO, 4096*512*2, 1024), v=(P_V, 8*2048*128*2, 0))[kind]
    a(f"  s_mov_b32 s{SRD_W}, s{ptr}")
    a(f"  s_mov_b32 s{SRD_W+1}, s{ptr+1}")
    a(f"  s_mov_b32 s{SRD_W+2}, {size}")
    a(f"  s_mov_b32 s{S_T}, {stride}")
    a(f"  v_mad_u32_u24 v{V_PD}, v{V_PROW}, s{S_T}, v{V_PSWZ}")
    src, gsft, wsft = dict(w1=(S_FOFF, 1, 7), wq=(S_G, 10, 8), w2=(S_FOFF, 10, 8), wo=(S_G, 19, 8))[kind]
    a(f"  s_lshl_b32 s{S_T}, s{src}, {gsft}")
    a(f"  s_lshl_b32 s{S_T+1}, s{S_W}, {wsft}")
    a(f"  s_add_u32 s{S_T}, s{S_T}, s{S_T+1}")
    if kind != 'w1': a(f"  s_add_u32 s{S_T}, s{S_T}, s{S_HSW}")
    a(f"  v_add_u32 v{V_PD}, s{S_T}, v{V_PD}")
    for n in range(1, 4): a(f"  v_add_u32 v{V_PD+n}, {n*(8*stride-1024)}, v{V_PD}")
    a(f"  s_mov_b32 s{S_STA}, {32*stride}")
    if kind == 'w1':
        a(f"  s_lshl_b32 s{S_T}, s{S_ODD}, 2")
        a(f"  s_or_b32 s{S_T}, s{S_T}, s{S_W}")
        a(f"  s_cmp_eq_u32 s{S_T}, 7")
        a(f"  s_cselect_b32 s{SRD_W+2}, 0, s{SRD_W+2}")
    if kind == 'w2':
        a(f"  s_lshl_b32 s{S_T}, s{S_ODD}, 16")
        a(f"  s_sub_u32 s{S_PLEN}, {8*32*stride}, s{S_T}")
    else: a(f"  s_mov_b32 s{S_PLEN}, {16*32*stride}")
    a(f"  s_mul_i32 s{S_POFF}, s{S_ROT7 if kind == 'w2' else S_ROT16}, {32*stride}")
    a(f"  s_sub_u32 s{S_POFF}, s{S_POFF}, s{S_STA}")

def b_adv():
    return [f"  s_add_u32 s{S_BOFF}, s{S_BOFF}, 4096",
            f"  s_cmp_eq_u32 s{S_BOFF}, s{S_BEND}",
            f"  s_cselect_b32 s{S_BOFF}, 0, s{S_BOFF}",
            f"  v_add_u32 v{V_BA}, s{S_BOFF}, v{V_L16}"]
def rpos(i): return (2 + i) % NS
def fA(k): return ('v', V_A + 16*k) if k < 2 else ('a', A_K + 16*(k-2))
def fB(k): return ('v', V_B + 16*k) if k < 2 else ('a', A_V + 16*(k-2))
def a_read(i, nt, rd):
    t, b = fA(i & 3); d = b + nt*4 + rd*2; slot = rpos(i)
    return f"  ds_read_b64_tr_b16 {t}[{d}:{d+1}], v{V_AA+nt+4*(slot//3)} offset:{(slot%3)*16384+rd*2048}"
def b_read(i, qt):
    t, b = fB(i & 3); d = b + qt*4
    return f"  ds_read_b128 {t}[{d}:{d+3}], v{V_BA} offset:{qt*1024}"

def gemm_step(i, first=False, loop=False, vm=None, vmw=16, noread=False, fillv=None, xvm=None):
    a(f"  s_waitcnt vmcnt({vmw}) lgkmcnt(0)")
    mem = [b_read(i+2, qt) for qt in range(4)] + [a_read(i+2, nt, rd) for nt in range(4) for rd in range(2)] + [prod_dma(n) for n in range(4)]
    ex = [[] for _ in range(16)]
    ba = b_adv(); pa = prod_adv()
    for k in range(4): ex[k].append(ba[k])
    if vm is None:
        for k in range(3): ex[4+k].append(pa[k])
        ex[7] += prod_m0(rpos(i+1))
    else:
        for k in range(4):
            mem[12+k] = vm[k][-1] if k < len(vm) else ""
            if k < len(vm): ex[11+k-(1 if k == 0 else 0)] += vm[k][:-1]
    if noread:
        for k in range(12): mem[k] = ""
        for k in range(4): ex[k] = []
    if xvm:
        for g_, l in xvm: ex[g_].append(l)
    if fillv:
        for k, l in enumerate(fillv): ex[k].append(l)
    if loop: ex[11].append(f"  s_sub_u32 s{S_CNT}, s{S_CNT}, 1")
    g = 0; s0 = i & 2
    for nt in (2*(i & 1), 2*(i & 1) + 1):
        for q_ in range(4):
            qt = 3 - q_ if nt & 1 else q_
            acc = V_ACC + (nt*4+qt)*4
            for u_ in range(2):
                u = u_ ^ (q_ & 1)
                (ta, ba_), (tb, bb) = fA(s0+u), fB(s0+u)
                a(mf(acc, ba_+nt*4, bb+qt*4, None if (first and u_ == 0) else acc, 'v', ta, tb))
                a(mem[g])
                for l in ex[g]: a(l)
                g += 1

gpos = [0]
def gemm_call(n):
    a(f"  s_mov_b32 s{S_CNT}, {n-1}")
    a(f"  s_call_b64 s[{S_RET}:{S_RET+1}], L_gemm{gpos[0] % 12}")
    gpos[0] += n
def gemm_inl(**kw):
    gemm_step(gpos[0] % 12, **kw); gpos[0] += 1
def gemm_first():
    gemm_inl(first=True); gemm_inl(first=True)
def b_reload(ffn2, wait=True):
    if wait: a("  s_waitcnt lgkmcnt(0)")
    a(f"  s_lshl_b32 s{S_BOFF}, s{S_ROT7 if ffn2 else S_ROT16}, 12")
    if ffn2: a(f"  s_lshr_b32 s{S_BEND}, s{S_PLEN}, 3")
    else: a(f"  s_mov_b32 s{S_BEND}, {16*4096}")
    a(f"  v_add_u32 v{V_BA}, s{S_BOFF}, v{V_L16}")
    for k in range(2):
        for qt in range(4): a(b_read(gpos[0] + k, qt))
        for l in b_adv(): a(l)
def a_first():
    for k in range(2):
        for nt in range(4):
            for rd in range(2): a(a_read(gpos[0] + k, nt, rd))

def store_partial(kind, half, dst=None, defer=False, sreg=S_T):
    a("  s_nop 5")
    a(f"  s_add_u32 s{sreg}, s{S_PBASE}, {kind*PART_KIND + half*8192}")
    a(f"  s_add_u32 s{sreg+1}, s{sreg}, 4096")
    if kind == 1 and OPT['own']:
        for c in range(2):
            a(f"  s_cmp_eq_u32 s{S_OWN}, {c}")
            a(f"  s_cselect_b32 s{sreg+c}, 0x40000000, s{sreg+c}")
            if OPT['sib']:
                a(f"  s_cmp_eq_u32 s{S_SIB}, {c}")
                a(f"  s_cselect_b32 s{sreg+c}, 0x40000000, s{sreg+c}")
    st = []
    for c in range(2):
        for qt in range(4):
            x = V_ACC + ((2*c)*4+qt)*4; y = V_ACC + ((2*c+1)*4+qt)*4
            d = x if dst is None else (dst[c*4+qt] if isinstance(dst, list) else dst + (c*4+qt)*4)
            a(f"  v_cvt_pk_bf16_f32 v{d}, v{x}, v{x+1}")
            a(f"  v_cvt_pk_bf16_f32 v{d+1}, v{x+2}, v{x+3}")
            a(f"  v_cvt_pk_bf16_f32 v{d+2}, v{y}, v{y+1}")
            a(f"  v_cvt_pk_bf16_f32 v{d+3}, v{y+2}, v{y+3}")
            l = f"  buffer_store_dwordx4 v[{d}:{d+3}], v{V_L16}, s[{SRD_WS}:{SRD_WS+3}], s{sreg+c} offen offset:{qt*1024} {['sc1', 'sc0 sc1', 'sc1 nt'][OPT['stf']]}"
            if defer: st.append(l)
            else: a(l)
    if not defer: a("  s_nop 1")
    return st

def spin(label, srd, voff, soff, target):
    a(f"  s_mov_b32 s{S_T+1}, {OPT['spin']}")
    a.label(label)
    a(f"  buffer_load_dword v{V_POLL}, v{voff}, s[{srd}:{srd+3}], {soff} offen sc1")
    a("  s_waitcnt vmcnt(0)")
    a(f"  v_readfirstlane_b32 s{S_T}, v{V_POLL}")
    a(f"  s_sub_u32 s{S_T+1}, s{S_T+1}, 1")
    a(f"  s_cbranch_scc1 {label}_done")
    a(f"  s_cmp_lt_u32 s{S_T}, {target}")
    a(f"  s_cbranch_scc1 {label}")
    a.label(label + "_done")

def part_load(kind, i, src, d, t='v'):
    return [f"  s_add_u32 s{S_T+2}, s{S_FB}, {kind*PART_KIND + src*65536 + i*8192}",
            f"  buffer_load_dwordx4 {t}[{d}:{d+3}], v{V_L16}, s[{SRD_WS}:{SRD_WS+3}], s{S_T+2} offen sc1"]
def part_sum(base, acc, T, vm0=None):
    for s_ in range(8):
        if vm0 is not None and s_ % 2 == 0: a(f"  s_waitcnt vmcnt({vm0-s_-1})")
        d = base + s_*4
        for j in range(4):
            lo, hi = acc+2*j, acc+2*j+1
            if s_ == 0:
                a(f"  v_lshlrev_b32 v{lo}, 16, v{d+j}")
                a(f"  v_and_b32 v{hi}, 0xffff0000, v{d+j}")
            elif OPT['dot']:
                a(f"  v_dot2c_f32_bf16 v{lo}, v{d+j}, v{V_ONE_LO}")
                a(f"  v_dot2c_f32_bf16 v{hi}, v{d+j}, v{V_ONE_HI}")
            else:
                t = T + 2*(j & 1)
                a(f"  v_lshlrev_b32 v{t}, 16, v{d+j}")
                a(f"  v_and_b32 v{t+1}, 0xffff0000, v{d+j}")
                a(f"  v_pk_add_f32 v[{lo}:{hi}], v[{lo}:{hi}], v[{t}:{t+1}]")
    if OPT['dot']: a("  s_nop 2")
def rnd_pair(r, T):
    a(f"  v_cvt_pk_bf16_f32 v{T}, v{r}, v{r+1}")
    a(f"  v_lshlrev_b32 v{r}, 16, v{T}")
    a(f"  v_and_b32 v{r+1}, 0xffff0000, v{T}")

def kslot(t): return (t + 2) & 3
def k_read(unit, kt, ds, dst=A_K):
    off = kslot(unit >> 1)*16384 + (unit & 1)*8192 + kt*4096
    d = dst + (kt*4+ds)*4
    return f"  ds_read_b128 a[{d}:{d+3}], v{V_KA+ds} offset:{off}"
def v_read(unit, dt, rd, dst=A_V):
    off = ((unit >> 1) & 3)*16384 + (unit & 1)*8192 + rd*4096
    d = dst + dt*4 + rd*2
    return f"  ds_read_b64_tr_b16 a[{d}:{d+1}], v{V_VA+dt} offset:{off}"
def k_dma(n):
    return f"  buffer_load_dwordx4 v{V_KD+n}, s[{SRD_K}:{SRD_K+3}], s{S_KOFF} offen offset:{n*1024}{POL} lds"
def v_dma(n):
    return f"  buffer_load_dwordx4 v{V_VD+(n&1)}, s[{SRD_V}:{SRD_V+3}], s{S_VOFF} offen offset:{n*1024}{POL} lds"
def k_tile_dma(t):
    a(f"  s_add_u32 m0, s{S_KM0}, {kslot(t)*16384}")
    a(f"  s_nop 0")
    for n in range(4): a(k_dma(n))
    a(f"  s_add_u32 s{S_KOFF}, s{S_KOFF}, 16384")
def v_tile_dma(t):
    a(f"  s_add_u32 m0, s{S_VM0}, {(t&3)*16384}")
    a(f"  s_nop 0")
    for n in range(4): a(v_dma(n))
    a(f"  s_add_u32 s{S_VOFF}, s{S_VOFF}, 16384")

NSUM = OPT['nsum']
SUMQT = {0: [], 2: [2, 3], 4: [0, 1, 2, 3]}[NSUM]
TORDER = [(0,0),(0,2),(0,1),(0,3),(1,0),(1,2),(1,1),(1,3)]
def s_reg(b, kt, qt): return V_S + b*32 + (kt*4+qt)*4
def qk_mfmas(b, zero=False, order=None, src=A_K):
    L = []
    QKO = [(0,0),(0,1),(0,2),(0,3),(1,3),(1,2),(1,1),(1,0)] if OPT['snake'] else TORDER
    for ti, (kt, qt) in enumerate(order or QKO):
        d = s_reg(b, kt, qt)
        for i_ in range(4):
            ds = 3 - i_ if (OPT['snake'] and ti & 1) else i_
            C = d if i_ else (None if zero else V_NEGM + qt*4)
            L.append(mf(d, src+(kt*4+ds)*4, A_Q+(qt*4+ds)*4, C, 'v', 'a', 'a'))
    return L
def ls_reg(qt):
    return V_LS + SUMQT.index(qt)*4 if NSUM == 2 else 160 + qt*4
def pv_half(T, h, src=A_V):
    L = []; k = 0
    for d_ in range(4):
        dt = 4*h + d_
        for qt in (range(3, -1, -1) if d_ % 2 == 0 else range(4)):
            d = A_O + (dt*4+qt)*4
            for u in ((0, 1) if k % 2 == 0 else (1, 0)):
                L.append(mf(d, src+(d_*2+u)*4, PBUF[(2*T+u) & 3][qt], d, 'a', 'a', 'v'))
            k += 1
    return L
def v_half(T, h, dst=A_V):
    L = []
    for f in range(8):
        dt = 4*h + (f >> 1); u = f & 1
        for rd in range(2):
            off = (T & 3)*16384 + u*8192 + rd*4096
            d = dst + f*4 + rd*2
            L.append(f"  ds_read_b64_tr_b16 a[{d}:{d+1}], v{V_VA+dt} offset:{off}")
    return L
def sum_pair(T, qt):
    return [mf(ls_reg(qt), V_ONES, PBUF[(2*T+u) & 3][qt], ls_reg(qt)) for u in range(2)]
def sm_ops(p, qt):
    L = []
    for kt in range(2):
        for r in range(4):
            s_ = s_reg(p & 1, kt, qt) + r
            L.append(f"  v_exp_f32 v{s_}, v{s_}")
            if qt not in SUMQT: L.append(f"  v_add_f32 v{V_L+qt}, v{V_L+qt}, v{s_}")
            if r & 1: L.append(f"  v_cvt_pk_bf16_f32 v{PBUF[p & 3][qt]+kt*2+(r>>1)}, v{s_-1}, v{s_}")
    return L

def period(p, last=False, extra=None, dma=None):
    b = p & 1; T = p >> 1
    M = qk_mfmas(b ^ 1) + pv_half(T-1, b) + sum_pair(T-1, SUMQT[1-b])
    ng = len(M)
    pre = [[] for _ in range(ng)]
    mem = [None]*ng
    cap = [0 if (g < 64 and g % 2 == 0) else 2 for g in range(ng)]
    exps = [(kt, qt, r) for kt, qt in TORDER for r in range(4)]
    for i, l in enumerate(v_half(T-1, b)):
        mem[2*i+1] = l; cap[2*i+1] = 1
    kpos = [0,1,2,4,5,6,8,9]; dpos = [3,7,11,15]
    if last:
        for i, l in enumerate(v_half(T-1, 1, A_K)):
            mem[33+2*i] = l; cap[33+2*i] = 1
    else:
        for i, j in enumerate(kpos):
            mem[33+2*j] = k_read(p+2, i >> 2, i & 3); cap[33+2*j] = 1
        for n, j in enumerate(dpos):
            mem[33+2*j] = k_dma(n) if b == 0 else v_dma(n); cap[33+2*j] = 0
        if dma is not None:
            for n, j in enumerate(dpos):
                mem[33+2*j] = dma[n][-1]; pre[32+2*j] += dma[n][:-1]
        elif b == 0:
            pre[34].append(f"  s_add_u32 m0, s{S_KM0}, {kslot(T)*16384}")
            pre[ng-2].append(f"  s_add_u32 s{S_KOFF}, s{S_KOFF}, 16384")
        else:
            pre[34].append(f"  s_add_u32 m0, s{S_VM0}, {((T+2)&3)*16384}")
            pre[ng-2].append(f"  s_add_u32 s{S_VOFF}, s{S_VOFF}, 16384")
    if extra:
        for k, l in enumerate(extra): pre[2*k] += l
    pre[30].append("  s_waitcnt lgkmcnt(3)")
    nk = sum(1 for g in range(32, 54) if mem[g] and mem[g].lstrip().startswith('ds_'))
    pre[54].append(f"  s_waitcnt lgkmcnt({nk})")
    q = []
    for g in range(ng):
        a(M[g])
        for l in pre[g]: a(l)
        if mem[g]: a(mem[g])
        if g < 64 and g % 2 == 0:
            kt, qt, r = exps[g//2]
            s = s_reg(b, kt, qt) + r
            four = sum(1 for l in pre[g] if 's_waitcnt' in l or l.rstrip().endswith(', 0'))
            E = '_e64' if OPT['e64'] else ''
            a(f"  v_exp_f32{E if four % 2 == 0 else ''} v{s}, v{s}")
            if qt not in SUMQT: q.append(f"  v_add_f32{E} v{V_L+qt}, v{V_L+qt}, v{s}")
            if r & 1: q.append(f"  v_cvt_pk_bf16_f32 v{PBUF[p & 3][qt]+kt*2+(r>>1)}, v{s-1}, v{s}")
        else:
            n = cap[g] if g < ng-1 else 99
            while n > 0 and q:
                a(q.pop(0)); n -= 1
    assert not q

def barrier_T(n=8):
    a(f"  s_waitcnt vmcnt({n}) lgkmcnt(0)")
    if not OPT['xnobar']: a("  s_barrier")

def xlane_reduce(reg, op, tmp):
    a(f"  v_mov_b32 v{tmp}, v{reg}")
    a("  s_nop 1")
    a(f"  v_permlane32_swap_b32 v{reg}, v{tmp}")
    a(f"  {op} v{reg}, v{reg}, v{tmp}")
    a(f"  v_mov_b32 v{tmp}, v{reg}")
    a("  s_nop 1")
    a(f"  v_permlane16_swap_b32 v{reg}, v{tmp}")
    a(f"  {op} v{reg}, v{reg}, v{tmp}")

def prefetch_groups():
    J, O = S_T+4, S_T
    X = SRD_X
    cnt = [0]
    def srd(ptr, size):
        return [f"  s_mov_b32 s{X}, s{ptr}", f"  s_mov_b32 s{X+1}, s{ptr+1}", f"  s_mov_b32 s{X+2}, {size}"]
    def ld(v, off=0):
        cnt[0] += 1
        return [f"  buffer_load_dword a{A_Q+cnt[0]}, v{v}, s[{X}:{X+3}], s{O} offen offset:{off}"]
    NG = OPT['ng']; NW = 128 // NG
    G = {}
    jj = [f"  s_and_b32 s{O}, s{S_R}, {32//NG-1}", f"  s_lshl_b32 s{O}, s{O}, 2", f"  s_add_u32 s{O}, s{O}, s{S_W}"]
    rows = 4*NG
    L = jj + [f"  s_mul_i32 s{O}, s{O}, {rows*8192}", f"  s_lshl_b32 s{O+1}, s{S_G}, 10", f"  s_add_u32 s{O}, s{O}, s{O+1}",
              f"  v_and_b32 v249, 7, v{V_LANE}", f"  v_lshlrev_b32 v249, 7, v249", f"  v_lshl_add_u32 v249, v{V_PROW}, 13, v249"] + srd(P_WQ, 512*4096*2) + ld(249)
    for k in range(1, (rows + 7)//8):
        L += [f"  s_add_u32 s{O}, s{O}, {8*8192}"] + ld(249)
    G['wq'] = L
    G['w2'] = jj + [f"  s_mul_i32 s{O}, s{O}, {2048*NG}", f"  s_lshl_b32 s{O+1}, s{S_FOFF}, 10", f"  s_add_u32 s{O}, s{O}, s{O+1}",
                    f"  v_mul_u32_u24 v250, {32*NG}, v{V_LANE}"] + srd(P_W2, 512*1792*2) + ld(250)
    L = [f"  v_lshlrev_b32 v251, 6, v{V_LANE}", f"  s_and_b32 s{O}, s{S_R}, 3", f"  s_lshl_b32 s{O}, s{O}, 14", f"  s_add_u32 s{O}, s{O}, s{S_KV0}"]
    G['kv'] = L + srd(P_K, 4 << 20) + ld(251) + srd(P_V, 4 << 20) + ld(251)
    G['ws'] = [f"  v_and_b32 v252, 1, v{V_LANE}", f"  v_lshlrev_b32 v252, 24, v252", f"  s_mov_b32 s{O}, s{S_PBASE}"] + srd(P_WS, 64 << 20) + ld(252)
    G['mb'] = [f"  v_and_b32 v255, 31, v{V_LANE}", f"  v_lshlrev_b32 v255, 2, v255", f"  v_mov_b32 v{V_POLL}, 0",
               f"  s_lshr_b32 s{O}, s{S_PBASE}, 16", f"  s_lshl_b32 s{O}, s{O}, 7", f"  s_add_u32 s{O}, s{O}, {MBOX}",
               f"  buffer_store_dword v{V_POLL}, v255, s[{SRD_WS}:{SRD_WS+3}], s{O} offen sc1"]
    L = jj + [f"  s_mul_i32 s{O}, s{O}, {4096*NG}", f"  s_lshl_b32 s{O+1}, s{S_G}, 19", f"  s_add_u32 s{O}, s{O}, s{O+1}",
              f"  v_lshlrev_b32 v253, {6 if NG == 1 else 7}, v{V_LANE}"] + srd(P_WO, 4 << 20)
    L += [f"  buffer_load_dword v254, v253, s[{X}:{X+3}], s{O} offen"]
    if NG == 4: L += [f"  s_add_u32 s{O}, s{O}, 8192", f"  buffer_load_dword v255, v253, s[{X}:{X+3}], s{O} offen"]
    G['wo'] = L
    return G
def nloads(L): return sum(1 for l in L if l.lstrip().startswith('buffer_'))

hdr = open('cdna_kernels/%s.s.ref' % NAME).read().split('\n')
for l in hdr:
    if l.startswith('; Override') or '@launch' in l or l.startswith('; grid=ceil'): continue
    if l.startswith(';'): a(l)
    else: break
a("; @launch grid=(256,1,1) block=(256,1,1) lds=163840")
a('.amdgcn_target "amdgcn-amd-amdhsa--gfx950"')
a(".text")
a(kernel_header(NAME + "_kernel"))
i0 = len(a.lines)
NG = OPT['ng']; LG = {1: 0, 2: 1, 4: 2, 8: 3}[NG]
L = V_LANE
C_ = SRD_V
a(f"""
  s_cmp_ge_u32 s2, 256
  s_cbranch_scc1 L_end
  s_load_dwordx16 s[16:31], s[0:1], 0
  s_load_dwordx2 s[{P_WS}:{P_WS+1}], s[0:1], 80
  s_load_dwordx4 s[{P_OUT}:{P_OUT+3}], s[0:1], 64
  s_getpc_b64 s[{C_}:{C_+1}]
L_pc:
  s_lshr_b32 s{S_T+1}, s2, 3
  s_mov_b32 s{C_+2}, L_code_end-L_pc
  s_mov_b32 s{C_+3}, 0x20000
  s_lshl_b32 s{S_T+2}, s{S_T+1}, 11
  v_lshlrev_b32 v2, 3, v0
""")
CPF = f"  buffer_load_dword a{A_Q}, v2, s[{C_}:{C_+3}], s{S_T+2} offen"
a(CPF)
stamp(0)
if OPT['stamps']: a("  s_memrealtime s[74:75]")
a(f"""
  s_lshr_b32 s{S_ROT16}, s{S_T+1}, {LG}
  s_bfe_u32 s{S_T}, s2, {(LG << 16) | (3-LG)}
  s_lshl_b32 s{S_T}, s{S_T}, {5-LG}
  s_add_u32 s{S_R}, s{S_ROT16}, s{S_T}
  s_lshl_b32 s{S_SP}, s{S_R}, 16
  v_lshrrev_b32 v4, 2, v0
  v_lshlrev_b32 v4, 10, v4
  v_and_b32 v5, 3, v0
  v_lshl_add_u32 v{V_T0}, v5, 4, v4
  s_mov_b32 s{SRD_X+2}, {2048*512*2}
  s_mov_b32 s{SRD_X+3}, 0x20000
  s_and_b32 s{S_G}, s2, {8//NG-1}
  s_lshl_b32 s{S_G}, s{S_G}, {LG}
  s_and_b32 s{S_T+3}, s{S_T+1}, {NG-1}
  s_add_u32 s{S_G}, s{S_G}, s{S_T+3}
  s_mov_b32 s{SRD_W+3}, 0x20000
""")
def xloads(j0, j1):
    for j in range(j0, j1):
        a(f"  buffer_load_dwordx4 v[{4*j+64}:{4*j+67}], v{V_T0}, s[{SRD_X}:{SRD_X+3}], s{S_SP} offen offset:{j*64}")
def xfirst():
    a("  s_waitcnt lgkmcnt(0)")
    a(f"  s_mov_b32 s{SRD_X}, s{P_X}")
    a(f"  s_mov_b32 s{SRD_X+1}, s{P_X+1}")
    stamp(7)
    xloads(0, OPT['xs'])
    stamp(7)
a(f"""
  v_lshrrev_b32 v1, 6, v0
  v_and_b32 v{V_LANE}, 63, v0
  s_mov_b32 s{S_REDO}, 0
  v_readfirstlane_b32 s{S_W}, v1
  s_and_b32 s{S_HSW}, s{S_R}, {OPT['hsw']}
  s_lshl_b32 s{S_HSW}, s{S_HSW}, 7
  s_bfe_u32 s{S_ODD}, s{S_G}, 0x10001
  s_xor_b32 s{S_ODD}, s{S_ODD}, {OPT['flip']}
  s_mul_i32 s{S_T}, s{S_ROT16}, 43
  s_lshr_b32 s{S_T}, s{S_T}, 8
  s_mul_i32 s{S_T}, s{S_T}, 6
  s_sub_u32 s{S_T}, s{S_ROT16}, s{S_T}
  s_and_b32 s{S_ROT7}, s{S_ROT16}, 7
  s_cmp_lg_u32 s{S_ODD}, 0
  s_cselect_b32 s{S_ROT7}, s{S_T}, s{S_ROT7}
  s_lshl_b32 s{S_ROT16}, s{S_ROT16}, {max(LG-1,0)}
  s_and_b32 s{S_ROT16}, s{S_ROT16}, 15
  v_lshlrev_b32 v{V_L16}, 4, v{L}
  v_lshrrev_b32 v{V_PROW}, 3, v{L}
  v_lshrrev_b32 v1, 4, v{L}            ; G
  v_lshlrev_b32 v2, 1, v1              ; G<<1
  v_and_b32 v3, 7, v{L}
  v_xor_b32 v3, v3, v2
  v_lshlrev_b32 v{V_PSWZ}, 4, v3
  s_lshl_b32 s{S_KM0}, s{S_W}, 12
  s_add_u32 s{S_VM0}, s{S_KM0}, {RB}
""")
xfirst()
a(f"""
  s_lshr_b32 s{S_T}, s{S_G}, 2
  s_mul_i32 s{S_FOFF}, s{S_T}, 896
  s_lshl_b32 s{S_T}, s{S_ODD}, 9
  s_add_u32 s{S_FOFF}, s{S_FOFF}, s{S_T}
  s_lshl_b32 s{S_T}, s{S_ODD}, 6
  s_sub_u32 s{S_T}, 256, s{S_T}
  s_and_b32 s{S_T+1}, s{S_G}, 1
  s_mul_i32 s{S_T}, s{S_T}, s{S_T+1}
  s_add_u32 s{S_FOFF}, s{S_FOFF}, s{S_T}
""")
PFG = prefetch_groups()
set_stream('w1')
a(f"""
  s_mov_b32 s{SRD_K}, s{P_K}
  s_mov_b32 s{SRD_K+1}, s{P_K+1}
  s_add_u32 s{S_T}, s{S_G}, 1
  s_lshl_b32 s{SRD_K+2}, s{S_T}, 19
  s_mov_b32 s{SRD_K+3}, 0x20000
  s_mov_b32 s{SRD_V}, s{P_V}
  s_mov_b32 s{SRD_V+1}, s{P_V+1}
  s_mov_b32 s{SRD_V+2}, s{SRD_K+2}
  s_mov_b32 s{SRD_V+3}, 0x20000
  s_mov_b32 s{SRD_WS}, s{P_WS}
  s_mov_b32 s{SRD_WS+1}, s{P_WS+1}
  s_mov_b32 s{SRD_WS+2}, {64<<20}
  s_mov_b32 s{SRD_WS+3}, 0x20000
  s_lshl_b32 s{S_KV0}, s{S_G}, 19
  s_add_u32 s{S_KV0}, s{S_KV0}, s{S_KM0}
  s_mov_b32 s{S_KOFF}, s{S_KV0}
  s_lshl_b32 s{S_PBASE}, s{S_R}, 3
  s_add_u32 s{S_PBASE}, s{S_PBASE}, s{S_G}
  s_lshl_b32 s{S_PBASE}, s{S_PBASE}, 16
  s_lshl_b32 s{S_T}, s{S_W}, 14
  s_add_u32 s{S_PBASE}, s{S_PBASE}, s{S_T}
  ; v1 = G, v6 = i = l&15
  v_and_b32 v6, 15, v{L}
  v_xor_b32 v7, v6, v1
""")
for n in range(4):
    a(f"  v_xor_b32 v8, {4*n}, v7")
    a(f"  v_lshlrev_b32 v8, 4, v8")
    a(f"  v_lshl_add_u32 v{V_KD+n}, v1, 8, v8")
for n in range(2):
    a(f"  v_xor_b32 v8, v6, v2")
    if n: a(f"  v_xor_b32 v8, 8, v8")
    a(f"  v_lshlrev_b32 v8, 4, v8")
    a(f"  v_lshl_add_u32 v{V_VD+n}, v1, 8, v8")
a(f"""
  v_and_b32 v8, 1, v1
  v_lshlrev_b32 v8, 1, v8
  v_lshrrev_b32 v9, 1, v1
  v_or_b32 v8, v8, v9
  v_xor_b32 v8, v8, v6
""")
for ds in range(4):
    a(f"  v_xor_b32 v9, {4*ds}, v8")
    a(f"  v_lshlrev_b32 v9, 4, v9")
    a(f"  v_lshl_add_u32 v{V_KA+ds}, v6, 8, v9")
    a(f"  v_xor_b32 v{V_KA+ds}, s{S_HSW}, v{V_KA+ds}")
a(f"""
  v_lshrrev_b32 v8, 2, v6
  v_lshl_add_u32 v8, v1, 2, v8         ; row
  v_and_b32 v9, 3, v6
  v_lshlrev_b32 v9, 3, v9              ; (i&3)*8
  v_lshl_add_u32 v10, v8, 8, v9
  v_add_u32 v10, {RB}, v10
  v_and_b32 v11, 7, v8
""")
for dt in range(8):
    a(f"  v_xor_b32 v12, {dt}, v11")
    a(f"  v_lshl_add_u32 v{V_VA+dt}, v12, 5, v10")
a(f"""
  v_lshl_add_u32 v10, v8, 7, v9
  v_add_u32 v10, s{S_VM0}, v10
  v_bfe_u32 v11, v8, 1, 2
""")
for nt in range(4):
    a(f"  v_xor_b32 v12, {nt}, v11")
    a(f"  v_lshl_add_u32 v{V_AA+nt}, v12, 5, v10")
    a(f"  v_add_u32 v{V_AA+4+nt}, {3*16384}, v{V_AA+nt}")
a(f"""
  v_lshrrev_b32 v8, 2, v{L}
  v_and_b32 v9, 1, v{L}
  v_lshl_add_u32 v8, v9, 5, v8
  v_lshlrev_b32 v8, 4, v8
  v_bfe_u32 v9, v{L}, 1, 1
  v_lshl_add_u32 v8, v9, 3, v8
  s_lshl_b32 s{S_T}, s{S_W}, 10
  v_add_u32 v{V_T1}, s{S_T}, v8
""")
a(f"""
  s_mov_b32 s{SRD_D}, s{P_DBG}
  s_mov_b32 s{SRD_D+1}, s{P_DBG+1}
  s_lshl_b32 s{SRD_D+2}, s{S_R}, 2
  s_add_u32 s{SRD_D+2}, s{SRD_D+2}, 4
  s_mov_b32 s{SRD_D+3}, 0x20000
  s_lshl_b32 s{S_FB}, s{S_R}, 19
  s_lshr_b32 s{S_T}, s{S_G}, 1
  s_lshl_b32 s{S_T}, s{S_T}, 14
  s_add_u32 s{S_FB}, s{S_FB}, s{S_T}
  s_and_b32 s{S_T+1}, s{S_G}, 1
  s_lshl_b32 s{S_T}, s{S_T+1}, 12
  s_add_u32 s{S_FB}, s{S_FB}, s{S_T}
  s_lshl_b32 s{S_T}, s{S_W}, 10
  s_add_u32 s{S_FB}, s{S_FB}, s{S_T}
  s_lshl_b32 s{S_XO}, s{S_R}, 16
  s_lshl_b32 s{S_T}, s{S_W}, 14
  s_add_u32 s{S_XO}, s{S_XO}, s{S_T}
  s_lshr_b32 s{S_T}, s{S_G}, 1
  s_lshl_b32 s{S_T}, s{S_T}, 8
  s_add_u32 s{S_XO}, s{S_XO}, s{S_T}
  s_lshl_b32 s{S_T}, s{S_T+1}, 6
  s_add_u32 s{S_XO}, s{S_XO}, s{S_T}
""")
def zero_o():
    for i in range(4): a(f"  v_mov_b32 v{204+i}, 0")
    a("  s_nop 1")
    for i in range(8): a(f"  v_mfma_f32_32x32x16_bf16 a[{A_O+16*i}:{A_O+16*i+15}], v[204:207], v[204:207], 0")
zero_o()
def dreg(e): return e if e < 64 else 64 + e
pfsel = [k for b_, k in ((1, 'w2'), (2, 'kv'), (4, 'ws')) if OPT['pf'] & b_] + ([] if OPT['mbl'] else ['mb'])
groups = []
for s_ in range(NS-1):
    pl = produce_list(rpos(s_))
    groups += [pl[:5], [pl[5]], [pl[6]], [pl[7]]]
for k in pfsel: groups.append(PFG[k])
NPF = sum(nloads(PFG[k]) for k in pfsel)
SUM, SQ = 192, 196
MU, MB = 200, 202
a(f"  v_and_b32 v8, 3, v{L}")
a(f"  v_and_b32 v9, 60, v{L}")
a(f"  v_lshl_add_u32 v8, v8, 12, v9")
a(f"  s_lshl_b32 s{S_T}, s{S_W}, 6")
a(f"  s_add_u32 s{S_T}, s{S_T}, {RB+1*16384}")
a(f"  v_add_u32 v{V_BA}, s{S_T}, v8")
a(f"  s_add_u32 s{S_T}, s{S_VM0}, {1*16384}")
a(f"  v_lshl_add_u32 v{V_RSO}, v6, 2, s{S_T}")
stamp(7)
xloads(OPT['xs'], 16)
stamp(7)
if OPT['stamps'] == 7:
    for k in (16, 15, 8, 0):
        a(f"  s_waitcnt vmcnt({k})"); stamp(7)
for j in range(16):
    a(f"  s_waitcnt vmcnt({15 - j + min(j, OPT['n1'])})")
    if j in (0, 8, 15): stamp(3)
    if j < OPT['n1']:
        for l in groups[j]: a(l)
    for i in range(4*j, 4*j+4):
        a(f"  v_lshlrev_b32 v{dreg(2*i)}, 16, v{64+i}")
        a(f"  v_and_b32 v{dreg(2*i+1)}, 0xffff0000, v{64+i}")
    for i in range(4*j, 4*j+4):
        e = dreg(2*i); t = SUM + 2*(i & 1); q = SQ + 2*(i & 1)
        if i < 2: a(f"  v_pk_add_f32 v[{t}:{t+1}], v[{e}:{e+1}], v[{dreg(2*i+4)}:{dreg(2*i+4)+1}]")
        elif i >= 4: a(f"  v_pk_add_f32 v[{t}:{t+1}], v[{t}:{t+1}], v[{e}:{e+1}]")
        if i < 2: a(f"  v_pk_mul_f32 v[{q}:{q+1}], v[{e}:{e+1}], v[{e}:{e+1}]")
        else: a(f"  v_pk_fma_f32 v[{q}:{q+1}], v[{e}:{e+1}], v[{e}:{e+1}], v[{q}:{q+1}]")
sprinkle = groups[OPT['n1']:]
stamp(3)
for r in (SUM, SQ): a(f"  v_pk_add_f32 v[{r}:{r+1}], v[{r}:{r+1}], v[{r+2}:{r+3}]")
for r in (SUM, SQ): a(f"  v_add_f32 v{r}, v{r}, v{r+1}")
a("  s_nop 0")
for qp in ("[1,0,3,2]", "[2,3,0,1]"):
    for r in (SUM, SQ): a(f"  v_add_f32_dpp v{r}, v{r}, v{r} quad_perm:{qp} row_mask:0xf bank_mask:0xf")
    a("  s_nop 0")
a(f"""
  v_mul_f32 v{MU}, 0x3b000000, v{SUM}
  v_cvt_pk_bf16_f32 v{MB}, v{MU}, v{MU}
  v_and_b32 v{MB}, 0xffff0000, v{MB}
""")
stats = f"""  v_mul_f32 v{SQ}, 0x3b000000, v{SQ}
  v_fma_f32 v{SQ}, -v{MU}, v{MU}, v{SQ}
  v_max_f32 v{SQ}, 0, v{SQ}
  v_cvt_pk_bf16_f32 v{SQ}, v{SQ}, v{SQ}
  v_and_b32 v{SQ}, 0xffff0000, v{SQ}
  v_add_f32 v{SQ}, 0x3727c5ac, v{SQ}
  v_cvt_pk_bf16_f32 v{SQ}, v{SQ}, v{SQ}
  v_and_b32 v{SQ}, 0xffff0000, v{SQ}
  v_sqrt_f32 v{SQ}, v{SQ}
  v_cvt_pk_bf16_f32 v{SQ}, v{SQ}, v{SQ}
  v_and_b32 v{SQ}, 0xffff0000, v{SQ}
  v_rcp_f32 v{SQ}, v{SQ}
  ds_write_b32 v{V_BA}, v{SQ}""".split('\n')
for j in range(16):
    if j in (0, 8): stamp(3)
    if j >= OPT['late'] and sprinkle:
        for l in sprinkle.pop(0): a(l)
    for k in range(4):
        e = dreg(2*(4*j+k))
        a(f"  v_pk_add_f32 v[{e}:{e+1}], v[{e}:{e+1}], v[{MB}:{MB+1}] op_sel_hi:[1,0] neg_lo:[0,1] neg_hi:[0,1]")
    if j < len(stats): a(stats[j])
    for k in range(4):
        i = 4*j + k; e = dreg(2*i)
        a(f"  v_cvt_pk_bf16_f32 v{64+i}, v{e}, v{e+1}")
    a(f"  ds_write_b64 v{V_T1}, v[{64+4*j}:{65+4*j}] offset:{j*4096}")
    a(f"  ds_write_b64 v{V_T1}, v[{66+4*j}:{67+4*j}] offset:{j*4096+256}")
for g_ in sprinkle:
    for l in g_: a(l)
stamp(3)
a(f"  s_waitcnt vmcnt({4*(NS-3)+NPF}) lgkmcnt(0)")
a_first()
a("  s_barrier")
stamp(3)
stamp()
for qt in range(4): a(f"  ds_read_b32 v{V_RS+qt}, v{V_RSO} offset:{qt*64}")
a(f"  s_lshl_b32 s{S_T}, s{S_W}, 6")
a(f"  v_add_u32 v{V_RSO}, s{S_T}, v{V_RSO}")
a(f"  ds_read_b32 v{V_RSO}, v{V_RSO}")
b_reload(False, wait=False)
a("  s_waitcnt lgkmcnt(8)")
produce_slot(rpos(5)); produce_slot(rpos(6))
a(f"  s_mov_b32 s{S_T}, {CSH:#x}")
for qt in range(4): a(f"  v_mul_f32 v{V_RS+qt}, s{S_T}, v{V_RS+qt}")
stamp(8)
gemm_first(); gemm_call(7); stamp(8); set_stream('wq', 0); gemm_call(7); stamp(8)
a("  s_nop 7")
for c in range(2):
    for qt in range(4):
        x = V_ACC + ((2*c)*4+qt)*4; y = V_ACC + ((2*c+1)*4+qt)*4
        d = V_H + (c*4+qt)*4
        for k, s in enumerate((x, x+2, y, y+2)):
            a(f"  v_cvt_pk_bf16_f32 v{d+k}, v{s}, v{s+1}")
        for k in range(4):
            a(f"  v_pk_max_i16 v{d+k}, v{d+k}, 0")
for half in range(2):
    if half == 1 and OPT['cp3']:
        a(f"  s_getpc_b64 s[{SRD_X}:{SRD_X+1}]")
        a.label("L_pc3")
        a(f"  s_mov_b32 s{SRD_X+2}, L_tail-L_pc3")
        a(f"  s_lshr_b32 s{S_T}, s2, 3")
        a(f"  s_lshl_b32 s{S_T}, s{S_T}, 2")
        a(f"  s_add_u32 s{S_T}, s{S_T}, s{S_W}")
        a(f"  s_lshl_b32 s{S_T}, s{S_T}, 8")
        a(f"  v_lshlrev_b32 v{V_T1}, 2, v{V_LANE}")
        a(f"  buffer_load_dword v255, v{V_T1}, s[{SRD_X}:{SRD_X+3}], s{S_T} offen")
    stamp(8)
    gemm_first(); gemm_call(7)
    if half == 0:
        stamp(8)
        set_stream('wq', 1); gemm_call(7); stamp(8)
    else:
        set_stream('w2', 0); gemm_call(6)
        a(f"  s_lshl_b32 s{S_T}, s{S_ODD}, 7")
        for n in range(4): a(f"  v_xor_b32 v{V_PD+n}, s{S_T}, v{V_PD+n}")
        gemm_call(1); stamp(8)
    def qepi1():
        for c in range(2):
            for qt in range(4):
                x = V_ACC + ((2*c)*4+qt)*4; y = V_ACC + ((2*c+1)*4+qt)*4
                rp = V_RS + (qt & 2); md = "op_sel:[0,1] op_sel_hi:[1,1]" if qt & 1 else "op_sel_hi:[1,0]"
                for s in (x, x+2, y, y+2):
                    a(f"  v_pk_mul_f32 v[{s}:{s+1}], v[{s}:{s+1}], v[{rp}:{rp+1}] {md}")
                d = 128 + (c*4+qt)*4
                for k, s in enumerate((x, x+2, y, y+2)):
                    a(f"  v_cvt_pk_bf16_f32 v{d+k}, v{s}, v{s+1}")
    def qepi2():
        for c in range(2):
            for qt in range(4):
                d = 128 + (c*4+qt)*4
                a(f"  v_permlane16_swap_b32 v{d}, v{d+2}")
                a(f"  v_permlane16_swap_b32 v{d+1}, v{d+3}")
        for c in range(2):
            for qt in range(4):
                d = 128 + (c*4+qt)*4
                for k in range(4):
                    a(f"  v_accvgpr_write_b32 a{A_Q+(qt*4+2*half+c)*4+k}, v{d+k}")
    if half == 0 or not OPT['hx']:
        a("  s_nop 7"); qepi1(); a("  s_nop 0"); qepi2()
stamp()
a(f"  s_lshl_b32 s{S_T}, s{S_W}, 13")
a(f"  v_add_u32 v{V_T0}, s{S_T}, v{V_L16}")
a("  s_waitcnt lgkmcnt(0)")
a("  s_barrier")
hw = [f"  ds_write_b128 v{V_T0}, v[{V_H+k*4}:{V_H+k*4+3}] offset:{k*1024}" for k in range(8)]
kd = capture(lambda: (k_tile_dma(0), k_tile_dma(1))) if not OPT['klate'] else []
if OPT['hx']:
    e1 = capture(qepi1)
    a("  s_nop 3")
    for k in range(8):
        a(hw[k])
        for l in e1[4*k:4*k+4]: a(l)
    e1 = e1[32:]
    for l in kd:
        a(l)
        if 'buffer_' in l or 'm0' in l:
            for _ in range(3): a(e1.pop(0))
    for l in e1: a(l)
else:
    for l in hw: a(l)
    k_tile_dma(0); k_tile_dma(1)
a("  s_waitcnt lgkmcnt(0)")
a("  s_barrier")
stamp(2)
b_reload(True, wait=False)
if OPT['hx']: qepi2()
a(f"  s_mov_b32 s{S_VOFF}, s{S_KV0}")
a(f"  s_cmp_lg_u32 s{S_ODD}, 0")
a("  s_cbranch_scc1 L_ffn2_odd")
def ffn2(nf):
    gpos[0] = 48; N = 48 + 2*nf
    vq = [f"S{k}" for k in range(49, 55) for _ in range(4)] + ['K']*(0 if OPT['klate'] else 8)
    kj = ((57, 58) if nf == 8 else (53, 54)) if OPT['klate'] else ()
    vj = (59, 60) if (nf == 8 and OPT['klate']) else (57, 58)
    def yg(tag): return len(vq) - 1 - max(i for i, t in enumerate(vq) if t == tag)
    st0 = None
    stj = (59, 60) if nf == 8 else (55, 56)
    j = 48
    while j < N:
        if j == 48 + nf: st0 = store_partial(0, 0, dst=128, defer=True, sreg=S_SP)
        if nf == 8 and j == 49: set_stream('w2', 1)
        if j == 50:
            n = 6 if nf == 8 else 3
            gemm_call(n)
            for k in range(n): vq.extend([f"S{j+k+7}"]*4)
            j += n; continue
        kw = dict(first=(j - 48) % nf < 2, vmw=(yg(f"S{j+2}") if j + 2 < N else 63), noread=(j + 2 >= N))
        if j + 7 < N: tags = [f"S{j+7}"]*4
        elif j in vj:
            kw['vm'] = [[f"  s_add_u32 m0, s{S_VM0}, {(j-vj[0])*16384}", v_dma(0)], [v_dma(1)], [v_dma(2)], [v_dma(3)]]
            if j == vj[1]: kw['xvm'] = [(5, f"  s_add_u32 s{S_VOFF}, s{S_VOFF}, 16384")]
            tags = ['V']*4
        elif j in kj:
            kw['vm'] = [[f"  s_add_u32 m0, s{S_KM0}, {kslot(j-kj[0])*16384}", k_dma(0)], [k_dma(1)], [k_dma(2)], [k_dma(3)]]
            kw['xvm'] = [(15, f"  s_add_u32 s{S_KOFF}, s{S_KOFF}, 16384")]
            tags = ['K']*4
        elif j in stj and OPT['early']:
            kw['vm'] = [[x] for x in st0[4*(j-stj[0]):4*(j-stj[0])+4]]; tags = ['st']*4
        else: kw['vm'] = []; tags = []
        gemm_inl(**kw); vq.extend(tags); j += 1
ffn2(8)
a("  s_branch L_ffn2_done")
iodd = len(a.lines)
a.label("L_ffn2_odd")
ffn2(6)
a.label("L_ffn2_done")
stamp(2)
a("  s_waitcnt vmcnt(12) lgkmcnt(0)")
a("  s_barrier")
stamp(2)
stamp(); stamp(4)
if OPT['stamps']:
    a("  s_memrealtime s[38:39]")
    a("  s_waitcnt lgkmcnt(0)")
def attn_init():
    L = [f"  s_add_u32 s{S_VOFF}, s{S_KV0}, {2*16384}"]
    L += [f"  v_mov_b32 v{V_L+i}, 0" for i in range(12)]
    L += [f"  v_and_b32 v{V_T0}, 3, v{V_LANE}", f"  v_cmp_eq_u32 vcc, 0, v{V_T0}", f"  v_mov_b32 v{V_T0}, 0x3f803f80", "  s_nop 0",
          f"  v_cndmask_b32 v{V_ONES}, 0, v{V_T0}, vcc"] + [f"  v_mov_b32 v{V_ONES+i}, v{V_ONES}" for i in range(1, 4)]
    return L
QORD = [(kt, qt) for qt in range(4) for kt in range(2)]
def maxq(qt):
    x = s_reg(0, 0, qt); y = s_reg(0, 1, qt); m = V_NEGM + qt*4
    a(f"  v_max3_f32 v{m}, v{x}, v{x+1}, v{x+2}")
    a(f"  v_max3_f32 v{m+1}, v{x+3}, v{y}, v{y+1}")
    a(f"  v_max3_f32 v{m}, v{m}, v{y+2}, v{y+3}")
    a(f"  v_max_f32 v{m}, v{m}, v{m+1}")
    xlane_reduce(m, 'v_max_f32', m+1)
    for k in range(3, -1, -1): a(f"  v_sub_f32 v{m+k}, 0, v{m}")
    for kt in range(2):
        for r in range(4):
            s_ = s_reg(0, kt, qt) + r
            a(f"  v_add_f32 v{s_}, v{s_}, v{m}")
def head_common():
    L = qk_mfmas(1, order=QORD, src=A_V)
    for qt in range(4): L += sm_ops(0, qt)
    L += [k_read(2, i >> 2, i & 3) for i in range(8)] + capture(lambda: k_tile_dma(4))
    L += qk_mfmas(0, order=QORD)
    for qt in range(4): L += sm_ops(1, qt)
    L += [k_read(3, i >> 2, i & 3) for i in range(8)] + capture(lambda: v_tile_dma(2))
    return L
KR01 = [k_read(0, i >> 2, i & 3) for i in range(8)] + [k_read(1, i >> 2, i & 3, A_V) for i in range(8)]
prog = KR01 + capture(lambda: store_partial(0, 1, dst=160, defer=True, sreg=S_SP))
prog += capture(lambda: (k_tile_dma(2), k_tile_dma(3))) + ["  s_waitcnt vmcnt(16)", "  s_barrier"]
prog += qk_mfmas(0, zero=True, order=QORD)
prog += [l for l in attn_init() if 's_nop' not in l]
for qt in range(4): prog += capture(lambda: maxq(qt))
prog += head_common()
prog += capture(lambda: set_stream('wo', 0)) + [f"  s_mov_b32 s{S_SV_POFF}, s{S_POFF}"]
emit_sched(prog, 'head')
stamp(4)
a(f"  s_mov_b32 s{S_LOOP}, 7")
a("  s_waitcnt vmcnt(12)")
a("  s_branch L_p2")
segs.append(('pre', i0, len(a.lines)))
a(".p2align 6")
il = len(a.lines)
a.label("L_loop")
for p in range(8, 16):
    if p == 10: a.label("L_p2")
    if p % 2 == 0: barrier_T(16)
    else:
        if OPT['e64']: a("  s_nop 0")
        a("  s_waitcnt lgkmcnt(0)")
    period(p)
a(f"  s_sub_u32 s{S_LOOP}, s{S_LOOP}, 1")
a(f"  s_cmp_eq_u32 s{S_LOOP}, 0")
a("  s_cbranch_scc1 L_tail")
itail = len(a.lines)
a(f"  s_cmp_lg_u32 s{S_REDO}, 0")
a("  s_cbranch_scc1 L_loop")
for k in range(2 if OPT['early'] else 0, 4):
    a(f"  s_cmp_lg_u32 s{S_LOOP}, {6-k}")
    a(f"  s_cbranch_scc1 L_bk{k}")
    if k == 3 and OPT['mbl']:
        for l in PFG['mb']: a(l.replace('v255', f'v{V_T0}'))
    a(f"  s_add_u32 s{S_T}, s{S_PBASE}, {k*4096}")
    for qt in range(4):
        d = 128 + (k*4+qt)*4
        a(f"  buffer_store_dwordx4 v[{d}:{d+3}], v{V_L16}, s[{SRD_WS}:{SRD_WS+3}], s{S_T} offen offset:{qt*1024} sc1")
    a("  s_branch L_loop")
    a.label(f"L_bk{k}")
a(f"  s_lshl_b32 s{S_T}, s{S_R}, 2")
a(f"  s_cmp_lg_u32 s{S_LOOP}, 1")
a("  s_cbranch_scc1 L_bk4")
a(f"  v_mov_b32 v{V_T0}, 0")
a(f"  buffer_load_dword v{V_POLL}, v{V_T0}, s[{SRD_D}:{SRD_D+3}], s{S_T} offen sc1")
if OPT['cp2']:
    a(f"  s_getpc_b64 s[{SRD_X}:{SRD_X+1}]")
    a.label("L_pc2")
    a(f"  s_mov_b32 s{SRD_X+2}, L_code_end-L_pc2")
    a(f"  s_lshr_b32 s{S_T}, s2, 3")
    a(f"  s_lshl_b32 s{S_T}, s{S_T}, 2")
    a(f"  s_add_u32 s{S_T}, s{S_T}, s{S_W}")
    a(f"  s_lshl_b32 s{S_T}, s{S_T}, 8")
    a(f"  v_lshlrev_b32 v{V_T1}, 2, v{V_LANE}")
    a(f"  buffer_load_dword v128, v{V_T1}, s[{SRD_X}:{SRD_X+3}], s{S_T} offen")
    if OPT['cp2'] == 2:
        for l in PFG['wo']: a(l.replace('v253', f'v{V_T1}').replace('v254', 'v129'))
a("  s_branch L_loop")
a.label("L_bk4")
if OPT['pt']:
    a(f"  v_lshlrev_b32 v{V_T1}, 7, v{V_LANE}")
    for k in range(2):
        a(f"  s_add_u32 s{S_T+1}, s{S_PBASE}, {PART_KIND + k*8192}")
        a(f"  buffer_load_dword v{130+k}, v{V_T1}, s[{SRD_WS}:{SRD_WS+3}], s{S_T+1} offen{' sc1' if OPT['pt'] == 2 else ''}")
a(f"  s_lshl_b32 s{S_T+1}, s{S_W}, 4")
a(f"  s_or_b32 s{S_T+1}, s{S_T+1}, s{S_LOOP}")
a(f"  s_cmp_lg_u32 s{S_T+1}, 2")
a("  s_cbranch_scc1 L_loop")
a(f"  v_mov_b32 v{V_T0}, 1")
a(f"  v_lshlrev_b32 v{V_T1}, 2, v{V_LANE}")
a(f"  buffer_atomic_add v{V_T0}, v{V_T1}, s[{SRD_D}:{SRD_D+3}], s{S_T} offen sc1")
a("  s_branch L_loop")
segs.append(('loop2', il, len(a.lines)))
it = len(a.lines)
a.label("L_tail")
stamp(4)
a(f"  v_readfirstlane_b32 s{S_T}, v{V_POLL}")
a("  s_nop 3")
a(f"  s_cmp_ge_u32 s{S_T}, 8")
a("  s_cbranch_scc1 L_spin1_done")
a(f"  v_mov_b32 v{V_T0}, 0")
a(f"  s_lshl_b32 s{S_T+2}, s{S_R}, 2")
spin("L_spin1", SRD_D, V_T0, f"s{S_T+2}", 8)
if OPT['sib']:
    a(f"  s_lshr_b32 s{S_T}, s{S_PBASE}, 16")
    a(f"  s_xor_b32 s{S_T}, s{S_T}, 1")
    a(f"  s_lshl_b32 s{S_T}, s{S_T}, 7")
    a(f"  s_add_u32 s{S_T}, s{S_T}, {MBOX}")
    a(f"  v_mov_b32 v{V_T0}, 4")
    a(f"  buffer_load_dword v{V_L+2}, v{V_T0}, s[{SRD_WS}:{SRD_WS+3}], s{S_T} offen sc1")
gl = [part_load(0, b_ >> 3, b_ & 7, 128 + 4*b_) for b_ in range(16)]
for p in range(56, 63):
    if p % 2 == 0: barrier_T()
    else: a("  s_waitcnt lgkmcnt(0)")
    if p in (56, 58, 60, 61): period(p, dma=[gl.pop(0) for _ in range(4)])
    elif p == 62:
        ex = []
        for pos in (4, 5):
            pl = produce_list(pos); ex += [pl[:4], [pl[4]], [], [pl[5]], [], [pl[6]], [], [pl[7]]]
        period(p, last=True, extra=[[]]*16 + ex)
    else: period(p)
stamp(4)
if OPT['sib']: a(f"  v_readfirstlane_b32 s{S_SIB}, v{V_L+2}")
a("  s_waitcnt lgkmcnt(0)")
THR = 0x53800000 if not OPT['force_redo'] else 0x3f000000
prog = v_half(31, 0) + produce_list(0) + produce_list(1)
prog += pv_half(30, 1, A_K) + sum_pair(30, SUMQT[0])
prog += [f"  s_mov_b32 s{S_SP}, {THR:#x}", f"  s_mov_b64 vcc, 0"]
for qt in (3, 2, 1, 0): prog += sm_ops(63, qt)
prog += v_half(31, 1, A_K) + ["  s_barrier"] + produce_list(2)
prog += sum_pair(31, 3) + sum_pair(31, 2)
for qt in (1, 0, 3, 2):
    lr = ls_reg(qt) if qt in SUMQT else V_L + qt
    if qt not in SUMQT: prog += capture(lambda: xlane_reduce(V_L+qt, 'v_add_f32', V_L+2+qt))
    prog += [f"  v_cmp_ngt_f32 s[{S_T+2}:{S_T+3}], s{S_SP}, v{lr}", f"  s_or_b64 vcc, vcc, s[{S_T+2}:{S_T+3}]",
             f"  v_rcp_f32 v{V_NEGM+2*qt}, v{lr}"]
prog += [f"  s_cmp_lg_u64 vcc, 0", f"  s_cselect_b32 s{S_T}, 1, 0", f"  s_lshl_b32 s{S_T+1}, s{S_W}, 2", f"  s_add_u32 s{S_T+1}, s{S_T+1}, {RB+3*16384}",
         f"  v_and_b32 v{V_T0}, 3, v{V_LANE}", f"  v_lshlrev_b32 v{V_T0}, 12, v{V_T0}", f"  v_add_u32 v{V_T0}, s{S_T+1}, v{V_T0}",
         f"  v_mov_b32 v{V_T1}, s{S_T}", f"  ds_write_b32 v{V_T0}, v{V_T1}",
         f"  s_lshl_b32 s{S_T}, s{S_W}, 14", f"  v_add_u32 v{V_T0}, s{S_T}, v{V_L16}"]
prog += pv_half(31, 0) + pv_half(31, 1, A_K)
def norm(c, qt, pk):
    t = qt * 12; L = []
    L += [f"  v_accvgpr_read_b32 v{t+k}, a{A_O+((2*c)*4+qt)*4+k}" for k in range(4)]
    L += [f"  v_accvgpr_read_b32 v{t+4+k}, a{A_O+((2*c+1)*4+qt)*4+k}" for k in range(4)]
    if pk: L += [f"  v_pk_mul_f32 v[{t+2*k}:{t+2*k+1}], v[{t+2*k}:{t+2*k+1}], v[{V_NEGM+2*qt}:{V_NEGM+2*qt+1}] op_sel_hi:[1,0]" for k in range(4)]
    else: L += [f"  v_mul_f32 v{t+k}, v{t+k}, v{V_NEGM+2*qt}" for k in range(8)]
    L += [f"  v_cvt_pk_bf16_f32 v{t+8+k}, v{t+2*k}, v{t+2*k+1}" for k in range(4)]
    L += [f"  ds_write_b128 v{V_T0}, v[{t+8}:{t+11}] offset:{(c*4+qt)*1024}"]
    return L
NOV = OPT['nov']
todo = [(c, qt) for c in range(4) for qt in range(4)]
for c, qt in todo[:NOV]: prog += norm(c, qt, False)
emit_sched(prog, 'tail')
stamp(); stamp(4)
if OPT['stamps']:
    a(f"  s_memrealtime s[{S_RET}:{S_RET+1}]")
    a("  s_waitcnt lgkmcnt(0)")
    a(f"  s_mov_b32 s39, s{S_RET}")
gpos[0] = 8
for nt in range(4): a(f"  v_add_u32 v{V_AA+4+nt}, {3*16384}, v{V_AA+nt}")
a("  s_waitcnt vmcnt(12)")
a_first()
for c, qt in todo[NOV:]:
    for l in norm(c, qt, True): a(l)
a("  s_waitcnt lgkmcnt(0)")
a("  s_barrier")
a(f"  s_add_u32 s{S_T}, s{S_VM0}, {3*16384}")
a(f"  v_mov_b32 v{V_T0}, s{S_T}")
a(f"  ds_read_b128 v[0:3], v{V_T0}")
b_reload(False, wait=False)
a("  s_waitcnt lgkmcnt(8)")
a("  v_or_b32 v0, v0, v1")
a("  v_or3_b32 v0, v0, v2, v3")
a("  s_nop 0")
a(f"  v_readfirstlane_b32 s{S_T}, v0")
a(f"  s_andn2_b32 s{S_T}, s{S_T}, s{S_REDO}")
if not OPT['noredo']: a("  s_cbranch_scc1 L_redo")
produce_slot(3); produce_slot(4)
a(f"  s_lshl_b32 s{S_T}, s{S_W}, 1")
a(f"  s_sub_u32 s{S_OWN}, s{S_G}, s{S_T}")
if OPT['sib']:
    a(f"  s_getreg_b32 s{S_T}, hwreg(HW_REG_XCC_ID, 0, 4)")
    a(f"  s_xor_b32 s{S_T+1}, s{S_OWN}, 1")
    a(f"  s_cmp_eq_u32 s{S_T}, s{S_SIB}")
    a(f"  s_cselect_b32 s{S_SIB}, s{S_T+1}, 99")
stamp()
gemm_first(); gemm_call(7); set_stream('wo', 1); gemm_call(7)
LOQ = [192, 196, 200, 204, 216, 220, 224, 228]
if OPT['own']:
    for k in range(4): a(f"  v_mov_b32 v{248+k}, 0")
    a("  s_nop 1")
    for k in range(4): a(f"  v_mfma_f32_32x32x16_bf16 a[{16*k}:{16*k+15}], v[248:251], v[248:251], 0")
st0 = store_partial(1, 0, dst=LOQ, defer=True, sreg=S_SP)
a(f"  s_mov_b32 s{SRD_X}, s{P_X}")
a(f"  s_mov_b32 s{SRD_X+1}, s{P_X+1}")
a(f"  s_mov_b32 s{SRD_X+2}, {2048*512*2}")
GL, XL, SL = 128, 248, 64
S_MB, S_DONE, S_M, S_NEW = S_KOFF, S_VOFF, S_LOOP, S_KM0
a(f"  s_lshr_b32 s{S_MB}, s{S_PBASE}, 16")
a(f"  s_lshl_b32 s{S_MB}, s{S_MB}, 7")
a(f"  s_add_u32 s{S_MB}, s{S_MB}, {MBOX}")
a(f"  s_add_u32 s{S_XO}, s{S_XO}, s{S_HSW}")
a(f"  s_xor_b32 s{S_HSW}, s{S_XO}, 128")
a(f"  v_mov_b32 v{V_ZERO}, 0")
a(f"  v_and_b32 v{V_T0}, 15, v{V_LANE}")
a(f"  v_lshlrev_b32 v{V_T0}, 10, v{V_T0}")
if OPT['o4']:
    a(f"  v_and_b32 v{V_T1}, 16, v{V_LANE}")
    a(f"  v_lshl_add_u32 v{V_T0}, v{V_T1}, 1, v{V_T0}")
    a(f"  v_bfe_u32 v{V_T1}, v{V_LANE}, 5, 1")
    a(f"  v_lshl_add_u32 v{V_XO}, v{V_T1}, 4, v{V_T0}")
else:
    a(f"  v_lshrrev_b32 v{V_T1}, 4, v{V_LANE}")
    a(f"  v_lshl_add_u32 v{V_XO}, v{V_T1}, 3, v{V_T0}")
POLL = f"  buffer_load_dword v{V_POLL}, v{V_ZERO}, s[{SRD_WS}:{SRD_WS+3}], s{S_MB} offen sc1"
XLD = [f"  buffer_load_dwordx2 v[{XL+2*k}:{XL+2*k+1}], v{V_XO}, s[{SRD_X}:{SRD_X+3}], s{S_HSW if k >> 1 else S_XO} offen offset:{(k&1)*32}" for k in range(4)]
if OPT['o4']: XLD = [f"  buffer_load_dwordx4 v[{XL+4*i}:{XL+4*i+3}], v{V_XO}, s[{SRD_X}:{SRD_X+3}], s{S_HSW if i else S_XO} offen" for i in range(2)]
S_SIG = S_KV0
a(f"  s_mov_b32 s{SRD_D}, s{P_WS}")
a(f"  s_mov_b32 s{SRD_D+1}, s{P_WS+1}")
a(f"  s_lshl_b32 s{S_SIG}, s{S_R}, 10")
a(f"  s_add_u32 s{S_SIG}, s{S_SIG}, {MBOX}")
a(f"  s_add_u32 s{S_T}, s{S_SIG}, 1024")
a(f"  s_cmp_eq_u32 s{S_W}, 0")
a(f"  s_cselect_b32 s{SRD_D+2}, s{S_T}, 0")
a(f"  s_lshl_b32 s{S_M}, 1, s{S_G}")
a(f"  v_mov_b32 v{V_T0}, s{S_M}")
a(f"  v_lshlrev_b32 v{V_T1}, 7, v{V_LANE}")
SIG = f"  buffer_atomic_add v{V_T0}, v{V_T1}, s[{SRD_D}:{SRD_D+3}], s{S_SIG} offen sc1"
SEL = 236
sel = [f"  v_lshrrev_b32 v{V_ONE_LO}, 4, v{V_LANE}", f"  v_bfe_u32 v{V_ONE_HI}, v{V_LANE}, 2, 2",
       f"  v_cmp_eq_u32 vcc, v{V_ONE_LO}, v{V_ONE_HI}", f"  v_and_b32 v{V_ONE_LO}, 1, v{V_LANE}", f"  v_lshlrev_b32 v{V_ONE_LO}, 4, v{V_ONE_LO}",
       f"  v_mov_b32 v{V_ONE_HI}, 0x3f80", f"  v_lshlrev_b32 v{V_ONE_HI}, v{V_ONE_LO}, v{V_ONE_HI}", f"  v_cndmask_b32 v{V_ONE_HI}, 0, v{V_ONE_HI}, vcc",
       f"  v_and_b32 v{V_ONE_LO}, 2, v{V_LANE}", f"  v_cmp_eq_u32 vcc, 0, v{V_ONE_LO}", f"  v_mov_b32 v{SEL}, 0", f"  v_mov_b32 v{SEL+1}, 0",
       f"  v_cndmask_b32 v{SEL+2}, 0, v{V_ONE_HI}, vcc", f"  v_cndmask_b32 v{SEL+3}, v{V_ONE_HI}, v{SEL}, vcc", f"  v_mov_b32 v{SEL+4}, 0", f"  v_mov_b32 v{SEL+5}, 0"]
def msum(base, acc, bt='v'):
    return [mf(acc + 4*h, SEL + 2 - 2*h, base + 4*s_, None if s_ == 0 else acc + 4*h, 'v', 'v', bt) for s_ in range(8) for h in range(2)]
SL = 0
def redirect(b_):
    return [f"  s_bitcmp1_b32 s{S_NEW}, {b_}", f"  s_cselect_b32 s{S_T+1}, s{S_FB}, 0x40000000",
            f"  s_add_u32 s{S_T+2}, s{S_T+1}, {PART_KIND + (b_ & 7)*65536 + (b_ >> 3)*8192}",
            f"  buffer_load_dwordx4 a[{SL+4*b_}:{SL+4*b_+3}], v{V_L16}, s[{SRD_WS}:{SRD_WS+3}], s{S_T+2} offen sc1"]
vq = [f"slot{k}" for k in range(7) for _ in range(4)]
st0 = list(st0)
def trickle():
    if OPT['trk']:
        a(st0.pop(0)); vq.append('st')
trickle()
gemm_first(); vq += ['slot7']*4 + ['slot8']*4
if OPT['trk']:
    for k in range(3):
        trickle(); gemm_call(2); vq += [f"slot{9+2*k}"]*4 + [f"slot{10+2*k}"]*4
    if OPT['trk'] == 2: trickle()
    gemm_call(1); vq += ['slot15']*4
else:
    gemm_call(7); vq += [f"slot{k}" for k in range(9, 16) for _ in range(4)]
if OPT['e1']:
    a(POLL); vq.append('poll1')
def younger(tag): return len(vq) - 1 - max(i for i, t in enumerate(vq) if t == tag)
a(f"  s_mov_b32 s{S_DONE}, 0")
for j in range(9, 16):
    vm = []; tags = []; xv = None
    w_ = younger(f"slot{j+2}") if j < 14 else 63
    if j in (9, 10):
        vm = [[x] for x in st0[:4]]; tags = ['st']*len(vm); st0 = st0[4:]
    if j == 11 and not OPT['xl']: vm = [[x] for x in XLD]; tags = ['x']*len(XLD)
    if OPT['e1'] and j in (12, 13):
        if j == 12:
            w_ = younger('poll1')
            xv = [(4, f"  v_readfirstlane_b32 s{S_NEW}, v{V_POLL}"), (8, f"  s_and_b32 s{S_DONE}, s{S_NEW}, 0xff")]
        vm = [redirect(4*(j-12)+k) for k in range(4)]; tags = ['e1']*4
    if j == 14: vm = [[""], [""], [""], [POLL]]; tags = ['poll']
    if j == 15 and OPT['ilv']:
        prog = capture(lambda: (gemm_inl(vm=[], vmw=63, noread=True), store_partial(1, 1)))
        prog = [l for l in prog if 's_waitcnt' not in l]
        a("  s_nop 3")
        out, t = schedule(prog, vmgap=40)
        for l in out: a(l)
        a("  s_nop 1")
        break
    gemm_inl(vm=vm, vmw=w_, noread=(j >= 14), fillv=(sel if j == 14 else None), xvm=xv)
    vq += tags
stamp(5)
if not OPT['ilv']: store_partial(1, 1)
stamp(); stamp(5)
GA, T = 16, 48
OWNQ = 64
if OPT['own']:
    a(f"  s_cmp_gt_u32 s{S_OWN}, 1")
    a("  s_cbranch_scc1 L_own_done")
    a(f"  v_add_u32 v{V_BA}, s{S_VM0}, v{V_L16}")
    a(f"  s_cmp_eq_u32 s{S_OWN}, 1")
    a("  s_cbranch_scc1 L_own1")
    for c in range(2):
        if c: a.label("L_own1")
        if OPT['sib']:
            o = 1 - c
            a(f"  s_cmp_eq_u32 s{S_SIB}, 99")
            a(f"  s_cbranch_scc1 L_nosib{c}")
            a(f"  s_add_u32 s{S_T}, s{S_PBASE}, {PART_KIND + o*4096}")
            a(f"  s_add_u32 s{S_T+1}, s{S_T}, 8192")
            for qt in range(4):
                x = V_ACC + ((2*o)*4+qt)*4
                a(f"  buffer_store_dwordx4 v[{LOQ[4*o+qt]}:{LOQ[4*o+qt]+3}], v{V_L16}, s[{SRD_WS}:{SRD_WS+3}], s{S_T} offen offset:{qt*1024}")
                a(f"  buffer_store_dwordx4 v[{x}:{x+3}], v{V_L16}, s[{SRD_WS}:{SRD_WS+3}], s{S_T+1} offen offset:{qt*1024}")
            a.label(f"L_nosib{c}")
        for qt in range(4):
            a(f"  ds_write_b128 v{V_BA}, v[{LOQ[4*c+qt]}:{LOQ[4*c+qt]+3}] offset:{qt*1024}")
            x = V_ACC + ((2*c)*4+qt)*4
            a(f"  ds_write_b128 v{V_BA}, v[{x}:{x+3}] offset:{16384+qt*1024}")
        if c == 0: a("  s_branch L_own_w")
    a.label("L_own_w")
    if OPT['sib']:
        a(f"  s_cmp_eq_u32 s{S_SIB}, 99")
        a("  s_cbranch_scc1 L_own_done")
        a("  s_waitcnt vmcnt(0)")
    a.label("L_own_done")
    a(f"  s_lshr_b32 s{S_T}, s{S_G}, 1")
    a(f"  s_lshl_b32 s{S_T}, s{S_T}, 2")
    a(f"  s_add_u32 s{S_T}, s{S_T}, s{S_W}")
    a(f"  s_lshl_b32 s{S_T}, s{S_T}, 10")
    a(f"  s_add_u32 s{S_T}, s{S_T}, {RB}")
    a("  s_waitcnt lgkmcnt(0)")
    a(f"  v_add_u32 v{V_BA}, s{S_T}, v{V_L16}")
a("  s_waitcnt vmcnt(8)")
a("  s_barrier")
a(SIG)
if OPT['own']:
    a(f"  ds_read_b128 v[{OWNQ}:{OWNQ+3}], v{V_BA}")
    a(f"  ds_read_b128 v[{OWNQ+4}:{OWNQ+7}], v{V_BA} offset:16384")
a(f"  v_readfirstlane_b32 s{S_NEW}, v{V_POLL}")
a(f"  v_lshlrev_b32 v{V_T0}, 8, v{V_T0}")
a("  s_nop 2")
if OPT['own']:
    a(f"  s_mul_i32 s{S_M}, s{S_M}, 0x101")
    a(f"  s_or_b32 s{S_DONE}, s{S_DONE}, s{S_M}")
    a(f"  s_mov_b32 s{S_M}, s{S_NEW}")
else:
    a(f"  s_or_b32 s{S_NEW}, s{S_NEW}, s{S_M}")
    a(f"  s_lshl_b32 s{S_M}, s{S_M}, 8")
    a(f"  s_or_b32 s{S_M}, s{S_M}, s{S_NEW}")
W1 = list(range(8, 15)) if OPT['e1'] else list(range(7))
W2 = ([15] if OPT['e1'] else list(range(7, 16))) if OPT['r2'] else []
S_SBM, S_SBO = S_FOFF, S_ROT7
if OPT['sib']:
    a(f"  s_xor_b32 s{S_T}, s{S_G}, 1")
    a(f"  s_lshl_b32 s{S_SBO}, s{S_T}, 16")
    a(f"  s_add_u32 s{S_SBO}, s{S_SBO}, s{S_FB}")
    a(f"  s_lshl_b32 s{S_T}, 0x101, s{S_T}")
    a(f"  s_cmp_eq_u32 s{S_SIB}, 99")
    a(f"  s_cselect_b32 s{S_SBM}, 0, s{S_T}")
    a(f"  s_andn2_b32 s{S_NEW}, s{S_NEW}, s{S_SBM}")
    for k in range(8): a(f"  v_mov_b32 v{OWNQ+8+k}, 0")
a(f"  s_and_b32 s{S_NEW}, s{S_NEW}, {sum(1 << b_ for b_ in W1 + W2):#x}")
a(f"  s_or_b32 s{S_DONE}, s{S_DONE}, s{S_NEW}")
fl = []
for s_ in W1:
    r_ = redirect(s_); fl += [r_[:2], r_[2:]]
def silu(acc):
    L = [f"  v_mul_f32 v{acc+e}, v{acc+e}, v{V_RSO}" for e in range(8)]
    def rp(r): return [f"  v_cvt_pk_bf16_f32 v{T+(r&2)//2}, v{r}, v{r+1}", f"  v_lshlrev_b32 v{r}, 16, v{T+(r&2)//2}", f"  v_and_b32 v{r+1}, 0xffff0000, v{T+(r&2)//2}"]
    for j in range(4): L += rp(acc+2*j)
    L += [f"  v_mul_f32 v{T+4+e}, 0xbfb8aa3b, v{acc+e}" for e in range(8)]
    L += [f"  v_exp_f32 v{T+4+e}, v{T+4+e}" for e in range(8)]
    L += [f"  v_add_f32 v{T+4+e}, 1.0, v{T+4+e}" for e in range(8)]
    L += [f"  v_rcp_f32 v{T+4+e}, v{T+4+e}" for e in range(8)]
    L += [f"  v_mul_f32 v{acc+e}, v{acc+e}, v{T+4+e}" for e in range(8)]
    for j in range(4): L += rp(acc+2*j)
    return L
s0 = silu(GA)
for g, l in enumerate(msum(GL, GA) + msum(GL + 32, GA + 8)):
    a(l)
    if g < len(fl):
        for x in fl[g]: a(x)
    if g >= 23:
        a(s0.pop(0)); a(s0.pop(0))
for b_ in W2:
    for l in redirect(b_): a(l)
    for _ in range(5):
        if s0: a(s0.pop(0))
stamp(5)
a(f"  s_waitcnt vmcnt({8 + len(W2)})")
a("  s_barrier")
a(SIG)
stamp(5)
def fround(first=False):
    if not first:
        a(POLL)
        a("  s_waitcnt vmcnt(0)")
        a(f"  v_readfirstlane_b32 s{S_M}, v{V_POLL}")
        a("  s_nop 3")
    a(f"  s_call_b64 s[{S_RET}:{S_RET+1}], L_round")
fround(True)
if OPT['xl']:
    for l in XLD: a(l)
for l in s0 + silu(GA + 8): a(l)
if OPT['slp']: a(f"  s_sleep {OPT['slp']}")
a(f"  s_mov_b32 s{SRD_D}, s{P_OUT}")
a(f"  s_mov_b32 s{SRD_D+1}, s{P_OUT+1}")
a(f"  s_mov_b32 s{SRD_D+2}, {2048*512*2}")
a(f"  s_mov_b32 s{S_CNT}, {OPT['spin']}")
SA = 0
for i in range(2):
    a.label(f"L_sp{i}")
    a(f"  s_cmp_lg_u32 s{S_DONE}, 0xffff")
    a(f"  s_cbranch_scc1 L_sp{i}_go")
    a("  s_waitcnt vmcnt(0)")
    a(f"  s_branch L_sp{i}_done")
    a.label(f"L_sp{i}_go")
    a(f"  s_bfe_u32 s{S_T+3}, s{S_DONE}, {(8 << 16) | (8*i)}")
    fround()
    a(f"  s_cmp_eq_u32 s{S_T+3}, 0xff")
    a(f"  s_cbranch_scc1 L_sp{i}_done")
    a(f"  s_sub_u32 s{S_CNT}, s{S_CNT}, 1")
    a(f"  s_cbranch_scc0 L_sp{i}")
    a(f"  s_mov_b32 s{S_CNT}, 0")
    a.label(f"L_sp{i}_done")
    stamp(5)
    if i == 1: stamp()
    xu = []
    if OPT['o4']: xu += [f"  v_permlane16_swap_b32 v{XL+4*i}, v{XL+4*i+2}", f"  v_permlane16_swap_b32 v{XL+4*i+1}, v{XL+4*i+3}"]
    for j in range(4):
        xr = XL + 4*i + j
        xu += [f"  v_lshlrev_b32 v{T+4+2*j}, 16, v{xr}", f"  v_and_b32 v{T+5+2*j}, 0xffff0000, v{xr}"]
    def ost(i, k): return f"  buffer_store_dwordx2 v[{XL+4*i+2*k}:{XL+4*i+2*k+1}], v{V_XO}, s[{SRD_D}:{SRD_D+3}], s{S_HSW if i else S_XO} offen offset:{k*32}"
    def ost4(i): return f"  buffer_store_dwordx4 v[{XL+4*i}:{XL+4*i+3}], v{V_XO}, s[{SRD_D}:{SRD_D+3}], s{S_HSW if i else S_XO} offen"
    if i == 1: xu += [ost4(0)] if OPT['o4'] else [ost(0, 0), ost(0, 1)]
    ms = msum(SL + i*32, SA, 'a')
    if OPT['own']:
        if i == 0: a("  s_waitcnt lgkmcnt(0)")
        ms += [mf(SA + 4*h, SEL + 2 - 2*h, OWNQ + 4*i, SA + 4*h) for h in range(2)]
        if OPT['sib']: ms += [mf(SA + 4*h, SEL + 2 - 2*h, OWNQ + 8 + 4*i, SA + 4*h) for h in range(2)]
    for g, l in enumerate(ms):
        a(l)
        if g < len(xu): a(xu[g])
    a("  s_nop 6")
    for j in range(4): rnd_pair(SA+2*j, T + (j & 1))
    for e in range(8): a(f"  v_mul_f32 v{SA+e}, v{SA+e}, v{GA+8*i+e}")
    for j in range(4): rnd_pair(SA+2*j, T + (j & 1))
    for e in range(8): a(f"  v_add_f32 v{SA+e}, v{SA+e}, v{T+4+e}")
    for j in range(4): a(f"  v_cvt_pk_bf16_f32 v{XL+4*i+j}, v{SA+2*j}, v{SA+2*j+1}")
    if OPT['o4']:
        a("  s_nop 0")
        a(f"  v_permlane16_swap_b32 v{XL+4*i}, v{XL+4*i+2}")
        a(f"  v_permlane16_swap_b32 v{XL+4*i+1}, v{XL+4*i+3}")
        if i == 1: a(ost4(1))
    elif i == 1:
        a(ost(1, 0)); a(ost(1, 1))
    if i == 0: stamp(5)
if OPT['stamps']:
    a("  s_waitcnt vmcnt(0)")
    stamp(0)
    a(f"  s_memrealtime s[{S_T}:{S_T+1}]")
    a("  s_waitcnt lgkmcnt(0)")
    n = nstamp[0]
    for i in range(n):
        a(f"  v_writelane_b32 v0, s{S_STAMP+2*i}, {i}")
    a(f"  v_writelane_b32 v0, s{S_T}, 15")
    a(f"  v_writelane_b32 v0, s74, 14")
    a(f"  v_writelane_b32 v0, s38, 12")
    a(f"  v_writelane_b32 v0, s39, 13")
    a(f"  s_lshl_b32 s{S_T}, s2, 2")
    a(f"  s_add_u32 s{S_T}, s{S_T}, s{S_W}")
    a(f"  s_lshl_b32 s{S_T}, s{S_T}, 6")
    a(f"  s_add_u32 s{S_T}, s{S_T}, {STAMP_OFF}")
    a(f"  v_lshlrev_b32 v1, 2, v{V_LANE}")
    a(f"  v_cmp_gt_u32 vcc, 16, v{V_LANE}")
    a(f"  s_and_saveexec_b64 s[{S_T+2}:{S_T+3}], vcc")
    a(f"  buffer_store_dword v0, v1, s[{SRD_WS}:{SRD_WS+3}], s{S_T} offen")
a.label("L_end")
a("  s_endpgm")
segs.append(('tail', 'tailjoin', (il, itail, it, len(a.lines))))
ir = len(a.lines)
a.label("L_redo")
a("  s_waitcnt lgkmcnt(0)")
a(f"  s_mov_b32 s{S_REDO}, 1")
a(f"  s_mov_b32 s{S_KOFF}, s{S_KV0}")
a(f"  s_mov_b32 s{S_LOOP}, 32")
a(f"  v_mov_b32 v{V_T0}, 0xff800000")
for qt in range(4): a(f"  v_mov_b32 v{V_NEGM+qt*4}, v{V_T0}")
a.label("L_redo_loop")
a("  s_waitcnt vmcnt(0) lgkmcnt(0)")
a("  s_barrier")
k_tile_dma(0)
a("  s_waitcnt vmcnt(0)")
a("  s_barrier")
for u in range(2):
    for i in range(8): a(k_read(u, i >> 2, i & 3))
    a("  s_waitcnt lgkmcnt(0)")
    for l in qk_mfmas(0, zero=True): a(l)
    a("  s_nop 7")
    for qt in range(4):
        m = V_NEGM + qt*4
        for kt in range(2):
            x = s_reg(0, kt, qt)
            a(f"  v_max3_f32 v{m}, v{x}, v{x+1}, v{m}")
            a(f"  v_max3_f32 v{m}, v{x+2}, v{x+3}, v{m}")
a(f"  s_sub_u32 s{S_LOOP}, s{S_LOOP}, 1")
a(f"  s_cmp_lg_u32 s{S_LOOP}, 0")
a("  s_cbranch_scc1 L_redo_loop")
for qt in range(4):
    m = V_NEGM + qt*4
    xlane_reduce(m, 'v_max_f32', m+1)
    a(f"  v_xor_b32 v{m}, 0x80000000, v{m}")
    for k in range(1, 4): a(f"  v_mov_b32 v{m+k}, v{m}")
a("  s_barrier")
a(f"  s_mov_b32 s{S_KOFF}, s{S_KV0}")
a(f"  s_mov_b32 s{S_VOFF}, s{S_KV0}")
for t in range(4): k_tile_dma(t)
for t in range(2): v_tile_dma(t)
a(f"  s_mov_b32 s{S_POFF}, s{S_SV_POFF}")
a("  s_waitcnt vmcnt(0)")
a("  s_barrier")
zero_o()
for l in attn_init(): a(l)
emit_sched(KR01 + ["  s_barrier"] + qk_mfmas(0, order=QORD) + head_common(), 'redo head')
a(f"  s_mov_b32 s{S_LOOP}, 7")
a("  s_branch L_p2")
segs.append(('redo', ir, len(a.lines)))
a.label("L_round")
a(f"  s_andn2_b32 s{S_NEW}, s{S_M}, s{S_DONE}")
a(f"  s_or_b32 s{S_DONE}, s{S_DONE}, s{S_M}")
if OPT['sib']:
    a(f"  s_and_b32 s{S_T}, s{S_NEW}, s{S_SBM}")
    a("  s_cbranch_scc0 L_rsib")
    a(f"  s_or_b32 s{S_DONE}, s{S_DONE}, s{S_SBM}")
    a(f"  s_andn2_b32 s{S_NEW}, s{S_NEW}, s{S_SBM}")
    for i in range(2):
        a(f"  s_add_u32 s{S_T}, s{S_SBO}, {PART_KIND + i*8192}")
        a(f"  buffer_load_dwordx4 v[{OWNQ+8+4*i}:{OWNQ+11+4*i}], v{V_L16}, s[{SRD_WS}:{SRD_WS+3}], s{S_T} offen{['', ' nt', ' sc0'][OPT['sib']-1]}")
    a.label("L_rsib")
for h in range(4):
    a(f"  s_and_b32 s{S_T}, s{S_NEW}, {0xf << (4*h)}")
    a(f"  s_cbranch_scc0 L_rs{h}")
    for b_ in range(4*h, 4*h+4):
        pl = part_load(1, b_ >> 3, b_ & 7, SL + b_*4, 'a')
        a(pl[0])
        a(f"  s_bitcmp1_b32 s{S_NEW}, {b_}")
        a(f"  s_cselect_b64 exec, -1, 0")
        a(pl[1])
    a("  s_mov_b64 exec, -1")
    a.label(f"L_rs{h}")
a(f"  s_setpc_b64 s[{S_RET}:{S_RET+1}]")
a(".p2align 6")
ig = len(a.lines)
for pos in range(12):
    a.label(f"L_gemm{pos}")
    gemm_step(pos, False, True)
    if pos < 11: a("  s_cbranch_scc1 L_gemm_ret")
    else: a("  s_cbranch_scc0 L_gemm0")
a.label("L_gemm_ret")
a(f"  s_setpc_b64 s[{S_RET}:{S_RET+1}]")
segs.append(('gemm2', ig, len(a.lines)))
a.label("L_code_end")

a('.section .rodata,"a"')
a(".p2align 6")
a(kernel_desc(NAME + "_kernel", 512, 102, 256))

errs = []
for s in segs:
    if s[1] == 'tailjoin':
        il_, itail_, it_, end_ = s[2]
        errs += hazard.check(a.lines[il_:itail_] + a.lines[it_:end_], 'tail')
    elif s[0].endswith('2'):
        errs += hazard.check(a.lines[s[1]:s[2]] * 2, s[0])
    else:
        errs += hazard.check(a.lines[s[1]:s[2]], s[0])
for e in errs[:40]: print("HAZ", e)
open(sys.argv[1], 'w').write(a.text())
print("written", sys.argv[1], len(a.lines), "lines;", len(errs), "hazard msgs")
```

```python
import re
import hazard
SCC = ('s', 200)
SCC_W = ('s_add', 's_sub', 's_cmp', 's_and', 's_or', 's_xor', 's_lshl', 's_lshr', 's_bitcmp', 's_bfe', 's_min', 's_max', 's_andn2', 's_not')
SCC_R = ('s_cselect', 's_addc', 's_cbranch')
def info(line):
    d = hazard.parse(line)
    op = d['op']
    d['r'] = set(d['r']); d['w'] = set(d['w'])
    if op.startswith('s_bitcmp'):
        d['r'] |= d['w']; d['w'] = set()
    if any(op.startswith(x) for x in SCC_W): d['w'].add(SCC)
    if any(op.startswith(x) for x in SCC_R): d['r'].add(SCC)
    d['fence'] = op in ('s_barrier', 's_waitcnt')
    k = d['kind']
    if k == 'mfma': d['cost'] = 8
    elif k == 'valu': d['cost'] = 8 if d['trans'] else (5 if 'cvt_pk' in op else 4)
    elif k == 'ds': d['cost'] = 8
    elif k == 'vm': d['cost'] = 16
    else: d['cost'] = 4
    return d
def need(p, d):
    raw = p['w'] & d['r']; waw = p['w'] & d['w']; war = p['r'] & d['w']
    dep = bool(raw or waw or war)
    mem = lambda x: x['kind'] in ('ds', 'vm')
    if p['kind'] == d['kind'] and mem(p): dep = True
    if (p['fence'] and (mem(d) or d['fence'])) or (d['fence'] and mem(p)): dep = True
    if not dep: return None
    n = 0
    t = d['r'] | d['w']
    if p['kind'] == 'mfma':
        if d['kind'] == 'mfma':
            if p['w'] & (d['A'] | d['B']): n = 8
            if (p['w'] & d['C'] and p['w'] != d['C']) or (p['w'] & d['w'] and p['w'] != d['C']): n = 8
        elif d['kind'] in ('valu', 'ds', 'vm'):
            if p['w'] & t: n = 8
            if d['kind'] == 'valu' and p['C'] & d['w']: n = max(n, 3)
    if p['kind'] == 'valu':
        vw = {x for x in p['w'] if x[0] != 's'}; sw = {x for x in p['w'] if x[0] == 's'}
        if d['kind'] == 'mfma' and vw & d['r']: n = 2
        if d['kind'] == 'valu':
            if p['trans'] and not d['trans'] and vw & d['r']: n = max(n, 1)
            if (d.get('perm') or d['dpp']) and vw & d['r']: n = max(n, 2)
            if d['rdlane'] and vw & d['r']: n = max(n, 1)
            if sw & d['r']: n = max(n, 2)
        if d['kind'] == 'vm' and sw & d['r']: n = max(n, 5)
        if d['kind'] == 'salu' and sw & d['r']: n = max(n, 3)
        if p['trans'] and d['kind'] in ('ds', 'vm') and vw & d['r']: n = max(n, 1)
    if p['kind'] == 'salu' and ('s', 124) in p['w'] and d.get('dma'): n = max(n, 1)
    if p.get('store') and len(p['store']) >= 3 and p['store'] & d['w']: n = max(n, 2)
    return n

def schedule(prog, lds_lat=140, pend=0, window=2000, vmgap=64, dswgap=48):
    I = [info(l) for l in prog if l.strip()]
    n = len(I)
    preds = [[] for _ in range(n)]
    for j in range(n):
        for i in range(max(0, j - window), j):
            k = need(I[i], I[j])
            if k is not None: preds[j].append((i, k))
    done = [None]*n
    out = []; slot = 0; t = 0; last_m = -100; after_m = False
    dsq = []
    rem = list(range(n))
    def ready(j):
        nops = 0; w = None; rt = 0
        for i, k in preds[j]:
            if done[i] is None: return (False, 0, None, 0)
            nops = max(nops, k - (slot - done[i][0] - 1))
            if I[i]['kind'] == 'ds' and i in dsq and ((I[i]['w'] & (I[j]['r'] | I[j]['w'])) or I[j]['op'] == 's_barrier'):
                w = i if w is None or dsq.index(i) > dsq.index(w) else w
                rt = max(rt, done[i][1] + lds_lat)
            if I[i]['kind'] == 'mfma' and k >= 8: rt = max(rt, done[i][1] + 36)
            if I[i]['kind'] == 'vm' and I[j]['kind'] == 'vm': rt = max(rt, done[i][1] + vmgap)
        return (True, nops, w, rt)
    def emit(j, nops, w):
        nonlocal slot, t, last_m, after_m, dsq
        if w is not None:
            idx = dsq.index(w)
            while idx + 1 < len(dsq) and done[dsq[idx+1]][1] + lds_lat <= t: idx += 1
            left = len(dsq) - idx - 1
            out.append(f"  s_waitcnt lgkmcnt({min(left, 15)})"); slot += 1; nops -= 1
            t = max(t + (0 if after_m else 4), done[w][1] + lds_lat)
            dsq = dsq[idx+1:]
        if nops > 0:
            out.append(f"  s_nop {nops-1}"); slot += nops; t += 4*nops
        d = I[j]
        if d['kind'] == 'mfma':
            t = max(t, last_m + 16); last_m = t
        done[j] = (slot, t)
        out.append("  " + d['line']); slot += 1
        c = d['cost']
        if after_m and d['kind'] not in ('valu', 'mfma'): c -= 4
        elif d['kind'] == 'ds' : c += 4
        t += c
        after_m = d['kind'] == 'mfma'
        if d['kind'] == 'ds': dsq.append(j)
        if d['op'] == 's_waitcnt' and 'lgkmcnt(0)' in d['line']: dsq = []
        rem.remove(j)
    while rem:
        cand = []
        for j in rem[:160]:
            ok, nops, w, rt = ready(j)
            if ok: cand.append((j, nops, w, rt))
        mf = next((c for c in cand if I[c[0]]['kind'] == 'mfma' and c[0] == next(x for x in rem if I[x]['kind'] == 'mfma')), None)
        free = [c for c in cand if I[c[0]]['kind'] != 'mfma' and c[1] <= 0 and c[3] <= t]
        mready = mf is not None and mf[1] <= 0 and mf[3] <= max(t, last_m + 16)
        budget = last_m + 16 - t
        pick = None
        if mready:
            if after_m:
                pick = next((c for c in free if I[c[0]]['kind'] in ('ds', 'vm')), None) or next((c for c in free if I[c[0]]['kind'] != 'valu'), None)
            if pick is None and budget > 0:
                pick = next((c for c in free if I[c[0]]['kind'] in ('valu', 'salu', 'other') and I[c[0]]['cost'] <= budget + 1), None)
            if pick is None:
                room = (budget + (4 if after_m else 0)) // 4
                blk = [c for c in cand if I[c[0]]['kind'] == 'valu' and c[1] > 1]
                if room > 0 and blk and not [c for c in free if I[c[0]]['kind'] == 'valu']:
                    k = min(room, min(c[1] for c in blk) - 1)
                    if k > 0:
                        out.append(f"  s_nop {k-1}"); slot += k
                        t += 4*k - (4 if after_m else 0); after_m = False
                pick = mf
        else:
            if after_m: pick = next((c for c in free if I[c[0]]['kind'] in ('ds', 'vm')), None)
            if pick is None and free: pick = free[0]
            if pick is None: pick = min(cand, key=lambda c: (max(c[3], t + 4*c[1]), c[0]))
        emit(pick[0], pick[1], pick[2])
    return out, t
```

```python
import sys, math
from asmlib import *
import hazard
from sched import schedule

NAME = "recurrent_scan__gqa_block_cached__dense_activation_relu__prompt"
OPT = dict(stamps=0, mimic_d=1, nsum=2, force_redo=0, pf=0, ng=2, rot=1, late=4, tlb=0, spin=200000, dot=1, xnobar=0, xnodma=0, xnost=0, noredo=0, pol=0, cpos=0, n1=8, w1pf=0, slp=0, xk=0, xv=0, xe=0, xa=0, xs=16, snake=1, nov=6, flip=0, early=0, ilv=0, stf=0, mbl=1, e64=0, xl=0, cp2=2, cp3=0, hsw=0, hx=1, o4=1, klate=1, rt=0, trk=0, e1=0, r2=0, own=1, pt=0, sib=0, xsz=1, lnd=0, pre=0, sl=0, rm=15, one1=0, hfill=1, m16=0, of=0, hst=0, hgap=64, ffma=1, sv=0, lay=1, skew=0, fst=0, pslp=0, w3=0, w2sw=0, stg=0, alt=0, kvr=0, ck=1, bsh=0)
for x in sys.argv[2:]:
    k, v = x.split('='); OPT[k] = int(v)

POL = {0: '', 1: ' nt', 2: ' sc1', 3: ' sc0', 4: ' sc0 sc1', 5: ' sc1 nt'}[OPT['pol']]
a = Asm()
segs = []

S_W, S_G, S_R = 4, 5, 6
S_RET = 8
S_CNT, S_CSLOT, S_PSLOT, S_POFF, S_STA, S_STB = 10, 11, 12, 13, 14, 15
P_X, P_K, P_V, P_WQ, P_WO, P_W1, P_W2, P_WS, P_DBG, P_OUT = 16, 18, 20, 22, 24, 28, 30, 36, 34, 32
S_PLO, S_PHI = 38, 39
S_BOFF, S_BEND, S_FOFF, S_PLEN, S_ROT16, S_ROT7, S_ODD = 3, 7, 26, 27, 100, 101, 15
SRD_W, SRD_K, SRD_V, SRD_WS, SRD_X = 40, 44, 48, 52, 56
S_KOFF, S_VOFF, S_LOOP, S_KM0, S_VM0, S_PBASE, S_REDO = 60, 61, 62, 63, 64, 65, 66
S_SV_POFF, S_KV0 = 68, 69
S_SP = 94
S_OWN = 68
S_SIB = 15
S_EV, S_EI = 26, 101
S_HSW = 67
S_T = 70
S_STAMP = 76

V_ACC, V_A, V_B = 0, 64, 96
V_S, V_P, V_NEGM, V_L, V_LS, V_ONES = 0, 64, 96, 112, 116, 124
V_H = 176
V_PROW, V_PSWZ, V_BA, V_LANE, V_L16, V_T0, V_T1 = 208, 209, 210, 212, 213, 214, 215
V_KA, V_VA, V_KD, V_VD, V_PD, V_AA = 216, 220, 228, 232, 236, 240
A_O, A_Q, A_K, A_V = 0, 128, 192, 224
RB = 65536
LAY = OPT['lay']
HSTR = (8 << 20) if LAY else 8192
WGSH = 15 if LAY else 16
NS = 6
PART_KIND = 16 << 20
STAMP_OFF = 48 << 20
MBOX = 40 << 20
SRD_D = 96
S_FB, S_XO = 11, 12
V_XO = 211
PBUF = [[64, 68, 72, 76], [80, 84, 88, 92], [192, 196, 200, 204], [208, 244, 248, 252]]
V_POLL = 234
V_RSO, V_RS = 235, 160
import struct
CSH = struct.unpack('<I', struct.pack('<f', (128 ** -0.5) * math.log2(math.e)))[0]
V_ONE_LO, V_ONE_HI, V_ZERO = 232, 233, 209

nstamp = [0]
def stamp(lvl=1):
    if OPT['stamps'] == lvl or (OPT['stamps'] and lvl == 0):
        i = nstamp[0]
        if i >= 9: return
        nstamp[0] += 1
        a(f"  s_mem{'real' if OPT['rt'] else ''}time s[{S_STAMP+2*i}:{S_STAMP+2*i+1}]")

def capture(fn):
    i = len(a.lines); fn(); L = a.lines[i:]; del a.lines[i:]
    return [l for l in L if l.strip() and not l.strip().startswith('s_nop') and not l.strip().startswith(';')]
def emit_sched(prog, name, **kw):
    out, t = schedule(prog, **kw)
    for l in out: a(l)
    print(f"  sched {name}: {len(out)} instrs, est {t} cycles")
def mf(d, A, B, C, dt='v', at='v', bt='v'):
    c = '0' if C is None else f"{dt}[{C}:{C+3}]"
    return f"  v_mfma_f32_16x16x32_bf16 {dt}[{d}:{d+3}], {at}[{A}:{A+3}], {bt}[{B}:{B+3}], {c}"

def prod_m0(pos):
    return [f"  s_add_u32 m0, s{S_VM0}, {pos*16384}"]
def prod_dma(n):
    return f"  buffer_load_dwordx4 v{V_PD+n}, s[{SRD_W}:{SRD_W+3}], s{S_POFF} offen offset:{n*1024}{POL} lds"
def prod_adv():
    return [f"  s_add_u32 s{S_POFF}, s{S_POFF}, s{S_STA}",
            f"  s_cmp_eq_u32 s{S_POFF}, s{S_PLEN}",
            f"  s_cselect_b32 s{S_POFF}, 0, s{S_POFF}"]
def produce_list(pos):
    return prod_m0(pos) + prod_adv() + [prod_dma(n) for n in range(4)]
def produce_slot(pos):
    for l in produce_list(pos): a(l)

def set_stream(kind, half=0):
    if kind == 'null':
        a(f"  s_mov_b32 s{SRD_W+2}, 0"); return
    if half == 1:
        for n in range(4): a(f"  v_xor_b32 v{V_PD+n}, 128, v{V_PD+n}")
        return
    ptr, size, stride = dict(w1=(P_W1, 512*1792*2, 3584), wq=(P_WQ, 512*4096*2, 8192), w2=(P_W2, 1792*512*2, 1024),
                             wo=(P_WO, 4096*512*2, 1024), v=(P_V, 8*2048*128*2, 0))[kind]
    a(f"  s_mov_b32 s{SRD_W}, s{ptr}")
    a(f"  s_mov_b32 s{SRD_W+1}, s{ptr+1}")
    a(f"  s_mov_b32 s{SRD_W+2}, {size}")
    a(f"  s_mov_b32 s{S_T}, {stride}")
    a(f"  v_mad_u32_u24 v{V_PD}, v{V_PROW}, s{S_T}, v{V_PSWZ}")
    src, gsft, wsft = dict(w1=(S_FOFF, 1, 7), wq=(S_G, 10, 8), w2=(S_FOFF, 10, 8), wo=(S_G, 19, 8))[kind]
    a(f"  s_lshl_b32 s{S_T}, s{src}, {gsft}")
    a(f"  s_lshl_b32 s{S_T+1}, s{S_W}, {wsft}")
    a(f"  s_add_u32 s{S_T}, s{S_T}, s{S_T+1}")
    if kind != 'w1': a(f"  s_add_u32 s{S_T}, s{S_T}, s{S_HSW}")
    if kind == 'w2' and OPT['w2sw']:
        a(f"  s_and_b32 s{S_T+1}, s{S_R}, 1")
        a(f"  s_lshl_b32 s{S_T+1}, s{S_T+1}, 7")
        a(f"  s_add_u32 s{S_T}, s{S_T}, s{S_T+1}")
    a(f"  v_add_u32 v{V_PD}, s{S_T}, v{V_PD}")
    for n in range(1, 4): a(f"  v_add_u32 v{V_PD+n}, {n*(8*stride-1024)}, v{V_PD}")
    a(f"  s_mov_b32 s{S_STA}, {32*stride}")
    if kind == 'w1':
        a(f"  s_lshl_b32 s{S_T}, s{S_ODD}, 2")
        a(f"  s_or_b32 s{S_T}, s{S_T}, s{S_W}")
        a(f"  s_cmp_eq_u32 s{S_T}, 7")
        a(f"  s_cselect_b32 s{SRD_W+2}, 0, s{SRD_W+2}")
    if kind == 'w2':
        a(f"  s_lshl_b32 s{S_T}, s{S_ODD}, 16")
        a(f"  s_sub_u32 s{S_PLEN}, {8*32*stride}, s{S_T}")
    else: a(f"  s_mov_b32 s{S_PLEN}, {16*32*stride}")
    a(f"  s_mul_i32 s{S_POFF}, s{S_ROT7 if kind == 'w2' else S_ROT16}, {32*stride}")
    a(f"  s_sub_u32 s{S_POFF}, s{S_POFF}, s{S_STA}")

def b_adv():
    return [f"  s_add_u32 s{S_BOFF}, s{S_BOFF}, 4096",
            f"  s_cmp_eq_u32 s{S_BOFF}, s{S_BEND}",
            f"  s_cselect_b32 s{S_BOFF}, 0, s{S_BOFF}",
            f"  v_add_u32 v{V_BA}, s{S_BOFF}, v{V_L16}"]
def rpos(i): return (2 + i) % NS
def fA(k): return ('v', V_A + 16*k) if k < 2 else ('a', A_K + 16*(k-2))
def fB(k): return ('v', V_B + 16*k) if k < 2 else ('a', A_V + 16*(k-2))
def a_read(i, nt, rd):
    t, b = fA(i & 3); d = b + nt*4 + rd*2; slot = rpos(i)
    return f"  ds_read_b64_tr_b16 {t}[{d}:{d+1}], v{V_AA+nt+4*(slot//3)} offset:{(slot%3)*16384+rd*2048}"
def b_read(i, qt):
    t, b = fB(i & 3); d = b + qt*4
    return f"  ds_read_b128 {t}[{d}:{d+3}], v{V_BA} offset:{qt*1024}"

def gemm_step(i, first=False, loop=False, vm=None, vmw=16, noread=False, fillv=None, xvm=None):
    a(f"  s_waitcnt vmcnt({vmw}) lgkmcnt(0)")
    mem = [b_read(i+2, qt) for qt in range(4)] + [a_read(i+2, nt, rd) for nt in range(4) for rd in range(2)] + [prod_dma(n) for n in range(4)]
    ex = [[] for _ in range(16)]
    ba = b_adv(); pa = prod_adv()
    for k in range(4): ex[k].append(ba[k])
    if vm is None:
        for k in range(3): ex[4+k].append(pa[k])
        ex[7] += prod_m0(rpos(i+1))
    else:
        for k in range(4):
            mem[12+k] = vm[k][-1] if k < len(vm) else ""
            if k < len(vm): ex[11+k-(1 if k == 0 else 0)] += vm[k][:-1]
    if noread:
        for k in range(12): mem[k] = ""
        for k in range(4): ex[k] = []
    if xvm:
        for g_, l in xvm: ex[g_].append(l)
    if fillv:
        for k, l in enumerate(fillv): ex[k].append(l)
    if loop: ex[11].append(f"  s_sub_u32 s{S_CNT}, s{S_CNT}, 1")
    g = 0; s0 = i & 2
    for nt in (2*(i & 1), 2*(i & 1) + 1):
        for q_ in range(4):
            qt = 3 - q_ if nt & 1 else q_
            acc = V_ACC + (nt*4+qt)*4
            for u_ in range(2):
                u = u_ ^ (q_ & 1)
                (ta, ba_), (tb, bb) = fA(s0+u), fB(s0+u)
                a(mf(acc, ba_+nt*4, bb+qt*4, None if (first and u_ == 0) else acc, 'v', ta, tb))
                a(mem[g])
                for l in ex[g]: a(l)
                g += 1

gpos = [0]
CKPT = {8, 3, 0, 7, 4, 10, 11} if OPT['ck'] else set(range(12))
def gemm_call(n):
    assert (gpos[0] + n - 1) % 12 in CKPT, (gpos[0], n)
    nck = sum(1 for k in range(n) if (gpos[0] + k) % 12 in CKPT)
    a(f"  s_mov_b32 s{S_CNT}, {nck-1}")
    a(f"  s_call_b64 s[{S_RET}:{S_RET+1}], L_gemm{gpos[0] % 12}")
    gpos[0] += n
def gemm_inl(**kw):
    gemm_step(gpos[0] % 12, **kw); gpos[0] += 1
def gemm_first():
    gemm_inl(first=True); gemm_inl(first=True)
def b_reload(ffn2, wait=True):
    if wait: a("  s_waitcnt lgkmcnt(0)")
    a(f"  s_lshl_b32 s{S_BOFF}, s{S_ROT7 if ffn2 else S_ROT16}, 12")
    if ffn2: a(f"  s_lshr_b32 s{S_BEND}, s{S_PLEN}, 3")
    else: a(f"  s_mov_b32 s{S_BEND}, {16*4096}")
    a(f"  v_add_u32 v{V_BA}, s{S_BOFF}, v{V_L16}")
    for k in range(2):
        for qt in range(4): a(b_read(gpos[0] + k, qt))
        for l in b_adv(): a(l)
def a_first():
    for k in range(2):
        for nt in range(4):
            for rd in range(2): a(a_read(gpos[0] + k, nt, rd))

def store_partial(kind, half, dst=None, defer=False, sreg=S_T):
    a("  s_nop 5")
    a(f"  s_add_u32 s{sreg}, s{S_PBASE}, {kind*PART_KIND + half*HSTR}")
    a(f"  s_add_u32 s{sreg+1}, s{sreg}, 4096")
    if kind == 1 and OPT['own']:
        for c in range(2):
            a(f"  s_cmp_eq_u32 s{S_OWN}, {c}")
            a(f"  s_cselect_b32 s{sreg+c}, 0x40000000, s{sreg+c}")
            if OPT['sib']:
                a(f"  s_cmp_eq_u32 s{S_SIB}, {c}")
                a(f"  s_cselect_b32 s{sreg+c}, 0x40000000, s{sreg+c}")
    st = []
    for c in range(2):
        for qt in range(4):
            x = V_ACC + ((2*c)*4+qt)*4; y = V_ACC + ((2*c+1)*4+qt)*4
            d = x if dst is None else (dst[c*4+qt] if isinstance(dst, list) else dst + (c*4+qt)*4)
            a(f"  v_cvt_pk_bf16_f32 v{d}, v{x}, v{x+1}")
            a(f"  v_cvt_pk_bf16_f32 v{d+1}, v{x+2}, v{x+3}")
            a(f"  v_cvt_pk_bf16_f32 v{d+2}, v{y}, v{y+1}")
            a(f"  v_cvt_pk_bf16_f32 v{d+3}, v{y+2}, v{y+3}")
            l = f"  buffer_store_dwordx4 v[{d}:{d+3}], v{V_L16}, s[{SRD_WS}:{SRD_WS+3}], s{sreg+c} offen offset:{qt*1024} {['sc1', 'sc0 sc1', 'sc1 nt'][OPT['stf']]}"
            if defer: st.append(l)
            else: a(l)
    if not defer: a("  s_nop 1")
    return st

def spin(label, srd, voff, soff, target):
    a(f"  s_mov_b32 s{S_T+1}, {OPT['spin']}")
    a.label(label)
    a(f"  buffer_load_dword v{V_POLL}, v{voff}, s[{srd}:{srd+3}], {soff} offen sc1")
    a("  s_waitcnt vmcnt(0)")
    a(f"  v_readfirstlane_b32 s{S_T}, v{V_POLL}")
    a(f"  s_sub_u32 s{S_T+1}, s{S_T+1}, 1")
    a(f"  s_cbranch_scc1 {label}_done")
    a(f"  s_cmp_lt_u32 s{S_T}, {target}")
    a(f"  s_cbranch_scc1 {label}")
    a.label(label + "_done")

def part_load(kind, i, src, d, t='v'):
    return [f"  s_add_u32 s{S_T+2}, s{S_FB}, {kind*PART_KIND + (src << WGSH) + i*HSTR}",
            f"  buffer_load_dwordx4 {t}[{d}:{d+3}], v{V_L16}, s[{SRD_WS}:{SRD_WS+3}], s{S_T+2} offen sc1"]
def part_sum(base, acc, T, vm0=None):
    for s_ in range(8):
        if vm0 is not None and s_ % 2 == 0: a(f"  s_waitcnt vmcnt({vm0-s_-1})")
        d = base + s_*4
        for j in range(4):
            lo, hi = acc+2*j, acc+2*j+1
            if s_ == 0:
                a(f"  v_lshlrev_b32 v{lo}, 16, v{d+j}")
                a(f"  v_and_b32 v{hi}, 0xffff0000, v{d+j}")
            elif OPT['dot']:
                a(f"  v_dot2c_f32_bf16 v{lo}, v{d+j}, v{V_ONE_LO}")
                a(f"  v_dot2c_f32_bf16 v{hi}, v{d+j}, v{V_ONE_HI}")
            else:
                t = T + 2*(j & 1)
                a(f"  v_lshlrev_b32 v{t}, 16, v{d+j}")
                a(f"  v_and_b32 v{t+1}, 0xffff0000, v{d+j}")
                a(f"  v_pk_add_f32 v[{lo}:{hi}], v[{lo}:{hi}], v[{t}:{t+1}]")
    if OPT['dot']: a("  s_nop 2")
def rnd_pair(r, T):
    a(f"  v_cvt_pk_bf16_f32 v{T}, v{r}, v{r+1}")
    a(f"  v_lshlrev_b32 v{r}, 16, v{T}")
    a(f"  v_and_b32 v{r+1}, 0xffff0000, v{T}")

def kslot(t): return (t + 2) & 3
def k_read(unit, kt, ds, dst=A_K):
    off = kslot(unit >> 1)*16384 + (unit & 1)*8192 + kt*4096
    d = dst + (kt*4+ds)*4
    return f"  ds_read_b128 a[{d}:{d+3}], v{V_KA+ds} offset:{off}"
def v_read(unit, dt, rd, dst=A_V):
    off = ((unit >> 1) & 3)*16384 + (unit & 1)*8192 + rd*4096
    d = dst + dt*4 + rd*2
    return f"  ds_read_b64_tr_b16 a[{d}:{d+1}], v{V_VA+dt} offset:{off}"
def k_dma(n):
    return f"  buffer_load_dwordx4 v{V_KD+n}, s[{SRD_K}:{SRD_K+3}], s{S_KOFF} offen offset:{n*1024}{POL} lds"
def v_dma(n):
    return f"  buffer_load_dwordx4 v{V_VD+(n&1)}, s[{SRD_V}:{SRD_V+3}], s{S_VOFF} offen offset:{n*1024}{POL} lds"
def k_tile_dma(t):
    a(f"  s_add_u32 m0, s{S_KM0}, {kslot(t)*16384}")
    a(f"  s_nop 0")
    for n in range(4): a(k_dma(n))
    a(f"  s_add_u32 s{S_KOFF}, s{S_KOFF}, 16384")
    if OPT['kvr']: a(f"  s_and_b32 s{S_KOFF}, s{S_KOFF}, 0x7ffff")
def v_tile_dma(t):
    a(f"  s_add_u32 m0, s{S_VM0}, {(t&3)*16384}")
    a(f"  s_nop 0")
    for n in range(4): a(v_dma(n))
    a(f"  s_add_u32 s{S_VOFF}, s{S_VOFF}, 16384")

NSUM = OPT['nsum']
SUMQT = {0: [], 2: [2, 3], 4: [0, 1, 2, 3]}[NSUM]
TORDER = [(0,0),(0,2),(0,1),(0,3),(1,0),(1,2),(1,1),(1,3)]
def s_reg(b, kt, qt): return V_S + b*32 + (kt*4+qt)*4
def qk_mfmas(b, zero=False, order=None, src=A_K):
    L = []
    QKO = [(0,0),(0,1),(0,2),(0,3),(1,3),(1,2),(1,1),(1,0)] if OPT['snake'] else TORDER
    for ti, (kt, qt) in enumerate(order or QKO):
        d = s_reg(b, kt, qt)
        for i_ in range(4):
            ds = 3 - i_ if (OPT['snake'] and ti & 1) else i_
            C = d if i_ else (None if zero else V_NEGM + qt*4)
            L.append(mf(d, src+(kt*4+ds)*4, A_Q+(qt*4+ds)*4, C, 'v', 'a', 'a'))
    return L
def ls_reg(qt):
    return V_LS + SUMQT.index(qt)*4 if NSUM == 2 else 160 + qt*4
def pv_half(T, h, src=A_V):
    L = []; k = 0
    for d_ in range(4):
        dt = 4*h + d_
        for qt in (range(3, -1, -1) if d_ % 2 == 0 else range(4)):
            d = A_O + (dt*4+qt)*4
            for u in ((0, 1) if k % 2 == 0 else (1, 0)):
                L.append(mf(d, src+(d_*2+u)*4, PBUF[(2*T+u) & 3][qt], d, 'a', 'a', 'v'))
            k += 1
    return L
def v_half(T, h, dst=A_V):
    L = []
    for f in range(8):
        dt = 4*h + (f >> 1); u = f & 1
        for rd in range(2):
            off = (T & 3)*16384 + u*8192 + rd*4096
            d = dst + f*4 + rd*2
            L.append(f"  ds_read_b64_tr_b16 a[{d}:{d+1}], v{V_VA+dt} offset:{off}")
    return L
def sum_pair(T, qt):
    return [mf(ls_reg(qt), V_ONES, PBUF[(2*T+u) & 3][qt], ls_reg(qt)) for u in range(2)]
def sm_ops(p, qt):
    L = []
    for kt in range(2):
        for r in range(4):
            s_ = s_reg(p & 1, kt, qt) + r
            L.append(f"  v_exp_f32 v{s_}, v{s_}")
            if qt not in SUMQT: L.append(f"  v_add_f32 v{V_L+qt}, v{V_L+qt}, v{s_}")
            if r & 1: L.append(f"  v_cvt_pk_bf16_f32 v{PBUF[p & 3][qt]+kt*2+(r>>1)}, v{s_-1}, v{s_}")
    return L

def period(p, last=False, extra=None, dma=None, endop=None):
    b = p & 1; T = p >> 1
    M = qk_mfmas(b ^ 1) + pv_half(T-1, b) + sum_pair(T-1, SUMQT[1-b])
    ng = len(M)
    pre = [[] for _ in range(ng)]
    mem = [None]*ng
    cap = [0 if (g < 64 and g % 2 == 0) else 2 for g in range(ng)]
    exps = [(kt, qt, r) for kt, qt in TORDER for r in range(4)]
    for i, l in enumerate(v_half(T-1, b)):
        mem[2*i+1] = l; cap[2*i+1] = 1
    kpos = [0,1,2,4,5,6,8,9]; dpos = [3,7,11,15]
    if last:
        for i, l in enumerate(v_half(T-1, 1, A_K)):
            mem[33+2*i] = l; cap[33+2*i] = 1
    else:
        for i, j in enumerate(kpos):
            mem[33+2*j] = k_read(p+2, i >> 2, i & 3); cap[33+2*j] = 1
        for n, j in enumerate(dpos):
            mem[33+2*j] = k_dma(n) if b == 0 else v_dma(n); cap[33+2*j] = 0
        if dma is not None:
            for n, j in enumerate(dpos):
                mem[33+2*j] = dma[n][-1]; pre[32+2*j] += dma[n][:-1]
        elif b == 0:
            pre[34].append(f"  s_add_u32 m0, s{S_KM0}, {kslot(T)*16384}")
            if OPT['kvr']: pre[36].append(f"  s_and_b32 s{S_KOFF}, s{S_KOFF}, 0x7ffff")
            pre[ng-2].append(f"  s_add_u32 s{S_KOFF}, s{S_KOFF}, 16384")
        else:
            pre[34].append(f"  s_add_u32 m0, s{S_VM0}, {((T+2)&3)*16384}")
            if OPT['kvr']: pre[36].append(f"  s_and_b32 s{S_VOFF}, s{S_VOFF}, 0x7ffff")
            pre[ng-2].append(f"  s_add_u32 s{S_VOFF}, s{S_VOFF}, 16384")
    if extra:
        for k, l in enumerate(extra): pre[2*k] += l
    if endop: pre[ng-1].append(endop)
    pre[30].append("  s_waitcnt lgkmcnt(3)")
    nk = sum(1 for g in range(32, 54) if mem[g] and mem[g].lstrip().startswith('ds_'))
    pre[54].append(f"  s_waitcnt lgkmcnt({nk})")
    q = []
    for g in range(ng):
        a(M[g])
        for l in pre[g]: a(l)
        if mem[g]: a(mem[g])
        if g < 64 and g % 2 == 0:
            kt, qt, r = exps[g//2]
            s = s_reg(b, kt, qt) + r
            four = sum(1 for l in pre[g] if 's_waitcnt' in l or l.rstrip().endswith(', 0'))
            E = '_e64' if OPT['e64'] else ''
            a(f"  v_exp_f32{E if four % 2 == 0 else ''} v{s}, v{s}")
            if qt not in SUMQT: q.append(f"  v_add_f32{E} v{V_L+qt}, v{V_L+qt}, v{s}")
            if r & 1: q.append(f"  v_cvt_pk_bf16_f32 v{PBUF[p & 3][qt]+kt*2+(r>>1)}, v{s-1}, v{s}")
        else:
            n = cap[g] if g < ng-1 else 99
            while n > 0 and q:
                a(q.pop(0)); n -= 1
    assert not q

def barrier_T(n=8):
    a(f"  s_waitcnt vmcnt({n}) lgkmcnt(0)")
    if not OPT['xnobar']: a("  s_barrier")

def xlane_reduce(reg, op, tmp):
    a(f"  v_mov_b32 v{tmp}, v{reg}")
    a("  s_nop 1")
    a(f"  v_permlane32_swap_b32 v{reg}, v{tmp}")
    a(f"  {op} v{reg}, v{reg}, v{tmp}")
    a(f"  v_mov_b32 v{tmp}, v{reg}")
    a("  s_nop 1")
    a(f"  v_permlane16_swap_b32 v{reg}, v{tmp}")
    a(f"  {op} v{reg}, v{reg}, v{tmp}")

def prefetch_groups():
    J, O = S_T+4, S_T
    X = SRD_X
    cnt = [0]
    def srd(ptr, size):
        return [f"  s_mov_b32 s{X}, s{ptr}", f"  s_mov_b32 s{X+1}, s{ptr+1}", f"  s_mov_b32 s{X+2}, {size}"]
    def ld(v, off=0):
        cnt[0] += 1
        return [f"  buffer_load_dword a{A_Q+cnt[0]}, v{v}, s[{X}:{X+3}], s{O} offen offset:{off}"]
    NG = OPT['ng']; NW = 128 // NG
    G = {}
    jj = [f"  s_and_b32 s{O}, s{S_R}, {32//NG-1}", f"  s_lshl_b32 s{O}, s{O}, 2", f"  s_add_u32 s{O}, s{O}, s{S_W}"]
    rows = 4*NG
    L = jj + [f"  s_mul_i32 s{O}, s{O}, {rows*8192}", f"  s_lshl_b32 s{O+1}, s{S_G}, 10", f"  s_add_u32 s{O}, s{O}, s{O+1}",
              f"  v_and_b32 v249, 7, v{V_LANE}", f"  v_lshlrev_b32 v249, 7, v249", f"  v_lshl_add_u32 v249, v{V_PROW}, 13, v249"] + srd(P_WQ, 512*4096*2) + ld(249)
    for k in range(1, (rows + 7)//8):
        L += [f"  s_add_u32 s{O}, s{O}, {8*8192}"] + ld(249)
    G['wq'] = L
    G['w2'] = jj + [f"  s_mul_i32 s{O}, s{O}, {2048*NG}", f"  s_lshl_b32 s{O+1}, s{S_FOFF}, 10", f"  s_add_u32 s{O}, s{O}, s{O+1}",
                    f"  v_mul_u32_u24 v250, {32*NG}, v{V_LANE}"] + srd(P_W2, 512*1792*2) + ld(250)
    L = [f"  v_lshlrev_b32 v251, 6, v{V_LANE}", f"  s_and_b32 s{O}, s{S_R}, 3", f"  s_lshl_b32 s{O}, s{O}, 14", f"  s_add_u32 s{O}, s{O}, s{S_KV0}"]
    G['kv'] = L + srd(P_K, 4 << 20) + ld(251) + srd(P_V, 4 << 20) + ld(251)
    G['ws'] = [f"  v_and_b32 v252, 1, v{V_LANE}", f"  v_lshlrev_b32 v252, 24, v252", f"  s_mov_b32 s{O}, s{S_PBASE}"] + srd(P_WS, 64 << 20) + ld(252)
    G['mb'] = [f"  v_and_b32 v255, 31, v{V_LANE}", f"  v_lshlrev_b32 v255, 2, v255", f"  v_mov_b32 v{V_POLL}, 0",
               f"  s_lshr_b32 s{O}, s{S_PBASE}, {WGSH}", f"  s_lshl_b32 s{O}, s{O}, 7", f"  s_add_u32 s{O}, s{O}, {MBOX}",
               f"  buffer_store_dword v{V_POLL}, v255, s[{SRD_WS}:{SRD_WS+3}], s{O} offen sc1"]
    L = jj + [f"  s_mul_i32 s{O}, s{O}, {4096*NG}", f"  s_lshl_b32 s{O+1}, s{S_G}, 19", f"  s_add_u32 s{O}, s{O}, s{O+1}",
              f"  v_lshlrev_b32 v253, {6 if NG == 1 else 7}, v{V_LANE}"] + srd(P_WO, 4 << 20)
    L += [f"  buffer_load_dword v254, v253, s[{X}:{X+3}], s{O} offen"]
    if NG == 4: L += [f"  s_add_u32 s{O}, s{O}, 8192", f"  buffer_load_dword v255, v253, s[{X}:{X+3}], s{O} offen"]
    G['wo'] = L
    return G
def nloads(L): return sum(1 for l in L if l.lstrip().startswith('buffer_'))

hdr = open('cdna_kernels/%s.s.ref' % NAME).read().split('\n')
for l in hdr:
    if l.startswith('; Override') or '@launch' in l or l.startswith('; grid=ceil'): continue
    if l.startswith(';'): a(l)
    else: break
a("; @launch grid=(256,1,1) block=(256,1,1) lds=163840")
a('.amdgcn_target "amdgcn-amd-amdhsa--gfx950"')
a(".text")
a(kernel_header(NAME + "_kernel"))
i0 = len(a.lines)
NG = OPT['ng']; LG = {1: 0, 2: 1, 4: 2, 8: 3}[NG]
L = V_LANE
C_ = SRD_V
a(f"""
  s_cmp_ge_u32 s2, 256
  s_cbranch_scc1 L_end
  s_load_dwordx16 s[16:31], s[0:1], 0
  s_load_dwordx2 s[{P_WS}:{P_WS+1}], s[0:1], 80
  s_load_dwordx4 s[{P_OUT}:{P_OUT+3}], s[0:1], 64
  s_getpc_b64 s[{C_}:{C_+1}]
L_pc:
  s_lshr_b32 s{S_T+1}, s2, 3
  s_mov_b32 s{C_+2}, L_code_end-L_pc
  s_mov_b32 s{C_+3}, 0x20000
  s_lshl_b32 s{S_T+2}, s{S_T+1}, 11
  v_lshlrev_b32 v2, 3, v0
""")
CPF = f"  buffer_load_dword a{A_Q}, v2, s[{C_}:{C_+3}], s{S_T+2} offen"
a(CPF)
stamp(0)
if OPT['stamps']: a("  s_memrealtime s[74:75]")
a(f"""
  s_lshr_b32 s{S_ROT16}, s{S_T+1}, {LG}
  s_bfe_u32 s{S_T}, s2, {(LG << 16) | (3-LG)}
  s_lshl_b32 s{S_T}, s{S_T}, {5-LG}
  s_add_u32 s{S_R}, s{S_ROT16}, s{S_T}
  s_lshl_b32 s{S_SP}, s{S_R}, 16
  v_lshrrev_b32 v4, 2, v0
  v_lshlrev_b32 v4, 10, v4
  v_and_b32 v5, 3, v0
  v_lshl_add_u32 v{V_T0}, v5, 4, v4
  s_mov_b32 s{SRD_X+2}, {2048*512*2}
  s_mov_b32 s{SRD_X+3}, 0x20000
  s_and_b32 s{S_G}, s2, {8//NG-1}
  s_lshl_b32 s{S_G}, s{S_G}, {LG}
  s_and_b32 s{S_T+3}, s{S_T+1}, {NG-1}
  s_add_u32 s{S_G}, s{S_G}, s{S_T+3}
  s_mov_b32 s{SRD_W+3}, 0x20000
""")
def xloads(j0, j1):
    for j in range(j0, j1):
        a(f"  buffer_load_dwordx4 v[{4*j+64}:{4*j+67}], v{V_T0}, s[{SRD_X}:{SRD_X+3}], s{S_SP} offen offset:{j*64}")
def xfirst():
    a("  s_waitcnt lgkmcnt(0)")
    a(f"  s_mov_b32 s{SRD_X}, s{P_X}")
    a(f"  s_mov_b32 s{SRD_X+1}, s{P_X+1}")
    stamp(7)
    if OPT['tlb'] & 1: a(f"  s_load_dword s{S_SP+1}, s[{P_W1}:{P_W1+1}], 0")
    if OPT['tlb'] & 2:
        a(f"  s_mov_b32 s{SRD_W}, s{P_W1}"); a(f"  s_mov_b32 s{SRD_W+1}, s{P_W1+1}"); a(f"  s_mov_b32 s{SRD_W+2}, 4")
        a(f"  buffer_load_dword a{A_Q+1}, v{V_T0}, s[{SRD_W}:{SRD_W+3}], 0 offen")
    xloads(0, OPT['xs'])
    stamp(7)
a(f"""
  v_lshrrev_b32 v1, 6, v0
  v_and_b32 v{V_LANE}, 63, v0
  s_mov_b32 s{S_REDO}, 0
  v_readfirstlane_b32 s{S_W}, v1
  s_and_b32 s{S_HSW}, s{S_R}, {OPT['hsw']}
  s_lshl_b32 s{S_HSW}, s{S_HSW}, 7
  s_bfe_u32 s{S_ODD}, s{S_G}, 0x10001
  s_xor_b32 s{S_ODD}, s{S_ODD}, {OPT['flip']}
  s_mul_i32 s{S_T}, s{S_ROT16}, 43
  s_lshr_b32 s{S_T}, s{S_T}, 8
  s_mul_i32 s{S_T}, s{S_T}, 6
  s_sub_u32 s{S_T}, s{S_ROT16}, s{S_T}
  s_and_b32 s{S_ROT7}, s{S_ROT16}, 7
  s_cmp_lg_u32 s{S_ODD}, 0
  s_cselect_b32 s{S_ROT7}, s{S_T}, s{S_ROT7}
  s_lshl_b32 s{S_ROT16}, s{S_ROT16}, {max(LG-1,0)}
  s_and_b32 s{S_ROT16}, s{S_ROT16}, {OPT['rm']}
  v_lshrrev_b32 v3, 3, v{L}
  v_and_b32 v3, {4 if OPT['xsz'] else 0}, v3
  v_xor_b32 v3, v3, v{L}
  v_lshlrev_b32 v{V_L16}, 4, v3
  v_lshrrev_b32 v{V_PROW}, 3, v{L}
  v_lshrrev_b32 v1, 4, v{L}            ; G
  v_lshlrev_b32 v2, 1, v1              ; G<<1
  v_and_b32 v3, 7, v{L}
  v_xor_b32 v3, v3, v2
  v_lshlrev_b32 v{V_PSWZ}, 4, v3
  s_lshl_b32 s{S_KM0}, s{S_W}, 12
  s_add_u32 s{S_VM0}, s{S_KM0}, {RB}
""")
xfirst()
a(f"""
  s_lshr_b32 s{S_T}, s{S_G}, 2
  s_mul_i32 s{S_FOFF}, s{S_T}, 896
  s_lshl_b32 s{S_T}, s{S_ODD}, 9
  s_add_u32 s{S_FOFF}, s{S_FOFF}, s{S_T}
  s_lshl_b32 s{S_T}, s{S_ODD}, 6
  s_sub_u32 s{S_T}, 256, s{S_T}
  s_and_b32 s{S_T+1}, s{S_G}, 1
  s_mul_i32 s{S_T}, s{S_T}, s{S_T+1}
  s_add_u32 s{S_FOFF}, s{S_FOFF}, s{S_T}
""")
PFG = prefetch_groups()
set_stream('w1')
a(f"""
  v_and_b32 v6, 15, v{L}
  v_lshrrev_b32 v8, 2, v6
  v_lshl_add_u32 v8, v1, 2, v8         ; row = 4G + (i>>2)
  v_and_b32 v9, 3, v6
  v_lshlrev_b32 v9, 3, v9              ; (i&3)*8
  v_lshl_add_u32 v10, v8, 7, v9
  v_add_u32 v10, s{S_VM0}, v10
  v_bfe_u32 v11, v8, 1, 2
""")
for nt in range(4):
    a(f"  v_xor_b32 v12, {nt}, v11")
    a(f"  v_lshl_add_u32 v{V_AA+nt}, v12, 5, v10")
    a(f"  v_add_u32 v{V_AA+4+nt}, {3*16384}, v{V_AA+nt}")
a(f"""
  v_lshrrev_b32 v8, 2, v{L}
  v_and_b32 v9, 1, v{L}
  v_mul_u32_u24 v9, {36 if OPT['xsz'] else 32}, v9
  v_xor_b32 v8, v9, v8
  v_lshlrev_b32 v8, 4, v8
  v_bfe_u32 v9, v{L}, 1, 1
  v_lshl_add_u32 v8, v9, 3, v8
  s_lshl_b32 s{S_T}, s{S_W}, 10
  v_add_u32 v{V_T1}, s{S_T}, v8
""")
def zero_o():
    for i in range(4): a(f"  v_mov_b32 v{204+i}, 0")
    a("  s_nop 1")
    for i in range(8): a(f"  v_mfma_f32_32x32x16_bf16 a[{A_O+16*i}:{A_O+16*i+15}], v[204:207], v[204:207], 0")
def setup_late():
    G_, G2, I_, t7, t8, t9, t10, t11, t12 = 129, 130, 134, 135, 136, 137, 138, 139, 140
    a(f"""
  s_lshl_b32 s{S_T}, s{S_G}, 19
  s_add_u32 s{SRD_K}, s{P_K}, s{S_T}
  s_addc_u32 s{SRD_K+1}, s{P_K+1}, 0
  s_mov_b32 s{SRD_K+2}, 0x80000
  s_mov_b32 s{SRD_K+3}, 0x20000
  s_add_u32 s{SRD_V}, s{P_V}, s{S_T}
  s_addc_u32 s{SRD_V+1}, s{P_V+1}, 0
  s_mov_b32 s{SRD_V+2}, 0x80000
  s_mov_b32 s{SRD_V+3}, 0x20000
  s_mov_b32 s{SRD_WS}, s{P_WS}
  s_mov_b32 s{SRD_WS+1}, s{P_WS+1}
  s_mov_b32 s{SRD_WS+2}, {64<<20}
  s_mov_b32 s{SRD_WS+3}, 0x20000
  s_and_b32 s{S_KV0}, s{S_R}, {OPT['kvr']}
  s_lshl_b32 s{S_KV0}, s{S_KV0}, {17 if OPT['kvr'] == 3 else 18}
  s_add_u32 s{S_KV0}, s{S_KV0}, s{S_KM0}
  s_mov_b32 s{S_KOFF}, s{S_KV0}
  s_lshl_b32 s{S_PBASE}, s{S_R}, 3
  s_add_u32 s{S_PBASE}, s{S_PBASE}, s{S_G}
  s_lshl_b32 s{S_PBASE}, s{S_PBASE}, {WGSH}
  s_and_b32 s{S_T}, s{S_R}, {3 if OPT['skew'] else 0}
  s_add_u32 s{S_T}, s{S_T}, s{S_W}
  s_and_b32 s{S_T}, s{S_T}, 3
  s_lshl_b32 s{S_T}, s{S_T}, {WGSH-2}
  s_add_u32 s{S_PBASE}, s{S_PBASE}, s{S_T}
  v_lshrrev_b32 v{G_}, 4, v{L}
  v_lshlrev_b32 v{G2}, 1, v{G_}
  v_and_b32 v{I_}, 15, v{L}
  v_xor_b32 v{t7}, v{I_}, v{G_}
  v_lshlrev_b32 v{t7}, 4, v{t7}
  v_lshl_add_u32 v{V_KD}, v{G_}, 8, v{t7}
""")
    for n in range(1, 4): a(f"  v_xor_b32 v{V_KD+n}, {64*n}, v{V_KD}")
    a(f"""
  ; V dma: G*256 + ((i ^ ((4*(n&1)+G)<<1))*16)
  v_xor_b32 v{t8}, v{I_}, v{G2}
  v_lshlrev_b32 v{t8}, 4, v{t8}
  v_lshl_add_u32 v{V_VD}, v{G_}, 8, v{t8}
  v_xor_b32 v{V_VD+1}, 128, v{V_VD}
  v_and_b32 v{t8}, 2, v{G2}
  v_lshrrev_b32 v{t9}, 1, v{G_}
  v_or_b32 v{t8}, v{t8}, v{t9}
  v_xor_b32 v{t8}, v{t8}, v{I_}
  v_lshlrev_b32 v{t8}, 4, v{t8}
  v_lshl_add_u32 v{V_KA}, v{I_}, 8, v{t8}
  v_xor_b32 v{V_KA}, s{S_HSW}, v{V_KA}
""")
    for ds in range(1, 4): a(f"  v_xor_b32 v{V_KA+ds}, {64*ds}, v{V_KA}")
    a(f"""
  v_lshrrev_b32 v{t8}, 2, v{I_}
  v_lshl_add_u32 v{t8}, v{G_}, 2, v{t8}
  v_and_b32 v{t9}, 3, v{I_}
  v_lshlrev_b32 v{t9}, 3, v{t9}
  v_lshl_add_u32 v{t10}, v{t8}, 8, v{t9}
  v_add_u32 v{t10}, {RB}, v{t10}
  v_and_b32 v{t11}, 7, v{t8}
  v_lshl_add_u32 v{V_VA}, v{t11}, 5, v{t10}
""")
    for dt in range(1, 8): a(f"  v_xor_b32 v{V_VA+dt}, {32*dt}, v{V_VA}")
    a(f"""
  s_mov_b32 s{SRD_D}, s{P_DBG}
  s_mov_b32 s{SRD_D+1}, s{P_DBG+1}
  s_lshl_b32 s{SRD_D+2}, s{S_R}, 2
  s_add_u32 s{SRD_D+2}, s{SRD_D+2}, 4
  s_mov_b32 s{SRD_D+3}, 0x20000
  s_lshl_b32 s{S_FB}, s{S_R}, {WGSH+3}
  s_lshr_b32 s{S_T}, s{S_G}, 1
  s_lshl_b32 s{S_T}, s{S_T}, 2
  s_and_b32 s{S_T+1}, s{S_G}, 1
  s_add_u32 s{S_T+1}, s{S_T+1}, s{S_T}
  s_and_b32 s{S_T}, s{S_R}, {3 if OPT['skew'] else 0}
  s_lshl_b32 s{S_T}, s{S_T}, 1
  s_add_u32 s{S_T}, s{S_T}, s{S_G}
  s_and_b32 s{S_T}, s{S_T}, 7
  s_lshl_b32 s{S_T}, s{S_T}, 12
  s_add_u32 s{S_FB}, s{S_FB}, s{S_T}
  s_lshl_b32 s{S_T}, s{S_W}, 10
  s_add_u32 s{S_FB}, s{S_FB}, s{S_T}
  s_lshl_b32 s{S_XO}, s{S_R}, 16
  s_lshl_b32 s{S_T}, s{S_W}, 14
  s_add_u32 s{S_XO}, s{S_XO}, s{S_T}
  s_lshl_b32 s{S_T}, s{S_T+1}, 6
  s_add_u32 s{S_XO}, s{S_XO}, s{S_T}
""")
    zero_o()
if not OPT['sl']: setup_late()
def dreg(e): return e if e < 64 else 64 + e
pfsel = [k for b_, k in ((1, 'w2'), (2, 'kv'), (4, 'ws')) if OPT['pf'] & b_] + ([] if OPT['mbl'] else ['mb'])
groups = []
for s_ in range(NS-1):
    pl = produce_list(rpos(s_))
    groups += [pl[:5], [pl[5]], [pl[6]], [pl[7]]]
for k in pfsel: groups.append(PFG[k])
NPF = sum(nloads(PFG[k]) for k in pfsel)
SUM, SQ = 192, 196
MU, MB = 200, 202
a(f"  v_and_b32 v8, 3, v{L}")
a(f"  v_and_b32 v9, 60, v{L}")
a(f"  v_lshl_add_u32 v8, v8, 12, v9")
a(f"  s_lshl_b32 s{S_T}, s{S_W}, 6")
a(f"  s_add_u32 s{S_T}, s{S_T}, {RB+1*16384}")
a(f"  v_add_u32 v{V_BA}, s{S_T}, v8")
a(f"  s_add_u32 s{S_T}, s{S_VM0}, {1*16384}")
a(f"  v_lshl_add_u32 v{V_RSO}, v6, 2, s{S_T}")
stamp(7)
PRE = OPT['pre']
for g_ in groups[:PRE]:
    for l in g_: a(l)
groups = groups[PRE:]
xloads(OPT['xs'], 16)
stamp(7)
if OPT['stamps'] == 7:
    for k in (16, 15, 8, 0):
        a(f"  s_waitcnt vmcnt({k})"); stamp(7)
for j in range(16):
    a(f"  s_waitcnt vmcnt({15 - j + min(j, OPT['n1']) + (PRE if j < OPT['xs'] else 0)})")
    if j in (0, 8, 15): stamp(3)
    if j < OPT['n1']:
        for l in groups[j]: a(l)
    for i in range(4*j, 4*j+4):
        a(f"  v_lshlrev_b32 v{dreg(2*i)}, 16, v{64+i}")
        a(f"  v_and_b32 v{dreg(2*i+1)}, 0xffff0000, v{64+i}")
    for i in range(4*j, 4*j+4):
        e = dreg(2*i); t = SUM + 2*(i & 1); q = SQ + 2*(i & 1)
        if i < 2: a(f"  v_pk_add_f32 v[{t}:{t+1}], v[{e}:{e+1}], v[{dreg(2*i+4)}:{dreg(2*i+4)+1}]")
        elif i >= 4: a(f"  v_pk_add_f32 v[{t}:{t+1}], v[{t}:{t+1}], v[{e}:{e+1}]")
        if i < 2: a(f"  v_pk_mul_f32 v[{q}:{q+1}], v[{e}:{e+1}], v[{e}:{e+1}]")
        else: a(f"  v_pk_fma_f32 v[{q}:{q+1}], v[{e}:{e+1}], v[{e}:{e+1}], v[{q}:{q+1}]")
sprinkle = groups[OPT['n1']:]
stamp(3)
for r in (SUM, SQ): a(f"  v_pk_add_f32 v[{r}:{r+1}], v[{r}:{r+1}], v[{r+2}:{r+3}]")
for r in (SUM, SQ): a(f"  v_add_f32 v{r}, v{r}, v{r+1}")
a("  s_nop 0")
for qp in ("[1,0,3,2]", "[2,3,0,1]"):
    for r in (SUM, SQ): a(f"  v_add_f32_dpp v{r}, v{r}, v{r} quad_perm:{qp} row_mask:0xf bank_mask:0xf")
    a("  s_nop 0")
a(f"""
  v_mul_f32 v{MU}, 0x3b000000, v{SUM}
  v_cvt_pk_bf16_f32 v{MB}, v{MU}, v{MU}
  v_and_b32 v{MB}, 0xffff0000, v{MB}
""")
stats = f"""  v_mul_f32 v{SQ}, 0x3b000000, v{SQ}
  v_fma_f32 v{SQ}, -v{MU}, v{MU}, v{SQ}
  v_max_f32 v{SQ}, 0, v{SQ}
  v_cvt_pk_bf16_f32 v{SQ}, v{SQ}, v{SQ}
  v_and_b32 v{SQ}, 0xffff0000, v{SQ}
  v_add_f32 v{SQ}, 0x3727c5ac, v{SQ}
  v_cvt_pk_bf16_f32 v{SQ}, v{SQ}, v{SQ}
  v_and_b32 v{SQ}, 0xffff0000, v{SQ}
  v_sqrt_f32 v{SQ}, v{SQ}
  v_cvt_pk_bf16_f32 v{SQ}, v{SQ}, v{SQ}
  v_and_b32 v{SQ}, 0xffff0000, v{SQ}
  v_rcp_f32 v{SQ}, v{SQ}
  ds_write_b32 v{V_BA}, v{SQ}""".split('\n')
for j in range(16):
    if j in (0, 8): stamp(3)
    if j >= OPT['late'] and sprinkle:
        for l in sprinkle.pop(0): a(l)
    for k in range(4):
        e = dreg(2*(4*j+k))
        a(f"  v_pk_add_f32 v[{e}:{e+1}], v[{e}:{e+1}], v[{MB}:{MB+1}] op_sel_hi:[1,0] neg_lo:[0,1] neg_hi:[0,1]")
    if j < len(stats): a(stats[j])
    for k in range(4):
        i = 4*j + k; e = dreg(2*i)
        a(f"  v_cvt_pk_bf16_f32 v{64+i}, v{e}, v{e+1}")
    a(f"  ds_write_b64 v{V_T1}, v[{64+4*j}:{65+4*j}] offset:{j*4096}")
    a(f"  ds_write_b64 v{V_T1}, v[{66+4*j}:{67+4*j}] offset:{j*4096+256}")
for g_ in sprinkle:
    for l in g_: a(l)
stamp(3)
a(f"  s_waitcnt vmcnt({4*(NS-3)+NPF}) lgkmcnt(0)")
a_first()
a("  s_barrier")
stamp(3)
stamp()
for qt in range(4): a(f"  ds_read_b32 v{V_RS+qt}, v{V_RSO} offset:{qt*64}")
a(f"  s_lshl_b32 s{S_T}, s{S_W}, 6")
a(f"  v_add_u32 v{V_RSO}, s{S_T}, v{V_RSO}")
a(f"  ds_read_b32 v{V_RSO}, v{V_RSO}")
b_reload(False, wait=False)
a("  s_waitcnt lgkmcnt(8)")
produce_slot(rpos(5)); produce_slot(rpos(6))
a(f"  s_mov_b32 s{S_T}, {CSH:#x}")
for qt in range(4): a(f"  v_mul_f32 v{V_RS+qt}, s{S_T}, v{V_RS+qt}")
stamp(8)
gemm_first()
if OPT['w3']:
    a(f"  s_cmp_lg_u32 s{SRD_W+2}, 0")
    a("  s_cbranch_scc1 L_w3n")
    X = SRD_X
    a(f"  s_mov_b32 s{X}, s{P_WQ}"); a(f"  s_mov_b32 s{X+1}, s{P_WQ+1}"); a(f"  s_mov_b32 s{X+2}, {512*4096*2}")
    a(f"  s_and_b32 s{S_T}, s{S_R}, 15")
    a(f"  s_lshl_b32 s{S_T+1}, s{S_T}, 18")
    a(f"  s_lshl_b32 s{S_T+2}, s{S_G}, 10")
    a(f"  s_add_u32 s{S_T+1}, s{S_T+1}, s{S_T+2}")
    a(f"  v_and_b32 v128, 7, v{V_LANE}"); a("  v_lshlrev_b32 v128, 7, v128"); a(f"  v_lshl_add_u32 v128, v{V_PROW}, 13, v128")
    for k in range(4):
        a(f"  buffer_load_dword v{130+k}, v128, s[{X}:{X+3}], s{S_T+1} offen")
        a(f"  s_add_u32 s{S_T+1}, s{S_T+1}, {8*8192}")
    if OPT['w3'] >= 2:
        a(f"  s_mov_b32 s{X}, s{P_W2}"); a(f"  s_mov_b32 s{X+1}, s{P_W2+1}"); a(f"  s_mov_b32 s{X+2}, {512*1792*2}")
        a(f"  s_mul_i32 s{S_T+1}, s{S_T}, {12*1024}")
        a(f"  s_lshl_b32 s{S_T+2}, s{S_FOFF}, 10")
        a(f"  s_add_u32 s{S_T+1}, s{S_T+1}, s{S_T+2}")
        a(f"  v_lshlrev_b32 v129, 7, v{V_LANE}")
        a(f"  buffer_load_dword v134, v129, s[{X}:{X+3}], s{S_T+1} offen")
        a(f"  s_add_u32 s{S_T+1}, s{S_T+1}, 4096")
        a(f"  buffer_load_dword v135, v129, s[{X}:{X+3}], s{S_T+1} offen")
    a(f"  s_add_u32 s{S_BOFF}, s{S_BOFF}, {7*4096}")
    a(f"  s_and_b32 s{S_BOFF}, s{S_BOFF}, 0xffff")
    a(f"  v_add_u32 v{V_BA}, s{S_BOFF}, v{V_L16}")
    a("  s_waitcnt vmcnt(0)")
    a("  s_branch L_w3j")
    a.label("L_w3n")
gemm_call(7)
if OPT['w3']: a.label("L_w3j")
stamp(8); set_stream('wq', 0)
if OPT['sl']:
    gemm_call(OPT['sl']); setup_late(); gemm_call(7 - OPT['sl'])
else: gemm_call(7)
stamp(8)
a("  s_nop 7")
for c in range(2):
    for qt in range(4):
        x = V_ACC + ((2*c)*4+qt)*4; y = V_ACC + ((2*c+1)*4+qt)*4
        d = V_H + (c*4+qt)*4
        for k, s in enumerate((x, x+2, y, y+2)):
            a(f"  v_cvt_pk_bf16_f32 v{d+k}, v{s}, v{s+1}")
        for k in range(4):
            a(f"  v_pk_max_i16 v{d+k}, v{d+k}, 0")
for half in range(2):
    if half == 1 and OPT['cp3']:
        a(f"  s_getpc_b64 s[{SRD_X}:{SRD_X+1}]")
        a.label("L_pc3")
        a(f"  s_mov_b32 s{SRD_X+2}, L_tail-L_pc3")
        a(f"  s_lshr_b32 s{S_T}, s2, 3")
        a(f"  s_lshl_b32 s{S_T}, s{S_T}, 2")
        a(f"  s_add_u32 s{S_T}, s{S_T}, s{S_W}")
        a(f"  s_lshl_b32 s{S_T}, s{S_T}, 8")
        a(f"  v_lshlrev_b32 v{V_T1}, 2, v{V_LANE}")
        a(f"  buffer_load_dword v255, v{V_T1}, s[{SRD_X}:{SRD_X+3}], s{S_T} offen")
    stamp(8)
    gemm_first(); gemm_call(7)
    if half == 0:
        stamp(8)
        set_stream('wq', 1); gemm_call(7); stamp(8)
    else:
        set_stream('w2', 0); gemm_call(6)
        a(f"  s_lshl_b32 s{S_T}, s{S_ODD}, 7")
        for n in range(4): a(f"  v_xor_b32 v{V_PD+n}, s{S_T}, v{V_PD+n}")
        gemm_call(1); stamp(8)
    def qepi1():
        for c in range(2):
            for qt in range(4):
                x = V_ACC + ((2*c)*4+qt)*4; y = V_ACC + ((2*c+1)*4+qt)*4
                rp = V_RS + (qt & 2); md = "op_sel:[0,1] op_sel_hi:[1,1]" if qt & 1 else "op_sel_hi:[1,0]"
                for s in (x, x+2, y, y+2):
                    a(f"  v_pk_mul_f32 v[{s}:{s+1}], v[{s}:{s+1}], v[{rp}:{rp+1}] {md}")
                d = 128 + (c*4+qt)*4
                for k, s in enumerate((x, x+2, y, y+2)):
                    a(f"  v_cvt_pk_bf16_f32 v{d+k}, v{s}, v{s+1}")
    def qepi2():
        for c in range(2):
            for qt in range(4):
                d = 128 + (c*4+qt)*4
                a(f"  v_permlane16_swap_b32 v{d}, v{d+2}")
                a(f"  v_permlane16_swap_b32 v{d+1}, v{d+3}")
        for c in range(2):
            for qt in range(4):
                d = 128 + (c*4+qt)*4
                for k in range(4):
                    a(f"  v_accvgpr_write_b32 a{A_Q+(qt*4+2*half+c)*4+k}, v{d+k}")
    if half == 0 or not OPT['hx']:
        a("  s_nop 7"); qepi1(); a("  s_nop 0"); qepi2()
stamp()
stamp(2)
a(f"  s_lshl_b32 s{S_T}, s{S_W}, 13")
a(f"  v_add_u32 v{V_T0}, s{S_T}, v{V_L16}")
a("  s_waitcnt lgkmcnt(0)")
a("  s_barrier")
hw = [f"  ds_write_b128 v{V_T0}, v[{V_H+k*4}:{V_H+k*4+3}] offset:{k*1024}" for k in range(8)]
kd = capture(lambda: (k_tile_dma(0), k_tile_dma(1))) if not OPT['klate'] else []
if OPT['hx']:
    e1 = capture(qepi1)
    a("  s_nop 3")
    for k in range(8):
        a(hw[k])
        for l in e1[4*k:4*k+4]: a(l)
    e1 = e1[32:]
    for l in kd:
        a(l)
        if 'buffer_' in l or 'm0' in l:
            for _ in range(3): a(e1.pop(0))
    for l in e1: a(l)
else:
    for l in hw: a(l)
    k_tile_dma(0); k_tile_dma(1)
a("  s_waitcnt lgkmcnt(0)")
a("  s_barrier")
stamp(2)
b_reload(True, wait=False)
if OPT['hx']: qepi2()
a(f"  s_mov_b32 s{S_VOFF}, s{S_KV0}")
a(f"  s_cmp_lg_u32 s{S_ODD}, 0")
a("  s_cbranch_scc1 L_ffn2_odd")
def attn_init():
    L = [f"  s_add_u32 s{S_VOFF}, s{S_KV0}, {2*16384}"]
    L += [f"  v_mov_b32 v{V_L+i}, 0" for i in range(12)]
    L += [f"  v_and_b32 v{V_T0}, {15 if OPT['one1'] else 3}, v{V_LANE}", f"  v_cmp_eq_u32 vcc, 0, v{V_T0}", f"  v_mov_b32 v{V_T0}, 0x3f803f80", "  s_nop 0",
          f"  v_cndmask_b32 v{V_ONES}, 0, v{V_T0}, vcc"] + [f"  v_mov_b32 v{V_ONES+i}, v{V_ONES}" for i in range(1, 4)]
    return L
HI_CVT = capture(lambda: store_partial(0, 1, dst=160, defer=True, sreg=S_SP))
HI_CVT = [l for l in HI_CVT if 'v_cvt' in l]
WO_SET = capture(lambda: set_stream('wo', 0)) + [f"  s_mov_b32 s{S_SV_POFF}, s{S_POFF}"]
A_INIT = [l for l in attn_init() if 's_nop' not in l]
def ffn2(nf):
    gpos[0] = 48; N = 48 + 2*nf
    vq = [f"S{k}" for k in range(49, 55) for _ in range(4)] + ['K']*(0 if OPT['klate'] else 8)
    kj = ((57, 58) if nf == 8 else (53, 54)) if OPT['klate'] else ()
    vj = (59, 60) if (nf == 8 and OPT['klate']) else (57, 58)
    def yg(tag): return len(vq) - 1 - max(i for i, t in enumerate(vq) if t == tag)
    st0 = None
    stj = (59, 60) if nf == 8 else (55, 56)
    j = 48
    ns0 = nstamp[0]
    while j < N:
        if j in (48, 50, 48 + nf, 50 + nf): stamp(2)
        if j == 48 + nf: st0 = store_partial(0, 0, dst=128, defer=True, sreg=S_SP)
        if nf == 8 and j == 49: set_stream('w2', 1)
        if j == 50:
            n = 6 if nf == 8 else 3
            gemm_call(n)
            for k in range(n): vq.extend([f"S{j+k+7}"]*4)
            j += n; continue
        kw = dict(first=(j - 48) % nf < 2, vmw=(yg(f"S{j+2}") if j + 2 < N else 63), noread=(j + 2 >= N))
        if j + 7 < N: tags = [f"S{j+7}"]*4
        elif j in vj:
            kw['vm'] = [[f"  s_add_u32 m0, s{S_VM0}, {(j-vj[0])*16384}", v_dma(0)], [v_dma(1)], [v_dma(2)], [v_dma(3)]]
            if j == vj[1]: kw['xvm'] = [(5, f"  s_add_u32 s{S_VOFF}, s{S_VOFF}, 16384")]
            tags = ['V']*4
        elif j in kj:
            kw['vm'] = [[f"  s_add_u32 m0, s{S_KM0}, {kslot(j-kj[0])*16384}", k_dma(0)], [k_dma(1)], [k_dma(2)], [k_dma(3)]]
            kw['xvm'] = [(15, f"  s_add_u32 s{S_KOFF}, s{S_KOFF}, 16384")]
            tags = ['K']*4
        elif j in stj and OPT['early']:
            kw['vm'] = [[x] for x in st0[4*(j-stj[0]):4*(j-stj[0])+4]]; tags = ['st']*4
        else: kw['vm'] = []; tags = []
        if OPT['hfill'] and j == N - 2:
            kw2 = dict(vm=[], vmw=63, noread=True)
            w0 = kw['vmw']
            prog = capture(lambda: (gemm_inl(**kw), gemm_inl(**kw2)))
            prog = [l for l in prog if 's_waitcnt' not in l]
            a(f"  s_waitcnt vmcnt({w0}) lgkmcnt(0)")
            emit_sched(prog + A_INIT + WO_SET + HI_CVT[:16], f'ffn2 end {nf}')
            break
        gemm_inl(**kw); vq.extend(tags); j += 1
_ns = nstamp[0]
ffn2(8)
nstamp[0] = _ns
a("  s_branch L_ffn2_done")
iodd = len(a.lines)
a.label("L_ffn2_odd")
ffn2(6)
a.label("L_ffn2_done")
stamp(2)
a("  s_waitcnt vmcnt(12) lgkmcnt(0)")
a("  s_barrier")
stamp(2)
stamp(); stamp(4)
if OPT['stamps']:
    a("  s_memrealtime s[38:39]")
    a("  s_waitcnt lgkmcnt(0)")
QORD = [(kt, qt) for qt in range(4) for kt in range(2)]
def maxq(qt):
    x = s_reg(0, 0, qt); y = s_reg(0, 1, qt); m = V_NEGM + qt*4
    a(f"  v_max3_f32 v{m}, v{x}, v{x+1}, v{x+2}")
    a(f"  v_max3_f32 v{m+1}, v{x+3}, v{y}, v{y+1}")
    a(f"  v_max3_f32 v{m}, v{m}, v{y+2}, v{y+3}")
    a(f"  v_max_f32 v{m}, v{m}, v{m+1}")
    xlane_reduce(m, 'v_max_f32', m+1)
    for k in range(3, -1, -1): a(f"  v_sub_f32 v{m+k}, 0, v{m}")
    for kt in range(2):
        for r in range(4):
            s_ = s_reg(0, kt, qt) + r
            a(f"  v_add_f32 v{s_}, v{s_}, v{m}")
def head_common():
    L = qk_mfmas(1, order=QORD, src=A_V)
    for qt in range(4): L += sm_ops(0, qt)
    L += [k_read(2, i >> 2, i & 3) for i in range(8)] + capture(lambda: k_tile_dma(4))
    L += qk_mfmas(0, order=QORD)
    for qt in range(4): L += sm_ops(1, qt)
    L += [k_read(3, i >> 2, i & 3) for i in range(8)] + capture(lambda: v_tile_dma(2))
    return L
KR01 = [k_read(0, i >> 2, i & 3) for i in range(8)] + [k_read(1, i >> 2, i & 3, A_V) for i in range(8)]
prog = KR01 + HI_CVT[(16 if OPT['hfill'] else 0):]
prog += capture(lambda: (k_tile_dma(2), k_tile_dma(3))) + ["  s_waitcnt vmcnt(16)", "  s_barrier"]
for k in range(OPT['hst']):
    prog.append(f"  s_add_u32 s{S_SP}, s{S_PBASE}, {k*4096}")
    prog += [f"  buffer_store_dwordx4 v[{128+(k*4+qt)*4}:{131+(k*4+qt)*4}], v{V_L16}, s[{SRD_WS}:{SRD_WS+3}], s{S_SP} offen offset:{qt*1024} sc1" for qt in range(4)]
if OPT['m16']:
    prog += qk_mfmas(0, zero=True, order=[(0, qt) for qt in range(4)])
    if not OPT['hfill']: prog += A_INIT
    def max16(qt):
        x = s_reg(0, 0, qt); m = V_NEGM + qt*4
        a(f"  v_max3_f32 v{m}, v{x}, v{x+1}, v{x+2}")
        a(f"  v_max_f32 v{m}, v{m}, v{x+3}")
        xlane_reduce(m, 'v_max_f32', m+1)
        for k in range(3, -1, -1): a(f"  v_sub_f32 v{m+k}, 0, v{m}")
    for qt in range(4): prog += capture(lambda: max16(qt))
    prog += qk_mfmas(0, order=QORD)
else:
    prog += qk_mfmas(0, zero=True, order=QORD)
    if not OPT['hfill']: prog += A_INIT
    for qt in range(4): prog += capture(lambda: maxq(qt))
prog += head_common()
if not OPT['hfill']: prog += WO_SET
emit_sched(prog, 'head', vmgap=OPT['hgap'])
stamp(4)
a(f"  s_mov_b32 s{S_LOOP}, 7")
a(f"  s_and_b32 s{S_EV}, s{S_R}, 3")
a(f"  s_mov_b32 s{S_EI}, 0")
a(f"  s_waitcnt vmcnt({12 + 4*OPT['hst']})")
a("  s_branch L_p2")
segs.append(('pre', i0, len(a.lines)))
a(".p2align 6")
il = len(a.lines)
a.label("L_loop")
for p in range(8, 16):
    if p == 10: a.label("L_p2")
    if p % 2 == 0: barrier_T(16)
    else:
        if OPT['e64']: a("  s_nop 0")
        a("  s_waitcnt lgkmcnt(0)")
    if OPT['stg'] and p & 1:
        period(p, endop=f"  s_sub_u32 s{S_EV}, s{S_EV}, 1")
        a(f"  s_cbranch_scc1 L_ev{p}")
        a.label(f"L_evr{p}")
    else: period(p)
a(f"  s_sub_u32 s{S_LOOP}, s{S_LOOP}, 1")
a(f"  s_cmp_eq_u32 s{S_LOOP}, 0")
a("  s_cbranch_scc1 L_tail")
itail = len(a.lines)
a(f"  s_cmp_lg_u32 s{S_REDO}, 0")
a("  s_cbranch_scc1 L_loop")
if OPT['alt']:
    a(f"  s_cmp_lt_u32 s{S_LOOP}, 3")
    a("  s_cbranch_scc1 L_bk3")
    a(f"  s_xor_b32 s{S_T}, s{S_LOOP}, s{S_ODD}")
    a(f"  s_bitcmp1_b32 s{S_T}, 0")
    a("  s_cbranch_scc0 L_loop")
    a(f"  s_cmp_lt_u32 s{S_LOOP}, 5")
    a("  s_cbranch_scc1 L_bk1")
    for hb in range(2):
        if hb:
            a.label("L_bk1")
            for l in PFG['mb']: a(l.replace('v255', f'v{V_T0}'))
        for k in (2*hb, 2*hb+1):
            a(f"  s_add_u32 s{S_T}, s{S_PBASE}, {(k & 1)*4096 + (k >> 1)*HSTR}")
            for qt in range(4):
                d = 128 + (k*4+qt)*4
                a(f"  buffer_store_dwordx4 v[{d}:{d+3}], v{V_L16}, s[{SRD_WS}:{SRD_WS+3}], s{S_T} offen offset:{qt*1024} sc1")
        a("  s_branch L_loop")
    a.label("L_bk3")
if OPT['bsh']:
    idx = 0
    for e, n_ in enumerate((6, 5, 5)):
        a(f"  s_cmp_lg_u32 s{S_LOOP}, {5-e}")
        a(f"  s_cbranch_scc1 L_bk{e}")
        if e == 2:
            for l in PFG['mb']: a(l.replace('v255', f'v{V_T0}'))
        for z in range(idx, idx + n_):
            k, qt = z >> 2, z & 3
            if z == idx or qt == 0: a(f"  s_add_u32 s{S_T}, s{S_PBASE}, {(k & 1)*4096 + (k >> 1)*HSTR}")
            a(f"  buffer_store_dwordx4 v[{128+4*z}:{131+4*z}], v{V_L16}, s[{SRD_WS}:{SRD_WS+3}], s{S_T} offen offset:{qt*1024} sc1")
        idx += n_
        a("  s_branch L_loop")
        a.label(f"L_bk{e}")
for k in range(OPT['hst'], 0 if (OPT['stg'] or OPT['alt'] or OPT['bsh']) else 4):
    a(f"  s_cmp_lg_u32 s{S_LOOP}, {6-k}")
    a(f"  s_cbranch_scc1 L_bk{k}")
    if k == 3 and OPT['mbl']:
        for l in PFG['mb']: a(l.replace('v255', f'v{V_T0}'))
    a(f"  s_add_u32 s{S_T}, s{S_PBASE}, {(k & 1)*4096 + (k >> 1)*HSTR}")
    if OPT['w2sw']:
        a(f"  s_and_b32 s{S_T+1}, s{S_R}, 1")
        a(f"  s_mul_i32 s{S_T+1}, s{S_T+1}, {HSTR}")
        a(f"  s_xor_b32 s{S_T}, s{S_T}, s{S_T+1}")
    for qt in range(4):
        d = 128 + (k*4+qt)*4
        a(f"  buffer_store_dwordx4 v[{d}:{d+3}], v{V_L16}, s[{SRD_WS}:{SRD_WS+3}], s{S_T} offen offset:{qt*1024} sc1")
    a("  s_branch L_loop")
    a.label(f"L_bk{k}")
a(f"  s_lshl_b32 s{S_T}, s{S_R}, 2")
a(f"  s_cmp_lg_u32 s{S_LOOP}, 1")
a("  s_cbranch_scc1 L_bk4")
a(f"  v_mov_b32 v{V_T0}, 0")
a(f"  buffer_load_dword v{V_POLL}, v{V_T0}, s[{SRD_D}:{SRD_D+3}], s{S_T} offen sc1")
if OPT['cp2']:
    a(f"  s_getpc_b64 s[{SRD_X}:{SRD_X+1}]")
    a.label("L_pc2")
    a(f"  s_mov_b32 s{SRD_X+2}, L_code_end-L_pc2")
    a(f"  s_lshr_b32 s{S_T}, s2, 3")
    a(f"  s_lshl_b32 s{S_T}, s{S_T}, 2")
    a(f"  s_add_u32 s{S_T}, s{S_T}, s{S_W}")
    a(f"  s_lshl_b32 s{S_T}, s{S_T}, 8")
    a(f"  v_lshlrev_b32 v{V_T1}, 2, v{V_LANE}")
    a(f"  buffer_load_dword v128, v{V_T1}, s[{SRD_X}:{SRD_X+3}], s{S_T} offen")
    if OPT['cp2'] == 2:
        for l in PFG['wo']: a(l.replace('v253', f'v{V_T1}').replace('v254', 'v129'))
a("  s_branch L_loop")
a.label("L_bk4")
if OPT['pt']:
    a(f"  v_lshlrev_b32 v{V_T1}, 7, v{V_LANE}")
    for k in range(2):
        a(f"  s_add_u32 s{S_T+1}, s{S_PBASE}, {PART_KIND + k*8192}")
        a(f"  buffer_load_dword v{130+k}, v{V_T1}, s[{SRD_WS}:{SRD_WS+3}], s{S_T+1} offen{' sc1' if OPT['pt'] == 2 else ''}")
a(f"  s_lshl_b32 s{S_T+1}, s{S_W}, 4")
a(f"  s_or_b32 s{S_T+1}, s{S_T+1}, s{S_LOOP}")
a(f"  s_cmp_lg_u32 s{S_T+1}, 2")
a("  s_cbranch_scc1 L_loop")
a(f"  v_mov_b32 v{V_T0}, 1")
a(f"  v_lshlrev_b32 v{V_T1}, 2, v{V_LANE}")
a(f"  buffer_atomic_add v{V_T0}, v{V_T1}, s[{SRD_D}:{SRD_D+3}], s{S_T} offen sc1")
a("  s_branch L_loop")
if OPT['stg']:
    for p in (9, 11, 13, 15):
        a.label(f"L_ev{p}")
        a(f"  s_call_b64 s[{S_RET}:{S_RET+1}], L_evt")
        a(f"  s_branch L_evr{p}")
    a.label("L_evt")
    a(f"  s_mov_b32 s{S_EV}, {OPT['stg'] + 2}")
    a(f"  s_add_u32 s{S_EI}, s{S_EI}, 1")
    for k in range(4):
        if k < 3:
            a(f"  s_cmp_lg_u32 s{S_EI}, {k+1}")
            a(f"  s_cbranch_scc1 L_evk{k}")
        else:
            a(f"  s_mov_b32 s{S_EV}, 1000")
            for l in PFG['mb']: a(l.replace('v255', f'v{V_T0}'))
        a(f"  s_add_u32 s{S_T}, s{S_PBASE}, {(k & 1)*4096 + (k >> 1)*HSTR}")
        for qt in range(4):
            d = 128 + (k*4+qt)*4
            a(f"  buffer_store_dwordx4 v[{d}:{d+3}], v{V_L16}, s[{SRD_WS}:{SRD_WS+3}], s{S_T} offen offset:{qt*1024} sc1")
        a(f"  s_setpc_b64 s[{S_RET}:{S_RET+1}]")
        if k < 3: a.label(f"L_evk{k}")
segs.append(('loop2', il, len(a.lines)))
it = len(a.lines)
a.label("L_tail")
stamp(4)
a(f"  v_readfirstlane_b32 s{S_T}, v{V_POLL}")
a("  s_nop 3")
a(f"  s_cmp_ge_u32 s{S_T}, 8")
a("  s_cbranch_scc1 L_spin1_done")
a(f"  v_mov_b32 v{V_T0}, 0")
a(f"  s_lshl_b32 s{S_T+2}, s{S_R}, 2")
spin("L_spin1", SRD_D, V_T0, f"s{S_T+2}", 8)
if OPT['sib']:
    a(f"  s_lshr_b32 s{S_T}, s{S_PBASE}, 16")
    a(f"  s_xor_b32 s{S_T}, s{S_T}, 1")
    a(f"  s_lshl_b32 s{S_T}, s{S_T}, 7")
    a(f"  s_add_u32 s{S_T}, s{S_T}, {MBOX}")
    a(f"  v_mov_b32 v{V_T0}, 4")
    a(f"  buffer_load_dword v{V_L+2}, v{V_T0}, s[{SRD_WS}:{SRD_WS+3}], s{S_T} offen sc1")
gl = [part_load(0, b_ >> 3, b_ & 7, 128 + 4*b_) for b_ in range(16)]
for p in range(56, 63):
    if p % 2 == 0: barrier_T()
    else: a("  s_waitcnt lgkmcnt(0)")
    if p in (56, 58, 60, 61): period(p, dma=[gl.pop(0) for _ in range(4)])
    elif p == 62:
        ex = []
        for pos in (4, 5):
            pl = produce_list(pos); ex += [pl[:4], [pl[4]], [], [pl[5]], [], [pl[6]], [], [pl[7]]]
        period(p, last=True, extra=[[]]*16 + ex)
    else: period(p)
stamp(4)
if OPT['sib']: a(f"  v_readfirstlane_b32 s{S_SIB}, v{V_L+2}")
a("  s_waitcnt lgkmcnt(0)")
THR = 0x53800000 if not OPT['force_redo'] else 0x3f000000
prog = v_half(31, 0) + produce_list(0) + produce_list(1)
prog += pv_half(30, 1, A_K) + sum_pair(30, SUMQT[0])
prog += [f"  s_mov_b32 s{S_SP}, {THR:#x}", f"  s_mov_b64 vcc, 0"]
for qt in (3, 2, 1, 0): prog += sm_ops(63, qt)
prog += v_half(31, 1, A_K) + ["  s_barrier"] + produce_list(2)
prog += sum_pair(31, 3) + sum_pair(31, 2)
for qt in (1, 0, 3, 2):
    lr = ls_reg(qt) if qt in SUMQT else V_L + qt
    if qt not in SUMQT: prog += capture(lambda: xlane_reduce(V_L+qt, 'v_add_f32', V_L+2+qt))
    elif OPT['one1']: prog += capture(lambda: xlane_reduce(lr, 'v_add_f32', lr+1))
    prog += [f"  v_cmp_ngt_f32 s[{S_T+2}:{S_T+3}], s{S_SP}, v{lr}", f"  s_or_b64 vcc, vcc, s[{S_T+2}:{S_T+3}]",
             f"  v_rcp_f32 v{V_NEGM+2*qt}, v{lr}"]
prog += [f"  s_cmp_lg_u64 vcc, 0", f"  s_cselect_b32 s{S_T}, 1, 0", f"  s_lshl_b32 s{S_T+1}, s{S_W}, 2", f"  s_add_u32 s{S_T+1}, s{S_T+1}, {RB+3*16384}",
         f"  v_and_b32 v{V_T0}, 3, v{V_LANE}", f"  v_lshlrev_b32 v{V_T0}, 12, v{V_T0}", f"  v_add_u32 v{V_T0}, s{S_T+1}, v{V_T0}",
         f"  v_mov_b32 v{V_T1}, s{S_T}", f"  ds_write_b32 v{V_T0}, v{V_T1}",
         f"  s_lshl_b32 s{S_T}, s{S_W}, 14", f"  v_add_u32 v{V_T0}, s{S_T}, v{V_L16}"]
prog += pv_half(31, 0) + pv_half(31, 1, A_K)
def norm(c, qt, pk):
    t = qt * 12; L = []
    L += [f"  v_accvgpr_read_b32 v{t+k}, a{A_O+((2*c)*4+qt)*4+k}" for k in range(4)]
    L += [f"  v_accvgpr_read_b32 v{t+4+k}, a{A_O+((2*c+1)*4+qt)*4+k}" for k in range(4)]
    if pk: L += [f"  v_pk_mul_f32 v[{t+2*k}:{t+2*k+1}], v[{t+2*k}:{t+2*k+1}], v[{V_NEGM+2*qt}:{V_NEGM+2*qt+1}] op_sel_hi:[1,0]" for k in range(4)]
    else: L += [f"  v_mul_f32 v{t+k}, v{t+k}, v{V_NEGM+2*qt}" for k in range(8)]
    L += [f"  v_cvt_pk_bf16_f32 v{t+8+k}, v{t+2*k}, v{t+2*k+1}" for k in range(4)]
    L += [f"  ds_write_b128 v{V_T0}, v[{t+8}:{t+11}] offset:{(c*4+qt)*1024}"]
    return L
NOV = OPT['nov']
todo = [(c, qt) for c in range(4) for qt in range(4)]
for c, qt in todo[:NOV]: prog += norm(c, qt, False)
emit_sched(prog, 'tail')
stamp(); stamp(4)
if OPT['stamps']:
    a(f"  s_memrealtime s[{S_RET}:{S_RET+1}]")
    a("  s_waitcnt lgkmcnt(0)")
    a(f"  s_mov_b32 s39, s{S_RET}")
gpos[0] = 8
for nt in range(4): a(f"  v_add_u32 v{V_AA+4+nt}, {3*16384}, v{V_AA+nt}")
a("  s_waitcnt vmcnt(12)")
a_first()
for c, qt in todo[NOV:]:
    for l in norm(c, qt, True): a(l)
a("  s_waitcnt lgkmcnt(0)")
a("  s_barrier")
a(f"  s_add_u32 s{S_T}, s{S_VM0}, {3*16384}")
a(f"  v_mov_b32 v{V_T0}, s{S_T}")
a(f"  ds_read_b128 v[0:3], v{V_T0}")
b_reload(False, wait=False)
a("  s_waitcnt lgkmcnt(8)")
a("  v_or_b32 v0, v0, v1")
a("  v_or3_b32 v0, v0, v2, v3")
a("  s_nop 0")
a(f"  v_readfirstlane_b32 s{S_T}, v0")
a(f"  s_andn2_b32 s{S_T}, s{S_T}, s{S_REDO}")
if not OPT['noredo']: a("  s_cbranch_scc1 L_redo")
produce_slot(3); produce_slot(4)
a(f"  s_lshl_b32 s{S_T}, s{S_W}, 1")
a(f"  s_sub_u32 s{S_OWN}, s{S_G}, s{S_T}")
if OPT['sib']:
    a(f"  s_getreg_b32 s{S_T}, hwreg(HW_REG_XCC_ID, 0, 4)")
    a(f"  s_xor_b32 s{S_T+1}, s{S_OWN}, 1")
    a(f"  s_cmp_eq_u32 s{S_T}, s{S_SIB}")
    a(f"  s_cselect_b32 s{S_SIB}, s{S_T+1}, 99")
stamp()
gemm_first(); gemm_call(7); set_stream('wo', 1); gemm_call(7)
LOQ = [192, 196, 200, 204, 216, 220, 224, 228]
if OPT['own']:
    for k in range(4): a(f"  v_mov_b32 v{248+k}, 0")
    a("  s_nop 1")
    for k in range(4): a(f"  v_mfma_f32_32x32x16_bf16 a[{16*k}:{16*k+15}], v[248:251], v[248:251], 0")
st0 = store_partial(1, 0, dst=LOQ, defer=True, sreg=S_SP)
a(f"  s_mov_b32 s{SRD_X}, s{P_X}")
a(f"  s_mov_b32 s{SRD_X+1}, s{P_X+1}")
a(f"  s_mov_b32 s{SRD_X+2}, {2048*512*2}")
GL, XL, SL = 128, 248, 64
S_MB, S_DONE, S_M, S_NEW = S_KOFF, S_VOFF, S_LOOP, S_KM0
a(f"  s_lshr_b32 s{S_MB}, s{S_PBASE}, {WGSH}")
a(f"  s_lshl_b32 s{S_MB}, s{S_MB}, 7")
a(f"  s_add_u32 s{S_MB}, s{S_MB}, {MBOX}")
a(f"  s_add_u32 s{S_XO}, s{S_XO}, s{S_HSW}")
a(f"  s_xor_b32 s{S_HSW}, s{S_XO}, 128")
if OPT['fst']:
    a(f"  v_and_b32 v{V_ZERO}, 15, v{V_LANE}")
    a(f"  v_lshlrev_b32 v{V_ZERO}, 2, v{V_ZERO}")
else: a(f"  v_mov_b32 v{V_ZERO}, 0")
a(f"  v_and_b32 v{V_T0}, 15, v{V_LANE}")
a(f"  v_lshlrev_b32 v{V_T0}, 10, v{V_T0}")
if OPT['o4']:
    a(f"  v_and_b32 v{V_T1}, 16, v{V_LANE}")
    a(f"  v_lshl_add_u32 v{V_T0}, v{V_T1}, 1, v{V_T0}")
    a(f"  v_bfe_u32 v{V_T1}, v{V_LANE}, 5, 1")
    a(f"  v_lshl_add_u32 v{V_XO}, v{V_T1}, 4, v{V_T0}")
else:
    a(f"  v_lshrrev_b32 v{V_T1}, 4, v{V_LANE}")
    a(f"  v_lshl_add_u32 v{V_XO}, v{V_T1}, 3, v{V_T0}")
POLL = f"  buffer_load_dword v{V_POLL}, v{V_ZERO}, s[{SRD_WS}:{SRD_WS+3}], s{S_MB} offen sc1"
XLD = [f"  buffer_load_dwordx2 v[{XL+2*k}:{XL+2*k+1}], v{V_XO}, s[{SRD_X}:{SRD_X+3}], s{S_HSW if k >> 1 else S_XO} offen offset:{(k&1)*32}" for k in range(4)]
if OPT['o4']: XLD = [f"  buffer_load_dwordx4 v[{XL+4*i}:{XL+4*i+3}], v{V_XO}, s[{SRD_X}:{SRD_X+3}], s{S_HSW if i else S_XO} offen" for i in range(2)]
S_SIG = S_KV0
a(f"  s_mov_b32 s{SRD_D}, s{P_WS}")
a(f"  s_mov_b32 s{SRD_D+1}, s{P_WS+1}")
a(f"  s_lshl_b32 s{S_SIG}, s{S_R}, 10")
a(f"  s_add_u32 s{S_SIG}, s{S_SIG}, {MBOX}")
a(f"  s_add_u32 s{S_T}, s{S_SIG}, 1024")
a(f"  s_cmp_eq_u32 s{S_W}, 0")
a(f"  s_cselect_b32 s{SRD_D+2}, s{S_T}, 0")
a(f"  s_lshl_b32 s{S_M}, 1, s{S_G}")
a(f"  v_mov_b32 v{V_T0}, s{S_M}")
a(f"  v_lshlrev_b32 v{V_T1}, 7, v{V_LANE}")
SIG = SIG2 = f"  buffer_atomic_add v{V_T0}, v{V_T1}, s[{SRD_D}:{SRD_D+3}], s{S_SIG} offen sc1"
if OPT['fst']:
    a(f"  v_lshl_add_u32 v{V_T1}, s{S_G}, 2, v{V_T1}")
    SIG = f"  buffer_store_dword v{V_T0}, v{V_T1}, s[{SRD_D}:{SRD_D+3}], s{S_SIG} offen sc1"
    SIG2 = f"  buffer_store_dword v{V_T0}, v{V_T1}, s[{SRD_D}:{SRD_D+3}], s{S_SIG} offen offset:32 sc1"
def getmask(sreg):
    if OPT['fst']:
        a(f"  v_cmp_ne_u32 vcc, 0, v{V_POLL}")
        a("  s_nop 3")
        a(f"  s_and_b32 s{sreg}, vcc_lo, 0xffff")
    else:
        a(f"  v_readfirstlane_b32 s{sreg}, v{V_POLL}")
SEL = 236
sel = [f"  v_lshrrev_b32 v{V_ONE_LO}, 4, v{V_LANE}", f"  v_bfe_u32 v{V_ONE_HI}, v{V_LANE}, 2, 2",
       f"  v_cmp_eq_u32 vcc, v{V_ONE_LO}, v{V_ONE_HI}", f"  v_and_b32 v{V_ONE_LO}, 1, v{V_LANE}", f"  v_lshlrev_b32 v{V_ONE_LO}, 4, v{V_ONE_LO}",
       f"  v_mov_b32 v{V_ONE_HI}, 0x3f80", f"  v_lshlrev_b32 v{V_ONE_HI}, v{V_ONE_LO}, v{V_ONE_HI}", f"  v_cndmask_b32 v{V_ONE_HI}, 0, v{V_ONE_HI}, vcc",
       f"  v_and_b32 v{V_ONE_LO}, 2, v{V_LANE}", f"  v_cmp_eq_u32 vcc, 0, v{V_ONE_LO}", f"  v_mov_b32 v{SEL}, 0", f"  v_mov_b32 v{SEL+1}, 0",
       f"  v_cndmask_b32 v{SEL+2}, 0, v{V_ONE_HI}, vcc", f"  v_cndmask_b32 v{SEL+3}, v{V_ONE_HI}, v{SEL}, vcc", f"  v_mov_b32 v{SEL+4}, 0", f"  v_mov_b32 v{SEL+5}, 0"]
def msum(base, acc, bt='v'):
    return [mf(acc + 4*h, SEL + 2 - 2*h, base + 4*s_, None if s_ == 0 else acc + 4*h, 'v', 'v', bt) for s_ in range(8) for h in range(2)]
SL = 0
def redirect(b_):
    return [f"  s_bitcmp1_b32 s{S_NEW}, {b_}", f"  s_cselect_b32 s{S_T+1}, s{S_FB}, 0x40000000",
            f"  s_add_u32 s{S_T+2}, s{S_T+1}, {PART_KIND + ((b_ & 7) << WGSH) + (b_ >> 3)*HSTR}",
            f"  buffer_load_dwordx4 a[{SL+4*b_}:{SL+4*b_+3}], v{V_L16}, s[{SRD_WS}:{SRD_WS+3}], s{S_T+2} offen sc1"]
vq = [f"slot{k}" for k in range(7) for _ in range(4)]
st0 = list(st0)
def trickle():
    if OPT['trk']:
        a(st0.pop(0)); vq.append('st')
trickle()
gemm_first(); vq += ['slot7']*4 + ['slot8']*4
if OPT['trk']:
    for k in range(3):
        trickle(); gemm_call(2); vq += [f"slot{9+2*k}"]*4 + [f"slot{10+2*k}"]*4
    if OPT['trk'] == 2: trickle()
    gemm_call(1); vq += ['slot15']*4
else:
    gemm_call(7); vq += [f"slot{k}" for k in range(9, 16) for _ in range(4)]
if OPT['e1']:
    a(POLL); vq.append('poll1')
def younger(tag): return len(vq) - 1 - max(i for i, t in enumerate(vq) if t == tag)
a(f"  s_mov_b32 s{S_DONE}, 0")
for j in range(9, 16):
    vm = []; tags = []; xv = None
    w_ = younger(f"slot{j+2}") if j < 14 else 63
    if j in (9, 10):
        vm = [[x] for x in st0[:4]]; tags = ['st']*len(vm); st0 = st0[4:]
    if j == 11 and not OPT['xl']: vm = [[x] for x in XLD]; tags = ['x']*len(XLD)
    if OPT['e1'] and j in (12, 13):
        if j == 12:
            w_ = younger('poll1')
            xv = [(4, f"  v_readfirstlane_b32 s{S_NEW}, v{V_POLL}"), (8, f"  s_and_b32 s{S_DONE}, s{S_NEW}, 0xff")]
        vm = [redirect(4*(j-12)+k) for k in range(4)]; tags = ['e1']*4
    if j == 14: vm = [[""], [""], [""], [POLL]]; tags = ['poll']
    if j == 15 and OPT['ilv']:
        prog = capture(lambda: (gemm_inl(vm=[], vmw=63, noread=True), store_partial(1, 1)))
        prog = [l for l in prog if 's_waitcnt' not in l]
        a("  s_nop 3")
        out, t = schedule(prog, vmgap=40)
        for l in out: a(l)
        a("  s_nop 1")
        break
    gemm_inl(vm=vm, vmw=w_, noread=(j >= 14), fillv=(sel if j == 14 else None), xvm=xv)
    vq += tags
stamp(5)
if not OPT['ilv']: store_partial(1, 1)
stamp(); stamp(5)
GA, T = 16, 48
OWNQ = 64
if OPT['own']:
    a(f"  s_cmp_gt_u32 s{S_OWN}, 1")
    a("  s_cbranch_scc1 L_own_done")
    a(f"  v_add_u32 v{V_BA}, s{S_VM0}, v{V_L16}")
    a(f"  s_cmp_eq_u32 s{S_OWN}, 1")
    a("  s_cbranch_scc1 L_own1")
    for c in range(2):
        if c: a.label("L_own1")
        if OPT['sib']:
            o = 1 - c
            a(f"  s_cmp_eq_u32 s{S_SIB}, 99")
            a(f"  s_cbranch_scc1 L_nosib{c}")
            a(f"  s_add_u32 s{S_T}, s{S_PBASE}, {PART_KIND + o*4096}")
            a(f"  s_add_u32 s{S_T+1}, s{S_T}, 8192")
            for qt in range(4):
                x = V_ACC + ((2*o)*4+qt)*4
                a(f"  buffer_store_dwordx4 v[{LOQ[4*o+qt]}:{LOQ[4*o+qt]+3}], v{V_L16}, s[{SRD_WS}:{SRD_WS+3}], s{S_T} offen offset:{qt*1024}")
                a(f"  buffer_store_dwordx4 v[{x}:{x+3}], v{V_L16}, s[{SRD_WS}:{SRD_WS+3}], s{S_T+1} offen offset:{qt*1024}")
            a.label(f"L_nosib{c}")
        for qt in range(4):
            a(f"  ds_write_b128 v{V_BA}, v[{LOQ[4*c+qt]}:{LOQ[4*c+qt]+3}] offset:{qt*1024}")
            x = V_ACC + ((2*c)*4+qt)*4
            a(f"  ds_write_b128 v{V_BA}, v[{x}:{x+3}] offset:{16384+qt*1024}")
        if c == 0: a("  s_branch L_own_w")
    a.label("L_own_w")
    if OPT['sib']:
        a(f"  s_cmp_eq_u32 s{S_SIB}, 99")
        a("  s_cbranch_scc1 L_own_done")
        a("  s_waitcnt vmcnt(0)")
    a.label("L_own_done")
    a(f"  s_lshr_b32 s{S_T}, s{S_G}, 1")
    a(f"  s_lshl_b32 s{S_T}, s{S_T}, 2")
    a(f"  s_add_u32 s{S_T}, s{S_T}, s{S_W}")
    a(f"  s_lshl_b32 s{S_T}, s{S_T}, 10")
    a(f"  s_add_u32 s{S_T}, s{S_T}, {RB}")
    a("  s_waitcnt lgkmcnt(0)")
    a(f"  v_add_u32 v{V_BA}, s{S_T}, v{V_L16}")
a("  s_waitcnt vmcnt(8)")
a("  s_barrier")
a(SIG)
if OPT['own']:
    a(f"  ds_read_b128 v[{OWNQ}:{OWNQ+3}], v{V_BA}")
    a(f"  ds_read_b128 v[{OWNQ+4}:{OWNQ+7}], v{V_BA} offset:16384")
getmask(S_NEW)
a(f"  v_lshlrev_b32 v{V_T0}, 8, v{V_T0}")
a("  s_nop 2")
if OPT['own']:
    a(f"  s_mul_i32 s{S_M}, s{S_M}, 0x101")
    a(f"  s_or_b32 s{S_DONE}, s{S_DONE}, s{S_M}")
    a(f"  s_mov_b32 s{S_M}, s{S_NEW}")
else:
    a(f"  s_or_b32 s{S_NEW}, s{S_NEW}, s{S_M}")
    a(f"  s_lshl_b32 s{S_M}, s{S_M}, 8")
    a(f"  s_or_b32 s{S_M}, s{S_M}, s{S_NEW}")
W1 = list(range(8, 15)) if OPT['e1'] else list(range(7))
W2 = ([15] if OPT['e1'] else list(range(7, 16))) if OPT['r2'] else []
S_SBM, S_SBO = S_FOFF, S_ROT7
if OPT['sib']:
    a(f"  s_xor_b32 s{S_T}, s{S_G}, 1")
    a(f"  s_lshl_b32 s{S_SBO}, s{S_T}, 16")
    a(f"  s_add_u32 s{S_SBO}, s{S_SBO}, s{S_FB}")
    a(f"  s_lshl_b32 s{S_T}, 0x101, s{S_T}")
    a(f"  s_cmp_eq_u32 s{S_SIB}, 99")
    a(f"  s_cselect_b32 s{S_SBM}, 0, s{S_T}")
    a(f"  s_andn2_b32 s{S_NEW}, s{S_NEW}, s{S_SBM}")
    for k in range(8): a(f"  v_mov_b32 v{OWNQ+8+k}, 0")
a(f"  s_and_b32 s{S_NEW}, s{S_NEW}, {sum(1 << b_ for b_ in W1 + W2):#x}")
a(f"  s_or_b32 s{S_DONE}, s{S_DONE}, s{S_NEW}")
fl = []
for s_ in W1:
    r_ = redirect(s_); fl += [r_[:2], r_[2:]]
def silu(acc):
    L = [f"  v_mul_f32 v{acc+e}, v{acc+e}, v{V_RSO}" for e in range(8)]
    def rp(r): return [f"  v_cvt_pk_bf16_f32 v{T+(r&2)//2}, v{r}, v{r+1}", f"  v_lshlrev_b32 v{r}, 16, v{T+(r&2)//2}", f"  v_and_b32 v{r+1}, 0xffff0000, v{T+(r&2)//2}"]
    for j in range(4): L += rp(acc+2*j)
    L += [f"  v_mul_f32 v{T+4+e}, 0xbfb8aa3b, v{acc+e}" for e in range(8)]
    L += [f"  v_exp_f32 v{T+4+e}, v{T+4+e}" for e in range(8)]
    L += [f"  v_add_f32 v{T+4+e}, 1.0, v{T+4+e}" for e in range(8)]
    L += [f"  v_rcp_f32 v{T+4+e}, v{T+4+e}" for e in range(8)]
    L += [f"  v_mul_f32 v{acc+e}, v{acc+e}, v{T+4+e}" for e in range(8)]
    for j in range(4): L += rp(acc+2*j)
    return L
s0 = silu(GA)
for g, l in enumerate(msum(GL, GA) + msum(GL + 32, GA + 8)):
    a(l)
    if g < len(fl):
        for x in fl[g]: a(x)
    if g >= 23:
        a(s0.pop(0)); a(s0.pop(0))
for b_ in W2:
    for l in redirect(b_): a(l)
    for _ in range(5):
        if s0: a(s0.pop(0))
s1 = silu(GA + 8)
if OPT['sv'] >= 1:
    for l in s0: a(l)
    s0 = []
if OPT['sv'] >= 2:
    for l in s1: a(l)
    s1 = []
stamp(5)
a(f"  s_waitcnt vmcnt({8 + len(W2)})")
a("  s_barrier")
a(SIG2)
stamp(5)
def fround(first=False):
    if not first:
        if OPT['pslp']: a(f"  s_sleep {OPT['pslp']}")
        a(POLL)
        a("  s_waitcnt vmcnt(0)")
        getmask(S_M)
        a("  s_nop 3")
    a(f"  s_call_b64 s[{S_RET}:{S_RET+1}], L_round")
fround(True)
if OPT['xl']:
    for l in XLD: a(l)
XU = 72
def SAr(i): return 8*i
pre_ = []
for i in range(2):
    pre_ += [mf(SAr(i) + 4*h, SEL + 2 - 2*h, OWNQ + 4*i, None) for h in range(2)]
    pre_ += [f"  v_permlane16_swap_b32 v{XL+4*i}, v{XL+4*i+2}", f"  v_permlane16_swap_b32 v{XL+4*i+1}, v{XL+4*i+3}"]
    for j in range(4):
        xr = XL + 4*i + j
        pre_ += [f"  v_lshlrev_b32 v{XU+8*i+2*j}, 16, v{xr}", f"  v_and_b32 v{XU+8*i+2*j+1}, 0xffff0000, v{xr}"]
a("  s_waitcnt lgkmcnt(0)")
emit_sched(s0 + s1 + pre_, 'silu')
stamp(5)
a(f"  s_mov_b32 s{SRD_D}, s{P_OUT}")
a(f"  s_mov_b32 s{SRD_D+1}, s{P_OUT+1}")
a(f"  s_mov_b32 s{SRD_D+2}, {2048*512*2}")
a(f"  s_mov_b32 s{S_CNT}, {OPT['spin']}")
def ost4(i): return f"  buffer_store_dwordx4 v[{XL+4*i}:{XL+4*i+3}], v{V_XO}, s[{SRD_D}:{SRD_D+3}], s{S_HSW if i else S_XO} offen"
def fin_m(i):
    SA = SAr(i)
    return [mf(SA + 4*h, SEL + 2 - 2*h, SL + i*32 + 4*s_, SA + 4*h, 'v', 'v', 'a') for h in range(2) for s_ in range(8)]
def fin_v(i):
    SA = SAr(i); L = []
    for h in range(2):
        t = T + 4*i + 2*h
        rp = lambda r, t_: [f"  v_cvt_pk_bf16_f32 v{t_}, v{r}, v{r+1}", f"  v_lshlrev_b32 v{r}, 16, v{t_}", f"  v_and_b32 v{r+1}, 0xffff0000, v{t_}"]
        if OPT['ffma']:
            L += [f"  v_fma_f32 v{SA+4*h+e}, v{SA+4*h+e}, v{GA+8*i+4*h+e}, v{XU+8*i+4*h+e}" for e in range(4)]
        else:
            for j in range(2): L += rp(SA+4*h+2*j, t+j)
            L += [f"  v_mul_f32 v{SA+4*h+e}, v{SA+4*h+e}, v{GA+8*i+4*h+e}" for e in range(4)]
            for j in range(2): L += rp(SA+4*h+2*j, t+j)
            L += [f"  v_add_f32 v{SA+4*h+e}, v{SA+4*h+e}, v{XU+8*i+4*h+e}" for e in range(4)]
        L += [f"  v_cvt_pk_bf16_f32 v{XL+4*i+2*h+j}, v{SA+4*h+2*j}, v{SA+4*h+2*j+1}" for j in range(2)]
    L += [f"  v_permlane16_swap_b32 v{XL+4*i}, v{XL+4*i+2}", f"  v_permlane16_swap_b32 v{XL+4*i+1}, v{XL+4*i+3}"]
    return L
for i in range(2):
    a.label(f"L_sp{i}")
    a(f"  s_cmp_eq_u32 s{S_DONE}, 0xffff")
    a(f"  s_cbranch_scc1 {'L_both' if i == 0 else 'L_sp1_done'}")
    a(f"  s_bfe_u32 s{S_T+3}, s{S_DONE}, {(8 << 16) | (8*i)}")
    fround()
    if i == 0:
        a(f"  s_cmp_eq_u32 s{S_T+3}, 0xff")
        a(f"  s_cbranch_scc1 L_sp{i}_done")
    a(f"  s_sub_u32 s{S_CNT}, s{S_CNT}, 1")
    a(f"  s_cbranch_scc0 L_sp{i}")
    a(f"  s_mov_b32 s{S_CNT}, 0")
    a.label(f"L_sp{i}_done")
    if i == 0: emit_sched(fin_m(0) + fin_v(0), 'fin0')
    else:
        a("  s_waitcnt vmcnt(0)")
        emit_sched([ost4(0)] + fin_m(1) + fin_v(1) + [ost4(1)], 'fin1')
a("  s_branch L_fin")
ib = len(a.lines)
a.label("L_both")
a("  s_waitcnt vmcnt(0)")
emit_sched(fin_m(0) + fin_m(1) + fin_v(0) + [ost4(0)] + fin_v(1) + [ost4(1)], 'both')
a.label("L_fin")
stamp(); stamp(5)
if OPT['stamps']:
    a("  s_waitcnt vmcnt(0)")
    stamp(0)
    a(f"  s_memrealtime s[{S_T}:{S_T+1}]")
    a("  s_waitcnt lgkmcnt(0)")
    n = nstamp[0]
    for i in range(n):
        a(f"  v_writelane_b32 v0, s{S_STAMP+2*i}, {i}")
    a(f"  v_writelane_b32 v0, s{S_T}, 15")
    a(f"  v_writelane_b32 v0, s74, 14")
    a(f"  v_writelane_b32 v0, s38, 12")
    a(f"  v_writelane_b32 v0, s39, 13")
    a(f"  s_lshl_b32 s{S_T}, s2, 2")
    a(f"  s_add_u32 s{S_T}, s{S_T}, s{S_W}")
    a(f"  s_lshl_b32 s{S_T}, s{S_T}, 6")
    a(f"  s_add_u32 s{S_T}, s{S_T}, {STAMP_OFF}")
    a(f"  v_lshlrev_b32 v1, 2, v{V_LANE}")
    a(f"  v_cmp_gt_u32 vcc, 16, v{V_LANE}")
    a(f"  s_and_saveexec_b64 s[{S_T+2}:{S_T+3}], vcc")
    a(f"  buffer_store_dword v0, v1, s[{SRD_WS}:{SRD_WS+3}], s{S_T} offen")
a.label("L_end")
a("  s_endpgm")
segs.append(('tail', 'tailjoin', (il, itail, it, len(a.lines))))
ir = len(a.lines)
a.label("L_redo")
a("  s_waitcnt lgkmcnt(0)")
a(f"  s_mov_b32 s{S_REDO}, 1")
a(f"  s_mov_b32 s{S_KOFF}, s{S_KV0}")
a(f"  s_mov_b32 s{S_LOOP}, 32")
a(f"  v_mov_b32 v{V_T0}, 0xff800000")
for qt in range(4): a(f"  v_mov_b32 v{V_NEGM+qt*4}, v{V_T0}")
a.label("L_redo_loop")
a("  s_waitcnt vmcnt(0) lgkmcnt(0)")
a("  s_barrier")
k_tile_dma(0)
a("  s_waitcnt vmcnt(0)")
a("  s_barrier")
for u in range(2):
    for i in range(8): a(k_read(u, i >> 2, i & 3))
    a("  s_waitcnt lgkmcnt(0)")
    for l in qk_mfmas(0, zero=True): a(l)
    a("  s_nop 7")
    for qt in range(4):
        m = V_NEGM + qt*4
        for kt in range(2):
            x = s_reg(0, kt, qt)
            a(f"  v_max3_f32 v{m}, v{x}, v{x+1}, v{m}")
            a(f"  v_max3_f32 v{m}, v{x+2}, v{x+3}, v{m}")
a(f"  s_sub_u32 s{S_LOOP}, s{S_LOOP}, 1")
a(f"  s_cmp_lg_u32 s{S_LOOP}, 0")
a("  s_cbranch_scc1 L_redo_loop")
for qt in range(4):
    m = V_NEGM + qt*4
    xlane_reduce(m, 'v_max_f32', m+1)
    a(f"  v_xor_b32 v{m}, 0x80000000, v{m}")
    for k in range(1, 4): a(f"  v_mov_b32 v{m+k}, v{m}")
a("  s_barrier")
a(f"  s_mov_b32 s{S_KOFF}, s{S_KV0}")
a(f"  s_mov_b32 s{S_VOFF}, s{S_KV0}")
for t in range(4): k_tile_dma(t)
for t in range(2): v_tile_dma(t)
a(f"  s_mov_b32 s{S_POFF}, s{S_SV_POFF}")
a("  s_waitcnt vmcnt(0)")
a("  s_barrier")
zero_o()
for l in attn_init(): a(l)
emit_sched(KR01 + ["  s_barrier"] + qk_mfmas(0, order=QORD) + head_common(), 'redo head')
a(f"  s_mov_b32 s{S_LOOP}, 7")
a("  s_branch L_p2")
segs.append(('redo', ir, len(a.lines)))
a.label("L_round")
a(f"  s_andn2_b32 s{S_NEW}, s{S_M}, s{S_DONE}")
a(f"  s_or_b32 s{S_DONE}, s{S_DONE}, s{S_M}")
if OPT['sib']:
    a(f"  s_and_b32 s{S_T}, s{S_NEW}, s{S_SBM}")
    a("  s_cbranch_scc0 L_rsib")
    a(f"  s_or_b32 s{S_DONE}, s{S_DONE}, s{S_SBM}")
    a(f"  s_andn2_b32 s{S_NEW}, s{S_NEW}, s{S_SBM}")
    for i in range(2):
        a(f"  s_add_u32 s{S_T}, s{S_SBO}, {PART_KIND + i*8192}")
        a(f"  buffer_load_dwordx4 v[{OWNQ+8+4*i}:{OWNQ+11+4*i}], v{V_L16}, s[{SRD_WS}:{SRD_WS+3}], s{S_T} offen{['', ' nt', ' sc0'][OPT['sib']-1]}")
    a.label("L_rsib")
for h in range(4):
    a(f"  s_and_b32 s{S_T}, s{S_NEW}, {0xf << (4*h)}")
    a(f"  s_cbranch_scc0 L_rs{h}")
    for b_ in range(4*h, 4*h+4):
        pl = part_load(1, b_ >> 3, b_ & 7, SL + b_*4, 'a')
        a(pl[0])
        a(f"  s_bitcmp1_b32 s{S_NEW}, {b_}")
        a(f"  s_cselect_b64 exec, -1, 0")
        a(pl[1])
    a("  s_mov_b64 exec, -1")
    a.label(f"L_rs{h}")
a(f"  s_setpc_b64 s[{S_RET}:{S_RET+1}]")
a(".p2align 6")
ig = len(a.lines)
for pos in range(12):
    a.label(f"L_gemm{pos}")
    gemm_step(pos, False, pos in CKPT)
    if pos not in CKPT: continue
    if pos < 11: a("  s_cbranch_scc1 L_gemm_ret")
    else: a("  s_cbranch_scc0 L_gemm0")
a.label("L_gemm_ret")
a(f"  s_setpc_b64 s[{S_RET}:{S_RET+1}]")
segs.append(('gemm2', ig, len(a.lines)))
a.label("L_code_end")

a('.section .rodata,"a"')
a(".p2align 6")
a(kernel_desc(NAME + "_kernel", 512, 102, 256))

errs = []
for s in segs:
    if s[1] == 'tailjoin':
        il_, itail_, it_, end_ = s[2]
        errs += hazard.check(a.lines[il_:itail_] + a.lines[it_:end_], 'tail')
    elif s[0].endswith('2'):
        errs += hazard.check(a.lines[s[1]:s[2]] * 2, s[0])
    else:
        errs += hazard.check(a.lines[s[1]:s[2]], s[0])
for e in errs[:40]: print("HAZ", e)
open(sys.argv[1], 'w').write(a.text())
print("written", sys.argv[1], len(a.lines), "lines;", len(errs), "hazard msgs")
```

```python
import sys, math
from asmlib import *
import hazard
from sched import schedule

NAME = "recurrent_scan__gqa_block_cached__dense_activation_relu__prompt"
OPT = dict(stamps=0, mimic_d=1, nsum=2, force_redo=0, pf=0, ng=2, rot=1, late=4, tlb=0, spin=200000, dot=1, xnobar=0, xnodma=0, xnost=0, noredo=0, pol=0, cpos=0, n1=8, w1pf=0, slp=0, xk=0, xv=0, xe=0, xa=0, xs=16, snake=1, nov=6, flip=0, early=0, ilv=0, stf=0, mbl=1, e64=0, xl=0, cp2=2, cp3=0, hsw=0, hx=1, o4=1, klate=1, rt=0, trk=0, e1=0, r2=0, own=1, pt=0, sib=0, xsz=1, lnd=0, pre=0, sl=0, rm=15, one1=0, hfill=1, m16=0, of=0, hst=0, hgap=64, ffma=1, sv=0, lay=1, skew=0, fst=0, pslp=0, w3=0, w2sw=0, stg=0, alt=0, kvr=0, ck=1, xvol=0, ln2=0, spA=0, spB=0, af=1, ochk=1, bsh=0)
for x in sys.argv[2:]:
    k, v = x.split('='); OPT[k] = int(v)

POL = {0: '', 1: ' nt', 2: ' sc1', 3: ' sc0', 4: ' sc0 sc1', 5: ' sc1 nt'}[OPT['pol']]
a = Asm()
segs = []

S_W, S_G, S_R = 4, 5, 6
S_RET = 8
S_CNT, S_CSLOT, S_PSLOT, S_POFF, S_STA, S_STB = 10, 11, 12, 13, 14, 15
P_X, P_K, P_V, P_WQ, P_WO, P_W1, P_W2, P_WS, P_DBG, P_OUT = 16, 18, 20, 22, 24, 28, 30, 36, 34, 32
S_PLO, S_PHI = 38, 39
S_BOFF, S_BEND, S_FOFF, S_PLEN, S_ROT16, S_ROT7, S_ODD = 3, 7, 26, 27, 100, 101, 15
SRD_W, SRD_K, SRD_V, SRD_WS, SRD_X = 40, 44, 48, 52, 56
S_KOFF, S_VOFF, S_LOOP, S_KM0, S_VM0, S_PBASE, S_REDO = 60, 61, 62, 63, 64, 65, 66
S_SV_POFF, S_KV0 = 68, 69
S_SP = 94
S_OWN = 68
S_SIB = 15
S_EV, S_EI = 26, 101
S_HSW = 67
S_T = 70
S_STAMP = 76

V_ACC, V_A, V_B = 0, 64, 96
V_S, V_P, V_NEGM, V_L, V_LS, V_ONES = 0, 64, 96, 112, 116, 124
V_H = 176
V_PROW, V_PSWZ, V_BA, V_LANE, V_L16, V_T0, V_T1 = 208, 209, 210, 212, 213, 214, 215
V_KA, V_VA, V_KD, V_VD, V_PD, V_AA = 216, 220, 228, 232, 236, 240
A_O, A_Q, A_K, A_V = 0, 128, 192, 224
RB = 65536
LAY = OPT['lay']
HSTR = (8 << 20) if LAY else 8192
WGSH = 15 if LAY else 16
NS = 6
PART_KIND = 16 << 20
STAMP_OFF = 48 << 20
MBOX = 40 << 20
SRD_D = 96
S_FB, S_XO = 11, 12
V_XO = 211
PBUF = [[64, 68, 72, 76], [80, 84, 88, 92], [192, 196, 200, 204], [208, 244, 248, 252]]
V_POLL = 234
V_RSO, V_RS = 235, 160
import struct
CSH = struct.unpack('<I', struct.pack('<f', (128 ** -0.5) * math.log2(math.e)))[0]
V_ONE_LO, V_ONE_HI, V_ZERO = 232, 233, 209

nstamp = [0]
def stamp(lvl=1):
    if OPT['stamps'] == lvl or (OPT['stamps'] and lvl == 0):
        i = nstamp[0]
        if i >= 9: return
        nstamp[0] += 1
        a(f"  s_mem{'real' if OPT['rt'] else ''}time s[{S_STAMP+2*i}:{S_STAMP+2*i+1}]")

def capture(fn):
    i = len(a.lines); fn(); L = a.lines[i:]; del a.lines[i:]
    return [l for l in L if l.strip() and not l.strip().startswith('s_nop') and not l.strip().startswith(';')]
def emit_sched(prog, name, **kw):
    out, t = schedule(prog, **kw)
    for l in out: a(l)
    print(f"  sched {name}: {len(out)} instrs, est {t} cycles")
def mf(d, A, B, C, dt='v', at='v', bt='v'):
    c = '0' if C is None else f"{dt}[{C}:{C+3}]"
    return f"  v_mfma_f32_16x16x32_bf16 {dt}[{d}:{d+3}], {at}[{A}:{A+3}], {bt}[{B}:{B+3}], {c}"

def prod_m0(pos):
    return [f"  s_add_u32 m0, s{S_VM0}, {pos*16384}"]
def prod_dma(n):
    return f"  buffer_load_dwordx4 v{V_PD+n}, s[{SRD_W}:{SRD_W+3}], s{S_POFF} offen offset:{n*1024}{POL} lds"
def prod_adv():
    return [f"  s_add_u32 s{S_POFF}, s{S_POFF}, s{S_STA}",
            f"  s_cmp_eq_u32 s{S_POFF}, s{S_PLEN}",
            f"  s_cselect_b32 s{S_POFF}, 0, s{S_POFF}"]
def produce_list(pos):
    return prod_m0(pos) + prod_adv() + [prod_dma(n) for n in range(4)]
def produce_slot(pos):
    for l in produce_list(pos): a(l)

def set_stream(kind, half=0):
    if kind == 'null':
        a(f"  s_mov_b32 s{SRD_W+2}, 0"); return
    if half == 1:
        for n in range(4): a(f"  v_xor_b32 v{V_PD+n}, 128, v{V_PD+n}")
        return
    ptr, size, stride = dict(w1=(P_W1, 512*1792*2, 3584), wq=(P_WQ, 512*4096*2, 8192), w2=(P_W2, 1792*512*2, 1024),
                             wo=(P_WO, 4096*512*2, 1024), v=(P_V, 8*2048*128*2, 0))[kind]
    a(f"  s_mov_b32 s{SRD_W}, s{ptr}")
    a(f"  s_mov_b32 s{SRD_W+1}, s{ptr+1}")
    a(f"  s_mov_b32 s{SRD_W+2}, {size}")
    a(f"  s_mov_b32 s{S_T}, {stride}")
    a(f"  v_mad_u32_u24 v{V_PD}, v{V_PROW}, s{S_T}, v{V_PSWZ}")
    src, gsft, wsft = dict(w1=(S_FOFF, 1, 7), wq=(S_G, 10, 8), w2=(S_FOFF, 10, 8), wo=(S_G, 19, 8))[kind]
    a(f"  s_lshl_b32 s{S_T}, s{src}, {gsft}")
    a(f"  s_lshl_b32 s{S_T+1}, s{S_W}, {wsft}")
    a(f"  s_add_u32 s{S_T}, s{S_T}, s{S_T+1}")
    if kind != 'w1': a(f"  s_add_u32 s{S_T}, s{S_T}, s{S_HSW}")
    if kind == 'w2' and OPT['w2sw']:
        a(f"  s_and_b32 s{S_T+1}, s{S_R}, 1")
        a(f"  s_lshl_b32 s{S_T+1}, s{S_T+1}, 7")
        a(f"  s_add_u32 s{S_T}, s{S_T}, s{S_T+1}")
    a(f"  v_add_u32 v{V_PD}, s{S_T}, v{V_PD}")
    for n in range(1, 4): a(f"  v_add_u32 v{V_PD+n}, {n*(8*stride-1024)}, v{V_PD}")
    a(f"  s_mov_b32 s{S_STA}, {32*stride}")
    if kind == 'w1':
        a(f"  s_lshl_b32 s{S_T}, s{S_ODD}, 2")
        a(f"  s_or_b32 s{S_T}, s{S_T}, s{S_W}")
        a(f"  s_cmp_eq_u32 s{S_T}, 7")
        a(f"  s_cselect_b32 s{SRD_W+2}, 0, s{SRD_W+2}")
    if kind == 'w2':
        a(f"  s_lshl_b32 s{S_T}, s{S_ODD}, 16")
        a(f"  s_sub_u32 s{S_PLEN}, {8*32*stride}, s{S_T}")
    else: a(f"  s_mov_b32 s{S_PLEN}, {16*32*stride}")
    a(f"  s_mul_i32 s{S_POFF}, s{S_ROT7 if kind == 'w2' else S_ROT16}, {32*stride}")
    a(f"  s_sub_u32 s{S_POFF}, s{S_POFF}, s{S_STA}")

def b_adv():
    return [f"  s_add_u32 s{S_BOFF}, s{S_BOFF}, 4096",
            f"  s_cmp_eq_u32 s{S_BOFF}, s{S_BEND}",
            f"  s_cselect_b32 s{S_BOFF}, 0, s{S_BOFF}",
            f"  v_add_u32 v{V_BA}, s{S_BOFF}, v{V_L16}"]
def rpos(i): return (2 + i) % NS
def fA(k): return ('v', V_A + 16*k) if k < 2 else ('a', A_K + 16*(k-2))
def fB(k): return ('v', V_B + 16*k) if k < 2 else ('a', A_V + 16*(k-2))
def a_read(i, nt, rd):
    t, b = fA(i & 3); d = b + nt*4 + rd*2; slot = rpos(i)
    return f"  ds_read_b64_tr_b16 {t}[{d}:{d+1}], v{V_AA+nt+4*(slot//3)} offset:{(slot%3)*16384+rd*2048}"
def b_read(i, qt):
    t, b = fB(i & 3); d = b + qt*4
    return f"  ds_read_b128 {t}[{d}:{d+3}], v{V_BA} offset:{qt*1024}"

def gemm_step(i, first=False, loop=False, vm=None, vmw=16, noread=False, fillv=None, xvm=None):
    a(f"  s_waitcnt vmcnt({vmw}) lgkmcnt(0)")
    mem = [b_read(i+2, qt) for qt in range(4)] + [a_read(i+2, nt, rd) for nt in range(4) for rd in range(2)] + [prod_dma(n) for n in range(4)]
    ex = [[] for _ in range(16)]
    ba = b_adv(); pa = prod_adv()
    for k in range(4): ex[k].append(ba[k])
    if vm is None:
        for k in range(3): ex[4+k].append(pa[k])
        ex[7] += prod_m0(rpos(i+1))
    else:
        for k in range(4):
            mem[12+k] = vm[k][-1] if k < len(vm) else ""
            if k < len(vm): ex[11+k-(1 if k == 0 else 0)] += vm[k][:-1]
    if noread:
        for k in range(12): mem[k] = ""
        for k in range(4): ex[k] = []
    if xvm:
        for g_, l in xvm: ex[g_].append(l)
    if fillv:
        for k, l in enumerate(fillv): ex[k].append(l)
    if loop: ex[11].append(f"  s_sub_u32 s{S_CNT}, s{S_CNT}, 1")
    g = 0; s0 = i & 2
    for nt in (2*(i & 1), 2*(i & 1) + 1):
        for q_ in range(4):
            qt = 3 - q_ if nt & 1 else q_
            acc = V_ACC + (nt*4+qt)*4
            for u_ in range(2):
                u = u_ ^ (q_ & 1)
                (ta, ba_), (tb, bb) = fA(s0+u), fB(s0+u)
                a(mf(acc, ba_+nt*4, bb+qt*4, None if (first and u_ == 0) else acc, 'v', ta, tb))
                a(mem[g])
                for l in ex[g]: a(l)
                g += 1

gpos = [0]
CKPT = {8, 3, 0, 7, 4, 10, 11} if OPT['ck'] else set(range(12))
def gemm_call(n):
    assert (gpos[0] + n - 1) % 12 in CKPT, (gpos[0], n)
    nck = sum(1 for k in range(n) if (gpos[0] + k) % 12 in CKPT)
    a(f"  s_mov_b32 s{S_CNT}, {nck-1}")
    a(f"  s_call_b64 s[{S_RET}:{S_RET+1}], L_gemm{gpos[0] % 12}")
    gpos[0] += n
def gemm_inl(**kw):
    gemm_step(gpos[0] % 12, **kw); gpos[0] += 1
def gemm_first():
    gemm_inl(first=True); gemm_inl(first=True)
def b_reload(ffn2, wait=True):
    if wait: a("  s_waitcnt lgkmcnt(0)")
    a(f"  s_lshl_b32 s{S_BOFF}, s{S_ROT7 if ffn2 else S_ROT16}, 12")
    if ffn2: a(f"  s_lshr_b32 s{S_BEND}, s{S_PLEN}, 3")
    else: a(f"  s_mov_b32 s{S_BEND}, {16*4096}")
    a(f"  v_add_u32 v{V_BA}, s{S_BOFF}, v{V_L16}")
    for k in range(2):
        for qt in range(4): a(b_read(gpos[0] + k, qt))
        for l in b_adv(): a(l)
def a_first():
    for k in range(2):
        for nt in range(4):
            for rd in range(2): a(a_read(gpos[0] + k, nt, rd))

def store_partial(kind, half, dst=None, defer=False, sreg=S_T):
    a("  s_nop 5")
    a(f"  s_add_u32 s{sreg}, s{S_PBASE}, {kind*PART_KIND + half*HSTR}")
    a(f"  s_add_u32 s{sreg+1}, s{sreg}, 4096")
    if kind == 1 and OPT['own']:
        for c in range(2):
            a(f"  s_cmp_eq_u32 s{S_OWN}, {c}")
            a(f"  s_cselect_b32 s{sreg+c}, 0x40000000, s{sreg+c}")
            if OPT['sib']:
                a(f"  s_cmp_eq_u32 s{S_SIB}, {c}")
                a(f"  s_cselect_b32 s{sreg+c}, 0x40000000, s{sreg+c}")
    if kind == 1 and OPT['xvol'] & 1: a(f"  s_mov_b32 s{sreg+1}, 0x40000000")
    if kind == 1 and OPT['xvol'] & 4:
        a(f"  s_mov_b32 s{sreg+1}, 0x40000000"); a(f"  s_mov_b32 s{sreg}, 0x40000000")
    st = []
    for c in range(2):
        for qt in range(4):
            x = V_ACC + ((2*c)*4+qt)*4; y = V_ACC + ((2*c+1)*4+qt)*4
            d = x if dst is None else (dst[c*4+qt] if isinstance(dst, list) else dst + (c*4+qt)*4)
            a(f"  v_cvt_pk_bf16_f32 v{d}, v{x}, v{x+1}")
            a(f"  v_cvt_pk_bf16_f32 v{d+1}, v{x+2}, v{x+3}")
            a(f"  v_cvt_pk_bf16_f32 v{d+2}, v{y}, v{y+1}")
            a(f"  v_cvt_pk_bf16_f32 v{d+3}, v{y+2}, v{y+3}")
            l = f"  buffer_store_dwordx4 v[{d}:{d+3}], v{V_L16}, s[{SRD_WS}:{SRD_WS+3}], s{sreg+c} offen offset:{qt*1024} {['sc1', 'sc0 sc1', 'sc1 nt'][OPT['stf']]}"
            if defer: st.append(l)
            else: a(l)
    if not defer: a("  s_nop 1")
    return st

def spin(label, srd, voff, soff, target):
    a(f"  s_mov_b32 s{S_T+1}, {OPT['spin']}")
    a.label(label)
    a(f"  buffer_load_dword v{V_POLL}, v{voff}, s[{srd}:{srd+3}], {soff} offen sc1")
    a("  s_waitcnt vmcnt(0)")
    a(f"  v_readfirstlane_b32 s{S_T}, v{V_POLL}")
    a(f"  s_sub_u32 s{S_T+1}, s{S_T+1}, 1")
    a(f"  s_cbranch_scc1 {label}_done")
    a(f"  s_cmp_lt_u32 s{S_T}, {target}")
    a(f"  s_cbranch_scc1 {label}")
    a.label(label + "_done")

def part_load(kind, i, src, d, t='v'):
    return [f"  s_add_u32 s{S_T+2}, s{S_FB}, {kind*PART_KIND + (src << WGSH) + i*HSTR}",
            f"  buffer_load_dwordx4 {t}[{d}:{d+3}], v{V_L16}, s[{SRD_WS}:{SRD_WS+3}], s{S_T+2} offen sc1"]
def part_sum(base, acc, T, vm0=None):
    for s_ in range(8):
        if vm0 is not None and s_ % 2 == 0: a(f"  s_waitcnt vmcnt({vm0-s_-1})")
        d = base + s_*4
        for j in range(4):
            lo, hi = acc+2*j, acc+2*j+1
            if s_ == 0:
                a(f"  v_lshlrev_b32 v{lo}, 16, v{d+j}")
                a(f"  v_and_b32 v{hi}, 0xffff0000, v{d+j}")
            elif OPT['dot']:
                a(f"  v_dot2c_f32_bf16 v{lo}, v{d+j}, v{V_ONE_LO}")
                a(f"  v_dot2c_f32_bf16 v{hi}, v{d+j}, v{V_ONE_HI}")
            else:
                t = T + 2*(j & 1)
                a(f"  v_lshlrev_b32 v{t}, 16, v{d+j}")
                a(f"  v_and_b32 v{t+1}, 0xffff0000, v{d+j}")
                a(f"  v_pk_add_f32 v[{lo}:{hi}], v[{lo}:{hi}], v[{t}:{t+1}]")
    if OPT['dot']: a("  s_nop 2")
def rnd_pair(r, T):
    a(f"  v_cvt_pk_bf16_f32 v{T}, v{r}, v{r+1}")
    a(f"  v_lshlrev_b32 v{r}, 16, v{T}")
    a(f"  v_and_b32 v{r+1}, 0xffff0000, v{T}")

def kslot(t): return (t + 2) & 3
def k_read(unit, kt, ds, dst=A_K):
    off = kslot(unit >> 1)*16384 + (unit & 1)*8192 + kt*4096
    d = dst + (kt*4+ds)*4
    return f"  ds_read_b128 a[{d}:{d+3}], v{V_KA+ds} offset:{off}"
def v_read(unit, dt, rd, dst=A_V):
    off = ((unit >> 1) & 3)*16384 + (unit & 1)*8192 + rd*4096
    d = dst + dt*4 + rd*2
    return f"  ds_read_b64_tr_b16 a[{d}:{d+1}], v{V_VA+dt} offset:{off}"
def k_dma(n):
    return f"  buffer_load_dwordx4 v{V_KD+n}, s[{SRD_K}:{SRD_K+3}], s{S_KOFF} offen offset:{n*1024}{POL} lds"
def v_dma(n):
    return f"  buffer_load_dwordx4 v{V_VD+(n&1)}, s[{SRD_V}:{SRD_V+3}], s{S_VOFF} offen offset:{n*1024}{POL} lds"
def k_tile_dma(t):
    a(f"  s_add_u32 m0, s{S_KM0}, {kslot(t)*16384}")
    a(f"  s_nop 0")
    for n in range(4): a(k_dma(n))
    a(f"  s_add_u32 s{S_KOFF}, s{S_KOFF}, 16384")
    if OPT['kvr']: a(f"  s_and_b32 s{S_KOFF}, s{S_KOFF}, 0x7ffff")
def v_tile_dma(t):
    a(f"  s_add_u32 m0, s{S_VM0}, {(t&3)*16384}")
    a(f"  s_nop 0")
    for n in range(4): a(v_dma(n))
    a(f"  s_add_u32 s{S_VOFF}, s{S_VOFF}, 16384")

NSUM = OPT['nsum']
SUMQT = {0: [], 2: [2, 3], 4: [0, 1, 2, 3]}[NSUM]
TORDER = [(0,0),(0,2),(0,1),(0,3),(1,0),(1,2),(1,1),(1,3)]
def s_reg(b, kt, qt): return V_S + b*32 + (kt*4+qt)*4
def qk_mfmas(b, zero=False, order=None, src=A_K):
    L = []
    QKO = [(0,0),(0,1),(0,2),(0,3),(1,3),(1,2),(1,1),(1,0)] if OPT['snake'] else TORDER
    for ti, (kt, qt) in enumerate(order or QKO):
        d = s_reg(b, kt, qt)
        for i_ in range(4):
            ds = 3 - i_ if (OPT['snake'] and ti & 1) else i_
            C = d if i_ else (None if zero else V_NEGM + qt*4)
            L.append(mf(d, src+(kt*4+ds)*4, A_Q+(qt*4+ds)*4, C, 'v', 'a', 'a'))
    return L
def ls_reg(qt):
    return V_LS + (qt & 1)*4
def pv_half(T, h, src=A_V):
    L = []; k = 0
    for d_ in range(4):
        dt = 4*h + d_
        for qt in (range(3, -1, -1) if d_ % 2 == 0 else range(4)):
            d = A_O + (dt*4+qt)*4
            for u in ((0, 1) if k % 2 == 0 else (1, 0)):
                L.append(mf(d, src+(d_*2+u)*4, PBUF[(2*T+u) & 3][qt], d, 'a', 'a', 'v'))
            k += 1
    return L
def v_half(T, h, dst=A_V):
    L = []
    for f in range(8):
        dt = 4*h + (f >> 1); u = f & 1
        for rd in range(2):
            off = (T & 3)*16384 + u*8192 + rd*4096
            d = dst + f*4 + rd*2
            L.append(f"  ds_read_b64_tr_b16 a[{d}:{d+1}], v{V_VA+dt} offset:{off}")
    return L
def sum_pair(T, qt):
    L = [mf(ls_reg(qt), V_ONES, PBUF[(2*T+u) & 3][qt], ls_reg(qt)) for u in range(2)]
    if NSUM == 4: L += [mf(ls_reg(qt), V_L, PBUF[(2*T+u) & 3][qt-2], ls_reg(qt)) for u in range(2)]
    return L
def sm_ops(p, qt):
    L = []
    for kt in range(2):
        for r in range(4):
            s_ = s_reg(p & 1, kt, qt) + r
            L.append(f"  v_exp_f32 v{s_}, v{s_}")
            if qt not in SUMQT: L.append(f"  v_add_f32 v{V_L+qt}, v{V_L+qt}, v{s_}")
            if r & 1: L.append(f"  v_cvt_pk_bf16_f32 v{PBUF[p & 3][qt]+kt*2+(r>>1)}, v{s_-1}, v{s_}")
    return L

def period(p, last=False, extra=None, dma=None, endop=None):
    b = p & 1; T = p >> 1
    M = qk_mfmas(b ^ 1) + pv_half(T-1, b) + sum_pair(T-1, 3-b)
    ng = len(M)
    pre = [[] for _ in range(ng)]
    mem = [None]*ng
    cap = [0 if (g < 64 and g % 2 == 0) else 2 for g in range(ng)]
    exps = [(kt, qt, r) for kt, qt in TORDER for r in range(4)]
    for i, l in enumerate(v_half(T-1, b)):
        mem[2*i+1] = l; cap[2*i+1] = 1
    kpos = [0,1,2,4,5,6,8,9]; dpos = [3,7,11,15]
    if last:
        for i, l in enumerate(v_half(T-1, 1, A_K)):
            mem[33+2*i] = l; cap[33+2*i] = 1
    else:
        for i, j in enumerate(kpos):
            mem[33+2*j] = k_read(p+2, i >> 2, i & 3); cap[33+2*j] = 1
        for n, j in enumerate(dpos):
            mem[33+2*j] = k_dma(n) if b == 0 else v_dma(n); cap[33+2*j] = 0
        if dma is not None:
            for n, j in enumerate(dpos):
                mem[33+2*j] = dma[n][-1]; pre[32+2*j] += dma[n][:-1]
        elif b == 0:
            pre[34].append(f"  s_add_u32 m0, s{S_KM0}, {kslot(T)*16384}")
            if OPT['kvr']: pre[36].append(f"  s_and_b32 s{S_KOFF}, s{S_KOFF}, 0x7ffff")
            pre[ng-2].append(f"  s_add_u32 s{S_KOFF}, s{S_KOFF}, 16384")
        else:
            pre[34].append(f"  s_add_u32 m0, s{S_VM0}, {((T+2)&3)*16384}")
            if OPT['kvr']: pre[36].append(f"  s_and_b32 s{S_VOFF}, s{S_VOFF}, 0x7ffff")
            pre[ng-2].append(f"  s_add_u32 s{S_VOFF}, s{S_VOFF}, 16384")
    if extra:
        for k, l in enumerate(extra): pre[2*k] += l
    if endop: pre[ng-1].append(endop)
    pre[30].append("  s_waitcnt lgkmcnt(3)")
    nk = sum(1 for g in range(32, 54) if mem[g] and mem[g].lstrip().startswith('ds_'))
    pre[54].append(f"  s_waitcnt lgkmcnt({nk})")
    q = []
    for g in range(ng):
        a(M[g])
        for l in pre[g]: a(l)
        if mem[g]: a(mem[g])
        if g < 64 and g % 2 == 0:
            kt, qt, r = exps[g//2]
            s = s_reg(b, kt, qt) + r
            four = sum(1 for l in pre[g] if 's_waitcnt' in l or l.rstrip().endswith(', 0'))
            E = '_e64' if OPT['e64'] else ''
            a(f"  v_exp_f32{E if four % 2 == 0 else ''} v{s}, v{s}")
            if qt not in SUMQT: q.append(f"  v_add_f32{E} v{V_L+qt}, v{V_L+qt}, v{s}")
            if r & 1: q.append(f"  v_cvt_pk_bf16_f32 v{PBUF[p & 3][qt]+kt*2+(r>>1)}, v{s-1}, v{s}")
        else:
            n = cap[g] if g < ng-1 else 99
            while n > 0 and q:
                a(q.pop(0)); n -= 1
    assert not q

def barrier_T(n=8):
    a(f"  s_waitcnt vmcnt({n}) lgkmcnt(0)")
    if not OPT['xnobar']: a("  s_barrier")

def xlane_reduce(reg, op, tmp):
    a(f"  v_mov_b32 v{tmp}, v{reg}")
    a("  s_nop 1")
    a(f"  v_permlane32_swap_b32 v{reg}, v{tmp}")
    a(f"  {op} v{reg}, v{reg}, v{tmp}")
    a(f"  v_mov_b32 v{tmp}, v{reg}")
    a("  s_nop 1")
    a(f"  v_permlane16_swap_b32 v{reg}, v{tmp}")
    a(f"  {op} v{reg}, v{reg}, v{tmp}")

def prefetch_groups():
    J, O = S_T+4, S_T
    X = SRD_X
    cnt = [0]
    def srd(ptr, size):
        return [f"  s_mov_b32 s{X}, s{ptr}", f"  s_mov_b32 s{X+1}, s{ptr+1}", f"  s_mov_b32 s{X+2}, {size}"]
    def ld(v, off=0):
        cnt[0] += 1
        return [f"  buffer_load_dword a{A_Q+cnt[0]}, v{v}, s[{X}:{X+3}], s{O} offen offset:{off}"]
    NG = OPT['ng']; NW = 128 // NG
    G = {}
    jj = [f"  s_and_b32 s{O}, s{S_R}, {32//NG-1}", f"  s_lshl_b32 s{O}, s{O}, 2", f"  s_add_u32 s{O}, s{O}, s{S_W}"]
    rows = 4*NG
    L = jj + [f"  s_mul_i32 s{O}, s{O}, {rows*8192}", f"  s_lshl_b32 s{O+1}, s{S_G}, 10", f"  s_add_u32 s{O}, s{O}, s{O+1}",
              f"  v_and_b32 v249, 7, v{V_LANE}", f"  v_lshlrev_b32 v249, 7, v249", f"  v_lshl_add_u32 v249, v{V_PROW}, 13, v249"] + srd(P_WQ, 512*4096*2) + ld(249)
    for k in range(1, (rows + 7)//8):
        L += [f"  s_add_u32 s{O}, s{O}, {8*8192}"] + ld(249)
    G['wq'] = L
    G['w2'] = jj + [f"  s_mul_i32 s{O}, s{O}, {2048*NG}", f"  s_lshl_b32 s{O+1}, s{S_FOFF}, 10", f"  s_add_u32 s{O}, s{O}, s{O+1}",
                    f"  v_mul_u32_u24 v250, {32*NG}, v{V_LANE}"] + srd(P_W2, 512*1792*2) + ld(250)
    L = [f"  v_lshlrev_b32 v251, 6, v{V_LANE}", f"  s_and_b32 s{O}, s{S_R}, 3", f"  s_lshl_b32 s{O}, s{O}, 14", f"  s_add_u32 s{O}, s{O}, s{S_KV0}"]
    G['kv'] = L + srd(P_K, 4 << 20) + ld(251) + srd(P_V, 4 << 20) + ld(251)
    G['ws'] = [f"  v_and_b32 v252, 1, v{V_LANE}", f"  v_lshlrev_b32 v252, 24, v252", f"  s_mov_b32 s{O}, s{S_PBASE}"] + srd(P_WS, 64 << 20) + ld(252)
    G['mb'] = [f"  v_and_b32 v255, 31, v{V_LANE}", f"  v_lshlrev_b32 v255, 2, v255", f"  v_mov_b32 v{V_POLL}, 0",
               f"  s_lshr_b32 s{O}, s{S_PBASE}, {WGSH}", f"  s_lshl_b32 s{O}, s{O}, 7", f"  s_add_u32 s{O}, s{O}, {MBOX}",
               f"  buffer_store_dword v{V_POLL}, v255, s[{SRD_WS}:{SRD_WS+3}], s{O} offen sc1"]
    L = jj + [f"  s_mul_i32 s{O}, s{O}, {4096*NG}", f"  s_lshl_b32 s{O+1}, s{S_G}, 19", f"  s_add_u32 s{O}, s{O}, s{O+1}",
              f"  v_lshlrev_b32 v253, {6 if NG == 1 else 7}, v{V_LANE}"] + srd(P_WO, 4 << 20)
    L += [f"  buffer_load_dword v254, v253, s[{X}:{X+3}], s{O} offen"]
    if NG == 4: L += [f"  s_add_u32 s{O}, s{O}, 8192", f"  buffer_load_dword v255, v253, s[{X}:{X+3}], s{O} offen"]
    G['wo'] = L
    return G
def nloads(L): return sum(1 for l in L if l.lstrip().startswith('buffer_'))

hdr = open('cdna_kernels/%s.s.ref' % NAME).read().split('\n')
for l in hdr:
    if l.startswith('; Override') or '@launch' in l or l.startswith('; grid=ceil'): continue
    if l.startswith(';'): a(l)
    else: break
a("; @launch grid=(256,1,1) block=(256,1,1) lds=163840")
a('.amdgcn_target "amdgcn-amd-amdhsa--gfx950"')
a(""";
;   2. FFN1 (a 256/192-column slice of w1), Q projection, FFN2 partial (split-K over the 8 workgroups of a row block)
;""")
a(".text")
a(kernel_header(NAME + "_kernel"))
i0 = len(a.lines)
NG = OPT['ng']; LG = {1: 0, 2: 1, 4: 2, 8: 3}[NG]
L = V_LANE
C_ = SRD_V
a(f"""
  s_cmp_ge_u32 s2, 256
  s_cbranch_scc1 L_end
  s_load_dwordx16 s[16:31], s[0:1], 0
  s_load_dwordx2 s[{P_WS}:{P_WS+1}], s[0:1], 80
  s_load_dwordx4 s[{P_OUT}:{P_OUT+3}], s[0:1], 64
  s_getpc_b64 s[{C_}:{C_+1}]
L_pc:
  s_lshr_b32 s{S_T+1}, s2, 3
  s_mov_b32 s{C_+2}, L_code_end-L_pc
  s_mov_b32 s{C_+3}, 0x20000
  s_lshl_b32 s{S_T+2}, s{S_T+1}, 11
  v_lshlrev_b32 v2, 3, v0
""")
CPF = f"  buffer_load_dword a{A_Q}, v2, s[{C_}:{C_+3}], s{S_T+2} offen"
a(CPF)
stamp(0)
if OPT['stamps']: a("  s_memrealtime s[74:75]")
if OPT['ln2']:
    XADDR = f"""  v_lshrrev_b32 v4, 6, v0
  v_bfe_u32 v5, v0, 3, 3
  v_lshl_add_u32 v4, v4, 4, v5
  v_lshlrev_b32 v4, 10, v4
  v_and_b32 v5, 7, v0
  v_lshl_add_u32 v{V_T0}, v5, 4, v4
  s_add_u32 s{S_SP+1}, s{S_SP}, 8192"""
    OPT['xs'] = 8
else:
    XADDR = f"""  v_lshrrev_b32 v4, 2, v0
  v_lshlrev_b32 v4, 10, v4
  v_and_b32 v5, 3, v0
  v_lshl_add_u32 v{V_T0}, v5, 4, v4"""
a(f"""
  s_lshr_b32 s{S_ROT16}, s{S_T+1}, {LG}
  s_bfe_u32 s{S_T}, s2, {(LG << 16) | (3-LG)}
  s_lshl_b32 s{S_T}, s{S_T}, {5-LG}
  s_add_u32 s{S_R}, s{S_ROT16}, s{S_T}
  s_lshl_b32 s{S_SP}, s{S_R}, 16
{XADDR}
  s_mov_b32 s{SRD_X+2}, {2048*512*2}
  s_mov_b32 s{SRD_X+3}, 0x20000
  s_and_b32 s{S_G}, s2, {8//NG-1}
  s_lshl_b32 s{S_G}, s{S_G}, {LG}
  s_and_b32 s{S_T+3}, s{S_T+1}, {NG-1}
  s_add_u32 s{S_G}, s{S_G}, s{S_T+3}
  s_mov_b32 s{SRD_W+3}, 0x20000
""")
def xloads(j0, j1):
    for j in range(j0, j1):
        if OPT['ln2']: a(f"  buffer_load_dwordx4 v[{4*j+64}:{4*j+67}], v{V_T0}, s[{SRD_X}:{SRD_X+3}], s{S_SP+(j>>3)} offen offset:{(j&7)*128}")
        else: a(f"  buffer_load_dwordx4 v[{4*j+64}:{4*j+67}], v{V_T0}, s[{SRD_X}:{SRD_X+3}], s{S_SP} offen offset:{j*64}")
def xfirst():
    a("  s_waitcnt lgkmcnt(0)")
    a(f"  s_mov_b32 s{SRD_X}, s{P_X}")
    a(f"  s_mov_b32 s{SRD_X+1}, s{P_X+1}")
    stamp(7)
    if OPT['tlb'] & 1: a(f"  s_load_dword s{S_SP+1}, s[{P_W1}:{P_W1+1}], 0")
    if OPT['tlb'] & 2:
        a(f"  s_mov_b32 s{SRD_W}, s{P_W1}"); a(f"  s_mov_b32 s{SRD_W+1}, s{P_W1+1}"); a(f"  s_mov_b32 s{SRD_W+2}, 4")
        a(f"  buffer_load_dword a{A_Q+1}, v{V_T0}, s[{SRD_W}:{SRD_W+3}], 0 offen")
    xloads(0, OPT['xs'])
    stamp(7)
a(f"""
  v_lshrrev_b32 v1, 6, v0
  v_and_b32 v{V_LANE}, 63, v0
  s_mov_b32 s{S_REDO}, 0
  v_readfirstlane_b32 s{S_W}, v1
  s_and_b32 s{S_HSW}, s{S_R}, {OPT['hsw']}
  s_lshl_b32 s{S_HSW}, s{S_HSW}, 7
  s_bfe_u32 s{S_ODD}, s{S_G}, 0x10001
  s_xor_b32 s{S_ODD}, s{S_ODD}, {OPT['flip']}
  s_mul_i32 s{S_T}, s{S_ROT16}, 43
  s_lshr_b32 s{S_T}, s{S_T}, 8
  s_mul_i32 s{S_T}, s{S_T}, 6
  s_sub_u32 s{S_T}, s{S_ROT16}, s{S_T}
  s_and_b32 s{S_ROT7}, s{S_ROT16}, 7
  s_cmp_lg_u32 s{S_ODD}, 0
  s_cselect_b32 s{S_ROT7}, s{S_T}, s{S_ROT7}
  s_lshl_b32 s{S_ROT16}, s{S_ROT16}, {max(LG-1,0)}
  s_and_b32 s{S_ROT16}, s{S_ROT16}, {OPT['rm']}
  v_lshrrev_b32 v3, 3, v{L}
  v_and_b32 v3, {4 if OPT['xsz'] else 0}, v3
  v_xor_b32 v3, v3, v{L}
  v_lshlrev_b32 v{V_L16}, 4, v3
  v_lshrrev_b32 v{V_PROW}, 3, v{L}
  v_lshrrev_b32 v1, 4, v{L}            ; G
  v_lshlrev_b32 v2, 1, v1              ; G<<1
  v_and_b32 v3, 7, v{L}
  v_xor_b32 v3, v3, v2
  v_lshlrev_b32 v{V_PSWZ}, 4, v3
  s_lshl_b32 s{S_KM0}, s{S_W}, 12
  s_add_u32 s{S_VM0}, s{S_KM0}, {RB}
""")
xfirst()
a(f"""
  s_lshr_b32 s{S_T}, s{S_G}, 2
  s_mul_i32 s{S_FOFF}, s{S_T}, 896
  s_lshl_b32 s{S_T}, s{S_ODD}, 9
  s_add_u32 s{S_FOFF}, s{S_FOFF}, s{S_T}
  s_lshl_b32 s{S_T}, s{S_ODD}, 6
  s_sub_u32 s{S_T}, 256, s{S_T}
  s_and_b32 s{S_T+1}, s{S_G}, 1
  s_mul_i32 s{S_T}, s{S_T}, s{S_T+1}
  s_add_u32 s{S_FOFF}, s{S_FOFF}, s{S_T}
""")
PFG = prefetch_groups()
set_stream('w1')
a(f"""
  v_and_b32 v6, 15, v{L}
  v_lshrrev_b32 v8, 2, v6
  v_lshl_add_u32 v8, v1, 2, v8         ; row = 4G + (i>>2)
  v_and_b32 v9, 3, v6
  v_lshlrev_b32 v9, 3, v9              ; (i&3)*8
  v_lshl_add_u32 v10, v8, 7, v9
  v_add_u32 v10, s{S_VM0}, v10
  v_bfe_u32 v11, v8, 1, 2
""")
for nt in range(4):
    a(f"  v_xor_b32 v12, {nt}, v11")
    a(f"  v_lshl_add_u32 v{V_AA+nt}, v12, 5, v10")
    a(f"  v_add_u32 v{V_AA+4+nt}, {3*16384}, v{V_AA+nt}")
a(f"""
  v_lshrrev_b32 v8, {3 if OPT['ln2'] else 2}, v{L}
  v_and_b32 v9, 1, v{L}
  v_mul_u32_u24 v9, {36 if OPT['xsz'] else 32}, v9
  v_xor_b32 v8, v9, v8
  v_lshlrev_b32 v8, 4, v8
  v_bfe_u32 v9, v{L}, 1, 1
  v_lshl_add_u32 v8, v9, 3, v8
  s_lshl_b32 s{S_T}, s{S_W}, 10
  v_add_u32 v{V_T1}, s{S_T}, v8
""")
if OPT['ln2']:
    a(f"  v_and_b32 v9, 4, v{L}")
    a(f"  v_lshl_add_u32 v{V_T1}, v9, 10, v{V_T1}")
def zero_o():
    for i in range(4): a(f"  v_mov_b32 v{204+i}, 0")
    a("  s_nop 1")
    for i in range(8): a(f"  v_mfma_f32_32x32x16_bf16 a[{A_O+16*i}:{A_O+16*i+15}], v[204:207], v[204:207], 0")
def setup_late():
    G_, G2, I_, t7, t8, t9, t10, t11, t12 = 129, 130, 134, 135, 136, 137, 138, 139, 140
    a(f"""
  s_lshl_b32 s{S_T}, s{S_G}, 19
  s_add_u32 s{SRD_K}, s{P_K}, s{S_T}
  s_addc_u32 s{SRD_K+1}, s{P_K+1}, 0
  s_mov_b32 s{SRD_K+2}, 0x80000
  s_mov_b32 s{SRD_K+3}, 0x20000
  s_add_u32 s{SRD_V}, s{P_V}, s{S_T}
  s_addc_u32 s{SRD_V+1}, s{P_V+1}, 0
  s_mov_b32 s{SRD_V+2}, 0x80000
  s_mov_b32 s{SRD_V+3}, 0x20000
  s_mov_b32 s{SRD_WS}, s{P_WS}
  s_mov_b32 s{SRD_WS+1}, s{P_WS+1}
  s_mov_b32 s{SRD_WS+2}, {64<<20}
  s_mov_b32 s{SRD_WS+3}, 0x20000
  s_and_b32 s{S_KV0}, s{S_R}, {OPT['kvr']}
  s_lshl_b32 s{S_KV0}, s{S_KV0}, {17 if OPT['kvr'] == 3 else 18}
  s_add_u32 s{S_KV0}, s{S_KV0}, s{S_KM0}
  s_mov_b32 s{S_KOFF}, s{S_KV0}
  s_lshl_b32 s{S_PBASE}, s{S_R}, 3
  s_add_u32 s{S_PBASE}, s{S_PBASE}, s{S_G}
  s_lshl_b32 s{S_PBASE}, s{S_PBASE}, {WGSH}
  s_and_b32 s{S_T}, s{S_R}, {3 if OPT['skew'] else 0}
  s_add_u32 s{S_T}, s{S_T}, s{S_W}
  s_and_b32 s{S_T}, s{S_T}, 3
  s_lshl_b32 s{S_T}, s{S_T}, {WGSH-2}
  s_add_u32 s{S_PBASE}, s{S_PBASE}, s{S_T}
  v_lshrrev_b32 v{G_}, 4, v{L}
  v_lshlrev_b32 v{G2}, 1, v{G_}
  v_and_b32 v{I_}, 15, v{L}
  v_xor_b32 v{t7}, v{I_}, v{G_}
  v_lshlrev_b32 v{t7}, 4, v{t7}
  v_lshl_add_u32 v{V_KD}, v{G_}, 8, v{t7}
""")
    for n in range(1, 4): a(f"  v_xor_b32 v{V_KD+n}, {64*n}, v{V_KD}")
    a(f"""
  ; V dma: G*256 + ((i ^ ((4*(n&1)+G)<<1))*16)
  v_xor_b32 v{t8}, v{I_}, v{G2}
  v_lshlrev_b32 v{t8}, 4, v{t8}
  v_lshl_add_u32 v{V_VD}, v{G_}, 8, v{t8}
  v_xor_b32 v{V_VD+1}, 128, v{V_VD}
  v_and_b32 v{t8}, 2, v{G2}
  v_lshrrev_b32 v{t9}, 1, v{G_}
  v_or_b32 v{t8}, v{t8}, v{t9}
  v_xor_b32 v{t8}, v{t8}, v{I_}
  v_lshlrev_b32 v{t8}, 4, v{t8}
  v_lshl_add_u32 v{V_KA}, v{I_}, 8, v{t8}
  v_xor_b32 v{V_KA}, s{S_HSW}, v{V_KA}
""")
    for ds in range(1, 4): a(f"  v_xor_b32 v{V_KA+ds}, {64*ds}, v{V_KA}")
    a(f"""
  v_lshrrev_b32 v{t8}, 2, v{I_}
  v_lshl_add_u32 v{t8}, v{G_}, 2, v{t8}
  v_and_b32 v{t9}, 3, v{I_}
  v_lshlrev_b32 v{t9}, 3, v{t9}
  v_lshl_add_u32 v{t10}, v{t8}, 8, v{t9}
  v_add_u32 v{t10}, {RB}, v{t10}
  v_and_b32 v{t11}, 7, v{t8}
  v_lshl_add_u32 v{V_VA}, v{t11}, 5, v{t10}
""")
    for dt in range(1, 8): a(f"  v_xor_b32 v{V_VA+dt}, {32*dt}, v{V_VA}")
    a(f"""
  s_mov_b32 s{SRD_D}, s{P_DBG}
  s_mov_b32 s{SRD_D+1}, s{P_DBG+1}
  s_lshl_b32 s{SRD_D+2}, s{S_R}, 2
  s_add_u32 s{SRD_D+2}, s{SRD_D+2}, 4
  s_mov_b32 s{SRD_D+3}, 0x20000
  s_lshl_b32 s{S_FB}, s{S_R}, {WGSH+3}
  s_lshr_b32 s{S_T}, s{S_G}, 1
  s_lshl_b32 s{S_T}, s{S_T}, 2
  s_and_b32 s{S_T+1}, s{S_G}, 1
  s_add_u32 s{S_T+1}, s{S_T+1}, s{S_T}
  s_and_b32 s{S_T}, s{S_R}, {3 if OPT['skew'] else 0}
  s_lshl_b32 s{S_T}, s{S_T}, 1
  s_add_u32 s{S_T}, s{S_T}, s{S_G}
  s_and_b32 s{S_T}, s{S_T}, 7
  s_lshl_b32 s{S_T}, s{S_T}, 12
  s_add_u32 s{S_FB}, s{S_FB}, s{S_T}
  s_lshl_b32 s{S_T}, s{S_W}, 10
  s_add_u32 s{S_FB}, s{S_FB}, s{S_T}
  s_lshl_b32 s{S_XO}, s{S_R}, 16
  s_lshl_b32 s{S_T}, s{S_W}, 14
  s_add_u32 s{S_XO}, s{S_XO}, s{S_T}
  s_lshl_b32 s{S_T}, s{S_T+1}, 6
  s_add_u32 s{S_XO}, s{S_XO}, s{S_T}
""")
    zero_o()
if not OPT['sl']: setup_late()
a("; ---- LayerNorm")
def dreg(e): return e if e < 64 else 64 + e
pfsel = [k for b_, k in ((1, 'w2'), (2, 'kv'), (4, 'ws')) if OPT['pf'] & b_] + ([] if OPT['mbl'] else ['mb'])
groups = []
for s_ in range(NS-1):
    pl = produce_list(rpos(s_))
    groups += [pl[:5], [pl[5]], [pl[6]], [pl[7]]]
for k in pfsel: groups.append(PFG[k])
NPF = sum(nloads(PFG[k]) for k in pfsel)
SUM, SQ = 192, 196
MU, MB = 200, 202
a(f"  v_and_b32 v8, 3, v{L}")
if OPT['ln2']:
    a(f"  v_lshrrev_b32 v9, 3, v{L}"); a("  v_lshlrev_b32 v9, 2, v9")
else: a(f"  v_and_b32 v9, 60, v{L}")
a(f"  v_lshl_add_u32 v8, v8, 12, v9")
a(f"  s_lshl_b32 s{S_T}, s{S_W}, 6")
a(f"  s_add_u32 s{S_T}, s{S_T}, {RB+1*16384}")
a(f"  v_add_u32 v{V_BA}, s{S_T}, v8")
a(f"  s_add_u32 s{S_T}, s{S_VM0}, {1*16384}")
a(f"  v_lshl_add_u32 v{V_RSO}, v6, 2, s{S_T}")
stamp(7)
PRE = OPT['pre']
for g_ in groups[:PRE]:
    for l in g_: a(l)
groups = groups[PRE:]
xloads(OPT['xs'], 16)
stamp(7)
if OPT['stamps'] == 7:
    for k in (16, 15, 8, 0):
        a(f"  s_waitcnt vmcnt({k})"); stamp(7)
def ln_two_halves():
    vq = [f"x{j}" for j in range(8)] + [f"S{k>>2}" for k in range(PRE)] + [f"x{j}" for j in range(8, 16)]
    gi = [PRE]; rest = list(groups)
    def yg(tag): return len(vq) - 1 - max(i for i, t in enumerate(vq) if t == tag)
    def spr():
        if rest:
            for l in rest.pop(0): a(l)
            vq.append(f"S{gi[0]>>2}"); gi[0] += 1
    for h in range(2):
        nA = OPT['spA'] if h == 0 else 0
        for j in range(8*h, 8*h+8):
            a(f"  s_waitcnt vmcnt({yg(f'x{j}')})")
            if j in (0, 8, 15): stamp(3)
            if (j & 7) < nA: spr()
            for i in range(4*j, 4*j+4):
                a(f"  v_lshlrev_b32 v{dreg(2*i)}, 16, v{64+i}")
                a(f"  v_and_b32 v{dreg(2*i+1)}, 0xffff0000, v{64+i}")
            for i in range(4*j, 4*j+4):
                e = dreg(2*i); t = SUM + 2*(i & 1); q = SQ + 2*(i & 1); ii = i & 31
                if ii < 2: a(f"  v_pk_add_f32 v[{t}:{t+1}], v[{e}:{e+1}], v[{dreg(2*i+4)}:{dreg(2*i+4)+1}]")
                elif ii >= 4: a(f"  v_pk_add_f32 v[{t}:{t+1}], v[{t}:{t+1}], v[{e}:{e+1}]")
                if ii < 2: a(f"  v_pk_mul_f32 v[{q}:{q+1}], v[{e}:{e+1}], v[{e}:{e+1}]")
                else: a(f"  v_pk_fma_f32 v[{q}:{q+1}], v[{e}:{e+1}], v[{e}:{e+1}], v[{q}:{q+1}]")
        stamp(3)
        for r in (SUM, SQ): a(f"  v_pk_add_f32 v[{r}:{r+1}], v[{r}:{r+1}], v[{r+2}:{r+3}]")
        for r in (SUM, SQ): a(f"  v_add_f32 v{r}, v{r}, v{r+1}")
        a("  s_nop 0")
        for qp in ("quad_perm:[1,0,3,2]", "quad_perm:[2,3,0,1]", "row_half_mirror"):
            for r in (SUM, SQ): a(f"  v_add_f32_dpp v{r}, v{r}, v{r} {qp} row_mask:0xf bank_mask:0xf")
            a("  s_nop 0")
        a(f"  v_mul_f32 v{MU}, 0x3b000000, v{SUM}")
        a(f"  v_cvt_pk_bf16_f32 v{MB}, v{MU}, v{MU}")
        a(f"  v_and_b32 v{MB}, 0xffff0000, v{MB}")
        st_ = f"""  v_mul_f32 v{SQ}, 0x3b000000, v{SQ}
  v_fma_f32 v{SQ}, -v{MU}, v{MU}, v{SQ}
  v_max_f32 v{SQ}, 0, v{SQ}
  v_cvt_pk_bf16_f32 v{SQ}, v{SQ}, v{SQ}
  v_and_b32 v{SQ}, 0xffff0000, v{SQ}
  v_add_f32 v{SQ}, 0x3727c5ac, v{SQ}
  v_cvt_pk_bf16_f32 v{SQ}, v{SQ}, v{SQ}
  v_and_b32 v{SQ}, 0xffff0000, v{SQ}
  v_sqrt_f32 v{SQ}, v{SQ}
  v_cvt_pk_bf16_f32 v{SQ}, v{SQ}, v{SQ}
  v_and_b32 v{SQ}, 0xffff0000, v{SQ}
  v_rcp_f32 v{MU+1}, v{SQ}
  ds_write_b32 v{V_BA}, v{MU+1} offset:{32*h}""".split('\n')
        for j in range(8*h, 8*h+8):
            if (h == 0 and (j & 7) < OPT['spB']) or h == 1: spr()
            for k in range(4):
                e = dreg(2*(4*j+k))
                a(f"  v_pk_add_f32 v[{e}:{e+1}], v[{e}:{e+1}], v[{MB}:{MB+1}] op_sel_hi:[1,0] neg_lo:[0,1] neg_hi:[0,1]")
            if st_: a(st_.pop(0))
            for k in range(4):
                i = 4*j + k; e = dreg(2*i)
                a(f"  v_cvt_pk_bf16_f32 v{64+i}, v{e}, v{e+1}")
                if k == 1 and st_: a(st_.pop(0))
            a(f"  ds_write_b64 v{V_T1}, v[{64+4*j}:{65+4*j}] offset:{(j&7)*8192+h*128}")
            a(f"  ds_write_b64 v{V_T1}, v[{66+4*j}:{67+4*j}] offset:{(j&7)*8192+h*128+256}")
        if h == 0: stamp(3)
    while rest: spr()
    stamp(3)
    a(f"  s_waitcnt vmcnt({yg('S1')}) lgkmcnt(0)")
def ln_one():
    for j in range(16):
        a(f"  s_waitcnt vmcnt({15 - j + min(j, OPT['n1']) + (PRE if j < OPT['xs'] else 0)})")
        if j in (0, 8, 15): stamp(3)
        if j < OPT['n1']:
            for l in groups[j]: a(l)
        for i in range(4*j, 4*j+4):
            a(f"  v_lshlrev_b32 v{dreg(2*i)}, 16, v{64+i}")
            a(f"  v_and_b32 v{dreg(2*i+1)}, 0xffff0000, v{64+i}")
        for i in range(4*j, 4*j+4):
            e = dreg(2*i); t = SUM + 2*(i & 1); q = SQ + 2*(i & 1)
            if i < 2: a(f"  v_pk_add_f32 v[{t}:{t+1}], v[{e}:{e+1}], v[{dreg(2*i+4)}:{dreg(2*i+4)+1}]")
            elif i >= 4: a(f"  v_pk_add_f32 v[{t}:{t+1}], v[{t}:{t+1}], v[{e}:{e+1}]")
            if i < 2: a(f"  v_pk_mul_f32 v[{q}:{q+1}], v[{e}:{e+1}], v[{e}:{e+1}]")
            else: a(f"  v_pk_fma_f32 v[{q}:{q+1}], v[{e}:{e+1}], v[{e}:{e+1}], v[{q}:{q+1}]")
    sprinkle = groups[OPT['n1']:]
    stamp(3)
    for r in (SUM, SQ): a(f"  v_pk_add_f32 v[{r}:{r+1}], v[{r}:{r+1}], v[{r+2}:{r+3}]")
    for r in (SUM, SQ): a(f"  v_add_f32 v{r}, v{r}, v{r+1}")
    a("  s_nop 0")
    for qp in ("[1,0,3,2]", "[2,3,0,1]"):
        for r in (SUM, SQ): a(f"  v_add_f32_dpp v{r}, v{r}, v{r} quad_perm:{qp} row_mask:0xf bank_mask:0xf")
        a("  s_nop 0")
    a(f"""
  v_mul_f32 v{MU}, 0x3b000000, v{SUM}
  v_cvt_pk_bf16_f32 v{MB}, v{MU}, v{MU}
  v_and_b32 v{MB}, 0xffff0000, v{MB}
""")
    stats = f"""  v_mul_f32 v{SQ}, 0x3b000000, v{SQ}
  v_fma_f32 v{SQ}, -v{MU}, v{MU}, v{SQ}
  v_max_f32 v{SQ}, 0, v{SQ}
  v_cvt_pk_bf16_f32 v{SQ}, v{SQ}, v{SQ}
  v_and_b32 v{SQ}, 0xffff0000, v{SQ}
  v_add_f32 v{SQ}, 0x3727c5ac, v{SQ}
  v_cvt_pk_bf16_f32 v{SQ}, v{SQ}, v{SQ}
  v_and_b32 v{SQ}, 0xffff0000, v{SQ}
  v_sqrt_f32 v{SQ}, v{SQ}
  v_cvt_pk_bf16_f32 v{SQ}, v{SQ}, v{SQ}
  v_and_b32 v{SQ}, 0xffff0000, v{SQ}
  v_rcp_f32 v{SQ}, v{SQ}
  ds_write_b32 v{V_BA}, v{SQ}""".split('\n')
    for j in range(16):
        if j in (0, 8): stamp(3)
        if j >= OPT['late'] and sprinkle:
            for l in sprinkle.pop(0): a(l)
        for k in range(4):
            e = dreg(2*(4*j+k))
            a(f"  v_pk_add_f32 v[{e}:{e+1}], v[{e}:{e+1}], v[{MB}:{MB+1}] op_sel_hi:[1,0] neg_lo:[0,1] neg_hi:[0,1]")
        if j < len(stats): a(stats[j])
        for k in range(4):
            i = 4*j + k; e = dreg(2*i)
            a(f"  v_cvt_pk_bf16_f32 v{64+i}, v{e}, v{e+1}")
        a(f"  ds_write_b64 v{V_T1}, v[{64+4*j}:{65+4*j}] offset:{j*4096}")
        a(f"  ds_write_b64 v{V_T1}, v[{66+4*j}:{67+4*j}] offset:{j*4096+256}")
    for g_ in sprinkle:
        for l in g_: a(l)
    stamp(3)
    a(f"  s_waitcnt vmcnt({4*(NS-3)+NPF}) lgkmcnt(0)")
(ln_two_halves if OPT['ln2'] else ln_one)()
a_first()
a("  s_barrier")
stamp(3)
stamp()
for qt in range(4): a(f"  ds_read_b32 v{V_RS+qt}, v{V_RSO} offset:{qt*64}")
a(f"  s_lshl_b32 s{S_T}, s{S_W}, 6")
a(f"  v_add_u32 v{V_RSO}, s{S_T}, v{V_RSO}")
a(f"  ds_read_b32 v{V_RSO}, v{V_RSO}")
b_reload(False, wait=False)
a("  s_waitcnt lgkmcnt(8)")
produce_slot(rpos(5)); produce_slot(rpos(6))
a(f"  s_mov_b32 s{S_T}, {CSH:#x}")
for qt in range(4): a(f"  v_mul_f32 v{V_RS+qt}, s{S_T}, v{V_RS+qt}")
a("; ---- FFN1")
stamp(8)
gemm_first()
if OPT['w3']:
    a(f"  s_cmp_lg_u32 s{SRD_W+2}, 0")
    a("  s_cbranch_scc1 L_w3n")
    X = SRD_X
    a(f"  s_mov_b32 s{X}, s{P_WQ}"); a(f"  s_mov_b32 s{X+1}, s{P_WQ+1}"); a(f"  s_mov_b32 s{X+2}, {512*4096*2}")
    a(f"  s_and_b32 s{S_T}, s{S_R}, 15")
    a(f"  s_lshl_b32 s{S_T+1}, s{S_T}, 18")
    a(f"  s_lshl_b32 s{S_T+2}, s{S_G}, 10")
    a(f"  s_add_u32 s{S_T+1}, s{S_T+1}, s{S_T+2}")
    a(f"  v_and_b32 v128, 7, v{V_LANE}"); a("  v_lshlrev_b32 v128, 7, v128"); a(f"  v_lshl_add_u32 v128, v{V_PROW}, 13, v128")
    for k in range(4):
        a(f"  buffer_load_dword v{130+k}, v128, s[{X}:{X+3}], s{S_T+1} offen")
        a(f"  s_add_u32 s{S_T+1}, s{S_T+1}, {8*8192}")
    if OPT['w3'] >= 2:
        a(f"  s_mov_b32 s{X}, s{P_W2}"); a(f"  s_mov_b32 s{X+1}, s{P_W2+1}"); a(f"  s_mov_b32 s{X+2}, {512*1792*2}")
        a(f"  s_mul_i32 s{S_T+1}, s{S_T}, {12*1024}")
        a(f"  s_lshl_b32 s{S_T+2}, s{S_FOFF}, 10")
        a(f"  s_add_u32 s{S_T+1}, s{S_T+1}, s{S_T+2}")
        a(f"  v_lshlrev_b32 v129, 7, v{V_LANE}")
        a(f"  buffer_load_dword v134, v129, s[{X}:{X+3}], s{S_T+1} offen")
        a(f"  s_add_u32 s{S_T+1}, s{S_T+1}, 4096")
        a(f"  buffer_load_dword v135, v129, s[{X}:{X+3}], s{S_T+1} offen")
    a(f"  s_add_u32 s{S_BOFF}, s{S_BOFF}, {7*4096}")
    a(f"  s_and_b32 s{S_BOFF}, s{S_BOFF}, 0xffff")
    a(f"  v_add_u32 v{V_BA}, s{S_BOFF}, v{V_L16}")
    a("  s_waitcnt vmcnt(0)")
    a("  s_branch L_w3j")
    a.label("L_w3n")
gemm_call(7)
if OPT['w3']: a.label("L_w3j")
stamp(8); set_stream('wq', 0)
if OPT['sl']:
    gemm_call(OPT['sl']); setup_late(); gemm_call(7 - OPT['sl'])
else: gemm_call(7)
stamp(8)
a("  s_nop 7")
for c in range(2):
    for qt in range(4):
        x = V_ACC + ((2*c)*4+qt)*4; y = V_ACC + ((2*c+1)*4+qt)*4
        d = V_H + (c*4+qt)*4
        for k, s in enumerate((x, x+2, y, y+2)):
            a(f"  v_cvt_pk_bf16_f32 v{d+k}, v{s}, v{s+1}")
        for k in range(4):
            a(f"  v_pk_max_i16 v{d+k}, v{d+k}, 0")
a("; ---- Q projection")
for half in range(2):
    if half == 1 and OPT['cp3']:
        a(f"  s_getpc_b64 s[{SRD_X}:{SRD_X+1}]")
        a.label("L_pc3")
        a(f"  s_mov_b32 s{SRD_X+2}, L_tail-L_pc3")
        a(f"  s_lshr_b32 s{S_T}, s2, 3")
        a(f"  s_lshl_b32 s{S_T}, s{S_T}, 2")
        a(f"  s_add_u32 s{S_T}, s{S_T}, s{S_W}")
        a(f"  s_lshl_b32 s{S_T}, s{S_T}, 8")
        a(f"  v_lshlrev_b32 v{V_T1}, 2, v{V_LANE}")
        a(f"  buffer_load_dword v255, v{V_T1}, s[{SRD_X}:{SRD_X+3}], s{S_T} offen")
    stamp(8)
    gemm_first(); gemm_call(7)
    if half == 0:
        stamp(8)
        set_stream('wq', 1); gemm_call(7); stamp(8)
    else:
        set_stream('w2', 0); gemm_call(6)
        a(f"  s_lshl_b32 s{S_T}, s{S_ODD}, 7")
        for n in range(4): a(f"  v_xor_b32 v{V_PD+n}, s{S_T}, v{V_PD+n}")
        gemm_call(1); stamp(8)
    def qepi1():
        for c in range(2):
            for qt in range(4):
                x = V_ACC + ((2*c)*4+qt)*4; y = V_ACC + ((2*c+1)*4+qt)*4
                rp = V_RS + (qt & 2); md = "op_sel:[0,1] op_sel_hi:[1,1]" if qt & 1 else "op_sel_hi:[1,0]"
                for s in (x, x+2, y, y+2):
                    a(f"  v_pk_mul_f32 v[{s}:{s+1}], v[{s}:{s+1}], v[{rp}:{rp+1}] {md}")
                d = 128 + (c*4+qt)*4
                for k, s in enumerate((x, x+2, y, y+2)):
                    a(f"  v_cvt_pk_bf16_f32 v{d+k}, v{s}, v{s+1}")
    def qepi2():
        for c in range(2):
            for qt in range(4):
                d = 128 + (c*4+qt)*4
                a(f"  v_permlane16_swap_b32 v{d}, v{d+2}")
                a(f"  v_permlane16_swap_b32 v{d+1}, v{d+3}")
        for c in range(2):
            for qt in range(4):
                d = 128 + (c*4+qt)*4
                for k in range(4):
                    a(f"  v_accvgpr_write_b32 a{A_Q+(qt*4+2*half+c)*4+k}, v{d+k}")
    if half == 0 or not OPT['hx']:
        a("  s_nop 7"); qepi1(); a("  s_nop 0"); qepi2()
stamp()
stamp(2)
a(f"  s_lshl_b32 s{S_T}, s{S_W}, 13")
a(f"  v_add_u32 v{V_T0}, s{S_T}, v{V_L16}")
a("  s_waitcnt lgkmcnt(0)")
a("  s_barrier")
hw = [f"  ds_write_b128 v{V_T0}, v[{V_H+k*4}:{V_H+k*4+3}] offset:{k*1024}" for k in range(8)]
kd = capture(lambda: (k_tile_dma(0), k_tile_dma(1))) if not OPT['klate'] else []
if OPT['hx']:
    e1 = capture(qepi1)
    a("  s_nop 3")
    for k in range(8):
        a(hw[k])
        for l in e1[4*k:4*k+4]: a(l)
    e1 = e1[32:]
    for l in kd:
        a(l)
        if 'buffer_' in l or 'm0' in l:
            for _ in range(3): a(e1.pop(0))
    for l in e1: a(l)
else:
    for l in hw: a(l)
    k_tile_dma(0); k_tile_dma(1)
a("  s_waitcnt lgkmcnt(0)")
a("  s_barrier")
stamp(2)
b_reload(True, wait=False)
if OPT['hx']: qepi2()
a(f"  s_mov_b32 s{S_VOFF}, s{S_KV0}")
a(f"  s_cmp_lg_u32 s{S_ODD}, 0")
a("  s_cbranch_scc1 L_ffn2_odd")
def attn_init():
    L = [f"  s_add_u32 s{S_VOFF}, s{S_KV0}, {2*16384}"]
    L += [f"  v_mov_b32 v{V_L+i}, 0" for i in range(12)]
    L += [f"  v_and_b32 v{V_T0}, {15 if OPT['one1'] else 3}, v{V_LANE}", f"  v_cmp_eq_u32 vcc, 0, v{V_T0}", f"  v_mov_b32 v{V_T0}, 0x3f803f80", "  s_nop 0",
          f"  v_cndmask_b32 v{V_ONES}, 0, v{V_T0}, vcc"] + [f"  v_mov_b32 v{V_ONES+i}, v{V_ONES}" for i in range(1, 4)]
    if NSUM == 4:
        L += ["  s_nop 1"] + [f"  v_mov_b32_dpp v{V_L+i}, v{V_ONES} quad_perm:[1,0,3,2] row_mask:0xf bank_mask:0xf" for i in range(4)]
    return L
HI_CVT = capture(lambda: store_partial(0, 1, dst=160, defer=True, sreg=S_SP))
HI_CVT = [l for l in HI_CVT if 'v_cvt' in l]
WO_SET = capture(lambda: set_stream('wo', 0)) + [f"  s_mov_b32 s{S_SV_POFF}, s{S_POFF}"]
A_INIT = [l for l in attn_init() if 's_nop' not in l]
def ffn2(nf):
    gpos[0] = 48; N = 48 + 2*nf
    vq = [f"S{k}" for k in range(49, 55) for _ in range(4)] + ['K']*(0 if OPT['klate'] else 8)
    kj = ((57, 58) if nf == 8 else (53, 54)) if OPT['klate'] else ()
    vj = (59, 60) if (nf == 8 and OPT['klate']) else (57, 58)
    def yg(tag): return len(vq) - 1 - max(i for i, t in enumerate(vq) if t == tag)
    st0 = None
    stj = (59, 60) if nf == 8 else (55, 56)
    j = 48
    ns0 = nstamp[0]
    while j < N:
        if j in (48, 50, 48 + nf, 50 + nf): stamp(2)
        if j == 48 + nf: st0 = store_partial(0, 0, dst=128, defer=True, sreg=S_SP)
        if nf == 8 and j == 49: set_stream('w2', 1)
        if j == 50:
            n = 6 if nf == 8 else 3
            gemm_call(n)
            for k in range(n): vq.extend([f"S{j+k+7}"]*4)
            j += n; continue
        kw = dict(first=(j - 48) % nf < 2, vmw=(yg(f"S{j+2}") if j + 2 < N else 63), noread=(j + 2 >= N))
        if j + 7 < N: tags = [f"S{j+7}"]*4
        elif j in vj:
            kw['vm'] = [[f"  s_add_u32 m0, s{S_VM0}, {(j-vj[0])*16384}", v_dma(0)], [v_dma(1)], [v_dma(2)], [v_dma(3)]]
            if j == vj[1]: kw['xvm'] = [(5, f"  s_add_u32 s{S_VOFF}, s{S_VOFF}, 16384")]
            tags = ['V']*4
        elif j in kj:
            kw['vm'] = [[f"  s_add_u32 m0, s{S_KM0}, {kslot(j-kj[0])*16384}", k_dma(0)], [k_dma(1)], [k_dma(2)], [k_dma(3)]]
            kw['xvm'] = [(15, f"  s_add_u32 s{S_KOFF}, s{S_KOFF}, 16384")]
            tags = ['K']*4
        elif j in stj and OPT['early']:
            kw['vm'] = [[x] for x in st0[4*(j-stj[0]):4*(j-stj[0])+4]]; tags = ['st']*4
        else: kw['vm'] = []; tags = []
        if OPT['hfill'] and j == N - 2:
            kw2 = dict(vm=[], vmw=63, noread=True)
            w0 = kw['vmw']
            prog = capture(lambda: (gemm_inl(**kw), gemm_inl(**kw2)))
            prog = [l for l in prog if 's_waitcnt' not in l]
            a(f"  s_waitcnt vmcnt({w0}) lgkmcnt(0)")
            emit_sched(prog + A_INIT + WO_SET + HI_CVT[:16], f'ffn2 end {nf}')
            break
        gemm_inl(**kw); vq.extend(tags); j += 1
_ns = nstamp[0]
ffn2(8)
nstamp[0] = _ns
a("  s_branch L_ffn2_done")
iodd = len(a.lines)
a.label("L_ffn2_odd")
ffn2(6)
a.label("L_ffn2_done")
stamp(2)
a("  s_waitcnt vmcnt(12) lgkmcnt(0)")
a("  s_barrier")
stamp(2)
stamp(); stamp(4)
if OPT['stamps']:
    a("  s_memrealtime s[38:39]")
    a("  s_waitcnt lgkmcnt(0)")
QORD = [(kt, qt) for qt in range(4) for kt in range(2)]
def maxq(qt):
    x = s_reg(0, 0, qt); y = s_reg(0, 1, qt); m = V_NEGM + qt*4
    a(f"  v_max3_f32 v{m}, v{x}, v{x+1}, v{x+2}")
    a(f"  v_max3_f32 v{m+1}, v{x+3}, v{y}, v{y+1}")
    a(f"  v_max3_f32 v{m}, v{m}, v{y+2}, v{y+3}")
    a(f"  v_max_f32 v{m}, v{m}, v{m+1}")
    xlane_reduce(m, 'v_max_f32', m+1)
    for k in range(3, -1, -1): a(f"  v_sub_f32 v{m+k}, 0, v{m}")
    for kt in range(2):
        for r in range(4):
            s_ = s_reg(0, kt, qt) + r
            a(f"  v_add_f32 v{s_}, v{s_}, v{m}")
def head_common():
    L = qk_mfmas(1, order=QORD, src=A_V)
    for qt in range(4): L += sm_ops(0, qt)
    L += [k_read(2, i >> 2, i & 3) for i in range(8)] + capture(lambda: k_tile_dma(4))
    L += qk_mfmas(0, order=QORD)
    for qt in range(4): L += sm_ops(1, qt)
    L += [k_read(3, i >> 2, i & 3) for i in range(8)] + capture(lambda: v_tile_dma(2))
    return L
KR01 = [k_read(0, i >> 2, i & 3) for i in range(8)] + [k_read(1, i >> 2, i & 3, A_V) for i in range(8)]
prog = KR01 + HI_CVT[(16 if OPT['hfill'] else 0):]
prog += capture(lambda: (k_tile_dma(2), k_tile_dma(3))) + ["  s_waitcnt vmcnt(16)", "  s_barrier"]
for k in range(OPT['hst']):
    prog.append(f"  s_add_u32 s{S_SP}, s{S_PBASE}, {k*4096}")
    prog += [f"  buffer_store_dwordx4 v[{128+(k*4+qt)*4}:{131+(k*4+qt)*4}], v{V_L16}, s[{SRD_WS}:{SRD_WS+3}], s{S_SP} offen offset:{qt*1024} sc1" for qt in range(4)]
if OPT['m16']:
    prog += qk_mfmas(0, zero=True, order=[(0, qt) for qt in range(4)])
    if not OPT['hfill']: prog += A_INIT
    def max16(qt):
        x = s_reg(0, 0, qt); m = V_NEGM + qt*4
        a(f"  v_max3_f32 v{m}, v{x}, v{x+1}, v{x+2}")
        a(f"  v_max_f32 v{m}, v{m}, v{x+3}")
        xlane_reduce(m, 'v_max_f32', m+1)
        for k in range(3, -1, -1): a(f"  v_sub_f32 v{m+k}, 0, v{m}")
    for qt in range(4): prog += capture(lambda: max16(qt))
    prog += qk_mfmas(0, order=QORD)
else:
    prog += qk_mfmas(0, zero=True, order=QORD)
    if not OPT['hfill']: prog += A_INIT
    for qt in range(4): prog += capture(lambda: maxq(qt))
prog += head_common()
if not OPT['hfill']: prog += WO_SET
emit_sched(prog, 'head', vmgap=OPT['hgap'])
stamp(4)
a(f"  s_mov_b32 s{S_LOOP}, 7")
a(f"  s_and_b32 s{S_EV}, s{S_R}, 3")
a(f"  s_mov_b32 s{S_EI}, 0")
a(f"  s_waitcnt vmcnt({12 + 4*OPT['hst']})")
a("  s_branch L_p2")
segs.append(('pre', i0, len(a.lines)))
a(".p2align 6")
il = len(a.lines)
a.label("L_loop")
for p in range(8, 16):
    if p == 10: a.label("L_p2")
    if p % 2 == 0: barrier_T(16)
    else:
        if OPT['e64']: a("  s_nop 0")
        a("  s_waitcnt lgkmcnt(0)")
    if OPT['stg'] and p & 1:
        period(p, endop=f"  s_sub_u32 s{S_EV}, s{S_EV}, 1")
        a(f"  s_cbranch_scc1 L_ev{p}")
        a.label(f"L_evr{p}")
    else: period(p)
a(f"  s_sub_u32 s{S_LOOP}, s{S_LOOP}, 1")
a(f"  s_cmp_eq_u32 s{S_LOOP}, 0")
a("  s_cbranch_scc1 L_tail")
itail = len(a.lines)
a(f"  s_cmp_lg_u32 s{S_REDO}, 0")
a("  s_cbranch_scc1 L_loop")
if OPT['alt']:
    a(f"  s_cmp_lt_u32 s{S_LOOP}, 3")
    a("  s_cbranch_scc1 L_bk3")
    a(f"  s_xor_b32 s{S_T}, s{S_LOOP}, s{S_ODD}")
    a(f"  s_bitcmp1_b32 s{S_T}, 0")
    a("  s_cbranch_scc0 L_loop")
    a(f"  s_cmp_lt_u32 s{S_LOOP}, 5")
    a("  s_cbranch_scc1 L_bk1")
    for hb in range(2):
        if hb:
            a.label("L_bk1")
            for l in PFG['mb']: a(l.replace('v255', f'v{V_T0}'))
        for k in (2*hb, 2*hb+1):
            a(f"  s_add_u32 s{S_T}, s{S_PBASE}, {(k & 1)*4096 + (k >> 1)*HSTR}")
            for qt in range(4):
                d = 128 + (k*4+qt)*4
                a(f"  buffer_store_dwordx4 v[{d}:{d+3}], v{V_L16}, s[{SRD_WS}:{SRD_WS+3}], s{S_T} offen offset:{qt*1024} sc1")
        a("  s_branch L_loop")
    a.label("L_bk3")
if OPT['bsh']:
    idx = 0
    for e, n_ in enumerate((6, 5, 5)):
        a(f"  s_cmp_lg_u32 s{S_LOOP}, {5-e}")
        a(f"  s_cbranch_scc1 L_bk{e}")
        if e == 2:
            for l in PFG['mb']: a(l.replace('v255', f'v{V_T0}'))
        for z in range(idx, idx + n_):
            k, qt = z >> 2, z & 3
            if z == idx or qt == 0: a(f"  s_add_u32 s{S_T}, s{S_PBASE}, {(k & 1)*4096 + (k >> 1)*HSTR}")
            a(f"  buffer_store_dwordx4 v[{128+4*z}:{131+4*z}], v{V_L16}, s[{SRD_WS}:{SRD_WS+3}], s{S_T} offen offset:{qt*1024} sc1")
        idx += n_
        a("  s_branch L_loop")
        a.label(f"L_bk{e}")
for k in range(OPT['hst'], 0 if (OPT['stg'] or OPT['alt'] or OPT['bsh']) else 4):
    a(f"  s_cmp_lg_u32 s{S_LOOP}, {6-k}")
    a(f"  s_cbranch_scc1 L_bk{k}")
    if k == 3 and OPT['mbl']:
        for l in PFG['mb']: a(l.replace('v255', f'v{V_T0}'))
    a(f"  s_add_u32 s{S_T}, s{S_PBASE}, {(k & 1)*4096 + (k >> 1)*HSTR}")
    if OPT['w2sw']:
        a(f"  s_and_b32 s{S_T+1}, s{S_R}, 1")
        a(f"  s_mul_i32 s{S_T+1}, s{S_T+1}, {HSTR}")
        a(f"  s_xor_b32 s{S_T}, s{S_T}, s{S_T+1}")
    for qt in range(4):
        d = 128 + (k*4+qt)*4
        a(f"  buffer_store_dwordx4 v[{d}:{d+3}], v{V_L16}, s[{SRD_WS}:{SRD_WS+3}], s{S_T} offen offset:{qt*1024} sc1")
    a("  s_branch L_loop")
    a.label(f"L_bk{k}")
a(f"  s_lshl_b32 s{S_T}, s{S_R}, 2")
a(f"  s_cmp_lg_u32 s{S_LOOP}, 1")
a("  s_cbranch_scc1 L_bk4")
a(f"  v_mov_b32 v{V_T0}, 0")
a(f"  buffer_load_dword v{V_POLL}, v{V_T0}, s[{SRD_D}:{SRD_D+3}], s{S_T} offen sc1")
if OPT['cp2']:
    a(f"  s_getpc_b64 s[{SRD_X}:{SRD_X+1}]")
    a.label("L_pc2")
    a(f"  s_mov_b32 s{SRD_X+2}, L_code_end-L_pc2")
    a(f"  s_lshr_b32 s{S_T}, s2, 3")
    a(f"  s_lshl_b32 s{S_T}, s{S_T}, 2")
    a(f"  s_add_u32 s{S_T}, s{S_T}, s{S_W}")
    a(f"  s_lshl_b32 s{S_T}, s{S_T}, 8")
    a(f"  v_lshlrev_b32 v{V_T1}, 2, v{V_LANE}")
    a(f"  buffer_load_dword v128, v{V_T1}, s[{SRD_X}:{SRD_X+3}], s{S_T} offen")
    if OPT['cp2'] == 2:
        for l in PFG['wo']: a(l.replace('v253', f'v{V_T1}').replace('v254', 'v129'))
a("  s_branch L_loop")
a.label("L_bk4")
if OPT['pt']:
    a(f"  v_lshlrev_b32 v{V_T1}, 7, v{V_LANE}")
    for k in range(2):
        a(f"  s_add_u32 s{S_T+1}, s{S_PBASE}, {PART_KIND + k*8192}")
        a(f"  buffer_load_dword v{130+k}, v{V_T1}, s[{SRD_WS}:{SRD_WS+3}], s{S_T+1} offen{' sc1' if OPT['pt'] == 2 else ''}")
a(f"  s_lshl_b32 s{S_T+1}, s{S_W}, 4")
a(f"  s_or_b32 s{S_T+1}, s{S_T+1}, s{S_LOOP}")
a(f"  s_cmp_lg_u32 s{S_T+1}, 2")
a("  s_cbranch_scc1 L_loop")
a(f"  v_mov_b32 v{V_T0}, 1")
a(f"  v_lshlrev_b32 v{V_T1}, 2, v{V_LANE}")
a(f"  buffer_atomic_add v{V_T0}, v{V_T1}, s[{SRD_D}:{SRD_D+3}], s{S_T} offen sc1")
a("  s_branch L_loop")
if OPT['stg']:
    for p in (9, 11, 13, 15):
        a.label(f"L_ev{p}")
        a(f"  s_call_b64 s[{S_RET}:{S_RET+1}], L_evt")
        a(f"  s_branch L_evr{p}")
    a.label("L_evt")
    a(f"  s_mov_b32 s{S_EV}, {OPT['stg'] + 2}")
    a(f"  s_add_u32 s{S_EI}, s{S_EI}, 1")
    for k in range(4):
        if k < 3:
            a(f"  s_cmp_lg_u32 s{S_EI}, {k+1}")
            a(f"  s_cbranch_scc1 L_evk{k}")
        else:
            a(f"  s_mov_b32 s{S_EV}, 1000")
            for l in PFG['mb']: a(l.replace('v255', f'v{V_T0}'))
        a(f"  s_add_u32 s{S_T}, s{S_PBASE}, {(k & 1)*4096 + (k >> 1)*HSTR}")
        for qt in range(4):
            d = 128 + (k*4+qt)*4
            a(f"  buffer_store_dwordx4 v[{d}:{d+3}], v{V_L16}, s[{SRD_WS}:{SRD_WS+3}], s{S_T} offen offset:{qt*1024} sc1")
        a(f"  s_setpc_b64 s[{S_RET}:{S_RET+1}]")
        if k < 3: a.label(f"L_evk{k}")
segs.append(('loop2', il, len(a.lines)))
it = len(a.lines)
a.label("L_tail")
stamp(4)
a(f"  v_readfirstlane_b32 s{S_T}, v{V_POLL}")
a("  s_nop 3")
a(f"  s_cmp_ge_u32 s{S_T}, 8")
a("  s_cbranch_scc1 L_spin1_done")
a(f"  v_mov_b32 v{V_T0}, 0")
a(f"  s_lshl_b32 s{S_T+2}, s{S_R}, 2")
spin("L_spin1", SRD_D, V_T0, f"s{S_T+2}", 8)
if OPT['sib']:
    a(f"  s_lshr_b32 s{S_T}, s{S_PBASE}, 16")
    a(f"  s_xor_b32 s{S_T}, s{S_T}, 1")
    a(f"  s_lshl_b32 s{S_T}, s{S_T}, 7")
    a(f"  s_add_u32 s{S_T}, s{S_T}, {MBOX}")
    a(f"  v_mov_b32 v{V_T0}, 4")
    a(f"  buffer_load_dword v{V_L+2}, v{V_T0}, s[{SRD_WS}:{SRD_WS+3}], s{S_T} offen sc1")
gl = [part_load(0, b_ >> 3, b_ & 7, 128 + 4*b_) for b_ in range(16)]
for p in range(56, 63):
    if p % 2 == 0: barrier_T()
    else: a("  s_waitcnt lgkmcnt(0)")
    if p in (56, 58, 60, 61): period(p, dma=[gl.pop(0) for _ in range(4)])
    elif p == 62:
        ex = []
        for pos in (4, 5):
            pl = produce_list(pos); ex += [pl[:4], [pl[4]], [], [pl[5]], [], [pl[6]], [], [pl[7]]]
        period(p, last=True, extra=[[]]*16 + ex)
    else: period(p)
stamp(4)
if OPT['sib']: a(f"  v_readfirstlane_b32 s{S_SIB}, v{V_L+2}")
a("  s_waitcnt lgkmcnt(0)")
THR = 0x53800000 if not OPT['force_redo'] else 0x3f000000
prog = v_half(31, 0) + produce_list(0) + produce_list(1)
prog += pv_half(30, 1, A_K) + sum_pair(30, 2)
prog += [f"  s_mov_b32 s{S_SP}, {THR:#x}", f"  s_mov_b64 vcc, 0"]
for qt in (3, 2, 1, 0): prog += sm_ops(63, qt)
prog += v_half(31, 1, A_K) + ["  s_barrier"] + produce_list(2)
prog += sum_pair(31, 3) + sum_pair(31, 2)
for qt in (1, 0, 3, 2):
    lr = (ls_reg(qt) + (qt < 2)) if qt in SUMQT else V_L + qt
    if qt not in SUMQT: prog += capture(lambda: xlane_reduce(V_L+qt, 'v_add_f32', V_L+2+qt))
    elif OPT['one1']: prog += capture(lambda: xlane_reduce(lr, 'v_add_f32', lr+1))
    prog += [f"  v_cmp_ngt_f32 s[{S_T+2}:{S_T+3}], s{S_SP}, v{lr}", f"  s_or_b64 vcc, vcc, s[{S_T+2}:{S_T+3}]",
             f"  v_rcp_f32 v{V_NEGM+2*qt}, v{lr}"]
FLG = [f"  s_cmp_lg_u64 vcc, 0", f"  s_cselect_b32 s{S_T}, 1, 0", f"  v_mov_b32 v56, s{S_T}", f"  ds_write_b32 v{V_T1}, v56"]
prog += [f"  s_lshl_b32 s{S_T+1}, s{S_W}, 2", f"  s_add_u32 s{S_T+1}, s{S_T+1}, {RB+3*16384}",
         f"  v_and_b32 v{V_T1}, 3, v{V_LANE}", f"  v_lshlrev_b32 v{V_T1}, 12, v{V_T1}", f"  v_add_u32 v{V_T1}, s{S_T+1}, v{V_T1}"]
if not OPT['ochk']: prog += FLG
prog += [f"  s_lshl_b32 s{S_T}, s{S_W}, 14", f"  v_add_u32 v{V_T0}, s{S_T}, v{V_L16}"]
gpos[0] = 8
if OPT['af']:
    prog += [f"  v_add_u32 v{60+nt}, {3*16384}, v{V_AA+nt}" for nt in range(4)] + ["  s_waitcnt vmcnt(12)"]
    af = capture(a_first)
    for nt in range(4): af = [l.replace(f", v{V_AA+4+nt} ", f", v{60+nt} ") for l in af]
    prog += af
prog += pv_half(31, 0) + pv_half(31, 1, A_K)
def norm(c, qt, pk):
    t = qt * 12; L = []
    L += [f"  v_accvgpr_read_b32 v{t+k}, a{A_O+((2*c)*4+qt)*4+k}" for k in range(4)]
    L += [f"  v_accvgpr_read_b32 v{t+4+k}, a{A_O+((2*c+1)*4+qt)*4+k}" for k in range(4)]
    if pk: L += [f"  v_pk_mul_f32 v[{t+2*k}:{t+2*k+1}], v[{t+2*k}:{t+2*k+1}], v[{V_NEGM+2*qt}:{V_NEGM+2*qt+1}] op_sel_hi:[1,0]" for k in range(4)]
    else: L += [f"  v_mul_f32 v{t+k}, v{t+k}, v{V_NEGM+2*qt}" for k in range(8)]
    L += [f"  v_cvt_pk_bf16_f32 v{t+8+k}, v{t+2*k}, v{t+2*k+1}" for k in range(4)]
    L += [f"  ds_write_b128 v{V_T0}, v[{t+8}:{t+11}] offset:{(c*4+qt)*1024}"]
    return L
def ochk(c, qt):
    return mf(52, V_ONES, qt*12+8, None if (c, qt) == (0, 0) else 52)
NOV = OPT['nov']
todo = [(c, qt) for c in range(4) for qt in range(4)]
if OPT['ochk']:
    NOV = min(NOV, 4)
for c, qt in todo[:NOV]: prog += norm(c, qt, False)
if OPT['ochk']: prog += [ochk(c, qt) for c, qt in todo[:NOV]]
emit_sched(prog, 'tail')
stamp(); stamp(4)
if OPT['stamps']:
    a(f"  s_memrealtime s[{S_RET}:{S_RET+1}]")
    a("  s_waitcnt lgkmcnt(0)")
    a(f"  s_mov_b32 s39, s{S_RET}")
gpos[0] = 8
for nt in range(4): a(f"  v_add_u32 v{V_AA+4+nt}, {3*16384}, v{V_AA+nt}")
if not OPT['af']:
    a("  s_waitcnt vmcnt(12)")
    a_first()
pend_ = None
for c, qt in todo[NOV:]:
    L_ = norm(c, qt, True)
    if pend_: L_.insert(1, pend_)
    for l in L_: a(l)
    pend_ = ochk(c, qt) if OPT['ochk'] else None
if OPT['ochk']:
    a("  s_nop 0")
    a(pend_)
    a("  s_nop 7")
    a(f"  v_cmp_u_f32 s[{S_T+2}:{S_T+3}], v53, v53")
    a("  s_nop 2")
    a(f"  s_or_b64 vcc, vcc, s[{S_T+2}:{S_T+3}]")
    for l in FLG: a(l)
a("  s_waitcnt lgkmcnt(0)")
a("  s_barrier")
a(f"  s_add_u32 s{S_T}, s{S_VM0}, {3*16384}")
a(f"  v_mov_b32 v{V_T0}, s{S_T}")
a(f"  ds_read_b128 v[0:3], v{V_T0}")
b_reload(False, wait=False)
a("  s_waitcnt lgkmcnt(8)")
a("  v_or_b32 v0, v0, v1")
a("  v_or3_b32 v0, v0, v2, v3")
a("  s_nop 0")
a(f"  v_readfirstlane_b32 s{S_T}, v0")
a(f"  s_andn2_b32 s{S_T}, s{S_T}, s{S_REDO}")
if not OPT['noredo']: a("  s_cbranch_scc1 L_redo")
produce_slot(3); produce_slot(4)
a(f"  s_lshl_b32 s{S_T}, s{S_W}, 1")
a(f"  s_sub_u32 s{S_OWN}, s{S_G}, s{S_T}")
if OPT['sib']:
    a(f"  s_getreg_b32 s{S_T}, hwreg(HW_REG_XCC_ID, 0, 4)")
    a(f"  s_xor_b32 s{S_T+1}, s{S_OWN}, 1")
    a(f"  s_cmp_eq_u32 s{S_T}, s{S_SIB}")
    a(f"  s_cselect_b32 s{S_SIB}, s{S_T+1}, 99")
stamp()
gemm_first(); gemm_call(7); set_stream('wo', 1); gemm_call(7)
LOQ = [192, 196, 200, 204, 216, 220, 224, 228]
if OPT['own']:
    for k in range(4): a(f"  v_mov_b32 v{248+k}, 0")
    a("  s_nop 1")
    for k in range(4): a(f"  v_mfma_f32_32x32x16_bf16 a[{16*k}:{16*k+15}], v[248:251], v[248:251], 0")
st0 = store_partial(1, 0, dst=LOQ, defer=True, sreg=S_SP)
a(f"  s_mov_b32 s{SRD_X}, s{P_X}")
a(f"  s_mov_b32 s{SRD_X+1}, s{P_X+1}")
a(f"  s_mov_b32 s{SRD_X+2}, {2048*512*2}")
GL, XL, SL = 128, 248, 64
S_MB, S_DONE, S_M, S_NEW = S_KOFF, S_VOFF, S_LOOP, S_KM0
a(f"  s_lshr_b32 s{S_MB}, s{S_PBASE}, {WGSH}")
a(f"  s_lshl_b32 s{S_MB}, s{S_MB}, 7")
a(f"  s_add_u32 s{S_MB}, s{S_MB}, {MBOX}")
a(f"  s_add_u32 s{S_XO}, s{S_XO}, s{S_HSW}")
a(f"  s_xor_b32 s{S_HSW}, s{S_XO}, 128")
if OPT['fst']:
    a(f"  v_and_b32 v{V_ZERO}, 15, v{V_LANE}")
    a(f"  v_lshlrev_b32 v{V_ZERO}, 2, v{V_ZERO}")
else: a(f"  v_mov_b32 v{V_ZERO}, 0")
a(f"  v_and_b32 v{V_T0}, 15, v{V_LANE}")
a(f"  v_lshlrev_b32 v{V_T0}, 10, v{V_T0}")
if OPT['o4']:
    a(f"  v_and_b32 v{V_T1}, 16, v{V_LANE}")
    a(f"  v_lshl_add_u32 v{V_T0}, v{V_T1}, 1, v{V_T0}")
    a(f"  v_bfe_u32 v{V_T1}, v{V_LANE}, 5, 1")
    a(f"  v_lshl_add_u32 v{V_XO}, v{V_T1}, 4, v{V_T0}")
else:
    a(f"  v_lshrrev_b32 v{V_T1}, 4, v{V_LANE}")
    a(f"  v_lshl_add_u32 v{V_XO}, v{V_T1}, 3, v{V_T0}")
POLL = f"  buffer_load_dword v{V_POLL}, v{V_ZERO}, s[{SRD_WS}:{SRD_WS+3}], s{S_MB} offen sc1"
XLD = [f"  buffer_load_dwordx2 v[{XL+2*k}:{XL+2*k+1}], v{V_XO}, s[{SRD_X}:{SRD_X+3}], s{S_HSW if k >> 1 else S_XO} offen offset:{(k&1)*32}" for k in range(4)]
if OPT['o4']: XLD = [f"  buffer_load_dwordx4 v[{XL+4*i}:{XL+4*i+3}], v{V_XO}, s[{SRD_X}:{SRD_X+3}], s{S_HSW if i else S_XO} offen" for i in range(2)]
if OPT['xvol'] & 2:
    a(f"  s_bitcmp1_b32 s{S_W}, 0")
    a(f"  s_cselect_b32 s{S_FB}, 0x40000000, s{S_FB}")
S_SIG = S_KV0
a(f"  s_mov_b32 s{SRD_D}, s{P_WS}")
a(f"  s_mov_b32 s{SRD_D+1}, s{P_WS+1}")
a(f"  s_lshl_b32 s{S_SIG}, s{S_R}, 10")
a(f"  s_add_u32 s{S_SIG}, s{S_SIG}, {MBOX}")
a(f"  s_add_u32 s{S_T}, s{S_SIG}, 1024")
a(f"  s_cmp_eq_u32 s{S_W}, 0")
a(f"  s_cselect_b32 s{SRD_D+2}, s{S_T}, 0")
a(f"  s_lshl_b32 s{S_M}, 1, s{S_G}")
a(f"  v_mov_b32 v{V_T0}, s{S_M}")
a(f"  v_lshlrev_b32 v{V_T1}, 7, v{V_LANE}")
SIG = SIG2 = f"  buffer_atomic_add v{V_T0}, v{V_T1}, s[{SRD_D}:{SRD_D+3}], s{S_SIG} offen sc1"
if OPT['fst']:
    a(f"  v_lshl_add_u32 v{V_T1}, s{S_G}, 2, v{V_T1}")
    SIG = f"  buffer_store_dword v{V_T0}, v{V_T1}, s[{SRD_D}:{SRD_D+3}], s{S_SIG} offen sc1"
    SIG2 = f"  buffer_store_dword v{V_T0}, v{V_T1}, s[{SRD_D}:{SRD_D+3}], s{S_SIG} offen offset:32 sc1"
def getmask(sreg):
    if OPT['fst']:
        a(f"  v_cmp_ne_u32 vcc, 0, v{V_POLL}")
        a("  s_nop 3")
        a(f"  s_and_b32 s{sreg}, vcc_lo, 0xffff")
    else:
        a(f"  v_readfirstlane_b32 s{sreg}, v{V_POLL}")
SEL = 236
sel = [f"  v_lshrrev_b32 v{V_ONE_LO}, 4, v{V_LANE}", f"  v_bfe_u32 v{V_ONE_HI}, v{V_LANE}, 2, 2",
       f"  v_cmp_eq_u32 vcc, v{V_ONE_LO}, v{V_ONE_HI}", f"  v_and_b32 v{V_ONE_LO}, 1, v{V_LANE}", f"  v_lshlrev_b32 v{V_ONE_LO}, 4, v{V_ONE_LO}",
       f"  v_mov_b32 v{V_ONE_HI}, 0x3f80", f"  v_lshlrev_b32 v{V_ONE_HI}, v{V_ONE_LO}, v{V_ONE_HI}", f"  v_cndmask_b32 v{V_ONE_HI}, 0, v{V_ONE_HI}, vcc",
       f"  v_and_b32 v{V_ONE_LO}, 2, v{V_LANE}", f"  v_cmp_eq_u32 vcc, 0, v{V_ONE_LO}", f"  v_mov_b32 v{SEL}, 0", f"  v_mov_b32 v{SEL+1}, 0",
       f"  v_cndmask_b32 v{SEL+2}, 0, v{V_ONE_HI}, vcc", f"  v_cndmask_b32 v{SEL+3}, v{V_ONE_HI}, v{SEL}, vcc", f"  v_mov_b32 v{SEL+4}, 0", f"  v_mov_b32 v{SEL+5}, 0"]
def msum(base, acc, bt='v'):
    return [mf(acc + 4*h, SEL + 2 - 2*h, base + 4*s_, None if s_ == 0 else acc + 4*h, 'v', 'v', bt) for s_ in range(8) for h in range(2)]
SL = 0
def redirect(b_):
    return [f"  s_bitcmp1_b32 s{S_NEW}, {b_}", f"  s_cselect_b32 s{S_T+1}, s{S_FB}, 0x40000000",
            f"  s_add_u32 s{S_T+2}, s{S_T+1}, {PART_KIND + ((b_ & 7) << WGSH) + (b_ >> 3)*HSTR}",
            f"  buffer_load_dwordx4 a[{SL+4*b_}:{SL+4*b_+3}], v{V_L16}, s[{SRD_WS}:{SRD_WS+3}], s{S_T+2} offen sc1"]
vq = [f"slot{k}" for k in range(7) for _ in range(4)]
st0 = list(st0)
def trickle():
    if OPT['trk']:
        a(st0.pop(0)); vq.append('st')
trickle()
gemm_first(); vq += ['slot7']*4 + ['slot8']*4
if OPT['trk']:
    for k in range(3):
        trickle(); gemm_call(2); vq += [f"slot{9+2*k}"]*4 + [f"slot{10+2*k}"]*4
    if OPT['trk'] == 2: trickle()
    gemm_call(1); vq += ['slot15']*4
else:
    gemm_call(7); vq += [f"slot{k}" for k in range(9, 16) for _ in range(4)]
if OPT['e1']:
    a(POLL); vq.append('poll1')
def younger(tag): return len(vq) - 1 - max(i for i, t in enumerate(vq) if t == tag)
a(f"  s_mov_b32 s{S_DONE}, 0")
for j in range(9, 16):
    vm = []; tags = []; xv = None
    w_ = younger(f"slot{j+2}") if j < 14 else 63
    if j in (9, 10):
        vm = [[x] for x in st0[:4]]; tags = ['st']*len(vm); st0 = st0[4:]
    if j == 11 and not OPT['xl']: vm = [[x] for x in XLD]; tags = ['x']*len(XLD)
    if OPT['e1'] and j in (12, 13):
        if j == 12:
            w_ = younger('poll1')
            xv = [(4, f"  v_readfirstlane_b32 s{S_NEW}, v{V_POLL}"), (8, f"  s_and_b32 s{S_DONE}, s{S_NEW}, 0xff")]
        vm = [redirect(4*(j-12)+k) for k in range(4)]; tags = ['e1']*4
    if j == 14: vm = [[""], [""], [""], [POLL]]; tags = ['poll']
    if j == 15 and OPT['ilv']:
        prog = capture(lambda: (gemm_inl(vm=[], vmw=63, noread=True), store_partial(1, 1)))
        prog = [l for l in prog if 's_waitcnt' not in l]
        a("  s_nop 3")
        out, t = schedule(prog, vmgap=40)
        for l in out: a(l)
        a("  s_nop 1")
        break
    gemm_inl(vm=vm, vmw=w_, noread=(j >= 14), fillv=(sel if j == 14 else None), xvm=xv)
    vq += tags
stamp(5)
if not OPT['ilv']: store_partial(1, 1)
stamp(); stamp(5)
GA, T = 16, 48
OWNQ = 64
if OPT['own']:
    a(f"  s_cmp_gt_u32 s{S_OWN}, 1")
    a("  s_cbranch_scc1 L_own_done")
    a(f"  v_add_u32 v{V_BA}, s{S_VM0}, v{V_L16}")
    a(f"  s_cmp_eq_u32 s{S_OWN}, 1")
    a("  s_cbranch_scc1 L_own1")
    for c in range(2):
        if c: a.label("L_own1")
        if OPT['sib']:
            o = 1 - c
            a(f"  s_cmp_eq_u32 s{S_SIB}, 99")
            a(f"  s_cbranch_scc1 L_nosib{c}")
            a(f"  s_add_u32 s{S_T}, s{S_PBASE}, {PART_KIND + o*4096}")
            a(f"  s_add_u32 s{S_T+1}, s{S_T}, 8192")
            for qt in range(4):
                x = V_ACC + ((2*o)*4+qt)*4
                a(f"  buffer_store_dwordx4 v[{LOQ[4*o+qt]}:{LOQ[4*o+qt]+3}], v{V_L16}, s[{SRD_WS}:{SRD_WS+3}], s{S_T} offen offset:{qt*1024}")
                a(f"  buffer_store_dwordx4 v[{x}:{x+3}], v{V_L16}, s[{SRD_WS}:{SRD_WS+3}], s{S_T+1} offen offset:{qt*1024}")
            a.label(f"L_nosib{c}")
        for qt in range(4):
            a(f"  ds_write_b128 v{V_BA}, v[{LOQ[4*c+qt]}:{LOQ[4*c+qt]+3}] offset:{qt*1024}")
            x = V_ACC + ((2*c)*4+qt)*4
            a(f"  ds_write_b128 v{V_BA}, v[{x}:{x+3}] offset:{16384+qt*1024}")
        if c == 0: a("  s_branch L_own_w")
    a.label("L_own_w")
    if OPT['sib']:
        a(f"  s_cmp_eq_u32 s{S_SIB}, 99")
        a("  s_cbranch_scc1 L_own_done")
        a("  s_waitcnt vmcnt(0)")
    a.label("L_own_done")
    a(f"  s_lshr_b32 s{S_T}, s{S_G}, 1")
    a(f"  s_lshl_b32 s{S_T}, s{S_T}, 2")
    a(f"  s_add_u32 s{S_T}, s{S_T}, s{S_W}")
    a(f"  s_lshl_b32 s{S_T}, s{S_T}, 10")
    a(f"  s_add_u32 s{S_T}, s{S_T}, {RB}")
    a("  s_waitcnt lgkmcnt(0)")
    a(f"  v_add_u32 v{V_BA}, s{S_T}, v{V_L16}")
a("  s_waitcnt vmcnt(8)")
a("  s_barrier")
a(SIG)
if OPT['own']:
    a(f"  ds_read_b128 v[{OWNQ}:{OWNQ+3}], v{V_BA}")
    a(f"  ds_read_b128 v[{OWNQ+4}:{OWNQ+7}], v{V_BA} offset:16384")
getmask(S_NEW)
a(f"  v_lshlrev_b32 v{V_T0}, 8, v{V_T0}")
a("  s_nop 2")
if OPT['own']:
    a(f"  s_mul_i32 s{S_M}, s{S_M}, 0x101")
    a(f"  s_or_b32 s{S_DONE}, s{S_DONE}, s{S_M}")
    a(f"  s_mov_b32 s{S_M}, s{S_NEW}")
else:
    a(f"  s_or_b32 s{S_NEW}, s{S_NEW}, s{S_M}")
    a(f"  s_lshl_b32 s{S_M}, s{S_M}, 8")
    a(f"  s_or_b32 s{S_M}, s{S_M}, s{S_NEW}")
W1 = list(range(8, 15)) if OPT['e1'] else list(range(7))
W2 = ([15] if OPT['e1'] else list(range(7, 16))) if OPT['r2'] else []
S_SBM, S_SBO = S_FOFF, S_ROT7
if OPT['sib']:
    a(f"  s_xor_b32 s{S_T}, s{S_G}, 1")
    a(f"  s_lshl_b32 s{S_SBO}, s{S_T}, 16")
    a(f"  s_add_u32 s{S_SBO}, s{S_SBO}, s{S_FB}")
    a(f"  s_lshl_b32 s{S_T}, 0x101, s{S_T}")
    a(f"  s_cmp_eq_u32 s{S_SIB}, 99")
    a(f"  s_cselect_b32 s{S_SBM}, 0, s{S_T}")
    a(f"  s_andn2_b32 s{S_NEW}, s{S_NEW}, s{S_SBM}")
    for k in range(8): a(f"  v_mov_b32 v{OWNQ+8+k}, 0")
a(f"  s_and_b32 s{S_NEW}, s{S_NEW}, {sum(1 << b_ for b_ in W1 + W2):#x}")
a(f"  s_or_b32 s{S_DONE}, s{S_DONE}, s{S_NEW}")
fl = []
for s_ in W1:
    r_ = redirect(s_); fl += [r_[:2], r_[2:]]
def silu(acc):
    L = [f"  v_mul_f32 v{acc+e}, v{acc+e}, v{V_RSO}" for e in range(8)]
    def rp(r): return [f"  v_cvt_pk_bf16_f32 v{T+(r&2)//2}, v{r}, v{r+1}", f"  v_lshlrev_b32 v{r}, 16, v{T+(r&2)//2}", f"  v_and_b32 v{r+1}, 0xffff0000, v{T+(r&2)//2}"]
    for j in range(4): L += rp(acc+2*j)
    L += [f"  v_mul_f32 v{T+4+e}, 0xbfb8aa3b, v{acc+e}" for e in range(8)]
    L += [f"  v_exp_f32 v{T+4+e}, v{T+4+e}" for e in range(8)]
    L += [f"  v_add_f32 v{T+4+e}, 1.0, v{T+4+e}" for e in range(8)]
    L += [f"  v_rcp_f32 v{T+4+e}, v{T+4+e}" for e in range(8)]
    L += [f"  v_mul_f32 v{acc+e}, v{acc+e}, v{T+4+e}" for e in range(8)]
    for j in range(4): L += rp(acc+2*j)
    return L
s0 = silu(GA)
for g, l in enumerate(msum(GL, GA) + msum(GL + 32, GA + 8)):
    a(l)
    if g < len(fl):
        for x in fl[g]: a(x)
    if g >= 23:
        a(s0.pop(0)); a(s0.pop(0))
for b_ in W2:
    for l in redirect(b_): a(l)
    for _ in range(5):
        if s0: a(s0.pop(0))
s1 = silu(GA + 8)
if OPT['sv'] >= 1:
    for l in s0: a(l)
    s0 = []
if OPT['sv'] >= 2:
    for l in s1: a(l)
    s1 = []
stamp(5)
a(f"  s_waitcnt vmcnt({8 + len(W2)})")
a("  s_barrier")
a(SIG2)
stamp(5)
def fround(first=False):
    if not first:
        if OPT['pslp']: a(f"  s_sleep {OPT['pslp']}")
        a(POLL)
        a("  s_waitcnt vmcnt(0)")
        getmask(S_M)
        a("  s_nop 3")
    a(f"  s_call_b64 s[{S_RET}:{S_RET+1}], L_round")
fround(True)
if OPT['xl']:
    for l in XLD: a(l)
XU = 72
def SAr(i): return 8*i
pre_ = []
for i in range(2):
    pre_ += [mf(SAr(i) + 4*h, SEL + 2 - 2*h, OWNQ + 4*i, None) for h in range(2)]
    pre_ += [f"  v_permlane16_swap_b32 v{XL+4*i}, v{XL+4*i+2}", f"  v_permlane16_swap_b32 v{XL+4*i+1}, v{XL+4*i+3}"]
    for j in range(4):
        xr = XL + 4*i + j
        pre_ += [f"  v_lshlrev_b32 v{XU+8*i+2*j}, 16, v{xr}", f"  v_and_b32 v{XU+8*i+2*j+1}, 0xffff0000, v{xr}"]
a("  s_waitcnt lgkmcnt(0)")
emit_sched(s0 + s1 + pre_, 'silu')
stamp(5)
a(f"  s_mov_b32 s{SRD_D}, s{P_OUT}")
a(f"  s_mov_b32 s{SRD_D+1}, s{P_OUT+1}")
a(f"  s_mov_b32 s{SRD_D+2}, {2048*512*2}")
a(f"  s_mov_b32 s{S_CNT}, {OPT['spin']}")
def ost4(i): return f"  buffer_store_dwordx4 v[{XL+4*i}:{XL+4*i+3}], v{V_XO}, s[{SRD_D}:{SRD_D+3}], s{S_HSW if i else S_XO} offen"
def fin_m(i):
    SA = SAr(i)
    return [mf(SA + 4*h, SEL + 2 - 2*h, SL + i*32 + 4*s_, SA + 4*h, 'v', 'v', 'a') for h in range(2) for s_ in range(8)]
def fin_v(i):
    SA = SAr(i); L = []
    for h in range(2):
        t = T + 4*i + 2*h
        rp = lambda r, t_: [f"  v_cvt_pk_bf16_f32 v{t_}, v{r}, v{r+1}", f"  v_lshlrev_b32 v{r}, 16, v{t_}", f"  v_and_b32 v{r+1}, 0xffff0000, v{t_}"]
        if OPT['ffma']:
            L += [f"  v_fma_f32 v{SA+4*h+e}, v{SA+4*h+e}, v{GA+8*i+4*h+e}, v{XU+8*i+4*h+e}" for e in range(4)]
        else:
            for j in range(2): L += rp(SA+4*h+2*j, t+j)
            L += [f"  v_mul_f32 v{SA+4*h+e}, v{SA+4*h+e}, v{GA+8*i+4*h+e}" for e in range(4)]
            for j in range(2): L += rp(SA+4*h+2*j, t+j)
            L += [f"  v_add_f32 v{SA+4*h+e}, v{SA+4*h+e}, v{XU+8*i+4*h+e}" for e in range(4)]
        L += [f"  v_cvt_pk_bf16_f32 v{XL+4*i+2*h+j}, v{SA+4*h+2*j}, v{SA+4*h+2*j+1}" for j in range(2)]
    L += [f"  v_permlane16_swap_b32 v{XL+4*i}, v{XL+4*i+2}", f"  v_permlane16_swap_b32 v{XL+4*i+1}, v{XL+4*i+3}"]
    return L
for i in range(2):
    a.label(f"L_sp{i}")
    a(f"  s_cmp_eq_u32 s{S_DONE}, 0xffff")
    a(f"  s_cbranch_scc1 {'L_both' if i == 0 else 'L_sp1_done'}")
    a(f"  s_bfe_u32 s{S_T+3}, s{S_DONE}, {(8 << 16) | (8*i)}")
    fround()
    if i == 0:
        a(f"  s_cmp_eq_u32 s{S_T+3}, 0xff")
        a(f"  s_cbranch_scc1 L_sp{i}_done")
    a(f"  s_sub_u32 s{S_CNT}, s{S_CNT}, 1")
    a(f"  s_cbranch_scc0 L_sp{i}")
    a(f"  s_mov_b32 s{S_CNT}, 0")
    a.label(f"L_sp{i}_done")
    if i == 0: emit_sched(fin_m(0) + fin_v(0), 'fin0')
    else:
        a("  s_waitcnt vmcnt(0)")
        emit_sched([ost4(0)] + fin_m(1) + fin_v(1) + [ost4(1)], 'fin1')
a("  s_branch L_fin")
ib = len(a.lines)
a.label("L_both")
a("  s_waitcnt vmcnt(0)")
emit_sched(fin_m(0) + fin_m(1) + fin_v(0) + [ost4(0)] + fin_v(1) + [ost4(1)], 'both')
a.label("L_fin")
stamp(); stamp(5)
if OPT['stamps']:
    a("  s_waitcnt vmcnt(0)")
    stamp(0)
    a(f"  s_memrealtime s[{S_T}:{S_T+1}]")
    a("  s_waitcnt lgkmcnt(0)")
    n = nstamp[0]
    for i in range(n):
        a(f"  v_writelane_b32 v0, s{S_STAMP+2*i}, {i}")
    a(f"  v_writelane_b32 v0, s{S_T}, 15")
    a(f"  v_writelane_b32 v0, s74, 14")
    a(f"  v_writelane_b32 v0, s38, 12")
    a(f"  v_writelane_b32 v0, s39, 13")
    a(f"  s_lshl_b32 s{S_T}, s2, 2")
    a(f"  s_add_u32 s{S_T}, s{S_T}, s{S_W}")
    a(f"  s_lshl_b32 s{S_T}, s{S_T}, 6")
    a(f"  s_add_u32 s{S_T}, s{S_T}, {STAMP_OFF}")
    a(f"  v_lshlrev_b32 v1, 2, v{V_LANE}")
    a(f"  v_cmp_gt_u32 vcc, 16, v{V_LANE}")
    a(f"  s_and_saveexec_b64 s[{S_T+2}:{S_T+3}], vcc")
    a(f"  buffer_store_dword v0, v1, s[{SRD_WS}:{SRD_WS+3}], s{S_T} offen")
a.label("L_end")
a("  s_endpgm")
segs.append(('tail', 'tailjoin', (il, itail, it, len(a.lines))))
ir = len(a.lines)
a.label("L_redo")
a("  s_waitcnt lgkmcnt(0)")
a(f"  s_mov_b32 s{S_REDO}, 1")
a(f"  s_mov_b32 s{S_KOFF}, s{S_KV0}")
a(f"  s_mov_b32 s{S_LOOP}, 32")
a(f"  v_mov_b32 v{V_T0}, 0xff800000")
for qt in range(4): a(f"  v_mov_b32 v{V_NEGM+qt*4}, v{V_T0}")
a.label("L_redo_loop")
a("  s_waitcnt vmcnt(0) lgkmcnt(0)")
a("  s_barrier")
k_tile_dma(0)
a("  s_waitcnt vmcnt(0)")
a("  s_barrier")
for u in range(2):
    for i in range(8): a(k_read(u, i >> 2, i & 3))
    a("  s_waitcnt lgkmcnt(0)")
    for l in qk_mfmas(0, zero=True): a(l)
    a("  s_nop 7")
    for qt in range(4):
        m = V_NEGM + qt*4
        for kt in range(2):
            x = s_reg(0, kt, qt)
            a(f"  v_max3_f32 v{m}, v{x}, v{x+1}, v{m}")
            a(f"  v_max3_f32 v{m}, v{x+2}, v{x+3}, v{m}")
a(f"  s_sub_u32 s{S_LOOP}, s{S_LOOP}, 1")
a(f"  s_cmp_lg_u32 s{S_LOOP}, 0")
a("  s_cbranch_scc1 L_redo_loop")
for qt in range(4):
    m = V_NEGM + qt*4
    xlane_reduce(m, 'v_max_f32', m+1)
    a(f"  v_xor_b32 v{m}, 0x80000000, v{m}")
    for k in range(1, 4): a(f"  v_mov_b32 v{m+k}, v{m}")
a("  s_barrier")
a(f"  s_mov_b32 s{S_KOFF}, s{S_KV0}")
a(f"  s_mov_b32 s{S_VOFF}, s{S_KV0}")
for t in range(4): k_tile_dma(t)
for t in range(2): v_tile_dma(t)
a(f"  s_mov_b32 s{S_POFF}, s{S_SV_POFF}")
a("  s_waitcnt vmcnt(0)")
a("  s_barrier")
zero_o()
for l in attn_init(): a(l)
emit_sched(KR01 + ["  s_barrier"] + qk_mfmas(0, order=QORD) + head_common(), 'redo head')
a(f"  s_mov_b32 s{S_LOOP}, 7")
a("  s_branch L_p2")
segs.append(('redo', ir, len(a.lines)))
a.label("L_round")
a(f"  s_andn2_b32 s{S_NEW}, s{S_M}, s{S_DONE}")
a(f"  s_or_b32 s{S_DONE}, s{S_DONE}, s{S_M}")
if OPT['sib']:
    a(f"  s_and_b32 s{S_T}, s{S_NEW}, s{S_SBM}")
    a("  s_cbranch_scc0 L_rsib")
    a(f"  s_or_b32 s{S_DONE}, s{S_DONE}, s{S_SBM}")
    a(f"  s_andn2_b32 s{S_NEW}, s{S_NEW}, s{S_SBM}")
    for i in range(2):
        a(f"  s_add_u32 s{S_T}, s{S_SBO}, {PART_KIND + i*8192}")
        a(f"  buffer_load_dwordx4 v[{OWNQ+8+4*i}:{OWNQ+11+4*i}], v{V_L16}, s[{SRD_WS}:{SRD_WS+3}], s{S_T} offen{['', ' nt', ' sc0'][OPT['sib']-1]}")
    a.label("L_rsib")
for h in range(4):
    a(f"  s_and_b32 s{S_T}, s{S_NEW}, {0xf << (4*h)}")
    a(f"  s_cbranch_scc0 L_rs{h}")
    for b_ in range(4*h, 4*h+4):
        pl = part_load(1, b_ >> 3, b_ & 7, SL + b_*4, 'a')
        a(pl[0])
        a(f"  s_bitcmp1_b32 s{S_NEW}, {b_}")
        a(f"  s_cselect_b64 exec, -1, 0")
        a(pl[1])
    a("  s_mov_b64 exec, -1")
    a.label(f"L_rs{h}")
a(f"  s_setpc_b64 s[{S_RET}:{S_RET+1}]")
a(".p2align 6")
ig = len(a.lines)
for pos in range(12):
    a.label(f"L_gemm{pos}")
    gemm_step(pos, False, pos in CKPT)
    if pos not in CKPT: continue
    if pos < 11: a("  s_cbranch_scc1 L_gemm_ret")
    else: a("  s_cbranch_scc0 L_gemm0")
a.label("L_gemm_ret")
a(f"  s_setpc_b64 s[{S_RET}:{S_RET+1}]")
segs.append(('gemm2', ig, len(a.lines)))
a.label("L_code_end")

a('.section .rodata,"a"')
a(".p2align 6")
a(kernel_desc(NAME + "_kernel", 512, 102, 256))

errs = []
for s in segs:
    if s[1] == 'tailjoin':
        il_, itail_, it_, end_ = s[2]
        errs += hazard.check(a.lines[il_:itail_] + a.lines[it_:end_], 'tail')
    elif s[0].endswith('2'):
        errs += hazard.check(a.lines[s[1]:s[2]] * 2, s[0])
    else:
        errs += hazard.check(a.lines[s[1]:s[2]], s[0])
for e in errs[:40]: print("HAZ", e)
open(sys.argv[1], 'w').write(a.text())
print("written", sys.argv[1], len(a.lines), "lines;", len(errs), "hazard msgs")
```

```python
import sys, math
from asmlib import *
import hazard
from sched import schedule

NAME = "recurrent_scan__gqa_block_cached__dense_activation_relu__prompt"
OPT = dict(stamps=0, mimic_d=1, nsum=2, force_redo=0, pf=0, ng=2, rot=1, late=4, tlb=0, spin=200000, dot=1, xnobar=0, xnodma=0, xnost=0, noredo=0, pol=0, cpos=0, n1=8, w1pf=0, slp=0, xk=0, xv=0, xe=0, xa=0, xs=16, snake=1, nov=6, flip=0, early=0, ilv=0, stf=0, mbl=1, e64=0, xl=0, cp2=1, cp3=0, hsw=0, hx=1, o4=1, klate=1, rt=0, trk=0, e1=0, r2=0, own=1, pt=0, sib=0, xsz=1, lnd=0, pre=0, sl=0, rm=15, one1=0, hfill=1, m16=0, of=0, hst=0, hgap=64, ffma=1, sv=0, lay=1, skew=0, fst=0, pslp=0, w3=4, w2sw=0, stg=0, alt=0, kvr=0, ck=1, xvol=0, ln2=0, spA=0, spB=0, af=1, ochk=1, bsh=0)
for x in sys.argv[2:]:
    k, v = x.split('='); OPT[k] = int(v)

POL = {0: '', 1: ' nt', 2: ' sc1', 3: ' sc0', 4: ' sc0 sc1', 5: ' sc1 nt'}[OPT['pol']]
a = Asm()
segs = []

S_W, S_G, S_R = 4, 5, 6
S_RET = 8
S_CNT, S_CSLOT, S_PSLOT, S_POFF, S_STA, S_STB = 10, 11, 12, 13, 14, 15
P_X, P_K, P_V, P_WQ, P_WO, P_W1, P_W2, P_WS, P_DBG, P_OUT = 16, 18, 20, 22, 24, 28, 30, 36, 34, 32
S_PLO, S_PHI = 38, 39
S_BOFF, S_BEND, S_FOFF, S_PLEN, S_ROT16, S_ROT7, S_ODD = 3, 7, 26, 27, 100, 101, 15
SRD_W, SRD_K, SRD_V, SRD_WS, SRD_X = 40, 44, 48, 52, 56
S_KOFF, S_VOFF, S_LOOP, S_KM0, S_VM0, S_PBASE, S_REDO = 60, 61, 62, 63, 64, 65, 66
S_SV_POFF, S_KV0 = 68, 69
S_SP = 94
S_OWN = 68
S_SIB = 15
S_EV, S_EI = 26, 101
S_HSW = 67
S_T = 70
S_STAMP = 76

V_ACC, V_A, V_B = 0, 64, 96
V_S, V_P, V_NEGM, V_L, V_LS, V_ONES = 0, 64, 96, 112, 116, 124
V_H = 176
V_PROW, V_PSWZ, V_BA, V_LANE, V_L16, V_T0, V_T1 = 208, 209, 210, 212, 213, 214, 215
V_KA, V_VA, V_KD, V_VD, V_PD, V_AA = 216, 220, 228, 232, 236, 240
A_O, A_Q, A_K, A_V = 0, 128, 192, 224
RB = 65536
LAY = OPT['lay']
HSTR = (8 << 20) if LAY else 8192
WGSH = 15 if LAY else 16
NS = 6
PART_KIND = 16 << 20
STAMP_OFF = 48 << 20
MBOX = 40 << 20
SRD_D = 96
S_FB, S_XO = 11, 12
V_XO = 211
PBUF = [[64, 68, 72, 76], [80, 84, 88, 92], [192, 196, 200, 204], [208, 244, 248, 252]]
V_POLL = 234
V_RSO, V_RS = 235, 160
import struct
CSH = struct.unpack('<I', struct.pack('<f', (128 ** -0.5) * math.log2(math.e)))[0]
V_ONE_LO, V_ONE_HI, V_ZERO = 232, 233, 209

nstamp = [0]
def stamp(lvl=1):
    if OPT['stamps'] == lvl or (OPT['stamps'] and lvl == 0):
        i = nstamp[0]
        if i >= 9: return
        nstamp[0] += 1
        a(f"  s_mem{'real' if OPT['rt'] else ''}time s[{S_STAMP+2*i}:{S_STAMP+2*i+1}]")

def capture(fn):
    i = len(a.lines); fn(); L = a.lines[i:]; del a.lines[i:]
    return [l for l in L if l.strip() and not l.strip().startswith('s_nop') and not l.strip().startswith(';')]
def emit_sched(prog, name, **kw):
    out, t = schedule(prog, **kw)
    for l in out: a(l)
    print(f"  sched {name}: {len(out)} instrs, est {t} cycles")
def mf(d, A, B, C, dt='v', at='v', bt='v'):
    c = '0' if C is None else f"{dt}[{C}:{C+3}]"
    return f"  v_mfma_f32_16x16x32_bf16 {dt}[{d}:{d+3}], {at}[{A}:{A+3}], {bt}[{B}:{B+3}], {c}"

def prod_m0(pos):
    return [f"  s_add_u32 m0, s{S_VM0}, {pos*16384}"]
def prod_dma(n):
    return f"  buffer_load_dwordx4 v{V_PD+n}, s[{SRD_W}:{SRD_W+3}], s{S_POFF} offen offset:{n*1024}{POL} lds"
def prod_adv():
    return [f"  s_add_u32 s{S_POFF}, s{S_POFF}, s{S_STA}",
            f"  s_cmp_eq_u32 s{S_POFF}, s{S_PLEN}",
            f"  s_cselect_b32 s{S_POFF}, 0, s{S_POFF}"]
def produce_list(pos):
    return prod_m0(pos) + prod_adv() + [prod_dma(n) for n in range(4)]
def produce_slot(pos):
    for l in produce_list(pos): a(l)

def set_stream(kind, half=0):
    if kind == 'null':
        a(f"  s_mov_b32 s{SRD_W+2}, 0"); return
    if half == 1:
        for n in range(4): a(f"  v_xor_b32 v{V_PD+n}, 128, v{V_PD+n}")
        return
    ptr, size, stride = dict(w1=(P_W1, 512*1792*2, 3584), wq=(P_WQ, 512*4096*2, 8192), w2=(P_W2, 1792*512*2, 1024),
                             wo=(P_WO, 4096*512*2, 1024), v=(P_V, 8*2048*128*2, 0))[kind]
    a(f"  s_mov_b32 s{SRD_W}, s{ptr}")
    a(f"  s_mov_b32 s{SRD_W+1}, s{ptr+1}")
    a(f"  s_mov_b32 s{SRD_W+2}, {size}")
    a(f"  s_mov_b32 s{S_T}, {stride}")
    a(f"  v_mad_u32_u24 v{V_PD}, v{V_PROW}, s{S_T}, v{V_PSWZ}")
    src, gsft, wsft = dict(w1=(S_FOFF, 1, 7), wq=(S_G, 10, 8), w2=(S_FOFF, 10, 8), wo=(S_G, 19, 8))[kind]
    a(f"  s_lshl_b32 s{S_T}, s{src}, {gsft}")
    a(f"  s_lshl_b32 s{S_T+1}, s{S_W}, {wsft}")
    a(f"  s_add_u32 s{S_T}, s{S_T}, s{S_T+1}")
    if kind != 'w1': a(f"  s_add_u32 s{S_T}, s{S_T}, s{S_HSW}")
    if kind == 'w2' and OPT['w2sw']:
        a(f"  s_and_b32 s{S_T+1}, s{S_R}, 1")
        a(f"  s_lshl_b32 s{S_T+1}, s{S_T+1}, 7")
        a(f"  s_add_u32 s{S_T}, s{S_T}, s{S_T+1}")
    a(f"  v_add_u32 v{V_PD}, s{S_T}, v{V_PD}")
    for n in range(1, 4): a(f"  v_add_u32 v{V_PD+n}, {n*(8*stride-1024)}, v{V_PD}")
    a(f"  s_mov_b32 s{S_STA}, {32*stride}")
    if kind == 'w1':
        a(f"  s_lshl_b32 s{S_T}, s{S_ODD}, 2")
        a(f"  s_or_b32 s{S_T}, s{S_T}, s{S_W}")
        a(f"  s_cmp_eq_u32 s{S_T}, 7")
        a(f"  s_cselect_b32 s{SRD_W+2}, 0, s{SRD_W+2}")
    if kind == 'w2':
        a(f"  s_lshl_b32 s{S_T}, s{S_ODD}, 16")
        a(f"  s_sub_u32 s{S_PLEN}, {8*32*stride}, s{S_T}")
    else: a(f"  s_mov_b32 s{S_PLEN}, {16*32*stride}")
    a(f"  s_mul_i32 s{S_POFF}, s{S_ROT7 if kind == 'w2' else S_ROT16}, {32*stride}")
    a(f"  s_sub_u32 s{S_POFF}, s{S_POFF}, s{S_STA}")

def b_adv():
    return [f"  s_add_u32 s{S_BOFF}, s{S_BOFF}, 4096",
            f"  s_cmp_eq_u32 s{S_BOFF}, s{S_BEND}",
            f"  s_cselect_b32 s{S_BOFF}, 0, s{S_BOFF}",
            f"  v_add_u32 v{V_BA}, s{S_BOFF}, v{V_L16}"]
def rpos(i): return (2 + i) % NS
def fA(k): return ('v', V_A + 16*k) if k < 2 else ('a', A_K + 16*(k-2))
def fB(k): return ('v', V_B + 16*k) if k < 2 else ('a', A_V + 16*(k-2))
def a_read(i, nt, rd):
    t, b = fA(i & 3); d = b + nt*4 + rd*2; slot = rpos(i)
    return f"  ds_read_b64_tr_b16 {t}[{d}:{d+1}], v{V_AA+nt+4*(slot//3)} offset:{(slot%3)*16384+rd*2048}"
def b_read(i, qt):
    t, b = fB(i & 3); d = b + qt*4
    return f"  ds_read_b128 {t}[{d}:{d+3}], v{V_BA} offset:{qt*1024}"

def gemm_step(i, first=False, loop=False, vm=None, vmw=16, noread=False, fillv=None, xvm=None):
    a(f"  s_waitcnt vmcnt({vmw}) lgkmcnt(0)")
    mem = [b_read(i+2, qt) for qt in range(4)] + [a_read(i+2, nt, rd) for nt in range(4) for rd in range(2)] + [prod_dma(n) for n in range(4)]
    ex = [[] for _ in range(16)]
    ba = b_adv(); pa = prod_adv()
    for k in range(4): ex[k].append(ba[k])
    if vm is None:
        for k in range(3): ex[4+k].append(pa[k])
        ex[7] += prod_m0(rpos(i+1))
    else:
        for k in range(4):
            mem[12+k] = vm[k][-1] if k < len(vm) else ""
            if k < len(vm): ex[11+k-(1 if k == 0 else 0)] += vm[k][:-1]
    if noread:
        for k in range(12): mem[k] = ""
        for k in range(4): ex[k] = []
    if xvm:
        for g_, l in xvm: ex[g_].append(l)
    if fillv:
        for k, l in enumerate(fillv): ex[k].append(l)
    if loop: ex[11].append(f"  s_sub_u32 s{S_CNT}, s{S_CNT}, 1")
    g = 0; s0 = i & 2
    for nt in (2*(i & 1), 2*(i & 1) + 1):
        for q_ in range(4):
            qt = 3 - q_ if nt & 1 else q_
            acc = V_ACC + (nt*4+qt)*4
            for u_ in range(2):
                u = u_ ^ (q_ & 1)
                (ta, ba_), (tb, bb) = fA(s0+u), fB(s0+u)
                a(mf(acc, ba_+nt*4, bb+qt*4, None if (first and u_ == 0) else acc, 'v', ta, tb))
                a(mem[g])
                for l in ex[g]: a(l)
                g += 1

gpos = [0]
CKPT = {8, 3, 0, 7, 4, 10, 11} if OPT['ck'] else set(range(12))
def gemm_call(n):
    assert (gpos[0] + n - 1) % 12 in CKPT, (gpos[0], n)
    nck = sum(1 for k in range(n) if (gpos[0] + k) % 12 in CKPT)
    a(f"  s_mov_b32 s{S_CNT}, {nck-1}")
    a(f"  s_call_b64 s[{S_RET}:{S_RET+1}], L_gemm{gpos[0] % 12}")
    gpos[0] += n
def gemm_inl(**kw):
    gemm_step(gpos[0] % 12, **kw); gpos[0] += 1
def gemm_first():
    gemm_inl(first=True); gemm_inl(first=True)
def b_reload(ffn2, wait=True):
    if wait: a("  s_waitcnt lgkmcnt(0)")
    a(f"  s_lshl_b32 s{S_BOFF}, s{S_ROT7 if ffn2 else S_ROT16}, 12")
    if ffn2: a(f"  s_lshr_b32 s{S_BEND}, s{S_PLEN}, 3")
    else: a(f"  s_mov_b32 s{S_BEND}, {16*4096}")
    a(f"  v_add_u32 v{V_BA}, s{S_BOFF}, v{V_L16}")
    for k in range(2):
        for qt in range(4): a(b_read(gpos[0] + k, qt))
        for l in b_adv(): a(l)
def a_first():
    for k in range(2):
        for nt in range(4):
            for rd in range(2): a(a_read(gpos[0] + k, nt, rd))

def store_partial(kind, half, dst=None, defer=False, sreg=S_T):
    a("  s_nop 5")
    a(f"  s_add_u32 s{sreg}, s{S_PBASE}, {kind*PART_KIND + half*HSTR}")
    a(f"  s_add_u32 s{sreg+1}, s{sreg}, 4096")
    if kind == 1 and OPT['own']:
        for c in range(2):
            a(f"  s_cmp_eq_u32 s{S_OWN}, {c}")
            a(f"  s_cselect_b32 s{sreg+c}, 0x40000000, s{sreg+c}")
            if OPT['sib']:
                a(f"  s_cmp_eq_u32 s{S_SIB}, {c}")
                a(f"  s_cselect_b32 s{sreg+c}, 0x40000000, s{sreg+c}")
    if kind == 1 and OPT['xvol'] & 1: a(f"  s_mov_b32 s{sreg+1}, 0x40000000")
    if kind == 1 and OPT['xvol'] & 4:
        a(f"  s_mov_b32 s{sreg+1}, 0x40000000"); a(f"  s_mov_b32 s{sreg}, 0x40000000")
    st = []
    for c in range(2):
        for qt in range(4):
            x = V_ACC + ((2*c)*4+qt)*4; y = V_ACC + ((2*c+1)*4+qt)*4
            d = x if dst is None else (dst[c*4+qt] if isinstance(dst, list) else dst + (c*4+qt)*4)
            a(f"  v_cvt_pk_bf16_f32 v{d}, v{x}, v{x+1}")
            a(f"  v_cvt_pk_bf16_f32 v{d+1}, v{x+2}, v{x+3}")
            a(f"  v_cvt_pk_bf16_f32 v{d+2}, v{y}, v{y+1}")
            a(f"  v_cvt_pk_bf16_f32 v{d+3}, v{y+2}, v{y+3}")
            l = f"  buffer_store_dwordx4 v[{d}:{d+3}], v{V_L16}, s[{SRD_WS}:{SRD_WS+3}], s{sreg+c} offen offset:{qt*1024} {['sc1', 'sc0 sc1', 'sc1 nt'][OPT['stf']]}"
            if defer: st.append(l)
            else: a(l)
    if not defer: a("  s_nop 1")
    return st

def spin(label, srd, voff, soff, target):
    a(f"  s_mov_b32 s{S_T+1}, {OPT['spin']}")
    a.label(label)
    a(f"  buffer_load_dword v{V_POLL}, v{voff}, s[{srd}:{srd+3}], {soff} offen sc1")
    a("  s_waitcnt vmcnt(0)")
    a(f"  v_readfirstlane_b32 s{S_T}, v{V_POLL}")
    a(f"  s_sub_u32 s{S_T+1}, s{S_T+1}, 1")
    a(f"  s_cbranch_scc1 {label}_done")
    a(f"  s_cmp_lt_u32 s{S_T}, {target}")
    a(f"  s_cbranch_scc1 {label}")
    a.label(label + "_done")

def part_load(kind, i, src, d, t='v'):
    return [f"  s_add_u32 s{S_T+2}, s{S_FB}, {kind*PART_KIND + (src << WGSH) + i*HSTR}",
            f"  buffer_load_dwordx4 {t}[{d}:{d+3}], v{V_L16}, s[{SRD_WS}:{SRD_WS+3}], s{S_T+2} offen sc1"]
def part_sum(base, acc, T, vm0=None):
    for s_ in range(8):
        if vm0 is not None and s_ % 2 == 0: a(f"  s_waitcnt vmcnt({vm0-s_-1})")
        d = base + s_*4
        for j in range(4):
            lo, hi = acc+2*j, acc+2*j+1
            if s_ == 0:
                a(f"  v_lshlrev_b32 v{lo}, 16, v{d+j}")
                a(f"  v_and_b32 v{hi}, 0xffff0000, v{d+j}")
            elif OPT['dot']:
                a(f"  v_dot2c_f32_bf16 v{lo}, v{d+j}, v{V_ONE_LO}")
                a(f"  v_dot2c_f32_bf16 v{hi}, v{d+j}, v{V_ONE_HI}")
            else:
                t = T + 2*(j & 1)
                a(f"  v_lshlrev_b32 v{t}, 16, v{d+j}")
                a(f"  v_and_b32 v{t+1}, 0xffff0000, v{d+j}")
                a(f"  v_pk_add_f32 v[{lo}:{hi}], v[{lo}:{hi}], v[{t}:{t+1}]")
    if OPT['dot']: a("  s_nop 2")
def rnd_pair(r, T):
    a(f"  v_cvt_pk_bf16_f32 v{T}, v{r}, v{r+1}")
    a(f"  v_lshlrev_b32 v{r}, 16, v{T}")
    a(f"  v_and_b32 v{r+1}, 0xffff0000, v{T}")

def kslot(t): return (t + 2) & 3
def k_read(unit, kt, ds, dst=A_K):
    off = kslot(unit >> 1)*16384 + (unit & 1)*8192 + kt*4096
    d = dst + (kt*4+ds)*4
    return f"  ds_read_b128 a[{d}:{d+3}], v{V_KA+ds} offset:{off}"
def v_read(unit, dt, rd, dst=A_V):
    off = ((unit >> 1) & 3)*16384 + (unit & 1)*8192 + rd*4096
    d = dst + dt*4 + rd*2
    return f"  ds_read_b64_tr_b16 a[{d}:{d+1}], v{V_VA+dt} offset:{off}"
def k_dma(n):
    return f"  buffer_load_dwordx4 v{V_KD+n}, s[{SRD_K}:{SRD_K+3}], s{S_KOFF} offen offset:{n*1024}{POL} lds"
def v_dma(n):
    return f"  buffer_load_dwordx4 v{V_VD+(n&1)}, s[{SRD_V}:{SRD_V+3}], s{S_VOFF} offen offset:{n*1024}{POL} lds"
def k_tile_dma(t):
    a(f"  s_add_u32 m0, s{S_KM0}, {kslot(t)*16384}")
    a(f"  s_nop 0")
    for n in range(4): a(k_dma(n))
    a(f"  s_add_u32 s{S_KOFF}, s{S_KOFF}, 16384")
    if OPT['kvr']: a(f"  s_and_b32 s{S_KOFF}, s{S_KOFF}, 0x7ffff")
def v_tile_dma(t):
    a(f"  s_add_u32 m0, s{S_VM0}, {(t&3)*16384}")
    a(f"  s_nop 0")
    for n in range(4): a(v_dma(n))
    a(f"  s_add_u32 s{S_VOFF}, s{S_VOFF}, 16384")

NSUM = OPT['nsum']
SUMQT = {0: [], 2: [2, 3], 4: [0, 1, 2, 3]}[NSUM]
TORDER = [(0,0),(0,2),(0,1),(0,3),(1,0),(1,2),(1,1),(1,3)]
def s_reg(b, kt, qt): return V_S + b*32 + (kt*4+qt)*4
def qk_mfmas(b, zero=False, order=None, src=A_K):
    L = []
    QKO = [(0,0),(0,1),(0,2),(0,3),(1,3),(1,2),(1,1),(1,0)] if OPT['snake'] else TORDER
    for ti, (kt, qt) in enumerate(order or QKO):
        d = s_reg(b, kt, qt)
        for i_ in range(4):
            ds = 3 - i_ if (OPT['snake'] and ti & 1) else i_
            C = d if i_ else (None if zero else V_NEGM + qt*4)
            L.append(mf(d, src+(kt*4+ds)*4, A_Q+(qt*4+ds)*4, C, 'v', 'a', 'a'))
    return L
def ls_reg(qt):
    return V_LS + (qt & 1)*4
def pv_half(T, h, src=A_V):
    L = []; k = 0
    for d_ in range(4):
        dt = 4*h + d_
        for qt in (range(3, -1, -1) if d_ % 2 == 0 else range(4)):
            d = A_O + (dt*4+qt)*4
            for u in ((0, 1) if k % 2 == 0 else (1, 0)):
                L.append(mf(d, src+(d_*2+u)*4, PBUF[(2*T+u) & 3][qt], d, 'a', 'a', 'v'))
            k += 1
    return L
def v_half(T, h, dst=A_V):
    L = []
    for f in range(8):
        dt = 4*h + (f >> 1); u = f & 1
        for rd in range(2):
            off = (T & 3)*16384 + u*8192 + rd*4096
            d = dst + f*4 + rd*2
            L.append(f"  ds_read_b64_tr_b16 a[{d}:{d+1}], v{V_VA+dt} offset:{off}")
    return L
def sum_pair(T, qt):
    L = [mf(ls_reg(qt), V_ONES, PBUF[(2*T+u) & 3][qt], ls_reg(qt)) for u in range(2)]
    if NSUM == 4: L += [mf(ls_reg(qt), V_L, PBUF[(2*T+u) & 3][qt-2], ls_reg(qt)) for u in range(2)]
    return L
def sm_ops(p, qt):
    L = []
    for kt in range(2):
        for r in range(4):
            s_ = s_reg(p & 1, kt, qt) + r
            L.append(f"  v_exp_f32 v{s_}, v{s_}")
            if qt not in SUMQT: L.append(f"  v_add_f32 v{V_L+qt}, v{V_L+qt}, v{s_}")
            if r & 1: L.append(f"  v_cvt_pk_bf16_f32 v{PBUF[p & 3][qt]+kt*2+(r>>1)}, v{s_-1}, v{s_}")
    return L

def period(p, last=False, extra=None, dma=None, endop=None):
    b = p & 1; T = p >> 1
    M = qk_mfmas(b ^ 1) + pv_half(T-1, b) + sum_pair(T-1, 3-b)
    ng = len(M)
    pre = [[] for _ in range(ng)]
    mem = [None]*ng
    cap = [0 if (g < 64 and g % 2 == 0) else 2 for g in range(ng)]
    exps = [(kt, qt, r) for kt, qt in TORDER for r in range(4)]
    for i, l in enumerate(v_half(T-1, b)):
        mem[2*i+1] = l; cap[2*i+1] = 1
    kpos = [0,1,2,4,5,6,8,9]; dpos = [3,7,11,15]
    if last:
        for i, l in enumerate(v_half(T-1, 1, A_K)):
            mem[33+2*i] = l; cap[33+2*i] = 1
    else:
        for i, j in enumerate(kpos):
            mem[33+2*j] = k_read(p+2, i >> 2, i & 3); cap[33+2*j] = 1
        for n, j in enumerate(dpos):
            mem[33+2*j] = k_dma(n) if b == 0 else v_dma(n); cap[33+2*j] = 0
        if dma is not None:
            for n, j in enumerate(dpos):
                mem[33+2*j] = dma[n][-1]; pre[32+2*j] += dma[n][:-1]
        elif b == 0:
            pre[34].append(f"  s_add_u32 m0, s{S_KM0}, {kslot(T)*16384}")
            if OPT['kvr']: pre[36].append(f"  s_and_b32 s{S_KOFF}, s{S_KOFF}, 0x7ffff")
            pre[ng-2].append(f"  s_add_u32 s{S_KOFF}, s{S_KOFF}, 16384")
        else:
            pre[34].append(f"  s_add_u32 m0, s{S_VM0}, {((T+2)&3)*16384}")
            if OPT['kvr']: pre[36].append(f"  s_and_b32 s{S_VOFF}, s{S_VOFF}, 0x7ffff")
            pre[ng-2].append(f"  s_add_u32 s{S_VOFF}, s{S_VOFF}, 16384")
    if extra:
        for k, l in enumerate(extra): pre[2*k] += l
    if endop: pre[ng-1].append(endop)
    pre[30].append("  s_waitcnt lgkmcnt(3)")
    nk = sum(1 for g in range(32, 54) if mem[g] and mem[g].lstrip().startswith('ds_'))
    pre[54].append(f"  s_waitcnt lgkmcnt({nk})")
    q = []
    for g in range(ng):
        a(M[g])
        for l in pre[g]: a(l)
        if mem[g]: a(mem[g])
        if g < 64 and g % 2 == 0:
            kt, qt, r = exps[g//2]
            s = s_reg(b, kt, qt) + r
            four = sum(1 for l in pre[g] if 's_waitcnt' in l or l.rstrip().endswith(', 0'))
            E = '_e64' if OPT['e64'] else ''
            a(f"  v_exp_f32{E if four % 2 == 0 else ''} v{s}, v{s}")
            if qt not in SUMQT: q.append(f"  v_add_f32{E} v{V_L+qt}, v{V_L+qt}, v{s}")
            if r & 1: q.append(f"  v_cvt_pk_bf16_f32 v{PBUF[p & 3][qt]+kt*2+(r>>1)}, v{s-1}, v{s}")
        else:
            n = cap[g] if g < ng-1 else 99
            while n > 0 and q:
                a(q.pop(0)); n -= 1
    assert not q

def barrier_T(n=8):
    a(f"  s_waitcnt vmcnt({n}) lgkmcnt(0)")
    if not OPT['xnobar']: a("  s_barrier")

def xlane_reduce(reg, op, tmp):
    a(f"  v_mov_b32 v{tmp}, v{reg}")
    a("  s_nop 1")
    a(f"  v_permlane32_swap_b32 v{reg}, v{tmp}")
    a(f"  {op} v{reg}, v{reg}, v{tmp}")
    a(f"  v_mov_b32 v{tmp}, v{reg}")
    a("  s_nop 1")
    a(f"  v_permlane16_swap_b32 v{reg}, v{tmp}")
    a(f"  {op} v{reg}, v{reg}, v{tmp}")

def prefetch_groups():
    J, O = S_T+4, S_T
    X = SRD_X
    cnt = [0]
    def srd(ptr, size):
        return [f"  s_mov_b32 s{X}, s{ptr}", f"  s_mov_b32 s{X+1}, s{ptr+1}", f"  s_mov_b32 s{X+2}, {size}"]
    def ld(v, off=0):
        cnt[0] += 1
        return [f"  buffer_load_dword a{A_Q+cnt[0]}, v{v}, s[{X}:{X+3}], s{O} offen offset:{off}"]
    NG = OPT['ng']; NW = 128 // NG
    G = {}
    jj = [f"  s_and_b32 s{O}, s{S_R}, {32//NG-1}", f"  s_lshl_b32 s{O}, s{O}, 2", f"  s_add_u32 s{O}, s{O}, s{S_W}"]
    rows = 4*NG
    L = jj + [f"  s_mul_i32 s{O}, s{O}, {rows*8192}", f"  s_lshl_b32 s{O+1}, s{S_G}, 10", f"  s_add_u32 s{O}, s{O}, s{O+1}",
              f"  v_and_b32 v249, 7, v{V_LANE}", f"  v_lshlrev_b32 v249, 7, v249", f"  v_lshl_add_u32 v249, v{V_PROW}, 13, v249"] + srd(P_WQ, 512*4096*2) + ld(249)
    for k in range(1, (rows + 7)//8):
        L += [f"  s_add_u32 s{O}, s{O}, {8*8192}"] + ld(249)
    G['wq'] = L
    G['w2'] = jj + [f"  s_mul_i32 s{O}, s{O}, {2048*NG}", f"  s_lshl_b32 s{O+1}, s{S_FOFF}, 10", f"  s_add_u32 s{O}, s{O}, s{O+1}",
                    f"  v_mul_u32_u24 v250, {32*NG}, v{V_LANE}"] + srd(P_W2, 512*1792*2) + ld(250)
    L = [f"  v_lshlrev_b32 v251, 6, v{V_LANE}", f"  s_and_b32 s{O}, s{S_R}, 3", f"  s_lshl_b32 s{O}, s{O}, 14", f"  s_add_u32 s{O}, s{O}, s{S_KV0}"]
    G['kv'] = L + srd(P_K, 4 << 20) + ld(251) + srd(P_V, 4 << 20) + ld(251)
    G['ws'] = [f"  v_and_b32 v252, 1, v{V_LANE}", f"  v_lshlrev_b32 v252, 24, v252", f"  s_mov_b32 s{O}, s{S_PBASE}"] + srd(P_WS, 64 << 20) + ld(252)
    G['mb'] = [f"  v_and_b32 v255, 31, v{V_LANE}", f"  v_lshlrev_b32 v255, 2, v255", f"  v_mov_b32 v{V_POLL}, 0",
               f"  s_lshr_b32 s{O}, s{S_PBASE}, {WGSH}", f"  s_lshl_b32 s{O}, s{O}, 7", f"  s_add_u32 s{O}, s{O}, {MBOX}",
               f"  buffer_store_dword v{V_POLL}, v255, s[{SRD_WS}:{SRD_WS+3}], s{O} offen sc1"]
    L = jj + [f"  s_mul_i32 s{O}, s{O}, {4096*NG}", f"  s_lshl_b32 s{O+1}, s{S_G}, 19", f"  s_add_u32 s{O}, s{O}, s{O+1}",
              f"  v_lshlrev_b32 v253, {6 if NG == 1 else 7}, v{V_LANE}"] + srd(P_WO, 4 << 20)
    L += [f"  buffer_load_dword v254, v253, s[{X}:{X+3}], s{O} offen"]
    if NG == 4: L += [f"  s_add_u32 s{O}, s{O}, 8192", f"  buffer_load_dword v255, v253, s[{X}:{X+3}], s{O} offen"]
    G['wo'] = L
    return G
def nloads(L): return sum(1 for l in L if l.lstrip().startswith('buffer_'))

hdr = open('cdna_kernels/%s.s.ref' % NAME).read().split('\n')
for l in hdr:
    if l.startswith('; Override') or '@launch' in l or l.startswith('; grid=ceil'): continue
    if l.startswith(';'): a(l)
    else: break
a("; @launch grid=(256,1,1) block=(256,1,1) lds=163840")
a('.amdgcn_target "amdgcn-amd-amdhsa--gfx950"')
a(""";
;   2. FFN1 (a 256/192-column slice of w1), Q projection, FFN2 partial (split-K over the 8 workgroups of a row block)
;""")
a(".text")
a(kernel_header(NAME + "_kernel"))
i0 = len(a.lines)
NG = OPT['ng']; LG = {1: 0, 2: 1, 4: 2, 8: 3}[NG]
L = V_LANE
C_ = SRD_V
a(f"""
  s_cmp_ge_u32 s2, 256
  s_cbranch_scc1 L_end
  s_load_dwordx16 s[16:31], s[0:1], 0
  s_load_dwordx2 s[{P_WS}:{P_WS+1}], s[0:1], 80
  s_load_dwordx4 s[{P_OUT}:{P_OUT+3}], s[0:1], 64
  s_getpc_b64 s[{C_}:{C_+1}]
L_pc:
  s_lshr_b32 s{S_T+1}, s2, 3
  s_mov_b32 s{C_+2}, L_code_end-L_pc
  s_mov_b32 s{C_+3}, 0x20000
  s_lshl_b32 s{S_T+2}, s{S_T+1}, 11
  v_lshlrev_b32 v2, 3, v0
""")
CPF = f"  buffer_load_dword a{A_Q}, v2, s[{C_}:{C_+3}], s{S_T+2} offen"
a(CPF)
stamp(0)
if OPT['stamps']: a("  s_memrealtime s[74:75]")
if OPT['ln2']:
    XADDR = f"""  v_lshrrev_b32 v4, 6, v0
  v_bfe_u32 v5, v0, 3, 3
  v_lshl_add_u32 v4, v4, 4, v5
  v_lshlrev_b32 v4, 10, v4
  v_and_b32 v5, 7, v0
  v_lshl_add_u32 v{V_T0}, v5, 4, v4
  s_add_u32 s{S_SP+1}, s{S_SP}, 8192"""
    OPT['xs'] = 8
else:
    XADDR = f"""  v_lshrrev_b32 v4, 2, v0
  v_lshlrev_b32 v4, 10, v4
  v_and_b32 v5, 3, v0
  v_lshl_add_u32 v{V_T0}, v5, 4, v4"""
a(f"""
  s_lshr_b32 s{S_ROT16}, s{S_T+1}, {LG}
  s_bfe_u32 s{S_T}, s2, {(LG << 16) | (3-LG)}
  s_lshl_b32 s{S_T}, s{S_T}, {5-LG}
  s_add_u32 s{S_R}, s{S_ROT16}, s{S_T}
  s_lshl_b32 s{S_SP}, s{S_R}, 16
{XADDR}
  s_mov_b32 s{SRD_X+2}, {2048*512*2}
  s_mov_b32 s{SRD_X+3}, 0x20000
  s_and_b32 s{S_G}, s2, {8//NG-1}
  s_lshl_b32 s{S_G}, s{S_G}, {LG}
  s_and_b32 s{S_T+3}, s{S_T+1}, {NG-1}
  s_add_u32 s{S_G}, s{S_G}, s{S_T+3}
  s_mov_b32 s{SRD_W+3}, 0x20000
""")
def xloads(j0, j1):
    for j in range(j0, j1):
        if OPT['ln2']: a(f"  buffer_load_dwordx4 v[{4*j+64}:{4*j+67}], v{V_T0}, s[{SRD_X}:{SRD_X+3}], s{S_SP+(j>>3)} offen offset:{(j&7)*128}")
        else: a(f"  buffer_load_dwordx4 v[{4*j+64}:{4*j+67}], v{V_T0}, s[{SRD_X}:{SRD_X+3}], s{S_SP} offen offset:{j*64}")
def xfirst():
    a("  s_waitcnt lgkmcnt(0)")
    a(f"  s_mov_b32 s{SRD_X}, s{P_X}")
    a(f"  s_mov_b32 s{SRD_X+1}, s{P_X+1}")
    stamp(7)
    if OPT['tlb'] & 1: a(f"  s_load_dword s{S_SP+1}, s[{P_W1}:{P_W1+1}], 0")
    if OPT['tlb'] & 2:
        a(f"  s_mov_b32 s{SRD_W}, s{P_W1}"); a(f"  s_mov_b32 s{SRD_W+1}, s{P_W1+1}"); a(f"  s_mov_b32 s{SRD_W+2}, 4")
        a(f"  buffer_load_dword a{A_Q+1}, v{V_T0}, s[{SRD_W}:{SRD_W+3}], 0 offen")
    xloads(0, OPT['xs'])
    stamp(7)
a(f"""
  v_lshrrev_b32 v1, 6, v0
  v_and_b32 v{V_LANE}, 63, v0
  s_mov_b32 s{S_REDO}, 0
  v_readfirstlane_b32 s{S_W}, v1
  s_and_b32 s{S_HSW}, s{S_R}, {OPT['hsw']}
  s_lshl_b32 s{S_HSW}, s{S_HSW}, 7
  s_bfe_u32 s{S_ODD}, s{S_G}, 0x10001
  s_xor_b32 s{S_ODD}, s{S_ODD}, {OPT['flip']}
  s_mul_i32 s{S_T}, s{S_ROT16}, 43
  s_lshr_b32 s{S_T}, s{S_T}, 8
  s_mul_i32 s{S_T}, s{S_T}, 6
  s_sub_u32 s{S_T}, s{S_ROT16}, s{S_T}
  s_and_b32 s{S_ROT7}, s{S_ROT16}, 7
  s_cmp_lg_u32 s{S_ODD}, 0
  s_cselect_b32 s{S_ROT7}, s{S_T}, s{S_ROT7}
  s_lshl_b32 s{S_ROT16}, s{S_ROT16}, {max(LG-1,0)}
  s_and_b32 s{S_ROT16}, s{S_ROT16}, {OPT['rm']}
  v_lshrrev_b32 v3, 3, v{L}
  v_and_b32 v3, {4 if OPT['xsz'] else 0}, v3
  v_xor_b32 v3, v3, v{L}
  v_lshlrev_b32 v{V_L16}, 4, v3
  v_lshrrev_b32 v{V_PROW}, 3, v{L}
  v_lshrrev_b32 v1, 4, v{L}            ; G
  v_lshlrev_b32 v2, 1, v1              ; G<<1
  v_and_b32 v3, 7, v{L}
  v_xor_b32 v3, v3, v2
  v_lshlrev_b32 v{V_PSWZ}, 4, v3
  s_lshl_b32 s{S_KM0}, s{S_W}, 12
  s_add_u32 s{S_VM0}, s{S_KM0}, {RB}
""")
xfirst()
a(f"""
  s_lshr_b32 s{S_T}, s{S_G}, 2
  s_mul_i32 s{S_FOFF}, s{S_T}, 896
  s_lshl_b32 s{S_T}, s{S_ODD}, 9
  s_add_u32 s{S_FOFF}, s{S_FOFF}, s{S_T}
  s_lshl_b32 s{S_T}, s{S_ODD}, 6
  s_sub_u32 s{S_T}, 256, s{S_T}
  s_and_b32 s{S_T+1}, s{S_G}, 1
  s_mul_i32 s{S_T}, s{S_T}, s{S_T+1}
  s_add_u32 s{S_FOFF}, s{S_FOFF}, s{S_T}
""")
PFG = prefetch_groups()
set_stream('w1')
a(f"""
  v_and_b32 v6, 15, v{L}
  v_lshrrev_b32 v8, 2, v6
  v_lshl_add_u32 v8, v1, 2, v8         ; row = 4G + (i>>2)
  v_and_b32 v9, 3, v6
  v_lshlrev_b32 v9, 3, v9              ; (i&3)*8
  v_lshl_add_u32 v10, v8, 7, v9
  v_add_u32 v10, s{S_VM0}, v10
  v_bfe_u32 v11, v8, 1, 2
""")
for nt in range(4):
    a(f"  v_xor_b32 v12, {nt}, v11")
    a(f"  v_lshl_add_u32 v{V_AA+nt}, v12, 5, v10")
    a(f"  v_add_u32 v{V_AA+4+nt}, {3*16384}, v{V_AA+nt}")
a(f"""
  v_lshrrev_b32 v8, {3 if OPT['ln2'] else 2}, v{L}
  v_and_b32 v9, 1, v{L}
  v_mul_u32_u24 v9, {36 if OPT['xsz'] else 32}, v9
  v_xor_b32 v8, v9, v8
  v_lshlrev_b32 v8, 4, v8
  v_bfe_u32 v9, v{L}, 1, 1
  v_lshl_add_u32 v8, v9, 3, v8
  s_lshl_b32 s{S_T}, s{S_W}, 10
  v_add_u32 v{V_T1}, s{S_T}, v8
""")
if OPT['ln2']:
    a(f"  v_and_b32 v9, 4, v{L}")
    a(f"  v_lshl_add_u32 v{V_T1}, v9, 10, v{V_T1}")
def zero_o():
    for i in range(4): a(f"  v_mov_b32 v{204+i}, 0")
    a("  s_nop 1")
    for i in range(8): a(f"  v_mfma_f32_32x32x16_bf16 a[{A_O+16*i}:{A_O+16*i+15}], v[204:207], v[204:207], 0")
def setup_late():
    G_, G2, I_, t7, t8, t9, t10, t11, t12 = 129, 130, 134, 135, 136, 137, 138, 139, 140
    a(f"""
  s_lshl_b32 s{S_T}, s{S_G}, 19
  s_add_u32 s{SRD_K}, s{P_K}, s{S_T}
  s_addc_u32 s{SRD_K+1}, s{P_K+1}, 0
  s_mov_b32 s{SRD_K+2}, 0x80000
  s_mov_b32 s{SRD_K+3}, 0x20000
  s_add_u32 s{SRD_V}, s{P_V}, s{S_T}
  s_addc_u32 s{SRD_V+1}, s{P_V+1}, 0
  s_mov_b32 s{SRD_V+2}, 0x80000
  s_mov_b32 s{SRD_V+3}, 0x20000
  s_mov_b32 s{SRD_WS}, s{P_WS}
  s_mov_b32 s{SRD_WS+1}, s{P_WS+1}
  s_mov_b32 s{SRD_WS+2}, {64<<20}
  s_mov_b32 s{SRD_WS+3}, 0x20000
  s_and_b32 s{S_KV0}, s{S_R}, {OPT['kvr']}
  s_lshl_b32 s{S_KV0}, s{S_KV0}, {17 if OPT['kvr'] == 3 else 18}
  s_add_u32 s{S_KV0}, s{S_KV0}, s{S_KM0}
  s_mov_b32 s{S_KOFF}, s{S_KV0}
  s_lshl_b32 s{S_PBASE}, s{S_R}, 3
  s_add_u32 s{S_PBASE}, s{S_PBASE}, s{S_G}
  s_lshl_b32 s{S_PBASE}, s{S_PBASE}, {WGSH}
  s_and_b32 s{S_T}, s{S_R}, {3 if OPT['skew'] else 0}
  s_add_u32 s{S_T}, s{S_T}, s{S_W}
  s_and_b32 s{S_T}, s{S_T}, 3
  s_lshl_b32 s{S_T}, s{S_T}, {WGSH-2}
  s_add_u32 s{S_PBASE}, s{S_PBASE}, s{S_T}
  v_lshrrev_b32 v{G_}, 4, v{L}
  v_lshlrev_b32 v{G2}, 1, v{G_}
  v_and_b32 v{I_}, 15, v{L}
  v_xor_b32 v{t7}, v{I_}, v{G_}
  v_lshlrev_b32 v{t7}, 4, v{t7}
  v_lshl_add_u32 v{V_KD}, v{G_}, 8, v{t7}
""")
    for n in range(1, 4): a(f"  v_xor_b32 v{V_KD+n}, {64*n}, v{V_KD}")
    a(f"""
  ; V dma: G*256 + ((i ^ ((4*(n&1)+G)<<1))*16)
  v_xor_b32 v{t8}, v{I_}, v{G2}
  v_lshlrev_b32 v{t8}, 4, v{t8}
  v_lshl_add_u32 v{V_VD}, v{G_}, 8, v{t8}
  v_xor_b32 v{V_VD+1}, 128, v{V_VD}
  v_and_b32 v{t8}, 2, v{G2}
  v_lshrrev_b32 v{t9}, 1, v{G_}
  v_or_b32 v{t8}, v{t8}, v{t9}
  v_xor_b32 v{t8}, v{t8}, v{I_}
  v_lshlrev_b32 v{t8}, 4, v{t8}
  v_lshl_add_u32 v{V_KA}, v{I_}, 8, v{t8}
  v_xor_b32 v{V_KA}, s{S_HSW}, v{V_KA}
""")
    for ds in range(1, 4): a(f"  v_xor_b32 v{V_KA+ds}, {64*ds}, v{V_KA}")
    a(f"""
  v_lshrrev_b32 v{t8}, 2, v{I_}
  v_lshl_add_u32 v{t8}, v{G_}, 2, v{t8}
  v_and_b32 v{t9}, 3, v{I_}
  v_lshlrev_b32 v{t9}, 3, v{t9}
  v_lshl_add_u32 v{t10}, v{t8}, 8, v{t9}
  v_add_u32 v{t10}, {RB}, v{t10}
  v_and_b32 v{t11}, 7, v{t8}
  v_lshl_add_u32 v{V_VA}, v{t11}, 5, v{t10}
""")
    for dt in range(1, 8): a(f"  v_xor_b32 v{V_VA+dt}, {32*dt}, v{V_VA}")
    a(f"""
  s_mov_b32 s{SRD_D}, s{P_DBG}
  s_mov_b32 s{SRD_D+1}, s{P_DBG+1}
  s_lshl_b32 s{SRD_D+2}, s{S_R}, 2
  s_add_u32 s{SRD_D+2}, s{SRD_D+2}, 4
  s_mov_b32 s{SRD_D+3}, 0x20000
  s_lshl_b32 s{S_FB}, s{S_R}, {WGSH+3}
  s_lshr_b32 s{S_T}, s{S_G}, 1
  s_lshl_b32 s{S_T}, s{S_T}, 2
  s_and_b32 s{S_T+1}, s{S_G}, 1
  s_add_u32 s{S_T+1}, s{S_T+1}, s{S_T}
  s_and_b32 s{S_T}, s{S_R}, {3 if OPT['skew'] else 0}
  s_lshl_b32 s{S_T}, s{S_T}, 1
  s_add_u32 s{S_T}, s{S_T}, s{S_G}
  s_and_b32 s{S_T}, s{S_T}, 7
  s_lshl_b32 s{S_T}, s{S_T}, 12
  s_add_u32 s{S_FB}, s{S_FB}, s{S_T}
  s_lshl_b32 s{S_T}, s{S_W}, 10
  s_add_u32 s{S_FB}, s{S_FB}, s{S_T}
  s_lshl_b32 s{S_XO}, s{S_R}, 16
  s_lshl_b32 s{S_T}, s{S_W}, 14
  s_add_u32 s{S_XO}, s{S_XO}, s{S_T}
  s_lshl_b32 s{S_T}, s{S_T+1}, 6
  s_add_u32 s{S_XO}, s{S_XO}, s{S_T}
""")
    zero_o()
if not OPT['sl']: setup_late()
a("; ---- LayerNorm")
def dreg(e): return e if e < 64 else 64 + e
pfsel = [k for b_, k in ((1, 'w2'), (2, 'kv'), (4, 'ws')) if OPT['pf'] & b_] + ([] if OPT['mbl'] else ['mb'])
groups = []
for s_ in range(NS-1):
    pl = produce_list(rpos(s_))
    groups += [pl[:5], [pl[5]], [pl[6]], [pl[7]]]
for k in pfsel: groups.append(PFG[k])
NPF = sum(nloads(PFG[k]) for k in pfsel)
SUM, SQ = 192, 196
MU, MB = 200, 202
a(f"  v_and_b32 v8, 3, v{L}")
if OPT['ln2']:
    a(f"  v_lshrrev_b32 v9, 3, v{L}"); a("  v_lshlrev_b32 v9, 2, v9")
else: a(f"  v_and_b32 v9, 60, v{L}")
a(f"  v_lshl_add_u32 v8, v8, 12, v9")
a(f"  s_lshl_b32 s{S_T}, s{S_W}, 6")
a(f"  s_add_u32 s{S_T}, s{S_T}, {RB+1*16384}")
a(f"  v_add_u32 v{V_BA}, s{S_T}, v8")
a(f"  s_add_u32 s{S_T}, s{S_VM0}, {1*16384}")
a(f"  v_lshl_add_u32 v{V_RSO}, v6, 2, s{S_T}")
stamp(7)
PRE = OPT['pre']
for g_ in groups[:PRE]:
    for l in g_: a(l)
groups = groups[PRE:]
xloads(OPT['xs'], 16)
stamp(7)
if OPT['stamps'] == 7:
    for k in (16, 15, 8, 0):
        a(f"  s_waitcnt vmcnt({k})"); stamp(7)
def ln_two_halves():
    vq = [f"x{j}" for j in range(8)] + [f"S{k>>2}" for k in range(PRE)] + [f"x{j}" for j in range(8, 16)]
    gi = [PRE]; rest = list(groups)
    def yg(tag): return len(vq) - 1 - max(i for i, t in enumerate(vq) if t == tag)
    def spr():
        if rest:
            for l in rest.pop(0): a(l)
            vq.append(f"S{gi[0]>>2}"); gi[0] += 1
    for h in range(2):
        nA = OPT['spA'] if h == 0 else 0
        for j in range(8*h, 8*h+8):
            a(f"  s_waitcnt vmcnt({yg(f'x{j}')})")
            if j in (0, 8, 15): stamp(3)
            if (j & 7) < nA: spr()
            for i in range(4*j, 4*j+4):
                a(f"  v_lshlrev_b32 v{dreg(2*i)}, 16, v{64+i}")
                a(f"  v_and_b32 v{dreg(2*i+1)}, 0xffff0000, v{64+i}")
            for i in range(4*j, 4*j+4):
                e = dreg(2*i); t = SUM + 2*(i & 1); q = SQ + 2*(i & 1); ii = i & 31
                if ii < 2: a(f"  v_pk_add_f32 v[{t}:{t+1}], v[{e}:{e+1}], v[{dreg(2*i+4)}:{dreg(2*i+4)+1}]")
                elif ii >= 4: a(f"  v_pk_add_f32 v[{t}:{t+1}], v[{t}:{t+1}], v[{e}:{e+1}]")
                if ii < 2: a(f"  v_pk_mul_f32 v[{q}:{q+1}], v[{e}:{e+1}], v[{e}:{e+1}]")
                else: a(f"  v_pk_fma_f32 v[{q}:{q+1}], v[{e}:{e+1}], v[{e}:{e+1}], v[{q}:{q+1}]")
        stamp(3)
        for r in (SUM, SQ): a(f"  v_pk_add_f32 v[{r}:{r+1}], v[{r}:{r+1}], v[{r+2}:{r+3}]")
        for r in (SUM, SQ): a(f"  v_add_f32 v{r}, v{r}, v{r+1}")
        a("  s_nop 0")
        for qp in ("quad_perm:[1,0,3,2]", "quad_perm:[2,3,0,1]", "row_half_mirror"):
            for r in (SUM, SQ): a(f"  v_add_f32_dpp v{r}, v{r}, v{r} {qp} row_mask:0xf bank_mask:0xf")
            a("  s_nop 0")
        a(f"  v_mul_f32 v{MU}, 0x3b000000, v{SUM}")
        a(f"  v_cvt_pk_bf16_f32 v{MB}, v{MU}, v{MU}")
        a(f"  v_and_b32 v{MB}, 0xffff0000, v{MB}")
        st_ = f"""  v_mul_f32 v{SQ}, 0x3b000000, v{SQ}
  v_fma_f32 v{SQ}, -v{MU}, v{MU}, v{SQ}
  v_max_f32 v{SQ}, 0, v{SQ}
  v_cvt_pk_bf16_f32 v{SQ}, v{SQ}, v{SQ}
  v_and_b32 v{SQ}, 0xffff0000, v{SQ}
  v_add_f32 v{SQ}, 0x3727c5ac, v{SQ}
  v_cvt_pk_bf16_f32 v{SQ}, v{SQ}, v{SQ}
  v_and_b32 v{SQ}, 0xffff0000, v{SQ}
  v_sqrt_f32 v{SQ}, v{SQ}
  v_cvt_pk_bf16_f32 v{SQ}, v{SQ}, v{SQ}
  v_and_b32 v{SQ}, 0xffff0000, v{SQ}
  v_rcp_f32 v{MU+1}, v{SQ}
  ds_write_b32 v{V_BA}, v{MU+1} offset:{32*h}""".split('\n')
        for j in range(8*h, 8*h+8):
            if (h == 0 and (j & 7) < OPT['spB']) or h == 1: spr()
            for k in range(4):
                e = dreg(2*(4*j+k))
                a(f"  v_pk_add_f32 v[{e}:{e+1}], v[{e}:{e+1}], v[{MB}:{MB+1}] op_sel_hi:[1,0] neg_lo:[0,1] neg_hi:[0,1]")
            if st_: a(st_.pop(0))
            for k in range(4):
                i = 4*j + k; e = dreg(2*i)
                a(f"  v_cvt_pk_bf16_f32 v{64+i}, v{e}, v{e+1}")
                if k == 1 and st_: a(st_.pop(0))
            a(f"  ds_write_b64 v{V_T1}, v[{64+4*j}:{65+4*j}] offset:{(j&7)*8192+h*128}")
            a(f"  ds_write_b64 v{V_T1}, v[{66+4*j}:{67+4*j}] offset:{(j&7)*8192+h*128+256}")
        if h == 0: stamp(3)
    while rest: spr()
    stamp(3)
    a(f"  s_waitcnt vmcnt({yg('S1')}) lgkmcnt(0)")
def ln_one():
    for j in range(16):
        a(f"  s_waitcnt vmcnt({15 - j + min(j, OPT['n1']) + (PRE if j < OPT['xs'] else 0)})")
        if j in (0, 8, 15): stamp(3)
        if j < OPT['n1']:
            for l in groups[j]: a(l)
        for i in range(4*j, 4*j+4):
            a(f"  v_lshlrev_b32 v{dreg(2*i)}, 16, v{64+i}")
            a(f"  v_and_b32 v{dreg(2*i+1)}, 0xffff0000, v{64+i}")
        for i in range(4*j, 4*j+4):
            e = dreg(2*i); t = SUM + 2*(i & 1); q = SQ + 2*(i & 1)
            if i < 2: a(f"  v_pk_add_f32 v[{t}:{t+1}], v[{e}:{e+1}], v[{dreg(2*i+4)}:{dreg(2*i+4)+1}]")
            elif i >= 4: a(f"  v_pk_add_f32 v[{t}:{t+1}], v[{t}:{t+1}], v[{e}:{e+1}]")
            if i < 2: a(f"  v_pk_mul_f32 v[{q}:{q+1}], v[{e}:{e+1}], v[{e}:{e+1}]")
            else: a(f"  v_pk_fma_f32 v[{q}:{q+1}], v[{e}:{e+1}], v[{e}:{e+1}], v[{q}:{q+1}]")
    sprinkle = groups[OPT['n1']:]
    stamp(3)
    for r in (SUM, SQ): a(f"  v_pk_add_f32 v[{r}:{r+1}], v[{r}:{r+1}], v[{r+2}:{r+3}]")
    for r in (SUM, SQ): a(f"  v_add_f32 v{r}, v{r}, v{r+1}")
    a("  s_nop 0")
    for qp in ("[1,0,3,2]", "[2,3,0,1]"):
        for r in (SUM, SQ): a(f"  v_add_f32_dpp v{r}, v{r}, v{r} quad_perm:{qp} row_mask:0xf bank_mask:0xf")
        a("  s_nop 0")
    a(f"""
  v_mul_f32 v{MU}, 0x3b000000, v{SUM}
  v_cvt_pk_bf16_f32 v{MB}, v{MU}, v{MU}
  v_and_b32 v{MB}, 0xffff0000, v{MB}
""")
    stats = f"""  v_mul_f32 v{SQ}, 0x3b000000, v{SQ}
  v_fma_f32 v{SQ}, -v{MU}, v{MU}, v{SQ}
  v_max_f32 v{SQ}, 0, v{SQ}
  v_cvt_pk_bf16_f32 v{SQ}, v{SQ}, v{SQ}
  v_and_b32 v{SQ}, 0xffff0000, v{SQ}
  v_add_f32 v{SQ}, 0x3727c5ac, v{SQ}
  v_cvt_pk_bf16_f32 v{SQ}, v{SQ}, v{SQ}
  v_and_b32 v{SQ}, 0xffff0000, v{SQ}
  v_sqrt_f32 v{SQ}, v{SQ}
  v_cvt_pk_bf16_f32 v{SQ}, v{SQ}, v{SQ}
  v_and_b32 v{SQ}, 0xffff0000, v{SQ}
  v_rcp_f32 v{SQ}, v{SQ}
  ds_write_b32 v{V_BA}, v{SQ}""".split('\n')
    for j in range(16):
        if j in (0, 8): stamp(3)
        if j >= OPT['late'] and sprinkle:
            for l in sprinkle.pop(0): a(l)
        for k in range(4):
            e = dreg(2*(4*j+k))
            a(f"  v_pk_add_f32 v[{e}:{e+1}], v[{e}:{e+1}], v[{MB}:{MB+1}] op_sel_hi:[1,0] neg_lo:[0,1] neg_hi:[0,1]")
        if j < len(stats): a(stats[j])
        for k in range(4):
            i = 4*j + k; e = dreg(2*i)
            a(f"  v_cvt_pk_bf16_f32 v{64+i}, v{e}, v{e+1}")
        a(f"  ds_write_b64 v{V_T1}, v[{64+4*j}:{65+4*j}] offset:{j*4096}")
        a(f"  ds_write_b64 v{V_T1}, v[{66+4*j}:{67+4*j}] offset:{j*4096+256}")
    for g_ in sprinkle:
        for l in g_: a(l)
    stamp(3)
    a(f"  s_waitcnt vmcnt({4*(NS-3)+NPF}) lgkmcnt(0)")
(ln_two_halves if OPT['ln2'] else ln_one)()
a_first()
a("  s_barrier")
stamp(3)
stamp()
for qt in range(4): a(f"  ds_read_b32 v{V_RS+qt}, v{V_RSO} offset:{qt*64}")
a(f"  s_lshl_b32 s{S_T}, s{S_W}, 6")
a(f"  v_add_u32 v{V_RSO}, s{S_T}, v{V_RSO}")
a(f"  ds_read_b32 v{V_RSO}, v{V_RSO}")
b_reload(False, wait=False)
a("  s_waitcnt lgkmcnt(8)")
produce_slot(rpos(5)); produce_slot(rpos(6))
a(f"  s_mov_b32 s{S_T}, {CSH:#x}")
for qt in range(4): a(f"  v_mul_f32 v{V_RS+qt}, s{S_T}, v{V_RS+qt}")
a("; ---- FFN1")
stamp(8)
if OPT['w3'] == 4:
    a(f"  s_cmp_lg_u32 s{SRD_W+2}, 0")
    a("  s_cbranch_scc1 L_w3n")
    set_stream('wq', 0)
    a("  s_waitcnt vmcnt(0) lgkmcnt(0)")
    for k in range(16, 22): produce_slot(rpos(k))
    gpos[0] = 16
    a("  s_waitcnt vmcnt(16)")
    a_first()
    a("  s_waitcnt lgkmcnt(0)")
    produce_slot(rpos(22))
    gpos[0] = 0
    a("  s_branch L_qstart")
    a.label("L_w3n")
if OPT['w3'] == 3:
    a(f"  s_cmp_lg_u32 s{SRD_W+2}, 0")
    a("  s_cbranch_scc1 L_w3n")
    a(f"  s_add_u32 s{S_BOFF}, s{S_BOFF}, {9*4096}")
    a(f"  s_and_b32 s{S_BOFF}, s{S_BOFF}, 0xffff")
    a(f"  v_add_u32 v{V_BA}, s{S_BOFF}, v{V_L16}")
    a("  s_branch L_w3j")
    a.label("L_w3n")
gemm_first()
if OPT['w3'] in (1, 2):
    a(f"  s_cmp_lg_u32 s{SRD_W+2}, 0")
    a("  s_cbranch_scc1 L_w3n")
    X = SRD_X
    a(f"  s_mov_b32 s{X}, s{P_WQ}"); a(f"  s_mov_b32 s{X+1}, s{P_WQ+1}"); a(f"  s_mov_b32 s{X+2}, {512*4096*2}")
    a(f"  s_and_b32 s{S_T}, s{S_R}, 15")
    a(f"  s_lshl_b32 s{S_T+1}, s{S_T}, 18")
    a(f"  s_lshl_b32 s{S_T+2}, s{S_G}, 10")
    a(f"  s_add_u32 s{S_T+1}, s{S_T+1}, s{S_T+2}")
    a(f"  v_and_b32 v128, 7, v{V_LANE}"); a("  v_lshlrev_b32 v128, 7, v128"); a(f"  v_lshl_add_u32 v128, v{V_PROW}, 13, v128")
    for k in range(4):
        a(f"  buffer_load_dword v{130+k}, v128, s[{X}:{X+3}], s{S_T+1} offen")
        a(f"  s_add_u32 s{S_T+1}, s{S_T+1}, {8*8192}")
    if OPT['w3'] >= 2:
        a(f"  s_mov_b32 s{X}, s{P_W2}"); a(f"  s_mov_b32 s{X+1}, s{P_W2+1}"); a(f"  s_mov_b32 s{X+2}, {512*1792*2}")
        a(f"  s_mul_i32 s{S_T+1}, s{S_T}, {12*1024}")
        a(f"  s_lshl_b32 s{S_T+2}, s{S_FOFF}, 10")
        a(f"  s_add_u32 s{S_T+1}, s{S_T+1}, s{S_T+2}")
        a(f"  v_lshlrev_b32 v129, 7, v{V_LANE}")
        a(f"  buffer_load_dword v134, v129, s[{X}:{X+3}], s{S_T+1} offen")
        a(f"  s_add_u32 s{S_T+1}, s{S_T+1}, 4096")
        a(f"  buffer_load_dword v135, v129, s[{X}:{X+3}], s{S_T+1} offen")
    a(f"  s_add_u32 s{S_BOFF}, s{S_BOFF}, {7*4096}")
    a(f"  s_and_b32 s{S_BOFF}, s{S_BOFF}, 0xffff")
    a(f"  v_add_u32 v{V_BA}, s{S_BOFF}, v{V_L16}")
    a("  s_waitcnt vmcnt(0)")
    a("  s_branch L_w3j")
    a.label("L_w3n")
gemm_call(7)
if OPT['w3'] in (1, 2, 3): a.label("L_w3j")
stamp(8); set_stream('wq', 0)
if OPT['sl']:
    gemm_call(OPT['sl']); setup_late(); gemm_call(7 - OPT['sl'])
else: gemm_call(7)
stamp(8)
a("  s_nop 7")
for c in range(2):
    for qt in range(4):
        x = V_ACC + ((2*c)*4+qt)*4; y = V_ACC + ((2*c+1)*4+qt)*4
        d = V_H + (c*4+qt)*4
        for k, s in enumerate((x, x+2, y, y+2)):
            a(f"  v_cvt_pk_bf16_f32 v{d+k}, v{s}, v{s+1}")
        for k in range(4):
            a(f"  v_pk_max_i16 v{d+k}, v{d+k}, 0")
a("; ---- Q projection")
a.label("L_qstart")
for half in range(2):
    if half == 1 and OPT['cp3']:
        a(f"  s_getpc_b64 s[{SRD_X}:{SRD_X+1}]")
        a.label("L_pc3")
        a(f"  s_mov_b32 s{SRD_X+2}, L_tail-L_pc3")
        a(f"  s_lshr_b32 s{S_T}, s2, 3")
        a(f"  s_lshl_b32 s{S_T}, s{S_T}, 2")
        a(f"  s_add_u32 s{S_T}, s{S_T}, s{S_W}")
        a(f"  s_lshl_b32 s{S_T}, s{S_T}, 8")
        a(f"  v_lshlrev_b32 v{V_T1}, 2, v{V_LANE}")
        a(f"  buffer_load_dword v255, v{V_T1}, s[{SRD_X}:{SRD_X+3}], s{S_T} offen")
    stamp(8)
    gemm_first(); gemm_call(7)
    if half == 0:
        stamp(8)
        set_stream('wq', 1); gemm_call(7); stamp(8)
    else:
        set_stream('w2', 0); gemm_call(6)
        a(f"  s_lshl_b32 s{S_T}, s{S_ODD}, 7")
        for n in range(4): a(f"  v_xor_b32 v{V_PD+n}, s{S_T}, v{V_PD+n}")
        gemm_call(1); stamp(8)
    def qepi1():
        for c in range(2):
            for qt in range(4):
                x = V_ACC + ((2*c)*4+qt)*4; y = V_ACC + ((2*c+1)*4+qt)*4
                rp = V_RS + (qt & 2); md = "op_sel:[0,1] op_sel_hi:[1,1]" if qt & 1 else "op_sel_hi:[1,0]"
                for s in (x, x+2, y, y+2):
                    a(f"  v_pk_mul_f32 v[{s}:{s+1}], v[{s}:{s+1}], v[{rp}:{rp+1}] {md}")
                d = 128 + (c*4+qt)*4
                for k, s in enumerate((x, x+2, y, y+2)):
                    a(f"  v_cvt_pk_bf16_f32 v{d+k}, v{s}, v{s+1}")
    def qepi2():
        for c in range(2):
            for qt in range(4):
                d = 128 + (c*4+qt)*4
                a(f"  v_permlane16_swap_b32 v{d}, v{d+2}")
                a(f"  v_permlane16_swap_b32 v{d+1}, v{d+3}")
        for c in range(2):
            for qt in range(4):
                d = 128 + (c*4+qt)*4
                for k in range(4):
                    a(f"  v_accvgpr_write_b32 a{A_Q+(qt*4+2*half+c)*4+k}, v{d+k}")
    if half == 0 or not OPT['hx']:
        a("  s_nop 7"); qepi1(); a("  s_nop 0"); qepi2()
stamp()
stamp(2)
a(f"  s_lshl_b32 s{S_T}, s{S_W}, 13")
a(f"  v_add_u32 v{V_T0}, s{S_T}, v{V_L16}")
a("  s_waitcnt lgkmcnt(0)")
a("  s_barrier")
hw = [f"  ds_write_b128 v{V_T0}, v[{V_H+k*4}:{V_H+k*4+3}] offset:{k*1024}" for k in range(8)]
kd = capture(lambda: (k_tile_dma(0), k_tile_dma(1))) if not OPT['klate'] else []
if OPT['hx']:
    e1 = capture(qepi1)
    a("  s_nop 3")
    for k in range(8):
        a(hw[k])
        for l in e1[4*k:4*k+4]: a(l)
    e1 = e1[32:]
    for l in kd:
        a(l)
        if 'buffer_' in l or 'm0' in l:
            for _ in range(3): a(e1.pop(0))
    for l in e1: a(l)
else:
    for l in hw: a(l)
    k_tile_dma(0); k_tile_dma(1)
a("  s_waitcnt lgkmcnt(0)")
a("  s_barrier")
stamp(2)
b_reload(True, wait=False)
if OPT['hx']: qepi2()
a(f"  s_mov_b32 s{S_VOFF}, s{S_KV0}")
a(f"  s_cmp_lg_u32 s{S_ODD}, 0")
a("  s_cbranch_scc1 L_ffn2_odd")
def attn_init():
    L = [f"  s_add_u32 s{S_VOFF}, s{S_KV0}, {2*16384}"]
    L += [f"  v_mov_b32 v{V_L+i}, 0" for i in range(12)]
    L += [f"  v_and_b32 v{V_T0}, {15 if OPT['one1'] else 3}, v{V_LANE}", f"  v_cmp_eq_u32 vcc, 0, v{V_T0}", f"  v_mov_b32 v{V_T0}, 0x3f803f80", "  s_nop 0",
          f"  v_cndmask_b32 v{V_ONES}, 0, v{V_T0}, vcc"] + [f"  v_mov_b32 v{V_ONES+i}, v{V_ONES}" for i in range(1, 4)]
    if NSUM == 4:
        L += ["  s_nop 1"] + [f"  v_mov_b32_dpp v{V_L+i}, v{V_ONES} quad_perm:[1,0,3,2] row_mask:0xf bank_mask:0xf" for i in range(4)]
    return L
HI_CVT = capture(lambda: store_partial(0, 1, dst=160, defer=True, sreg=S_SP))
HI_CVT = [l for l in HI_CVT if 'v_cvt' in l]
WO_SET = capture(lambda: set_stream('wo', 0)) + [f"  s_mov_b32 s{S_SV_POFF}, s{S_POFF}"]
A_INIT = [l for l in attn_init() if 's_nop' not in l]
def ffn2(nf):
    gpos[0] = 48; N = 48 + 2*nf
    vq = [f"S{k}" for k in range(49, 55) for _ in range(4)] + ['K']*(0 if OPT['klate'] else 8)
    kj = ((57, 58) if nf == 8 else (53, 54)) if OPT['klate'] else ()
    vj = (59, 60) if (nf == 8 and OPT['klate']) else (57, 58)
    def yg(tag): return len(vq) - 1 - max(i for i, t in enumerate(vq) if t == tag)
    st0 = None
    stj = (59, 60) if nf == 8 else (55, 56)
    j = 48
    ns0 = nstamp[0]
    while j < N:
        if j in (48, 50, 48 + nf, 50 + nf): stamp(2)
        if j == 48 + nf: st0 = store_partial(0, 0, dst=128, defer=True, sreg=S_SP)
        if nf == 8 and j == 49: set_stream('w2', 1)
        if j == 50:
            n = 6 if nf == 8 else 3
            gemm_call(n)
            for k in range(n): vq.extend([f"S{j+k+7}"]*4)
            j += n; continue
        kw = dict(first=(j - 48) % nf < 2, vmw=(yg(f"S{j+2}") if j + 2 < N else 63), noread=(j + 2 >= N))
        if j + 7 < N: tags = [f"S{j+7}"]*4
        elif j in vj:
            kw['vm'] = [[f"  s_add_u32 m0, s{S_VM0}, {(j-vj[0])*16384}", v_dma(0)], [v_dma(1)], [v_dma(2)], [v_dma(3)]]
            if j == vj[1]: kw['xvm'] = [(5, f"  s_add_u32 s{S_VOFF}, s{S_VOFF}, 16384")]
            tags = ['V']*4
        elif j in kj:
            kw['vm'] = [[f"  s_add_u32 m0, s{S_KM0}, {kslot(j-kj[0])*16384}", k_dma(0)], [k_dma(1)], [k_dma(2)], [k_dma(3)]]
            kw['xvm'] = [(15, f"  s_add_u32 s{S_KOFF}, s{S_KOFF}, 16384")]
            tags = ['K']*4
        elif j in stj and OPT['early']:
            kw['vm'] = [[x] for x in st0[4*(j-stj[0]):4*(j-stj[0])+4]]; tags = ['st']*4
        else: kw['vm'] = []; tags = []
        if OPT['hfill'] and j == N - 2:
            kw2 = dict(vm=[], vmw=63, noread=True)
            w0 = kw['vmw']
            prog = capture(lambda: (gemm_inl(**kw), gemm_inl(**kw2)))
            prog = [l for l in prog if 's_waitcnt' not in l]
            a(f"  s_waitcnt vmcnt({w0}) lgkmcnt(0)")
            emit_sched(prog + A_INIT + WO_SET + HI_CVT[:16], f'ffn2 end {nf}')
            break
        gemm_inl(**kw); vq.extend(tags); j += 1
_ns = nstamp[0]
ffn2(8)
nstamp[0] = _ns
a("  s_branch L_ffn2_done")
iodd = len(a.lines)
a.label("L_ffn2_odd")
ffn2(6)
a.label("L_ffn2_done")
stamp(2)
a("  s_waitcnt vmcnt(12) lgkmcnt(0)")
a("  s_barrier")
stamp(2)
stamp(); stamp(4)
if OPT['stamps']:
    a("  s_memrealtime s[38:39]")
    a("  s_waitcnt lgkmcnt(0)")
QORD = [(kt, qt) for qt in range(4) for kt in range(2)]
def maxq(qt):
    x = s_reg(0, 0, qt); y = s_reg(0, 1, qt); m = V_NEGM + qt*4
    a(f"  v_max3_f32 v{m}, v{x}, v{x+1}, v{x+2}")
    a(f"  v_max3_f32 v{m+1}, v{x+3}, v{y}, v{y+1}")
    a(f"  v_max3_f32 v{m}, v{m}, v{y+2}, v{y+3}")
    a(f"  v_max_f32 v{m}, v{m}, v{m+1}")
    xlane_reduce(m, 'v_max_f32', m+1)
    for k in range(3, -1, -1): a(f"  v_sub_f32 v{m+k}, 0, v{m}")
    for kt in range(2):
        for r in range(4):
            s_ = s_reg(0, kt, qt) + r
            a(f"  v_add_f32 v{s_}, v{s_}, v{m}")
def head_common():
    L = qk_mfmas(1, order=QORD, src=A_V)
    for qt in range(4): L += sm_ops(0, qt)
    L += [k_read(2, i >> 2, i & 3) for i in range(8)] + capture(lambda: k_tile_dma(4))
    L += qk_mfmas(0, order=QORD)
    for qt in range(4): L += sm_ops(1, qt)
    L += [k_read(3, i >> 2, i & 3) for i in range(8)] + capture(lambda: v_tile_dma(2))
    return L
KR01 = [k_read(0, i >> 2, i & 3) for i in range(8)] + [k_read(1, i >> 2, i & 3, A_V) for i in range(8)]
prog = KR01 + HI_CVT[(16 if OPT['hfill'] else 0):]
prog += capture(lambda: (k_tile_dma(2), k_tile_dma(3))) + ["  s_waitcnt vmcnt(16)", "  s_barrier"]
for k in range(OPT['hst']):
    prog.append(f"  s_add_u32 s{S_SP}, s{S_PBASE}, {k*4096}")
    prog += [f"  buffer_store_dwordx4 v[{128+(k*4+qt)*4}:{131+(k*4+qt)*4}], v{V_L16}, s[{SRD_WS}:{SRD_WS+3}], s{S_SP} offen offset:{qt*1024} sc1" for qt in range(4)]
if OPT['m16']:
    prog += qk_mfmas(0, zero=True, order=[(0, qt) for qt in range(4)])
    if not OPT['hfill']: prog += A_INIT
    def max16(qt):
        x = s_reg(0, 0, qt); m = V_NEGM + qt*4
        a(f"  v_max3_f32 v{m}, v{x}, v{x+1}, v{x+2}")
        a(f"  v_max_f32 v{m}, v{m}, v{x+3}")
        xlane_reduce(m, 'v_max_f32', m+1)
        for k in range(3, -1, -1): a(f"  v_sub_f32 v{m+k}, 0, v{m}")
    for qt in range(4): prog += capture(lambda: max16(qt))
    prog += qk_mfmas(0, order=QORD)
else:
    prog += qk_mfmas(0, zero=True, order=QORD)
    if not OPT['hfill']: prog += A_INIT
    for qt in range(4): prog += capture(lambda: maxq(qt))
prog += head_common()
if not OPT['hfill']: prog += WO_SET
emit_sched(prog, 'head', vmgap=OPT['hgap'])
stamp(4)
a(f"  s_mov_b32 s{S_LOOP}, 7")
a(f"  s_and_b32 s{S_EV}, s{S_R}, 3")
a(f"  s_mov_b32 s{S_EI}, 0")
a(f"  s_waitcnt vmcnt({12 + 4*OPT['hst']})")
a("  s_branch L_p2")
segs.append(('pre', i0, len(a.lines)))
a(".p2align 6")
il = len(a.lines)
a.label("L_loop")
for p in range(8, 16):
    if p == 10: a.label("L_p2")
    if p % 2 == 0: barrier_T(16)
    else:
        if OPT['e64']: a("  s_nop 0")
        a("  s_waitcnt lgkmcnt(0)")
    if OPT['stg'] and p & 1:
        period(p, endop=f"  s_sub_u32 s{S_EV}, s{S_EV}, 1")
        a(f"  s_cbranch_scc1 L_ev{p}")
        a.label(f"L_evr{p}")
    else: period(p)
a(f"  s_sub_u32 s{S_LOOP}, s{S_LOOP}, 1")
a(f"  s_cmp_eq_u32 s{S_LOOP}, 0")
a("  s_cbranch_scc1 L_tail")
itail = len(a.lines)
a(f"  s_cmp_lg_u32 s{S_REDO}, 0")
a("  s_cbranch_scc1 L_loop")
if OPT['alt']:
    a(f"  s_cmp_lt_u32 s{S_LOOP}, 3")
    a("  s_cbranch_scc1 L_bk3")
    a(f"  s_xor_b32 s{S_T}, s{S_LOOP}, s{S_ODD}")
    a(f"  s_bitcmp1_b32 s{S_T}, 0")
    a("  s_cbranch_scc0 L_loop")
    a(f"  s_cmp_lt_u32 s{S_LOOP}, 5")
    a("  s_cbranch_scc1 L_bk1")
    for hb in range(2):
        if hb:
            a.label("L_bk1")
            for l in PFG['mb']: a(l.replace('v255', f'v{V_T0}'))
        for k in (2*hb, 2*hb+1):
            a(f"  s_add_u32 s{S_T}, s{S_PBASE}, {(k & 1)*4096 + (k >> 1)*HSTR}")
            for qt in range(4):
                d = 128 + (k*4+qt)*4
                a(f"  buffer_store_dwordx4 v[{d}:{d+3}], v{V_L16}, s[{SRD_WS}:{SRD_WS+3}], s{S_T} offen offset:{qt*1024} sc1")
        a("  s_branch L_loop")
    a.label("L_bk3")
if OPT['bsh']:
    idx = 0
    for e, n_ in enumerate((6, 5, 5)):
        a(f"  s_cmp_lg_u32 s{S_LOOP}, {5-e}")
        a(f"  s_cbranch_scc1 L_bk{e}")
        if e == 2:
            for l in PFG['mb']: a(l.replace('v255', f'v{V_T0}'))
        for z in range(idx, idx + n_):
            k, qt = z >> 2, z & 3
            if z == idx or qt == 0: a(f"  s_add_u32 s{S_T}, s{S_PBASE}, {(k & 1)*4096 + (k >> 1)*HSTR}")
            a(f"  buffer_store_dwordx4 v[{128+4*z}:{131+4*z}], v{V_L16}, s[{SRD_WS}:{SRD_WS+3}], s{S_T} offen offset:{qt*1024} sc1")
        idx += n_
        a("  s_branch L_loop")
        a.label(f"L_bk{e}")
for k in range(OPT['hst'], 0 if (OPT['stg'] or OPT['alt'] or OPT['bsh']) else 4):
    a(f"  s_cmp_lg_u32 s{S_LOOP}, {6-k}")
    a(f"  s_cbranch_scc1 L_bk{k}")
    if k == 3 and OPT['mbl']:
        for l in PFG['mb']: a(l.replace('v255', f'v{V_T0}'))
    a(f"  s_add_u32 s{S_T}, s{S_PBASE}, {(k & 1)*4096 + (k >> 1)*HSTR}")
    if OPT['w2sw']:
        a(f"  s_and_b32 s{S_T+1}, s{S_R}, 1")
        a(f"  s_mul_i32 s{S_T+1}, s{S_T+1}, {HSTR}")
        a(f"  s_xor_b32 s{S_T}, s{S_T}, s{S_T+1}")
    for qt in range(4):
        d = 128 + (k*4+qt)*4
        a(f"  buffer_store_dwordx4 v[{d}:{d+3}], v{V_L16}, s[{SRD_WS}:{SRD_WS+3}], s{S_T} offen offset:{qt*1024} sc1")
    a("  s_branch L_loop")
    a.label(f"L_bk{k}")
a(f"  s_lshl_b32 s{S_T}, s{S_R}, 2")
a(f"  s_cmp_lg_u32 s{S_LOOP}, 1")
a("  s_cbranch_scc1 L_bk4")
a(f"  v_mov_b32 v{V_T0}, 0")
a(f"  buffer_load_dword v{V_POLL}, v{V_T0}, s[{SRD_D}:{SRD_D+3}], s{S_T} offen sc1")
if OPT['cp2']:
    a(f"  s_getpc_b64 s[{SRD_X}:{SRD_X+1}]")
    a.label("L_pc2")
    a(f"  s_mov_b32 s{SRD_X+2}, L_code_end-L_pc2")
    a(f"  s_lshr_b32 s{S_T}, s2, 3")
    a(f"  s_lshl_b32 s{S_T}, s{S_T}, 2")
    a(f"  s_add_u32 s{S_T}, s{S_T}, s{S_W}")
    a(f"  s_lshl_b32 s{S_T}, s{S_T}, 8")
    a(f"  v_lshlrev_b32 v{V_T1}, 2, v{V_LANE}")
    a(f"  buffer_load_dword v128, v{V_T1}, s[{SRD_X}:{SRD_X+3}], s{S_T} offen")
    if OPT['cp2'] == 2:
        for l in PFG['wo']: a(l.replace('v253', f'v{V_T1}').replace('v254', 'v129'))
a("  s_branch L_loop")
a.label("L_bk4")
if OPT['pt']:
    a(f"  v_lshlrev_b32 v{V_T1}, 7, v{V_LANE}")
    for k in range(2):
        a(f"  s_add_u32 s{S_T+1}, s{S_PBASE}, {PART_KIND + k*8192}")
        a(f"  buffer_load_dword v{130+k}, v{V_T1}, s[{SRD_WS}:{SRD_WS+3}], s{S_T+1} offen{' sc1' if OPT['pt'] == 2 else ''}")
a(f"  s_lshl_b32 s{S_T+1}, s{S_W}, 4")
a(f"  s_or_b32 s{S_T+1}, s{S_T+1}, s{S_LOOP}")
a(f"  s_cmp_lg_u32 s{S_T+1}, 2")
a("  s_cbranch_scc1 L_loop")
a(f"  v_mov_b32 v{V_T0}, 1")
a(f"  v_lshlrev_b32 v{V_T1}, 2, v{V_LANE}")
a(f"  buffer_atomic_add v{V_T0}, v{V_T1}, s[{SRD_D}:{SRD_D+3}], s{S_T} offen sc1")
a("  s_branch L_loop")
if OPT['stg']:
    for p in (9, 11, 13, 15):
        a.label(f"L_ev{p}")
        a(f"  s_call_b64 s[{S_RET}:{S_RET+1}], L_evt")
        a(f"  s_branch L_evr{p}")
    a.label("L_evt")
    a(f"  s_mov_b32 s{S_EV}, {OPT['stg'] + 2}")
    a(f"  s_add_u32 s{S_EI}, s{S_EI}, 1")
    for k in range(4):
        if k < 3:
            a(f"  s_cmp_lg_u32 s{S_EI}, {k+1}")
            a(f"  s_cbranch_scc1 L_evk{k}")
        else:
            a(f"  s_mov_b32 s{S_EV}, 1000")
            for l in PFG['mb']: a(l.replace('v255', f'v{V_T0}'))
        a(f"  s_add_u32 s{S_T}, s{S_PBASE}, {(k & 1)*4096 + (k >> 1)*HSTR}")
        for qt in range(4):
            d = 128 + (k*4+qt)*4
            a(f"  buffer_store_dwordx4 v[{d}:{d+3}], v{V_L16}, s[{SRD_WS}:{SRD_WS+3}], s{S_T} offen offset:{qt*1024} sc1")
        a(f"  s_setpc_b64 s[{S_RET}:{S_RET+1}]")
        if k < 3: a.label(f"L_evk{k}")
segs.append(('loop2', il, len(a.lines)))
it = len(a.lines)
a.label("L_tail")
stamp(4)
a(f"  v_readfirstlane_b32 s{S_T}, v{V_POLL}")
a("  s_nop 3")
a(f"  s_cmp_ge_u32 s{S_T}, 8")
a("  s_cbranch_scc1 L_spin1_done")
a(f"  v_mov_b32 v{V_T0}, 0")
a(f"  s_lshl_b32 s{S_T+2}, s{S_R}, 2")
spin("L_spin1", SRD_D, V_T0, f"s{S_T+2}", 8)
if OPT['sib']:
    a(f"  s_lshr_b32 s{S_T}, s{S_PBASE}, 16")
    a(f"  s_xor_b32 s{S_T}, s{S_T}, 1")
    a(f"  s_lshl_b32 s{S_T}, s{S_T}, 7")
    a(f"  s_add_u32 s{S_T}, s{S_T}, {MBOX}")
    a(f"  v_mov_b32 v{V_T0}, 4")
    a(f"  buffer_load_dword v{V_L+2}, v{V_T0}, s[{SRD_WS}:{SRD_WS+3}], s{S_T} offen sc1")
gl = [part_load(0, b_ >> 3, b_ & 7, 128 + 4*b_) for b_ in range(16)]
for p in range(56, 63):
    if p % 2 == 0: barrier_T()
    else: a("  s_waitcnt lgkmcnt(0)")
    if p in (56, 58, 60, 61): period(p, dma=[gl.pop(0) for _ in range(4)])
    elif p == 62:
        ex = []
        for pos in (4, 5):
            pl = produce_list(pos); ex += [pl[:4], [pl[4]], [], [pl[5]], [], [pl[6]], [], [pl[7]]]
        period(p, last=True, extra=[[]]*16 + ex)
    else: period(p)
stamp(4)
if OPT['sib']: a(f"  v_readfirstlane_b32 s{S_SIB}, v{V_L+2}")
a("  s_waitcnt lgkmcnt(0)")
THR = 0x53800000 if not OPT['force_redo'] else 0x3f000000
prog = v_half(31, 0) + produce_list(0) + produce_list(1)
prog += pv_half(30, 1, A_K) + sum_pair(30, 2)
prog += [f"  s_mov_b32 s{S_SP}, {THR:#x}", f"  s_mov_b64 vcc, 0"]
for qt in (3, 2, 1, 0): prog += sm_ops(63, qt)
prog += v_half(31, 1, A_K) + ["  s_barrier"] + produce_list(2)
prog += sum_pair(31, 3) + sum_pair(31, 2)
for qt in (1, 0, 3, 2):
    lr = (ls_reg(qt) + (qt < 2)) if qt in SUMQT else V_L + qt
    if qt not in SUMQT: prog += capture(lambda: xlane_reduce(V_L+qt, 'v_add_f32', V_L+2+qt))
    elif OPT['one1']: prog += capture(lambda: xlane_reduce(lr, 'v_add_f32', lr+1))
    prog += [f"  v_cmp_ngt_f32 s[{S_T+2}:{S_T+3}], s{S_SP}, v{lr}", f"  s_or_b64 vcc, vcc, s[{S_T+2}:{S_T+3}]",
             f"  v_rcp_f32 v{V_NEGM+2*qt}, v{lr}"]
FLG = [f"  s_cmp_lg_u64 vcc, 0", f"  s_cselect_b32 s{S_T}, 1, 0", f"  v_mov_b32 v56, s{S_T}", f"  ds_write_b32 v{V_T1}, v56"]
prog += [f"  s_lshl_b32 s{S_T+1}, s{S_W}, 2", f"  s_add_u32 s{S_T+1}, s{S_T+1}, {RB+3*16384}",
         f"  v_and_b32 v{V_T1}, 3, v{V_LANE}", f"  v_lshlrev_b32 v{V_T1}, 12, v{V_T1}", f"  v_add_u32 v{V_T1}, s{S_T+1}, v{V_T1}"]
if not OPT['ochk']: prog += FLG
prog += [f"  s_lshl_b32 s{S_T}, s{S_W}, 14", f"  v_add_u32 v{V_T0}, s{S_T}, v{V_L16}"]
gpos[0] = 8
if OPT['af']:
    prog += [f"  v_add_u32 v{60+nt}, {3*16384}, v{V_AA+nt}" for nt in range(4)] + ["  s_waitcnt vmcnt(12)"]
    af = capture(a_first)
    for nt in range(4): af = [l.replace(f", v{V_AA+4+nt} ", f", v{60+nt} ") for l in af]
    prog += af
prog += pv_half(31, 0) + pv_half(31, 1, A_K)
def norm(c, qt, pk):
    t = qt * 12; L = []
    L += [f"  v_accvgpr_read_b32 v{t+k}, a{A_O+((2*c)*4+qt)*4+k}" for k in range(4)]
    L += [f"  v_accvgpr_read_b32 v{t+4+k}, a{A_O+((2*c+1)*4+qt)*4+k}" for k in range(4)]
    if pk: L += [f"  v_pk_mul_f32 v[{t+2*k}:{t+2*k+1}], v[{t+2*k}:{t+2*k+1}], v[{V_NEGM+2*qt}:{V_NEGM+2*qt+1}] op_sel_hi:[1,0]" for k in range(4)]
    else: L += [f"  v_mul_f32 v{t+k}, v{t+k}, v{V_NEGM+2*qt}" for k in range(8)]
    L += [f"  v_cvt_pk_bf16_f32 v{t+8+k}, v{t+2*k}, v{t+2*k+1}" for k in range(4)]
    L += [f"  ds_write_b128 v{V_T0}, v[{t+8}:{t+11}] offset:{(c*4+qt)*1024}"]
    return L
def ochk(c, qt):
    return mf(52, V_ONES, qt*12+8, None if (c, qt) == (0, 0) else 52)
NOV = OPT['nov']
todo = [(c, qt) for c in range(4) for qt in range(4)]
if OPT['ochk']:
    NOV = min(NOV, 4)
for c, qt in todo[:NOV]: prog += norm(c, qt, False)
if OPT['ochk']: prog += [ochk(c, qt) for c, qt in todo[:NOV]]
emit_sched(prog, 'tail')
stamp(); stamp(4)
if OPT['stamps']:
    a(f"  s_memrealtime s[{S_RET}:{S_RET+1}]")
    a("  s_waitcnt lgkmcnt(0)")
    a(f"  s_mov_b32 s39, s{S_RET}")
gpos[0] = 8
for nt in range(4): a(f"  v_add_u32 v{V_AA+4+nt}, {3*16384}, v{V_AA+nt}")
if not OPT['af']:
    a("  s_waitcnt vmcnt(12)")
    a_first()
pend_ = None
for c, qt in todo[NOV:]:
    L_ = norm(c, qt, True)
    if pend_: L_.insert(1, pend_)
    for l in L_: a(l)
    pend_ = ochk(c, qt) if OPT['ochk'] else None
if OPT['ochk']:
    a("  s_nop 0")
    a(pend_)
    a("  s_nop 7")
    a(f"  v_cmp_u_f32 s[{S_T+2}:{S_T+3}], v53, v53")
    a("  s_nop 2")
    a(f"  s_or_b64 vcc, vcc, s[{S_T+2}:{S_T+3}]")
    for l in FLG: a(l)
a("  s_waitcnt lgkmcnt(0)")
a("  s_barrier")
a(f"  s_add_u32 s{S_T}, s{S_VM0}, {3*16384}")
a(f"  v_mov_b32 v{V_T0}, s{S_T}")
a(f"  ds_read_b128 v[0:3], v{V_T0}")
b_reload(False, wait=False)
a("  s_waitcnt lgkmcnt(8)")
a("  v_or_b32 v0, v0, v1")
a("  v_or3_b32 v0, v0, v2, v3")
a("  s_nop 0")
a(f"  v_readfirstlane_b32 s{S_T}, v0")
a(f"  s_andn2_b32 s{S_T}, s{S_T}, s{S_REDO}")
if not OPT['noredo']: a("  s_cbranch_scc1 L_redo")
produce_slot(3); produce_slot(4)
a(f"  s_lshl_b32 s{S_T}, s{S_W}, 1")
a(f"  s_sub_u32 s{S_OWN}, s{S_G}, s{S_T}")
if OPT['sib']:
    a(f"  s_getreg_b32 s{S_T}, hwreg(HW_REG_XCC_ID, 0, 4)")
    a(f"  s_xor_b32 s{S_T+1}, s{S_OWN}, 1")
    a(f"  s_cmp_eq_u32 s{S_T}, s{S_SIB}")
    a(f"  s_cselect_b32 s{S_SIB}, s{S_T+1}, 99")
stamp()
gemm_first(); gemm_call(7); set_stream('wo', 1); gemm_call(7)
LOQ = [192, 196, 200, 204, 216, 220, 224, 228]
if OPT['own']:
    for k in range(4): a(f"  v_mov_b32 v{248+k}, 0")
    a("  s_nop 1")
    for k in range(4): a(f"  v_mfma_f32_32x32x16_bf16 a[{16*k}:{16*k+15}], v[248:251], v[248:251], 0")
st0 = store_partial(1, 0, dst=LOQ, defer=True, sreg=S_SP)
a(f"  s_mov_b32 s{SRD_X}, s{P_X}")
a(f"  s_mov_b32 s{SRD_X+1}, s{P_X+1}")
a(f"  s_mov_b32 s{SRD_X+2}, {2048*512*2}")
GL, XL, SL = 128, 248, 64
S_MB, S_DONE, S_M, S_NEW = S_KOFF, S_VOFF, S_LOOP, S_KM0
a(f"  s_lshr_b32 s{S_MB}, s{S_PBASE}, {WGSH}")
a(f"  s_lshl_b32 s{S_MB}, s{S_MB}, 7")
a(f"  s_add_u32 s{S_MB}, s{S_MB}, {MBOX}")
a(f"  s_add_u32 s{S_XO}, s{S_XO}, s{S_HSW}")
a(f"  s_xor_b32 s{S_HSW}, s{S_XO}, 128")
if OPT['fst']:
    a(f"  v_and_b32 v{V_ZERO}, 15, v{V_LANE}")
    a(f"  v_lshlrev_b32 v{V_ZERO}, 2, v{V_ZERO}")
else: a(f"  v_mov_b32 v{V_ZERO}, 0")
a(f"  v_and_b32 v{V_T0}, 15, v{V_LANE}")
a(f"  v_lshlrev_b32 v{V_T0}, 10, v{V_T0}")
if OPT['o4']:
    a(f"  v_and_b32 v{V_T1}, 16, v{V_LANE}")
    a(f"  v_lshl_add_u32 v{V_T0}, v{V_T1}, 1, v{V_T0}")
    a(f"  v_bfe_u32 v{V_T1}, v{V_LANE}, 5, 1")
    a(f"  v_lshl_add_u32 v{V_XO}, v{V_T1}, 4, v{V_T0}")
else:
    a(f"  v_lshrrev_b32 v{V_T1}, 4, v{V_LANE}")
    a(f"  v_lshl_add_u32 v{V_XO}, v{V_T1}, 3, v{V_T0}")
POLL = f"  buffer_load_dword v{V_POLL}, v{V_ZERO}, s[{SRD_WS}:{SRD_WS+3}], s{S_MB} offen sc1"
XLD = [f"  buffer_load_dwordx2 v[{XL+2*k}:{XL+2*k+1}], v{V_XO}, s[{SRD_X}:{SRD_X+3}], s{S_HSW if k >> 1 else S_XO} offen offset:{(k&1)*32}" for k in range(4)]
if OPT['o4']: XLD = [f"  buffer_load_dwordx4 v[{XL+4*i}:{XL+4*i+3}], v{V_XO}, s[{SRD_X}:{SRD_X+3}], s{S_HSW if i else S_XO} offen" for i in range(2)]
if OPT['xvol'] & 2:
    a(f"  s_bitcmp1_b32 s{S_W}, 0")
    a(f"  s_cselect_b32 s{S_FB}, 0x40000000, s{S_FB}")
S_SIG = S_KV0
a(f"  s_mov_b32 s{SRD_D}, s{P_WS}")
a(f"  s_mov_b32 s{SRD_D+1}, s{P_WS+1}")
a(f"  s_lshl_b32 s{S_SIG}, s{S_R}, 10")
a(f"  s_add_u32 s{S_SIG}, s{S_SIG}, {MBOX}")
a(f"  s_add_u32 s{S_T}, s{S_SIG}, 1024")
a(f"  s_cmp_eq_u32 s{S_W}, 0")
a(f"  s_cselect_b32 s{SRD_D+2}, s{S_T}, 0")
a(f"  s_lshl_b32 s{S_M}, 1, s{S_G}")
a(f"  v_mov_b32 v{V_T0}, s{S_M}")
a(f"  v_lshlrev_b32 v{V_T1}, 7, v{V_LANE}")
SIG = SIG2 = f"  buffer_atomic_add v{V_T0}, v{V_T1}, s[{SRD_D}:{SRD_D+3}], s{S_SIG} offen sc1"
if OPT['fst']:
    a(f"  v_lshl_add_u32 v{V_T1}, s{S_G}, 2, v{V_T1}")
    SIG = f"  buffer_store_dword v{V_T0}, v{V_T1}, s[{SRD_D}:{SRD_D+3}], s{S_SIG} offen sc1"
    SIG2 = f"  buffer_store_dword v{V_T0}, v{V_T1}, s[{SRD_D}:{SRD_D+3}], s{S_SIG} offen offset:32 sc1"
def getmask(sreg):
    if OPT['fst']:
        a(f"  v_cmp_ne_u32 vcc, 0, v{V_POLL}")
        a("  s_nop 3")
        a(f"  s_and_b32 s{sreg}, vcc_lo, 0xffff")
    else:
        a(f"  v_readfirstlane_b32 s{sreg}, v{V_POLL}")
SEL = 236
sel = [f"  v_lshrrev_b32 v{V_ONE_LO}, 4, v{V_LANE}", f"  v_bfe_u32 v{V_ONE_HI}, v{V_LANE}, 2, 2",
       f"  v_cmp_eq_u32 vcc, v{V_ONE_LO}, v{V_ONE_HI}", f"  v_and_b32 v{V_ONE_LO}, 1, v{V_LANE}", f"  v_lshlrev_b32 v{V_ONE_LO}, 4, v{V_ONE_LO}",
       f"  v_mov_b32 v{V_ONE_HI}, 0x3f80", f"  v_lshlrev_b32 v{V_ONE_HI}, v{V_ONE_LO}, v{V_ONE_HI}", f"  v_cndmask_b32 v{V_ONE_HI}, 0, v{V_ONE_HI}, vcc",
       f"  v_and_b32 v{V_ONE_LO}, 2, v{V_LANE}", f"  v_cmp_eq_u32 vcc, 0, v{V_ONE_LO}", f"  v_mov_b32 v{SEL}, 0", f"  v_mov_b32 v{SEL+1}, 0",
       f"  v_cndmask_b32 v{SEL+2}, 0, v{V_ONE_HI}, vcc", f"  v_cndmask_b32 v{SEL+3}, v{V_ONE_HI}, v{SEL}, vcc", f"  v_mov_b32 v{SEL+4}, 0", f"  v_mov_b32 v{SEL+5}, 0"]
def msum(base, acc, bt='v'):
    return [mf(acc + 4*h, SEL + 2 - 2*h, base + 4*s_, None if s_ == 0 else acc + 4*h, 'v', 'v', bt) for s_ in range(8) for h in range(2)]
SL = 0
def redirect(b_):
    return [f"  s_bitcmp1_b32 s{S_NEW}, {b_}", f"  s_cselect_b32 s{S_T+1}, s{S_FB}, 0x40000000",
            f"  s_add_u32 s{S_T+2}, s{S_T+1}, {PART_KIND + ((b_ & 7) << WGSH) + (b_ >> 3)*HSTR}",
            f"  buffer_load_dwordx4 a[{SL+4*b_}:{SL+4*b_+3}], v{V_L16}, s[{SRD_WS}:{SRD_WS+3}], s{S_T+2} offen sc1"]
vq = [f"slot{k}" for k in range(7) for _ in range(4)]
st0 = list(st0)
def trickle():
    if OPT['trk']:
        a(st0.pop(0)); vq.append('st')
trickle()
gemm_first(); vq += ['slot7']*4 + ['slot8']*4
if OPT['trk']:
    for k in range(3):
        trickle(); gemm_call(2); vq += [f"slot{9+2*k}"]*4 + [f"slot{10+2*k}"]*4
    if OPT['trk'] == 2: trickle()
    gemm_call(1); vq += ['slot15']*4
else:
    gemm_call(7); vq += [f"slot{k}" for k in range(9, 16) for _ in range(4)]
if OPT['e1']:
    a(POLL); vq.append('poll1')
def younger(tag): return len(vq) - 1 - max(i for i, t in enumerate(vq) if t == tag)
a(f"  s_mov_b32 s{S_DONE}, 0")
for j in range(9, 16):
    vm = []; tags = []; xv = None
    w_ = younger(f"slot{j+2}") if j < 14 else 63
    if j in (9, 10):
        vm = [[x] for x in st0[:4]]; tags = ['st']*len(vm); st0 = st0[4:]
    if j == 11 and not OPT['xl']: vm = [[x] for x in XLD]; tags = ['x']*len(XLD)
    if OPT['e1'] and j in (12, 13):
        if j == 12:
            w_ = younger('poll1')
            xv = [(4, f"  v_readfirstlane_b32 s{S_NEW}, v{V_POLL}"), (8, f"  s_and_b32 s{S_DONE}, s{S_NEW}, 0xff")]
        vm = [redirect(4*(j-12)+k) for k in range(4)]; tags = ['e1']*4
    if j == 14: vm = [[""], [""], [""], [POLL]]; tags = ['poll']
    if j == 15 and OPT['ilv']:
        prog = capture(lambda: (gemm_inl(vm=[], vmw=63, noread=True), store_partial(1, 1)))
        prog = [l for l in prog if 's_waitcnt' not in l]
        a("  s_nop 3")
        out, t = schedule(prog, vmgap=40)
        for l in out: a(l)
        a("  s_nop 1")
        break
    gemm_inl(vm=vm, vmw=w_, noread=(j >= 14), fillv=(sel if j == 14 else None), xvm=xv)
    vq += tags
stamp(5)
if not OPT['ilv']: store_partial(1, 1)
stamp(); stamp(5)
GA, T = 16, 48
OWNQ = 64
if OPT['own']:
    a(f"  s_cmp_gt_u32 s{S_OWN}, 1")
    a("  s_cbranch_scc1 L_own_done")
    a(f"  v_add_u32 v{V_BA}, s{S_VM0}, v{V_L16}")
    a(f"  s_cmp_eq_u32 s{S_OWN}, 1")
    a("  s_cbranch_scc1 L_own1")
    for c in range(2):
        if c: a.label("L_own1")
        if OPT['sib']:
            o = 1 - c
            a(f"  s_cmp_eq_u32 s{S_SIB}, 99")
            a(f"  s_cbranch_scc1 L_nosib{c}")
            a(f"  s_add_u32 s{S_T}, s{S_PBASE}, {PART_KIND + o*4096}")
            a(f"  s_add_u32 s{S_T+1}, s{S_T}, 8192")
            for qt in range(4):
                x = V_ACC + ((2*o)*4+qt)*4
                a(f"  buffer_store_dwordx4 v[{LOQ[4*o+qt]}:{LOQ[4*o+qt]+3}], v{V_L16}, s[{SRD_WS}:{SRD_WS+3}], s{S_T} offen offset:{qt*1024}")
                a(f"  buffer_store_dwordx4 v[{x}:{x+3}], v{V_L16}, s[{SRD_WS}:{SRD_WS+3}], s{S_T+1} offen offset:{qt*1024}")
            a.label(f"L_nosib{c}")
        for qt in range(4):
            a(f"  ds_write_b128 v{V_BA}, v[{LOQ[4*c+qt]}:{LOQ[4*c+qt]+3}] offset:{qt*1024}")
            x = V_ACC + ((2*c)*4+qt)*4
            a(f"  ds_write_b128 v{V_BA}, v[{x}:{x+3}] offset:{16384+qt*1024}")
        if c == 0: a("  s_branch L_own_w")
    a.label("L_own_w")
    if OPT['sib']:
        a(f"  s_cmp_eq_u32 s{S_SIB}, 99")
        a("  s_cbranch_scc1 L_own_done")
        a("  s_waitcnt vmcnt(0)")
    a.label("L_own_done")
    a(f"  s_lshr_b32 s{S_T}, s{S_G}, 1")
    a(f"  s_lshl_b32 s{S_T}, s{S_T}, 2")
    a(f"  s_add_u32 s{S_T}, s{S_T}, s{S_W}")
    a(f"  s_lshl_b32 s{S_T}, s{S_T}, 10")
    a(f"  s_add_u32 s{S_T}, s{S_T}, {RB}")
    a("  s_waitcnt lgkmcnt(0)")
    a(f"  v_add_u32 v{V_BA}, s{S_T}, v{V_L16}")
a("  s_waitcnt vmcnt(8)")
a("  s_barrier")
a(SIG)
if OPT['own']:
    a(f"  ds_read_b128 v[{OWNQ}:{OWNQ+3}], v{V_BA}")
    a(f"  ds_read_b128 v[{OWNQ+4}:{OWNQ+7}], v{V_BA} offset:16384")
getmask(S_NEW)
a(f"  v_lshlrev_b32 v{V_T0}, 8, v{V_T0}")
a("  s_nop 2")
if OPT['own']:
    a(f"  s_mul_i32 s{S_M}, s{S_M}, 0x101")
    a(f"  s_or_b32 s{S_DONE}, s{S_DONE}, s{S_M}")
    a(f"  s_mov_b32 s{S_M}, s{S_NEW}")
else:
    a(f"  s_or_b32 s{S_NEW}, s{S_NEW}, s{S_M}")
    a(f"  s_lshl_b32 s{S_M}, s{S_M}, 8")
    a(f"  s_or_b32 s{S_M}, s{S_M}, s{S_NEW}")
W1 = list(range(8, 15)) if OPT['e1'] else list(range(7))
W2 = ([15] if OPT['e1'] else list(range(7, 16))) if OPT['r2'] else []
S_SBM, S_SBO = S_FOFF, S_ROT7
if OPT['sib']:
    a(f"  s_xor_b32 s{S_T}, s{S_G}, 1")
    a(f"  s_lshl_b32 s{S_SBO}, s{S_T}, 16")
    a(f"  s_add_u32 s{S_SBO}, s{S_SBO}, s{S_FB}")
    a(f"  s_lshl_b32 s{S_T}, 0x101, s{S_T}")
    a(f"  s_cmp_eq_u32 s{S_SIB}, 99")
    a(f"  s_cselect_b32 s{S_SBM}, 0, s{S_T}")
    a(f"  s_andn2_b32 s{S_NEW}, s{S_NEW}, s{S_SBM}")
    for k in range(8): a(f"  v_mov_b32 v{OWNQ+8+k}, 0")
a(f"  s_and_b32 s{S_NEW}, s{S_NEW}, {sum(1 << b_ for b_ in W1 + W2):#x}")
a(f"  s_or_b32 s{S_DONE}, s{S_DONE}, s{S_NEW}")
fl = []
for s_ in W1:
    r_ = redirect(s_); fl += [r_[:2], r_[2:]]
def silu(acc):
    L = [f"  v_mul_f32 v{acc+e}, v{acc+e}, v{V_RSO}" for e in range(8)]
    def rp(r): return [f"  v_cvt_pk_bf16_f32 v{T+(r&2)//2}, v{r}, v{r+1}", f"  v_lshlrev_b32 v{r}, 16, v{T+(r&2)//2}", f"  v_and_b32 v{r+1}, 0xffff0000, v{T+(r&2)//2}"]
    for j in range(4): L += rp(acc+2*j)
    L += [f"  v_mul_f32 v{T+4+e}, 0xbfb8aa3b, v{acc+e}" for e in range(8)]
    L += [f"  v_exp_f32 v{T+4+e}, v{T+4+e}" for e in range(8)]
    L += [f"  v_add_f32 v{T+4+e}, 1.0, v{T+4+e}" for e in range(8)]
    L += [f"  v_rcp_f32 v{T+4+e}, v{T+4+e}" for e in range(8)]
    L += [f"  v_mul_f32 v{acc+e}, v{acc+e}, v{T+4+e}" for e in range(8)]
    for j in range(4): L += rp(acc+2*j)
    return L
s0 = silu(GA)
for g, l in enumerate(msum(GL, GA) + msum(GL + 32, GA + 8)):
    a(l)
    if g < len(fl):
        for x in fl[g]: a(x)
    if g >= 23:
        a(s0.pop(0)); a(s0.pop(0))
for b_ in W2:
    for l in redirect(b_): a(l)
    for _ in range(5):
        if s0: a(s0.pop(0))
s1 = silu(GA + 8)
if OPT['sv'] >= 1:
    for l in s0: a(l)
    s0 = []
if OPT['sv'] >= 2:
    for l in s1: a(l)
    s1 = []
stamp(5)
a(f"  s_waitcnt vmcnt({8 + len(W2)})")
a("  s_barrier")
a(SIG2)
stamp(5)
def fround(first=False):
    if not first:
        if OPT['pslp']: a(f"  s_sleep {OPT['pslp']}")
        a(POLL)
        a("  s_waitcnt vmcnt(0)")
        getmask(S_M)
        a("  s_nop 3")
    a(f"  s_call_b64 s[{S_RET}:{S_RET+1}], L_round")
fround(True)
if OPT['xl']:
    for l in XLD: a(l)
XU = 72
def SAr(i): return 8*i
pre_ = []
for i in range(2):
    pre_ += [mf(SAr(i) + 4*h, SEL + 2 - 2*h, OWNQ + 4*i, None) for h in range(2)]
    pre_ += [f"  v_permlane16_swap_b32 v{XL+4*i}, v{XL+4*i+2}", f"  v_permlane16_swap_b32 v{XL+4*i+1}, v{XL+4*i+3}"]
    for j in range(4):
        xr = XL + 4*i + j
        pre_ += [f"  v_lshlrev_b32 v{XU+8*i+2*j}, 16, v{xr}", f"  v_and_b32 v{XU+8*i+2*j+1}, 0xffff0000, v{xr}"]
a("  s_waitcnt lgkmcnt(0)")
emit_sched(s0 + s1 + pre_, 'silu')
stamp(5)
a(f"  s_mov_b32 s{SRD_D}, s{P_OUT}")
a(f"  s_mov_b32 s{SRD_D+1}, s{P_OUT+1}")
a(f"  s_mov_b32 s{SRD_D+2}, {2048*512*2}")
a(f"  s_mov_b32 s{S_CNT}, {OPT['spin']}")
def ost4(i): return f"  buffer_store_dwordx4 v[{XL+4*i}:{XL+4*i+3}], v{V_XO}, s[{SRD_D}:{SRD_D+3}], s{S_HSW if i else S_XO} offen"
def fin_m(i):
    SA = SAr(i)
    return [mf(SA + 4*h, SEL + 2 - 2*h, SL + i*32 + 4*s_, SA + 4*h, 'v', 'v', 'a') for h in range(2) for s_ in range(8)]
def fin_v(i):
    SA = SAr(i); L = []
    for h in range(2):
        t = T + 4*i + 2*h
        rp = lambda r, t_: [f"  v_cvt_pk_bf16_f32 v{t_}, v{r}, v{r+1}", f"  v_lshlrev_b32 v{r}, 16, v{t_}", f"  v_and_b32 v{r+1}, 0xffff0000, v{t_}"]
        if OPT['ffma']:
            L += [f"  v_fma_f32 v{SA+4*h+e}, v{SA+4*h+e}, v{GA+8*i+4*h+e}, v{XU+8*i+4*h+e}" for e in range(4)]
        else:
            for j in range(2): L += rp(SA+4*h+2*j, t+j)
            L += [f"  v_mul_f32 v{SA+4*h+e}, v{SA+4*h+e}, v{GA+8*i+4*h+e}" for e in range(4)]
            for j in range(2): L += rp(SA+4*h+2*j, t+j)
            L += [f"  v_add_f32 v{SA+4*h+e}, v{SA+4*h+e}, v{XU+8*i+4*h+e}" for e in range(4)]
        L += [f"  v_cvt_pk_bf16_f32 v{XL+4*i+2*h+j}, v{SA+4*h+2*j}, v{SA+4*h+2*j+1}" for j in range(2)]
    L += [f"  v_permlane16_swap_b32 v{XL+4*i}, v{XL+4*i+2}", f"  v_permlane16_swap_b32 v{XL+4*i+1}, v{XL+4*i+3}"]
    return L
for i in range(2):
    a.label(f"L_sp{i}")
    a(f"  s_cmp_eq_u32 s{S_DONE}, 0xffff")
    a(f"  s_cbranch_scc1 {'L_both' if i == 0 else 'L_sp1_done'}")
    a(f"  s_bfe_u32 s{S_T+3}, s{S_DONE}, {(8 << 16) | (8*i)}")
    fround()
    if i == 0:
        a(f"  s_cmp_eq_u32 s{S_T+3}, 0xff")
        a(f"  s_cbranch_scc1 L_sp{i}_done")
    a(f"  s_sub_u32 s{S_CNT}, s{S_CNT}, 1")
    a(f"  s_cbranch_scc0 L_sp{i}")
    a(f"  s_mov_b32 s{S_CNT}, 0")
    a.label(f"L_sp{i}_done")
    if i == 0: emit_sched(fin_m(0) + fin_v(0), 'fin0')
    else:
        a("  s_waitcnt vmcnt(0)")
        emit_sched([ost4(0)] + fin_m(1) + fin_v(1) + [ost4(1)], 'fin1')
a("  s_branch L_fin")
ib = len(a.lines)
a.label("L_both")
a("  s_waitcnt vmcnt(0)")
emit_sched(fin_m(0) + fin_m(1) + fin_v(0) + [ost4(0)] + fin_v(1) + [ost4(1)], 'both')
a.label("L_fin")
stamp(); stamp(5)
if OPT['stamps']:
    a("  s_waitcnt vmcnt(0)")
    stamp(0)
    a(f"  s_memrealtime s[{S_T}:{S_T+1}]")
    a("  s_waitcnt lgkmcnt(0)")
    n = nstamp[0]
    for i in range(n):
        a(f"  v_writelane_b32 v0, s{S_STAMP+2*i}, {i}")
    a(f"  v_writelane_b32 v0, s{S_T}, 15")
    a(f"  v_writelane_b32 v0, s74, 14")
    a(f"  v_writelane_b32 v0, s38, 12")
    a(f"  v_writelane_b32 v0, s39, 13")
    a(f"  s_lshl_b32 s{S_T}, s2, 2")
    a(f"  s_add_u32 s{S_T}, s{S_T}, s{S_W}")
    a(f"  s_lshl_b32 s{S_T}, s{S_T}, 6")
    a(f"  s_add_u32 s{S_T}, s{S_T}, {STAMP_OFF}")
    a(f"  v_lshlrev_b32 v1, 2, v{V_LANE}")
    a(f"  v_cmp_gt_u32 vcc, 16, v{V_LANE}")
    a(f"  s_and_saveexec_b64 s[{S_T+2}:{S_T+3}], vcc")
    a(f"  buffer_store_dword v0, v1, s[{SRD_WS}:{SRD_WS+3}], s{S_T} offen")
a.label("L_end")
a("  s_endpgm")
segs.append(('tail', 'tailjoin', (il, itail, it, len(a.lines))))
ir = len(a.lines)
a.label("L_redo")
a("  s_waitcnt lgkmcnt(0)")
a(f"  s_mov_b32 s{S_REDO}, 1")
a(f"  s_mov_b32 s{S_KOFF}, s{S_KV0}")
a(f"  s_mov_b32 s{S_LOOP}, 32")
a(f"  v_mov_b32 v{V_T0}, 0xff800000")
for qt in range(4): a(f"  v_mov_b32 v{V_NEGM+qt*4}, v{V_T0}")
a.label("L_redo_loop")
a("  s_waitcnt vmcnt(0) lgkmcnt(0)")
a("  s_barrier")
k_tile_dma(0)
a("  s_waitcnt vmcnt(0)")
a("  s_barrier")
for u in range(2):
    for i in range(8): a(k_read(u, i >> 2, i & 3))
    a("  s_waitcnt lgkmcnt(0)")
    for l in qk_mfmas(0, zero=True): a(l)
    a("  s_nop 7")
    for qt in range(4):
        m = V_NEGM + qt*4
        for kt in range(2):
            x = s_reg(0, kt, qt)
            a(f"  v_max3_f32 v{m}, v{x}, v{x+1}, v{m}")
            a(f"  v_max3_f32 v{m}, v{x+2}, v{x+3}, v{m}")
a(f"  s_sub_u32 s{S_LOOP}, s{S_LOOP}, 1")
a(f"  s_cmp_lg_u32 s{S_LOOP}, 0")
a("  s_cbranch_scc1 L_redo_loop")
for qt in range(4):
    m = V_NEGM + qt*4
    xlane_reduce(m, 'v_max_f32', m+1)
    a(f"  v_xor_b32 v{m}, 0x80000000, v{m}")
    for k in range(1, 4): a(f"  v_mov_b32 v{m+k}, v{m}")
a("  s_barrier")
a(f"  s_mov_b32 s{S_KOFF}, s{S_KV0}")
a(f"  s_mov_b32 s{S_VOFF}, s{S_KV0}")
for t in range(4): k_tile_dma(t)
for t in range(2): v_tile_dma(t)
a(f"  s_mov_b32 s{S_POFF}, s{S_SV_POFF}")
a("  s_waitcnt vmcnt(0)")
a("  s_barrier")
zero_o()
for l in attn_init(): a(l)
emit_sched(KR01 + ["  s_barrier"] + qk_mfmas(0, order=QORD) + head_common(), 'redo head')
a(f"  s_mov_b32 s{S_LOOP}, 7")
a("  s_branch L_p2")
segs.append(('redo', ir, len(a.lines)))
a.label("L_round")
a(f"  s_andn2_b32 s{S_NEW}, s{S_M}, s{S_DONE}")
a(f"  s_or_b32 s{S_DONE}, s{S_DONE}, s{S_M}")
if OPT['sib']:
    a(f"  s_and_b32 s{S_T}, s{S_NEW}, s{S_SBM}")
    a("  s_cbranch_scc0 L_rsib")
    a(f"  s_or_b32 s{S_DONE}, s{S_DONE}, s{S_SBM}")
    a(f"  s_andn2_b32 s{S_NEW}, s{S_NEW}, s{S_SBM}")
    for i in range(2):
        a(f"  s_add_u32 s{S_T}, s{S_SBO}, {PART_KIND + i*8192}")
        a(f"  buffer_load_dwordx4 v[{OWNQ+8+4*i}:{OWNQ+11+4*i}], v{V_L16}, s[{SRD_WS}:{SRD_WS+3}], s{S_T} offen{['', ' nt', ' sc0'][OPT['sib']-1]}")
    a.label("L_rsib")
for h in range(4):
    a(f"  s_and_b32 s{S_T}, s{S_NEW}, {0xf << (4*h)}")
    a(f"  s_cbranch_scc0 L_rs{h}")
    for b_ in range(4*h, 4*h+4):
        pl = part_load(1, b_ >> 3, b_ & 7, SL + b_*4, 'a')
        a(pl[0])
        a(f"  s_bitcmp1_b32 s{S_NEW}, {b_}")
        a(f"  s_cselect_b64 exec, -1, 0")
        a(pl[1])
    a("  s_mov_b64 exec, -1")
    a.label(f"L_rs{h}")
a(f"  s_setpc_b64 s[{S_RET}:{S_RET+1}]")
a(".p2align 6")
ig = len(a.lines)
for pos in range(12):
    a.label(f"L_gemm{pos}")
    gemm_step(pos, False, pos in CKPT)
    if pos not in CKPT: continue
    if pos < 11: a("  s_cbranch_scc1 L_gemm_ret")
    else: a("  s_cbranch_scc0 L_gemm0")
a.label("L_gemm_ret")
a(f"  s_setpc_b64 s[{S_RET}:{S_RET+1}]")
segs.append(('gemm2', ig, len(a.lines)))
a.label("L_code_end")

a('.section .rodata,"a"')
a(".p2align 6")
a(kernel_desc(NAME + "_kernel", 512, 102, 256))

errs = []
for s in segs:
    if s[1] == 'tailjoin':
        il_, itail_, it_, end_ = s[2]
        errs += hazard.check(a.lines[il_:itail_] + a.lines[it_:end_], 'tail')
    elif s[0].endswith('2'):
        errs += hazard.check(a.lines[s[1]:s[2]] * 2, s[0])
    else:
        errs += hazard.check(a.lines[s[1]:s[2]], s[0])
for e in errs[:40]: print("HAZ", e)
open(sys.argv[1], 'w').write(a.text())
print("written", sys.argv[1], len(a.lines), "lines;", len(errs), "hazard msgs")
```

```python
import sys, math
from asmlib import *
import hazard
from sched import schedule

NAME = "recurrent_scan__gqa_block_cached__dense_activation_relu__prompt"
OPT = dict(stamps=0, mimic_d=1, nsum=2, force_redo=0, pf=0, ng=2, rot=1, late=4, tlb=0, spin=200000, dot=1, xnobar=0, xnodma=0, xnost=0, noredo=0, pol=0, cpos=0, n1=8, w1pf=0, slp=0, xk=0, xv=0, xe=0, xa=0, xs=16, snake=1, nov=6, flip=0, early=0, ilv=0, stf=0, mbl=1, e64=0, xl=0, cp2=1, cp3=0, hsw=0, hx=1, o4=1, klate=1, rt=0, trk=0, e1=0, r2=0, own=1, pt=0, sib=0, xsz=1, lnd=0, pre=0, sl=0, rm=15, one1=0, hfill=1, m16=0, of=0, hst=0, hgap=64, ffma=1, sv=0, lay=1, skew=0, fst=0, pslp=0, w3=4, w2sw=0, stg=0, alt=0, kvr=0, ck=1, xvol=0, ln2=0, spA=0, spB=0, af=1, ochk=1, ool=1, al=1, fx=0, dp=2, pref=0, gd=0, tal=0, lal=12, gal=12, pad=2, bsh=0)
for x in sys.argv[2:]:
    k, v = x.split('='); OPT[k] = int(v)

POL = {0: '', 1: ' nt', 2: ' sc1', 3: ' sc0', 4: ' sc0 sc1', 5: ' sc1 nt'}[OPT['pol']]
a = Asm()
segs = []

S_W, S_G, S_R = 4, 5, 6
S_RET = 8
S_CNT, S_CSLOT, S_PSLOT, S_POFF, S_STA, S_STB = 10, 11, 12, 13, 14, 15
P_X, P_K, P_V, P_WQ, P_WO, P_W1, P_W2, P_WS, P_DBG, P_OUT = 16, 18, 20, 22, 24, 28, 30, 36, 34, 32
S_PLO, S_PHI = 38, 39
S_BOFF, S_BEND, S_FOFF, S_PLEN, S_ROT16, S_ROT7, S_ODD = 3, 7, 26, 27, 100, 101, 15
SRD_W, SRD_K, SRD_V, SRD_WS, SRD_X = 40, 44, 48, 52, 56
S_KOFF, S_VOFF, S_LOOP, S_KM0, S_VM0, S_PBASE, S_REDO = 60, 61, 62, 63, 64, 65, 66
S_SV_POFF, S_KV0 = 68, 69
S_SP = 94
S_OWN = 68
S_SIB = 15
S_EV, S_EI = 26, 101
S_HSW = 67
S_T = 70
S_STAMP = 76

V_ACC, V_A, V_B = 0, 64, 96
V_S, V_P, V_NEGM, V_L, V_LS, V_ONES = 0, 64, 96, 112, 116, 124
V_H = 176
V_PROW, V_PSWZ, V_BA, V_LANE, V_L16, V_T0, V_T1 = 208, 209, 210, 212, 213, 214, 215
V_KA, V_VA, V_KD, V_VD, V_PD, V_AA = 216, 220, 228, 232, 236, 240
A_O, A_Q, A_K, A_V = 0, 128, 192, 224
RB = 65536
LAY = OPT['lay']
HSTR = (8 << 20) if LAY else 8192
WGSH = 15 if LAY else 16
NS = 6
PART_KIND = 16 << 20
STAMP_OFF = 48 << 20
MBOX = 40 << 20
SRD_D = 96
S_FB, S_XO = 11, 12
V_XO = 211
PBUF = [[64, 68, 72, 76], [80, 84, 88, 92], [192, 196, 200, 204], [208, 244, 248, 252]]
V_POLL = 234
V_RSO, V_RS = 235, 160
import struct
CSH = struct.unpack('<I', struct.pack('<f', (128 ** -0.5) * math.log2(math.e)))[0]
V_ONE_LO, V_ONE_HI, V_ZERO = 232, 233, 209

nstamp = [0]
def stamp(lvl=1):
    if OPT['stamps'] == lvl or (OPT['stamps'] and lvl == 0):
        i = nstamp[0]
        if i >= 9: return
        nstamp[0] += 1
        a(f"  s_mem{'real' if OPT['rt'] else ''}time s[{S_STAMP+2*i}:{S_STAMP+2*i+1}]")

def align8():
    if OPT['al'] == 1: a(".p2align 3")
    if OPT['al'] == 2:
        a(".p2align 3"); a("  s_nop 0")
def capture(fn):
    i = len(a.lines); fn(); L = a.lines[i:]; del a.lines[i:]
    return [l for l in L if l.strip() and not l.strip().startswith('s_nop') and not l.strip().startswith(';') and not l.strip().startswith('.')]
import re as _re
def isize(l):
    t = l.split(';')[0].strip(); op = t.split()[0]
    if op.startswith(('v_mfma', 'ds_', 'buffer_', 'v_cvt_pk', 'v_accvgpr_read', 'v_accvgpr_write', 'v_max3', 'v_fma_', 'v_lshl_add', 'v_pk_', 'v_mad', 'v_bfe', 'v_and_or', 'v_or3', 's_mem')): return 8
    if op.endswith(('_e64', '_dpp')): return 8
    if op.startswith('v_cmp') and not t.split()[1].startswith('vcc'): return 8
    if op in ('s_nop', 's_waitcnt', 's_barrier'): return 4
    for tok in _re.split(r'[,\s]+', t)[1:]:
        if _re.fullmatch(r'-?(0x[0-9a-f]+|\d+)', tok):
            v = int(tok, 0)
            if v < -16 or v > 64: return 8
    return 4
PROMO = ('v_exp_f32', 'v_add_f32', 'v_mul_f32', 'v_mov_b32', 'v_max_f32', 'v_sub_f32', 'v_rcp_f32', 'v_lshlrev_b32', 'v_and_b32', 'v_add_u32')
def fix_align(L):
    L = list(L); ph = 0
    for i, l in enumerate(L):
        sz = isize(l)
        if sz == 8 and ph == 4 and i and L[i-1].split()[0] in PROMO and isize(L[i-1]) == 4:
            op = L[i-1].split()[0]
            L[i-1] = L[i-1].replace(op, op + '_e64', 1); ph = 0
        ph = (ph + sz) % 8
    return L
def emit_sched(prog, name, **kw):
    out, t = schedule(prog, **kw)
    if OPT['fx'] & {'head': 1, 'tail': 2}.get(name, 4):
        a(".p2align 3"); out = fix_align(out)
    for l in out: a(l)
    print(f"  sched {name}: {len(out)} instrs, est {t} cycles")
def mf(d, A, B, C, dt='v', at='v', bt='v'):
    c = '0' if C is None else f"{dt}[{C}:{C+3}]"
    return f"  v_mfma_f32_16x16x32_bf16 {dt}[{d}:{d+3}], {at}[{A}:{A+3}], {bt}[{B}:{B+3}], {c}"

def prod_m0(pos):
    return [f"  s_add_u32 m0, s{S_VM0}, {pos*16384}"]
def prod_dma(n):
    return f"  buffer_load_dwordx4 v{V_PD+n}, s[{SRD_W}:{SRD_W+3}], s{S_POFF} offen offset:{n*1024}{POL} lds"
def prod_adv():
    return [f"  s_add_u32 s{S_POFF}, s{S_POFF}, s{S_STA}",
            f"  s_cmp_eq_u32 s{S_POFF}, s{S_PLEN}",
            f"  s_cselect_b32 s{S_POFF}, 0, s{S_POFF}"]
def produce_list(pos):
    return prod_m0(pos) + prod_adv() + [prod_dma(n) for n in range(4)]
def produce_slot(pos):
    for l in produce_list(pos): a(l)

def set_stream(kind, half=0):
    if kind == 'null':
        a(f"  s_mov_b32 s{SRD_W+2}, 0"); return
    if half == 1:
        for n in range(4): a(f"  v_xor_b32 v{V_PD+n}, 128, v{V_PD+n}")
        return
    ptr, size, stride = dict(w1=(P_W1, 512*1792*2, 3584), wq=(P_WQ, 512*4096*2, 8192), w2=(P_W2, 1792*512*2, 1024),
                             wo=(P_WO, 4096*512*2, 1024), v=(P_V, 8*2048*128*2, 0))[kind]
    a(f"  s_mov_b32 s{SRD_W}, s{ptr}")
    a(f"  s_mov_b32 s{SRD_W+1}, s{ptr+1}")
    a(f"  s_mov_b32 s{SRD_W+2}, {size}")
    a(f"  s_mov_b32 s{S_T}, {stride}")
    a(f"  v_mad_u32_u24 v{V_PD}, v{V_PROW}, s{S_T}, v{V_PSWZ}")
    src, gsft, wsft = dict(w1=(S_FOFF, 1, 7), wq=(S_G, 10, 8), w2=(S_FOFF, 10, 8), wo=(S_G, 19, 8))[kind]
    a(f"  s_lshl_b32 s{S_T}, s{src}, {gsft}")
    a(f"  s_lshl_b32 s{S_T+1}, s{S_W}, {wsft}")
    a(f"  s_add_u32 s{S_T}, s{S_T}, s{S_T+1}")
    if kind != 'w1': a(f"  s_add_u32 s{S_T}, s{S_T}, s{S_HSW}")
    if kind == 'w2' and OPT['w2sw']:
        a(f"  s_and_b32 s{S_T+1}, s{S_R}, 1")
        a(f"  s_lshl_b32 s{S_T+1}, s{S_T+1}, 7")
        a(f"  s_add_u32 s{S_T}, s{S_T}, s{S_T+1}")
    a(f"  v_add_u32 v{V_PD}, s{S_T}, v{V_PD}")
    for n in range(1, 4): a(f"  v_add_u32 v{V_PD+n}, {n*(8*stride-1024)}, v{V_PD}")
    a(f"  s_mov_b32 s{S_STA}, {32*stride}")
    if kind == 'w1':
        a(f"  s_lshl_b32 s{S_T}, s{S_ODD}, 2")
        a(f"  s_or_b32 s{S_T}, s{S_T}, s{S_W}")
        a(f"  s_cmp_eq_u32 s{S_T}, 7")
        a(f"  s_cselect_b32 s{SRD_W+2}, 0, s{SRD_W+2}")
    if kind == 'w2':
        a(f"  s_lshl_b32 s{S_T}, s{S_ODD}, 16")
        a(f"  s_sub_u32 s{S_PLEN}, {8*32*stride}, s{S_T}")
    else: a(f"  s_mov_b32 s{S_PLEN}, {16*32*stride}")
    a(f"  s_mul_i32 s{S_POFF}, s{S_ROT7 if kind == 'w2' else S_ROT16}, {32*stride}")
    a(f"  s_sub_u32 s{S_POFF}, s{S_POFF}, s{S_STA}")

def b_adv():
    return [f"  s_add_u32 s{S_BOFF}, s{S_BOFF}, 4096",
            f"  s_cmp_eq_u32 s{S_BOFF}, s{S_BEND}",
            f"  s_cselect_b32 s{S_BOFF}, 0, s{S_BOFF}",
            f"  v_add_u32 v{V_BA}, s{S_BOFF}, v{V_L16}"]
def rpos(i): return (2 + i) % NS
def fA(k): return ('v', V_A + 16*k) if k < 2 else ('a', A_K + 16*(k-2))
def fB(k): return ('v', V_B + 16*k) if k < 2 else ('a', A_V + 16*(k-2))
def a_read(i, nt, rd):
    t, b = fA(i & 3); d = b + nt*4 + rd*2; slot = rpos(i)
    return f"  ds_read_b64_tr_b16 {t}[{d}:{d+1}], v{V_AA+nt+4*(slot//3)} offset:{(slot%3)*16384+rd*2048}"
def b_read(i, qt):
    t, b = fB(i & 3); d = b + qt*4
    return f"  ds_read_b128 {t}[{d}:{d+3}], v{V_BA} offset:{qt*1024}"

def gemm_step(i, first=False, loop=None, vm=None, vmw=16, noread=False, fillv=None, xvm=None):
    if OPT['gd'] and loop is not None and vm is None and not first:
        a(f"  s_waitcnt lgkmcnt(4)")
        rd_ = [b_read(i+2, qt) for qt in range(4)] + [a_read(i+2, nt, rd) for nt in range(4) for rd in range(2)]
        mem = []; ex = [[] for _ in range(16)]
        for g in range(16): mem.append(prod_dma(g >> 2) if g % 4 == 3 else rd_.pop(0))
        pa = prod_adv(); ba = b_adv()
        ex[0] += [pa[0]]; ex[1] += pa[1:]; ex[2] += prod_m0(rpos(i+1)) + ["  s_waitcnt lgkmcnt(3)"]
        ex[4] += [f"  s_waitcnt vmcnt({vmw+1})"]
        ex[5] += [ba[0]]; ex[6] += [ba[1]]; ex[8] += [ba[2]]; ex[9] += [ba[3]]
        if loop: ex[13].append(f"  s_sub_u32 s{S_CNT}, s{S_CNT}, 1")
        g = 0; s0 = i & 2
        for nt in (2*(i & 1), 2*(i & 1) + 1):
            for q_ in range(4):
                qt = 3 - q_ if nt & 1 else q_
                acc = V_ACC + (nt*4+qt)*4
                for u_ in range(2):
                    u = u_ ^ (q_ & 1)
                    (ta, ba_), (tb, bb) = fA(s0+u), fB(s0+u)
                    a(mf(acc, ba_+nt*4, bb+qt*4, acc, 'v', ta, tb))
                    a(mem[g])
                    for l in ex[g]: a(l)
                    g += 1
        return
    a(f"  s_waitcnt vmcnt({vmw}) lgkmcnt(0)")
    mem = [b_read(i+2, qt) for qt in range(4)] + [a_read(i+2, nt, rd) for nt in range(4) for rd in range(2)] + [prod_dma(n) for n in range(4)]
    ex = [[] for _ in range(16)]
    ba = b_adv(); pa = prod_adv()
    for k in range(4): ex[k].append(ba[k])
    if vm is None:
        for k in range(3): ex[4+k].append(pa[k])
        ex[7] += prod_m0(rpos(i+1))
    else:
        for k in range(4):
            mem[12+k] = vm[k][-1] if k < len(vm) else ""
            if k < len(vm): ex[11+k-(1 if k == 0 else 0)] += vm[k][:-1]
    if noread:
        for k in range(12): mem[k] = ""
        for k in range(4): ex[k] = []
    if xvm:
        for g_, l in xvm: ex[g_].append(l)
    if fillv:
        for k, l in enumerate(fillv): ex[k].append(l)
    if loop: ex[11].append(f"  s_sub_u32 s{S_CNT}, s{S_CNT}, 1")
    g = 0; s0 = i & 2
    for nt in (2*(i & 1), 2*(i & 1) + 1):
        for q_ in range(4):
            qt = 3 - q_ if nt & 1 else q_
            acc = V_ACC + (nt*4+qt)*4
            for u_ in range(2):
                u = u_ ^ (q_ & 1)
                (ta, ba_), (tb, bb) = fA(s0+u), fB(s0+u)
                a(mf(acc, ba_+nt*4, bb+qt*4, None if (first and u_ == 0) else acc, 'v', ta, tb))
                a(mem[g])
                for l in ex[g]: a(l)
                g += 1

gpos = [0]
CKPT = {8, 3, 0, 7, 4, 10, 11} if OPT['ck'] else set(range(12))
def gemm_call(n):
    assert (gpos[0] + n - 1) % 12 in CKPT, (gpos[0], n)
    nck = sum(1 for k in range(n) if (gpos[0] + k) % 12 in CKPT)
    a(f"  s_mov_b32 s{S_CNT}, {nck-1}")
    a(f"  s_call_b64 s[{S_RET}:{S_RET+1}], L_gemm{gpos[0] % 12}")
    gpos[0] += n
def gemm_inl(**kw):
    gemm_step(gpos[0] % 12, **kw); gpos[0] += 1
def gemm_first():
    gemm_inl(first=True); gemm_inl(first=True)
def b_reload(ffn2, wait=True):
    if wait: a("  s_waitcnt lgkmcnt(0)")
    a(f"  s_lshl_b32 s{S_BOFF}, s{S_ROT7 if ffn2 else S_ROT16}, 12")
    if ffn2: a(f"  s_lshr_b32 s{S_BEND}, s{S_PLEN}, 3")
    else: a(f"  s_mov_b32 s{S_BEND}, {16*4096}")
    a(f"  v_add_u32 v{V_BA}, s{S_BOFF}, v{V_L16}")
    for k in range(2):
        for qt in range(4): a(b_read(gpos[0] + k, qt))
        for l in b_adv(): a(l)
def a_first():
    for k in range(2):
        for nt in range(4):
            for rd in range(2): a(a_read(gpos[0] + k, nt, rd))

def store_partial(kind, half, dst=None, defer=False, sreg=S_T):
    a("  s_nop 5")
    a(f"  s_add_u32 s{sreg}, s{S_PBASE}, {kind*PART_KIND + half*HSTR}")
    a(f"  s_add_u32 s{sreg+1}, s{sreg}, 4096")
    if kind == 1 and OPT['own']:
        for c in range(2):
            a(f"  s_cmp_eq_u32 s{S_OWN}, {c}")
            a(f"  s_cselect_b32 s{sreg+c}, 0x40000000, s{sreg+c}")
            if OPT['sib']:
                a(f"  s_cmp_eq_u32 s{S_SIB}, {c}")
                a(f"  s_cselect_b32 s{sreg+c}, 0x40000000, s{sreg+c}")
    if kind == 1 and OPT['xvol'] & 1: a(f"  s_mov_b32 s{sreg+1}, 0x40000000")
    if kind == 1 and OPT['xvol'] & 4:
        a(f"  s_mov_b32 s{sreg+1}, 0x40000000"); a(f"  s_mov_b32 s{sreg}, 0x40000000")
    st = []
    align8()
    for c in range(2):
        for qt in range(4):
            x = V_ACC + ((2*c)*4+qt)*4; y = V_ACC + ((2*c+1)*4+qt)*4
            d = x if dst is None else (dst[c*4+qt] if isinstance(dst, list) else dst + (c*4+qt)*4)
            a(f"  v_cvt_pk_bf16_f32 v{d}, v{x}, v{x+1}")
            a(f"  v_cvt_pk_bf16_f32 v{d+1}, v{x+2}, v{x+3}")
            a(f"  v_cvt_pk_bf16_f32 v{d+2}, v{y}, v{y+1}")
            a(f"  v_cvt_pk_bf16_f32 v{d+3}, v{y+2}, v{y+3}")
            l = f"  buffer_store_dwordx4 v[{d}:{d+3}], v{V_L16}, s[{SRD_WS}:{SRD_WS+3}], s{sreg+c} offen offset:{qt*1024} {['sc1', 'sc0 sc1', 'sc1 nt'][OPT['stf']]}"
            if defer: st.append(l)
            else: a(l)
    if not defer: a("  s_nop 1")
    return st

def spin(label, srd, voff, soff, target):
    a(f"  s_mov_b32 s{S_T+1}, {OPT['spin']}")
    a.label(label)
    a(f"  buffer_load_dword v{V_POLL}, v{voff}, s[{srd}:{srd+3}], {soff} offen sc1")
    a("  s_waitcnt vmcnt(0)")
    a(f"  v_readfirstlane_b32 s{S_T}, v{V_POLL}")
    a(f"  s_sub_u32 s{S_T+1}, s{S_T+1}, 1")
    a(f"  s_cbranch_scc1 {label}_done")
    a(f"  s_cmp_lt_u32 s{S_T}, {target}")
    a(f"  s_cbranch_scc1 {label}")
    a.label(label + "_done")

def part_load(kind, i, src, d, t='v'):
    return [f"  s_add_u32 s{S_T+2}, s{S_FB}, {kind*PART_KIND + (src << WGSH) + i*HSTR}",
            f"  buffer_load_dwordx4 {t}[{d}:{d+3}], v{V_L16}, s[{SRD_WS}:{SRD_WS+3}], s{S_T+2} offen sc1"]
def part_sum(base, acc, T, vm0=None):
    for s_ in range(8):
        if vm0 is not None and s_ % 2 == 0: a(f"  s_waitcnt vmcnt({vm0-s_-1})")
        d = base + s_*4
        for j in range(4):
            lo, hi = acc+2*j, acc+2*j+1
            if s_ == 0:
                a(f"  v_lshlrev_b32 v{lo}, 16, v{d+j}")
                a(f"  v_and_b32 v{hi}, 0xffff0000, v{d+j}")
            elif OPT['dot']:
                a(f"  v_dot2c_f32_bf16 v{lo}, v{d+j}, v{V_ONE_LO}")
                a(f"  v_dot2c_f32_bf16 v{hi}, v{d+j}, v{V_ONE_HI}")
            else:
                t = T + 2*(j & 1)
                a(f"  v_lshlrev_b32 v{t}, 16, v{d+j}")
                a(f"  v_and_b32 v{t+1}, 0xffff0000, v{d+j}")
                a(f"  v_pk_add_f32 v[{lo}:{hi}], v[{lo}:{hi}], v[{t}:{t+1}]")
    if OPT['dot']: a("  s_nop 2")
def rnd_pair(r, T):
    a(f"  v_cvt_pk_bf16_f32 v{T}, v{r}, v{r+1}")
    a(f"  v_lshlrev_b32 v{r}, 16, v{T}")
    a(f"  v_and_b32 v{r+1}, 0xffff0000, v{T}")

def kslot(t): return (t + 2) & 3
def k_read(unit, kt, ds, dst=A_K):
    off = kslot(unit >> 1)*16384 + (unit & 1)*8192 + kt*4096
    d = dst + (kt*4+ds)*4
    return f"  ds_read_b128 a[{d}:{d+3}], v{V_KA+ds} offset:{off}"
def v_read(unit, dt, rd, dst=A_V):
    off = ((unit >> 1) & 3)*16384 + (unit & 1)*8192 + rd*4096
    d = dst + dt*4 + rd*2
    return f"  ds_read_b64_tr_b16 a[{d}:{d+1}], v{V_VA+dt} offset:{off}"
def k_dma(n):
    return f"  buffer_load_dwordx4 v{V_KD+n}, s[{SRD_K}:{SRD_K+3}], s{S_KOFF} offen offset:{n*1024}{POL} lds"
def v_dma(n):
    return f"  buffer_load_dwordx4 v{V_VD+(n&1)}, s[{SRD_V}:{SRD_V+3}], s{S_VOFF} offen offset:{n*1024}{POL} lds"
def k_tile_dma(t):
    a(f"  s_add_u32 m0, s{S_KM0}, {kslot(t)*16384}")
    a(f"  s_nop 0")
    for n in range(4): a(k_dma(n))
    a(f"  s_add_u32 s{S_KOFF}, s{S_KOFF}, 16384")
    if OPT['kvr']: a(f"  s_and_b32 s{S_KOFF}, s{S_KOFF}, 0x7ffff")
def v_tile_dma(t):
    a(f"  s_add_u32 m0, s{S_VM0}, {(t&3)*16384}")
    a(f"  s_nop 0")
    for n in range(4): a(v_dma(n))
    a(f"  s_add_u32 s{S_VOFF}, s{S_VOFF}, 16384")

NSUM = OPT['nsum']
SUMQT = {0: [], 2: [2, 3], 4: [0, 1, 2, 3]}[NSUM]
TORDER = [(0,0),(0,2),(0,1),(0,3),(1,0),(1,2),(1,1),(1,3)]
def s_reg(b, kt, qt): return V_S + b*32 + (kt*4+qt)*4
def qk_mfmas(b, zero=False, order=None, src=A_K):
    L = []
    QKO = [(0,0),(0,1),(0,2),(0,3),(1,3),(1,2),(1,1),(1,0)] if OPT['snake'] else TORDER
    for ti, (kt, qt) in enumerate(order or QKO):
        d = s_reg(b, kt, qt)
        for i_ in range(4):
            ds = 3 - i_ if (OPT['snake'] and ti & 1) else i_
            C = d if i_ else (None if zero else V_NEGM + qt*4)
            L.append(mf(d, src+(kt*4+ds)*4, A_Q+(qt*4+ds)*4, C, 'v', 'a', 'a'))
    return L
def ls_reg(qt):
    return V_LS + (qt & 1)*4
def pv_half(T, h, src=A_V):
    L = []; k = 0
    for d_ in range(4):
        dt = 4*h + d_
        for qt in (range(3, -1, -1) if d_ % 2 == 0 else range(4)):
            d = A_O + (dt*4+qt)*4
            for u in ((0, 1) if k % 2 == 0 else (1, 0)):
                L.append(mf(d, src+(d_*2+u)*4, PBUF[(2*T+u) & 3][qt], d, 'a', 'a', 'v'))
            k += 1
    return L
def v_half(T, h, dst=A_V):
    L = []
    for f in range(8):
        dt = 4*h + (f >> 1); u = f & 1
        for rd in range(2):
            off = (T & 3)*16384 + u*8192 + rd*4096
            d = dst + f*4 + rd*2
            L.append(f"  ds_read_b64_tr_b16 a[{d}:{d+1}], v{V_VA+dt} offset:{off}")
    return L
def sum_pair(T, qt):
    L = [mf(ls_reg(qt), V_ONES, PBUF[(2*T+u) & 3][qt], ls_reg(qt)) for u in range(2)]
    if NSUM == 4: L += [mf(ls_reg(qt), V_L, PBUF[(2*T+u) & 3][qt-2], ls_reg(qt)) for u in range(2)]
    return L
def sm_ops(p, qt):
    L = []
    for kt in range(2):
        for r in range(4):
            s_ = s_reg(p & 1, kt, qt) + r
            L.append(f"  v_exp_f32 v{s_}, v{s_}")
            if qt not in SUMQT: L.append(f"  v_add_f32 v{V_L+qt}, v{V_L+qt}, v{s_}")
            if r & 1: L.append(f"  v_cvt_pk_bf16_f32 v{PBUF[p & 3][qt]+kt*2+(r>>1)}, v{s_-1}, v{s_}")
    return L

def period(p, last=False, extra=None, dma=None, endop=None):
    b = p & 1; T = p >> 1
    M = qk_mfmas(b ^ 1) + pv_half(T-1, b) + sum_pair(T-1, 3-b)
    ng = len(M)
    pre = [[] for _ in range(ng)]
    mem = [None]*ng
    cap = [0 if (g < 64 and g % 2 == 0) else 2 for g in range(ng)]
    exps = [(kt, qt, r) for kt, qt in TORDER for r in range(4)]
    for i, l in enumerate(v_half(T-1, b)):
        mem[2*i+1] = l; cap[2*i+1] = 1
    kpos, dpos = {0: ([0,1,2,4,5,6,8,9], [3,7,11,15]), 1: ([0,2,3,4,6,7,8,10], [1,5,9,13]), 2: ([0,1,3,4,5,7,8,9], [2,6,10,14]),
                  3: ([0,1,2,3,4,5,6,7], [8,10,12,14]), 4: ([0,2,4,6,8,9,10,11], [1,3,5,7]), 5: ([0,1,3,4,6,7,9,10], [2,5,8,11])}[OPT['dp']]
    if last:
        for i, l in enumerate(v_half(T-1, 1, A_K)):
            mem[33+2*i] = l; cap[33+2*i] = 1
    else:
        for i, j in enumerate(kpos):
            mem[33+2*j] = k_read(p+2, i >> 2, i & 3); cap[33+2*j] = 1
        for n, j in enumerate(dpos):
            mem[33+2*j] = k_dma(n) if b == 0 else v_dma(n); cap[33+2*j] = 0
        if dma is not None:
            for n, j in enumerate(dpos):
                mem[33+2*j] = dma[n][-1]; pre[32+2*j] += dma[n][:-1]
        elif b == 0:
            pre[32].append(f"  s_add_u32 m0, s{S_KM0}, {kslot(T)*16384}")
            if OPT['kvr']: pre[36].append(f"  s_and_b32 s{S_KOFF}, s{S_KOFF}, 0x7ffff")
            pre[ng-2].append(f"  s_add_u32 s{S_KOFF}, s{S_KOFF}, 16384")
        else:
            pre[32].append(f"  s_add_u32 m0, s{S_VM0}, {((T+2)&3)*16384}")
            if OPT['kvr']: pre[36].append(f"  s_and_b32 s{S_VOFF}, s{S_VOFF}, 0x7ffff")
            pre[ng-2].append(f"  s_add_u32 s{S_VOFF}, s{S_VOFF}, 16384")
    if extra:
        for k, l in enumerate(extra): pre[2*k] += l
    if endop: pre[ng-1].append(endop)
    pre[30].append("  s_waitcnt lgkmcnt(3)")
    nk = sum(1 for g in range(32, 54) if mem[g] and mem[g].lstrip().startswith('ds_'))
    pre[54].append(f"  s_waitcnt lgkmcnt({nk})")
    q = []
    for g in range(ng):
        a(M[g])
        for l in pre[g]: a(l)
        if mem[g]: a(mem[g])
        if g < 64 and g % 2 == 0:
            kt, qt, r = exps[g//2]
            s = s_reg(b, kt, qt) + r
            four = sum(1 for l in pre[g] if 's_waitcnt' in l or l.rstrip().endswith(', 0'))
            E = '_e64' if OPT['e64'] else ''
            a(f"  v_exp_f32{E if four % 2 == 0 else ''} v{s}, v{s}")
            if qt not in SUMQT: q.append(f"  v_add_f32{E} v{V_L+qt}, v{V_L+qt}, v{s}")
            if r & 1: q.append(f"  v_cvt_pk_bf16_f32 v{PBUF[p & 3][qt]+kt*2+(r>>1)}, v{s-1}, v{s}")
        else:
            n = cap[g] if g < ng-1 else 99
            if OPT['pref'] and g < 32:
                want = 'v_add' if g % 4 == 1 else 'v_cvt'
                k = next((i for i, l in enumerate(q) if want in l), None)
                if k is not None: q.insert(0, q.pop(k))
                elif g % 4 == 1 and OPT['pref'] == 2: n = 0
            if OPT['pref'] and g == 64: n = min(n, 1)
            while n > 0 and q:
                a(q.pop(0)); n -= 1
    assert not q

def barrier_T(n=8):
    a(f"  s_waitcnt vmcnt({n}) lgkmcnt(0)")
    if not OPT['xnobar']: a("  s_barrier")

def xlane_reduce(reg, op, tmp):
    a(f"  v_mov_b32 v{tmp}, v{reg}")
    a("  s_nop 1")
    a(f"  v_permlane32_swap_b32 v{reg}, v{tmp}")
    a(f"  {op} v{reg}, v{reg}, v{tmp}")
    a(f"  v_mov_b32 v{tmp}, v{reg}")
    a("  s_nop 1")
    a(f"  v_permlane16_swap_b32 v{reg}, v{tmp}")
    a(f"  {op} v{reg}, v{reg}, v{tmp}")

def prefetch_groups():
    J, O = S_T+4, S_T
    X = SRD_X
    cnt = [0]
    def srd(ptr, size):
        return [f"  s_mov_b32 s{X}, s{ptr}", f"  s_mov_b32 s{X+1}, s{ptr+1}", f"  s_mov_b32 s{X+2}, {size}"]
    def ld(v, off=0):
        cnt[0] += 1
        return [f"  buffer_load_dword a{A_Q+cnt[0]}, v{v}, s[{X}:{X+3}], s{O} offen offset:{off}"]
    NG = OPT['ng']; NW = 128 // NG
    G = {}
    jj = [f"  s_and_b32 s{O}, s{S_R}, {32//NG-1}", f"  s_lshl_b32 s{O}, s{O}, 2", f"  s_add_u32 s{O}, s{O}, s{S_W}"]
    rows = 4*NG
    L = jj + [f"  s_mul_i32 s{O}, s{O}, {rows*8192}", f"  s_lshl_b32 s{O+1}, s{S_G}, 10", f"  s_add_u32 s{O}, s{O}, s{O+1}",
              f"  v_and_b32 v249, 7, v{V_LANE}", f"  v_lshlrev_b32 v249, 7, v249", f"  v_lshl_add_u32 v249, v{V_PROW}, 13, v249"] + srd(P_WQ, 512*4096*2) + ld(249)
    for k in range(1, (rows + 7)//8):
        L += [f"  s_add_u32 s{O}, s{O}, {8*8192}"] + ld(249)
    G['wq'] = L
    G['w2'] = jj + [f"  s_mul_i32 s{O}, s{O}, {2048*NG}", f"  s_lshl_b32 s{O+1}, s{S_FOFF}, 10", f"  s_add_u32 s{O}, s{O}, s{O+1}",
                    f"  v_mul_u32_u24 v250, {32*NG}, v{V_LANE}"] + srd(P_W2, 512*1792*2) + ld(250)
    L = [f"  v_lshlrev_b32 v251, 6, v{V_LANE}", f"  s_and_b32 s{O}, s{S_R}, 3", f"  s_lshl_b32 s{O}, s{O}, 14", f"  s_add_u32 s{O}, s{O}, s{S_KV0}"]
    G['kv'] = L + srd(P_K, 4 << 20) + ld(251) + srd(P_V, 4 << 20) + ld(251)
    G['ws'] = [f"  v_and_b32 v252, 1, v{V_LANE}", f"  v_lshlrev_b32 v252, 24, v252", f"  s_mov_b32 s{O}, s{S_PBASE}"] + srd(P_WS, 64 << 20) + ld(252)
    G['mb'] = [f"  v_and_b32 v255, 31, v{V_LANE}", f"  v_lshlrev_b32 v255, 2, v255", f"  v_mov_b32 v{V_POLL}, 0",
               f"  s_lshr_b32 s{O}, s{S_PBASE}, {WGSH}", f"  s_lshl_b32 s{O}, s{O}, 7", f"  s_add_u32 s{O}, s{O}, {MBOX}",
               f"  buffer_store_dword v{V_POLL}, v255, s[{SRD_WS}:{SRD_WS+3}], s{O} offen sc1"]
    L = jj + [f"  s_mul_i32 s{O}, s{O}, {4096*NG}", f"  s_lshl_b32 s{O+1}, s{S_G}, 19", f"  s_add_u32 s{O}, s{O}, s{O+1}",
              f"  v_lshlrev_b32 v253, {6 if NG == 1 else 7}, v{V_LANE}"] + srd(P_WO, 4 << 20)
    L += [f"  buffer_load_dword v254, v253, s[{X}:{X+3}], s{O} offen"]
    if NG == 4: L += [f"  s_add_u32 s{O}, s{O}, 8192", f"  buffer_load_dword v255, v253, s[{X}:{X+3}], s{O} offen"]
    G['wo'] = L
    return G
def nloads(L): return sum(1 for l in L if l.lstrip().startswith('buffer_'))

hdr = open('cdna_kernels/%s.s.ref' % NAME).read().split('\n')
for l in hdr:
    if l.startswith('; Override') or '@launch' in l or l.startswith('; grid=ceil'): continue
    if l.startswith(';'): a(l)
    else: break
a("; @launch grid=(256,1,1) block=(256,1,1) lds=163840")
a('.amdgcn_target "amdgcn-amd-amdhsa--gfx950"')
a(""";
;   2. FFN1 (a 256/192-column slice of w1), Q projection, FFN2 partial (split-K over the 8 workgroups of a row block)
;   3. flash attention over all 2048 keys.  Softmax reference point: row max of the first 32 keys, fed in as the MFMA
;      accumulator start value.  Run-time check afterwards (row sum >= 2^40 / NaN, or any non-finite output value):
;      L_redo computes the TRUE row max over all keys and the attention is repeated with it.
;   4. output projection partial; the 8 workgroups of a row block exchange bf16 partials through d_ws
;""")
a(".text")
a(kernel_header(NAME + "_kernel"))
i0 = len(a.lines)
NG = OPT['ng']; LG = {1: 0, 2: 1, 4: 2, 8: 3}[NG]
L = V_LANE
C_ = SRD_V
a(f"""
  s_cmp_ge_u32 s2, 256
  s_cbranch_scc1 L_end
  s_load_dwordx16 s[16:31], s[0:1], 0
  s_load_dwordx2 s[{P_WS}:{P_WS+1}], s[0:1], 80
  s_load_dwordx4 s[{P_OUT}:{P_OUT+3}], s[0:1], 64
  s_getpc_b64 s[{C_}:{C_+1}]
L_pc:
  s_lshr_b32 s{S_T+1}, s2, 3
  s_mov_b32 s{C_+2}, L_code_end-L_pc
  s_mov_b32 s{C_+3}, 0x20000
  s_lshl_b32 s{S_T+2}, s{S_T+1}, 11
  v_lshlrev_b32 v2, 3, v0
""")
CPF = f"  buffer_load_dword a{A_Q}, v2, s[{C_}:{C_+3}], s{S_T+2} offen"
a(CPF)
stamp(0)
if OPT['stamps']: a("  s_memrealtime s[74:75]")
if OPT['ln2']:
    XADDR = f"""  v_lshrrev_b32 v4, 6, v0
  v_bfe_u32 v5, v0, 3, 3
  v_lshl_add_u32 v4, v4, 4, v5
  v_lshlrev_b32 v4, 10, v4
  v_and_b32 v5, 7, v0
  v_lshl_add_u32 v{V_T0}, v5, 4, v4
  s_add_u32 s{S_SP+1}, s{S_SP}, 8192"""
    OPT['xs'] = 8
else:
    XADDR = f"""  v_lshrrev_b32 v4, 2, v0
  v_lshlrev_b32 v4, 10, v4
  v_and_b32 v5, 3, v0
  v_lshl_add_u32 v{V_T0}, v5, 4, v4"""
a(f"""
  s_lshr_b32 s{S_ROT16}, s{S_T+1}, {LG}
  s_bfe_u32 s{S_T}, s2, {(LG << 16) | (3-LG)}
  s_lshl_b32 s{S_T}, s{S_T}, {5-LG}
  s_add_u32 s{S_R}, s{S_ROT16}, s{S_T}
  s_lshl_b32 s{S_SP}, s{S_R}, 16
{XADDR}
  s_mov_b32 s{SRD_X+2}, {2048*512*2}
  s_mov_b32 s{SRD_X+3}, 0x20000
  s_and_b32 s{S_G}, s2, {8//NG-1}
  s_lshl_b32 s{S_G}, s{S_G}, {LG}
  s_and_b32 s{S_T+3}, s{S_T+1}, {NG-1}
  s_add_u32 s{S_G}, s{S_G}, s{S_T+3}
  s_mov_b32 s{SRD_W+3}, 0x20000
""")
def xloads(j0, j1):
    for j in range(j0, j1):
        if OPT['ln2']: a(f"  buffer_load_dwordx4 v[{4*j+64}:{4*j+67}], v{V_T0}, s[{SRD_X}:{SRD_X+3}], s{S_SP+(j>>3)} offen offset:{(j&7)*128}")
        else: a(f"  buffer_load_dwordx4 v[{4*j+64}:{4*j+67}], v{V_T0}, s[{SRD_X}:{SRD_X+3}], s{S_SP} offen offset:{j*64}")
def xfirst():
    a("  s_waitcnt lgkmcnt(0)")
    a(f"  s_mov_b32 s{SRD_X}, s{P_X}")
    a(f"  s_mov_b32 s{SRD_X+1}, s{P_X+1}")
    stamp(7)
    if OPT['tlb'] & 1: a(f"  s_load_dword s{S_SP+1}, s[{P_W1}:{P_W1+1}], 0")
    if OPT['tlb'] & 2:
        a(f"  s_mov_b32 s{SRD_W}, s{P_W1}"); a(f"  s_mov_b32 s{SRD_W+1}, s{P_W1+1}"); a(f"  s_mov_b32 s{SRD_W+2}, 4")
        a(f"  buffer_load_dword a{A_Q+1}, v{V_T0}, s[{SRD_W}:{SRD_W+3}], 0 offen")
    xloads(0, OPT['xs'])
    stamp(7)
a(f"""
  v_lshrrev_b32 v1, 6, v0
  v_and_b32 v{V_LANE}, 63, v0
  s_mov_b32 s{S_REDO}, 0
  v_readfirstlane_b32 s{S_W}, v1
  s_and_b32 s{S_HSW}, s{S_R}, {OPT['hsw']}
  s_lshl_b32 s{S_HSW}, s{S_HSW}, 7
  s_bfe_u32 s{S_ODD}, s{S_G}, 0x10001
  s_xor_b32 s{S_ODD}, s{S_ODD}, {OPT['flip']}
  s_mul_i32 s{S_T}, s{S_ROT16}, 43
  s_lshr_b32 s{S_T}, s{S_T}, 8
  s_mul_i32 s{S_T}, s{S_T}, 6
  s_sub_u32 s{S_T}, s{S_ROT16}, s{S_T}
  s_and_b32 s{S_ROT7}, s{S_ROT16}, 7
  s_cmp_lg_u32 s{S_ODD}, 0
  s_cselect_b32 s{S_ROT7}, s{S_T}, s{S_ROT7}
  s_lshl_b32 s{S_ROT16}, s{S_ROT16}, {max(LG-1,0)}
  s_and_b32 s{S_ROT16}, s{S_ROT16}, {OPT['rm']}
  v_lshrrev_b32 v3, 3, v{L}
  v_and_b32 v3, {4 if OPT['xsz'] else 0}, v3
  v_xor_b32 v3, v3, v{L}
  v_lshlrev_b32 v{V_L16}, 4, v3
  v_lshrrev_b32 v{V_PROW}, 3, v{L}
  v_lshrrev_b32 v1, 4, v{L}            ; G
  v_lshlrev_b32 v2, 1, v1              ; G<<1
  v_and_b32 v3, 7, v{L}
  v_xor_b32 v3, v3, v2
  v_lshlrev_b32 v{V_PSWZ}, 4, v3
  s_lshl_b32 s{S_KM0}, s{S_W}, 12
  s_add_u32 s{S_VM0}, s{S_KM0}, {RB}
""")
xfirst()
a(f"""
  s_lshr_b32 s{S_T}, s{S_G}, 2
  s_mul_i32 s{S_FOFF}, s{S_T}, 896
  s_lshl_b32 s{S_T}, s{S_ODD}, 9
  s_add_u32 s{S_FOFF}, s{S_FOFF}, s{S_T}
  s_lshl_b32 s{S_T}, s{S_ODD}, 6
  s_sub_u32 s{S_T}, 256, s{S_T}
  s_and_b32 s{S_T+1}, s{S_G}, 1
  s_mul_i32 s{S_T}, s{S_T}, s{S_T+1}
  s_add_u32 s{S_FOFF}, s{S_FOFF}, s{S_T}
""")
PFG = prefetch_groups()
set_stream('w1')
a(f"""
  v_and_b32 v6, 15, v{L}
  v_lshrrev_b32 v8, 2, v6
  v_lshl_add_u32 v8, v1, 2, v8         ; row = 4G + (i>>2)
  v_and_b32 v9, 3, v6
  v_lshlrev_b32 v9, 3, v9              ; (i&3)*8
  v_lshl_add_u32 v10, v8, 7, v9
  v_add_u32 v10, s{S_VM0}, v10
  v_bfe_u32 v11, v8, 1, 2
""")
for nt in range(4):
    a(f"  v_xor_b32 v12, {nt}, v11")
    a(f"  v_lshl_add_u32 v{V_AA+nt}, v12, 5, v10")
    a(f"  v_add_u32 v{V_AA+4+nt}, {3*16384}, v{V_AA+nt}")
a(f"""
  v_lshrrev_b32 v8, {3 if OPT['ln2'] else 2}, v{L}
  v_and_b32 v9, 1, v{L}
  v_mul_u32_u24 v9, {36 if OPT['xsz'] else 32}, v9
  v_xor_b32 v8, v9, v8
  v_lshlrev_b32 v8, 4, v8
  v_bfe_u32 v9, v{L}, 1, 1
  v_lshl_add_u32 v8, v9, 3, v8
  s_lshl_b32 s{S_T}, s{S_W}, 10
  v_add_u32 v{V_T1}, s{S_T}, v8
""")
if OPT['ln2']:
    a(f"  v_and_b32 v9, 4, v{L}")
    a(f"  v_lshl_add_u32 v{V_T1}, v9, 10, v{V_T1}")
def zero_o():
    for i in range(4): a(f"  v_mov_b32 v{204+i}, 0")
    a("  s_nop 1")
    for i in range(8): a(f"  v_mfma_f32_32x32x16_bf16 a[{A_O+16*i}:{A_O+16*i+15}], v[204:207], v[204:207], 0")
def setup_late():
    G_, G2, I_, t7, t8, t9, t10, t11, t12 = 129, 130, 134, 135, 136, 137, 138, 139, 140
    a(f"""
  s_lshl_b32 s{S_T}, s{S_G}, 19
  s_add_u32 s{SRD_K}, s{P_K}, s{S_T}
  s_addc_u32 s{SRD_K+1}, s{P_K+1}, 0
  s_mov_b32 s{SRD_K+2}, 0x80000
  s_mov_b32 s{SRD_K+3}, 0x20000
  s_add_u32 s{SRD_V}, s{P_V}, s{S_T}
  s_addc_u32 s{SRD_V+1}, s{P_V+1}, 0
  s_mov_b32 s{SRD_V+2}, 0x80000
  s_mov_b32 s{SRD_V+3}, 0x20000
  s_mov_b32 s{SRD_WS}, s{P_WS}
  s_mov_b32 s{SRD_WS+1}, s{P_WS+1}
  s_mov_b32 s{SRD_WS+2}, {64<<20}
  s_mov_b32 s{SRD_WS+3}, 0x20000
  s_and_b32 s{S_KV0}, s{S_R}, {OPT['kvr']}
  s_lshl_b32 s{S_KV0}, s{S_KV0}, {17 if OPT['kvr'] == 3 else 18}
  s_add_u32 s{S_KV0}, s{S_KV0}, s{S_KM0}
  s_mov_b32 s{S_KOFF}, s{S_KV0}
  s_lshl_b32 s{S_PBASE}, s{S_R}, 3
  s_add_u32 s{S_PBASE}, s{S_PBASE}, s{S_G}
  s_lshl_b32 s{S_PBASE}, s{S_PBASE}, {WGSH}
  s_and_b32 s{S_T}, s{S_R}, {3 if OPT['skew'] else 0}
  s_add_u32 s{S_T}, s{S_T}, s{S_W}
  s_and_b32 s{S_T}, s{S_T}, 3
  s_lshl_b32 s{S_T}, s{S_T}, {WGSH-2}
  s_add_u32 s{S_PBASE}, s{S_PBASE}, s{S_T}
  v_lshrrev_b32 v{G_}, 4, v{L}
  v_lshlrev_b32 v{G2}, 1, v{G_}
  v_and_b32 v{I_}, 15, v{L}
  v_xor_b32 v{t7}, v{I_}, v{G_}
  v_lshlrev_b32 v{t7}, 4, v{t7}
  v_lshl_add_u32 v{V_KD}, v{G_}, 8, v{t7}
""")
    for n in range(1, 4): a(f"  v_xor_b32 v{V_KD+n}, {64*n}, v{V_KD}")
    a(f"""
  ; V dma: G*256 + ((i ^ ((4*(n&1)+G)<<1))*16)
  v_xor_b32 v{t8}, v{I_}, v{G2}
  v_lshlrev_b32 v{t8}, 4, v{t8}
  v_lshl_add_u32 v{V_VD}, v{G_}, 8, v{t8}
  v_xor_b32 v{V_VD+1}, 128, v{V_VD}
  v_and_b32 v{t8}, 2, v{G2}
  v_lshrrev_b32 v{t9}, 1, v{G_}
  v_or_b32 v{t8}, v{t8}, v{t9}
  v_xor_b32 v{t8}, v{t8}, v{I_}
  v_lshlrev_b32 v{t8}, 4, v{t8}
  v_lshl_add_u32 v{V_KA}, v{I_}, 8, v{t8}
  v_xor_b32 v{V_KA}, s{S_HSW}, v{V_KA}
""")
    for ds in range(1, 4): a(f"  v_xor_b32 v{V_KA+ds}, {64*ds}, v{V_KA}")
    a(f"""
  v_lshrrev_b32 v{t8}, 2, v{I_}
  v_lshl_add_u32 v{t8}, v{G_}, 2, v{t8}
  v_and_b32 v{t9}, 3, v{I_}
  v_lshlrev_b32 v{t9}, 3, v{t9}
  v_lshl_add_u32 v{t10}, v{t8}, 8, v{t9}
  v_add_u32 v{t10}, {RB}, v{t10}
  v_and_b32 v{t11}, 7, v{t8}
  v_lshl_add_u32 v{V_VA}, v{t11}, 5, v{t10}
""")
    for dt in range(1, 8): a(f"  v_xor_b32 v{V_VA+dt}, {32*dt}, v{V_VA}")
    a(f"""
  s_mov_b32 s{SRD_D}, s{P_DBG}
  s_mov_b32 s{SRD_D+1}, s{P_DBG+1}
  s_lshl_b32 s{SRD_D+2}, s{S_R}, 2
  s_add_u32 s{SRD_D+2}, s{SRD_D+2}, 4
  s_mov_b32 s{SRD_D+3}, 0x20000
  ; final: read base = r*512K + (g>>1)*16K + (g&1)*4K + w*1024 ; x/out soffset = (64r+16w)*1024 + (g>>1)*256 + (g&1)*64
  s_lshl_b32 s{S_FB}, s{S_R}, {WGSH+3}
  s_lshr_b32 s{S_T}, s{S_G}, 1
  s_lshl_b32 s{S_T}, s{S_T}, 2
  s_and_b32 s{S_T+1}, s{S_G}, 1
  s_add_u32 s{S_T+1}, s{S_T+1}, s{S_T}
  s_and_b32 s{S_T}, s{S_R}, {3 if OPT['skew'] else 0}
  s_lshl_b32 s{S_T}, s{S_T}, 1
  s_add_u32 s{S_T}, s{S_T}, s{S_G}
  s_and_b32 s{S_T}, s{S_T}, 7
  s_lshl_b32 s{S_T}, s{S_T}, 12
  s_add_u32 s{S_FB}, s{S_FB}, s{S_T}
  s_lshl_b32 s{S_T}, s{S_W}, 10
  s_add_u32 s{S_FB}, s{S_FB}, s{S_T}
  s_lshl_b32 s{S_XO}, s{S_R}, 16
  s_lshl_b32 s{S_T}, s{S_W}, 14
  s_add_u32 s{S_XO}, s{S_XO}, s{S_T}
  s_lshl_b32 s{S_T}, s{S_T+1}, 6
  s_add_u32 s{S_XO}, s{S_XO}, s{S_T}
""")
    zero_o()
if not OPT['sl']: setup_late()
a("; ---- LayerNorm")
def dreg(e): return e if e < 64 else 64 + e
pfsel = [k for b_, k in ((1, 'w2'), (2, 'kv'), (4, 'ws')) if OPT['pf'] & b_] + ([] if OPT['mbl'] else ['mb'])
groups = []
for s_ in range(NS-1):
    pl = produce_list(rpos(s_))
    groups += [pl[:5], [pl[5]], [pl[6]], [pl[7]]]
for k in pfsel: groups.append(PFG[k])
NPF = sum(nloads(PFG[k]) for k in pfsel)
SUM, SQ = 192, 196
MU, MB = 200, 202
a(f"  v_and_b32 v8, 3, v{L}")
if OPT['ln2']:
    a(f"  v_lshrrev_b32 v9, 3, v{L}"); a("  v_lshlrev_b32 v9, 2, v9")
else: a(f"  v_and_b32 v9, 60, v{L}")
a(f"  v_lshl_add_u32 v8, v8, 12, v9")
a(f"  s_lshl_b32 s{S_T}, s{S_W}, 6")
a(f"  s_add_u32 s{S_T}, s{S_T}, {RB+1*16384}")
a(f"  v_add_u32 v{V_BA}, s{S_T}, v8")
a(f"  s_add_u32 s{S_T}, s{S_VM0}, {1*16384}")
a(f"  v_lshl_add_u32 v{V_RSO}, v6, 2, s{S_T}")
stamp(7)
PRE = OPT['pre']
for g_ in groups[:PRE]:
    for l in g_: a(l)
groups = groups[PRE:]
xloads(OPT['xs'], 16)
stamp(7)
if OPT['stamps'] == 7:
    for k in (16, 15, 8, 0):
        a(f"  s_waitcnt vmcnt({k})"); stamp(7)
def ln_two_halves():
    vq = [f"x{j}" for j in range(8)] + [f"S{k>>2}" for k in range(PRE)] + [f"x{j}" for j in range(8, 16)]
    gi = [PRE]; rest = list(groups)
    def yg(tag): return len(vq) - 1 - max(i for i, t in enumerate(vq) if t == tag)
    def spr():
        if rest:
            for l in rest.pop(0): a(l)
            vq.append(f"S{gi[0]>>2}"); gi[0] += 1
    for h in range(2):
        nA = OPT['spA'] if h == 0 else 0
        for j in range(8*h, 8*h+8):
            a(f"  s_waitcnt vmcnt({yg(f'x{j}')})")
            if j in (0, 8, 15): stamp(3)
            if (j & 7) < nA: spr()
            for i in range(4*j, 4*j+4):
                a(f"  v_lshlrev_b32 v{dreg(2*i)}, 16, v{64+i}")
                a(f"  v_and_b32 v{dreg(2*i+1)}, 0xffff0000, v{64+i}")
            for i in range(4*j, 4*j+4):
                e = dreg(2*i); t = SUM + 2*(i & 1); q = SQ + 2*(i & 1); ii = i & 31
                if ii < 2: a(f"  v_pk_add_f32 v[{t}:{t+1}], v[{e}:{e+1}], v[{dreg(2*i+4)}:{dreg(2*i+4)+1}]")
                elif ii >= 4: a(f"  v_pk_add_f32 v[{t}:{t+1}], v[{t}:{t+1}], v[{e}:{e+1}]")
                if ii < 2: a(f"  v_pk_mul_f32 v[{q}:{q+1}], v[{e}:{e+1}], v[{e}:{e+1}]")
                else: a(f"  v_pk_fma_f32 v[{q}:{q+1}], v[{e}:{e+1}], v[{e}:{e+1}], v[{q}:{q+1}]")
        stamp(3)
        for r in (SUM, SQ): a(f"  v_pk_add_f32 v[{r}:{r+1}], v[{r}:{r+1}], v[{r+2}:{r+3}]")
        for r in (SUM, SQ): a(f"  v_add_f32 v{r}, v{r}, v{r+1}")
        a("  s_nop 0")
        for qp in ("quad_perm:[1,0,3,2]", "quad_perm:[2,3,0,1]", "row_half_mirror"):
            for r in (SUM, SQ): a(f"  v_add_f32_dpp v{r}, v{r}, v{r} {qp} row_mask:0xf bank_mask:0xf")
            a("  s_nop 0")
        a(f"  v_mul_f32 v{MU}, 0x3b000000, v{SUM}")
        a(f"  v_cvt_pk_bf16_f32 v{MB}, v{MU}, v{MU}")
        a(f"  v_and_b32 v{MB}, 0xffff0000, v{MB}")
        st_ = f"""  v_mul_f32 v{SQ}, 0x3b000000, v{SQ}
  v_fma_f32 v{SQ}, -v{MU}, v{MU}, v{SQ}
  v_max_f32 v{SQ}, 0, v{SQ}
  v_cvt_pk_bf16_f32 v{SQ}, v{SQ}, v{SQ}
  v_and_b32 v{SQ}, 0xffff0000, v{SQ}
  v_add_f32 v{SQ}, 0x3727c5ac, v{SQ}
  v_cvt_pk_bf16_f32 v{SQ}, v{SQ}, v{SQ}
  v_and_b32 v{SQ}, 0xffff0000, v{SQ}
  v_sqrt_f32 v{SQ}, v{SQ}
  v_cvt_pk_bf16_f32 v{SQ}, v{SQ}, v{SQ}
  v_and_b32 v{SQ}, 0xffff0000, v{SQ}
  v_rcp_f32 v{MU+1}, v{SQ}
  ds_write_b32 v{V_BA}, v{MU+1} offset:{32*h}""".split('\n')
        for j in range(8*h, 8*h+8):
            if (h == 0 and (j & 7) < OPT['spB']) or h == 1: spr()
            for k in range(4):
                e = dreg(2*(4*j+k))
                a(f"  v_pk_add_f32 v[{e}:{e+1}], v[{e}:{e+1}], v[{MB}:{MB+1}] op_sel_hi:[1,0] neg_lo:[0,1] neg_hi:[0,1]")
            if st_: a(st_.pop(0))
            for k in range(4):
                i = 4*j + k; e = dreg(2*i)
                a(f"  v_cvt_pk_bf16_f32 v{64+i}, v{e}, v{e+1}")
                if k == 1 and st_: a(st_.pop(0))
            a(f"  ds_write_b64 v{V_T1}, v[{64+4*j}:{65+4*j}] offset:{(j&7)*8192+h*128}")
            a(f"  ds_write_b64 v{V_T1}, v[{66+4*j}:{67+4*j}] offset:{(j&7)*8192+h*128+256}")
        if h == 0: stamp(3)
    while rest: spr()
    stamp(3)
    a(f"  s_waitcnt vmcnt({yg('S1')}) lgkmcnt(0)")
def ln_one():
    for j in range(16):
        a(f"  s_waitcnt vmcnt({15 - j + min(j, OPT['n1']) + (PRE if j < OPT['xs'] else 0)})")
        if j in (0, 8, 15): stamp(3)
        if j < OPT['n1']:
            for l in groups[j]: a(l)
        for i in range(4*j, 4*j+4):
            a(f"  v_lshlrev_b32 v{dreg(2*i)}, 16, v{64+i}")
            a(f"  v_and_b32 v{dreg(2*i+1)}, 0xffff0000, v{64+i}")
        for i in range(4*j, 4*j+4):
            e = dreg(2*i); t = SUM + 2*(i & 1); q = SQ + 2*(i & 1)
            if i < 2: a(f"  v_pk_add_f32 v[{t}:{t+1}], v[{e}:{e+1}], v[{dreg(2*i+4)}:{dreg(2*i+4)+1}]")
            elif i >= 4: a(f"  v_pk_add_f32 v[{t}:{t+1}], v[{t}:{t+1}], v[{e}:{e+1}]")
            if i < 2: a(f"  v_pk_mul_f32 v[{q}:{q+1}], v[{e}:{e+1}], v[{e}:{e+1}]")
            else: a(f"  v_pk_fma_f32 v[{q}:{q+1}], v[{e}:{e+1}], v[{e}:{e+1}], v[{q}:{q+1}]")
    sprinkle = groups[OPT['n1']:]
    stamp(3)
    for r in (SUM, SQ): a(f"  v_pk_add_f32 v[{r}:{r+1}], v[{r}:{r+1}], v[{r+2}:{r+3}]")
    for r in (SUM, SQ): a(f"  v_add_f32 v{r}, v{r}, v{r+1}")
    a("  s_nop 0")
    for qp in ("[1,0,3,2]", "[2,3,0,1]"):
        for r in (SUM, SQ): a(f"  v_add_f32_dpp v{r}, v{r}, v{r} quad_perm:{qp} row_mask:0xf bank_mask:0xf")
        a("  s_nop 0")
    a(f"""
  v_mul_f32 v{MU}, 0x3b000000, v{SUM}
  v_cvt_pk_bf16_f32 v{MB}, v{MU}, v{MU}
  v_and_b32 v{MB}, 0xffff0000, v{MB}
""")
    stats = f"""  v_mul_f32 v{SQ}, 0x3b000000, v{SQ}
  v_fma_f32 v{SQ}, -v{MU}, v{MU}, v{SQ}
  v_max_f32 v{SQ}, 0, v{SQ}
  v_cvt_pk_bf16_f32 v{SQ}, v{SQ}, v{SQ}
  v_and_b32 v{SQ}, 0xffff0000, v{SQ}
  v_add_f32 v{SQ}, 0x3727c5ac, v{SQ}
  v_cvt_pk_bf16_f32 v{SQ}, v{SQ}, v{SQ}
  v_and_b32 v{SQ}, 0xffff0000, v{SQ}
  v_sqrt_f32 v{SQ}, v{SQ}
  v_cvt_pk_bf16_f32 v{SQ}, v{SQ}, v{SQ}
  v_and_b32 v{SQ}, 0xffff0000, v{SQ}
  v_rcp_f32 v{SQ}, v{SQ}
  ds_write_b32 v{V_BA}, v{SQ}""".split('\n')
    for j in range(16):
        if j in (0, 8): stamp(3)
        if j >= OPT['late'] and sprinkle:
            for l in sprinkle.pop(0): a(l)
        for k in range(4):
            e = dreg(2*(4*j+k))
            a(f"  v_pk_add_f32 v[{e}:{e+1}], v[{e}:{e+1}], v[{MB}:{MB+1}] op_sel_hi:[1,0] neg_lo:[0,1] neg_hi:[0,1]")
        if j < len(stats): a(stats[j])
        for k in range(4):
            i = 4*j + k; e = dreg(2*i)
            a(f"  v_cvt_pk_bf16_f32 v{64+i}, v{e}, v{e+1}")
        a(f"  ds_write_b64 v{V_T1}, v[{64+4*j}:{65+4*j}] offset:{j*4096}")
        a(f"  ds_write_b64 v{V_T1}, v[{66+4*j}:{67+4*j}] offset:{j*4096+256}")
    for g_ in sprinkle:
        for l in g_: a(l)
    stamp(3)
    a(f"  s_waitcnt vmcnt({4*(NS-3)+NPF}) lgkmcnt(0)")
(ln_two_halves if OPT['ln2'] else ln_one)()
a_first()
a("  s_barrier")
stamp(3)
stamp()
for qt in range(4): a(f"  ds_read_b32 v{V_RS+qt}, v{V_RSO} offset:{qt*64}")
a(f"  s_lshl_b32 s{S_T}, s{S_W}, 6")
a(f"  v_add_u32 v{V_RSO}, s{S_T}, v{V_RSO}")
a(f"  ds_read_b32 v{V_RSO}, v{V_RSO}")
b_reload(False, wait=False)
a("  s_waitcnt lgkmcnt(8)")
produce_slot(rpos(5)); produce_slot(rpos(6))
a(f"  s_mov_b32 s{S_T}, {CSH:#x}")
for qt in range(4): a(f"  v_mul_f32 v{V_RS+qt}, s{S_T}, v{V_RS+qt}")
a("; ---- FFN1")
stamp(8)
if OPT['w3'] == 4:
    a(f"  s_cmp_lg_u32 s{SRD_W+2}, 0")
    a("  s_cbranch_scc0 L_w3")
    _i = len(a.lines)
    a.label("L_w3")
    set_stream('wq', 0)
    a("  s_waitcnt vmcnt(0) lgkmcnt(0)")
    for k in range(16, 22): produce_slot(rpos(k))
    gpos[0] = 16
    a("  s_waitcnt vmcnt(16)")
    a_first()
    a("  s_waitcnt lgkmcnt(0)")
    produce_slot(rpos(22))
    gpos[0] = 0
    a("  s_branch L_qstart")
    W3_CODE = a.lines[_i:]; del a.lines[_i:]
if OPT['w3'] == 3:
    a(f"  s_cmp_lg_u32 s{SRD_W+2}, 0")
    a("  s_cbranch_scc1 L_w3n")
    a(f"  s_add_u32 s{S_BOFF}, s{S_BOFF}, {9*4096}")
    a(f"  s_and_b32 s{S_BOFF}, s{S_BOFF}, 0xffff")
    a(f"  v_add_u32 v{V_BA}, s{S_BOFF}, v{V_L16}")
    a("  s_branch L_w3j")
    a.label("L_w3n")
gemm_first()
if OPT['w3'] in (1, 2):
    a(f"  s_cmp_lg_u32 s{SRD_W+2}, 0")
    a("  s_cbranch_scc1 L_w3n")
    X = SRD_X
    a(f"  s_mov_b32 s{X}, s{P_WQ}"); a(f"  s_mov_b32 s{X+1}, s{P_WQ+1}"); a(f"  s_mov_b32 s{X+2}, {512*4096*2}")
    a(f"  s_and_b32 s{S_T}, s{S_R}, 15")
    a(f"  s_lshl_b32 s{S_T+1}, s{S_T}, 18")
    a(f"  s_lshl_b32 s{S_T+2}, s{S_G}, 10")
    a(f"  s_add_u32 s{S_T+1}, s{S_T+1}, s{S_T+2}")
    a(f"  v_and_b32 v128, 7, v{V_LANE}"); a("  v_lshlrev_b32 v128, 7, v128"); a(f"  v_lshl_add_u32 v128, v{V_PROW}, 13, v128")
    for k in range(4):
        a(f"  buffer_load_dword v{130+k}, v128, s[{X}:{X+3}], s{S_T+1} offen")
        a(f"  s_add_u32 s{S_T+1}, s{S_T+1}, {8*8192}")
    if OPT['w3'] >= 2:
        a(f"  s_mov_b32 s{X}, s{P_W2}"); a(f"  s_mov_b32 s{X+1}, s{P_W2+1}"); a(f"  s_mov_b32 s{X+2}, {512*1792*2}")
        a(f"  s_mul_i32 s{S_T+1}, s{S_T}, {12*1024}")
        a(f"  s_lshl_b32 s{S_T+2}, s{S_FOFF}, 10")
        a(f"  s_add_u32 s{S_T+1}, s{S_T+1}, s{S_T+2}")
        a(f"  v_lshlrev_b32 v129, 7, v{V_LANE}")
        a(f"  buffer_load_dword v134, v129, s[{X}:{X+3}], s{S_T+1} offen")
        a(f"  s_add_u32 s{S_T+1}, s{S_T+1}, 4096")
        a(f"  buffer_load_dword v135, v129, s[{X}:{X+3}], s{S_T+1} offen")
    a(f"  s_add_u32 s{S_BOFF}, s{S_BOFF}, {7*4096}")
    a(f"  s_and_b32 s{S_BOFF}, s{S_BOFF}, 0xffff")
    a(f"  v_add_u32 v{V_BA}, s{S_BOFF}, v{V_L16}")
    a("  s_waitcnt vmcnt(0)")
    a("  s_branch L_w3j")
    a.label("L_w3n")
gemm_call(7)
if OPT['w3'] in (1, 2, 3): a.label("L_w3j")
stamp(8); set_stream('wq', 0)
if OPT['sl']:
    gemm_call(OPT['sl']); setup_late(); gemm_call(7 - OPT['sl'])
else: gemm_call(7)
stamp(8)
a("  s_nop 7"); align8()
for c in range(2):
    for qt in range(4):
        x = V_ACC + ((2*c)*4+qt)*4; y = V_ACC + ((2*c+1)*4+qt)*4
        d = V_H + (c*4+qt)*4
        for k, s in enumerate((x, x+2, y, y+2)):
            a(f"  v_cvt_pk_bf16_f32 v{d+k}, v{s}, v{s+1}")
        for k in range(4):
            a(f"  v_pk_max_i16 v{d+k}, v{d+k}, 0")
a("; ---- Q projection")
a.label("L_qstart")
for half in range(2):
    if half == 1 and OPT['cp3']:
        a(f"  s_getpc_b64 s[{SRD_X}:{SRD_X+1}]")
        a.label("L_pc3")
        a(f"  s_mov_b32 s{SRD_X+2}, L_tail-L_pc3")
        a(f"  s_lshr_b32 s{S_T}, s2, 3")
        a(f"  s_lshl_b32 s{S_T}, s{S_T}, 2")
        a(f"  s_add_u32 s{S_T}, s{S_T}, s{S_W}")
        a(f"  s_lshl_b32 s{S_T}, s{S_T}, 8")
        a(f"  v_lshlrev_b32 v{V_T1}, 2, v{V_LANE}")
        a(f"  buffer_load_dword v255, v{V_T1}, s[{SRD_X}:{SRD_X+3}], s{S_T} offen")
    stamp(8)
    gemm_first(); gemm_call(7)
    if half == 0:
        stamp(8)
        set_stream('wq', 1); gemm_call(7); stamp(8)
    else:
        set_stream('w2', 0); gemm_call(6)
        a(f"  s_lshl_b32 s{S_T}, s{S_ODD}, 7")
        for n in range(4): a(f"  v_xor_b32 v{V_PD+n}, s{S_T}, v{V_PD+n}")
        gemm_call(1); stamp(8)
    def qepi1():
        for c in range(2):
            for qt in range(4):
                x = V_ACC + ((2*c)*4+qt)*4; y = V_ACC + ((2*c+1)*4+qt)*4
                rp = V_RS + (qt & 2); md = "op_sel:[0,1] op_sel_hi:[1,1]" if qt & 1 else "op_sel_hi:[1,0]"
                for s in (x, x+2, y, y+2):
                    a(f"  v_pk_mul_f32 v[{s}:{s+1}], v[{s}:{s+1}], v[{rp}:{rp+1}] {md}")
                d = 128 + (c*4+qt)*4
                for k, s in enumerate((x, x+2, y, y+2)):
                    a(f"  v_cvt_pk_bf16_f32 v{d+k}, v{s}, v{s+1}")
    def qepi2():
        for c in range(2):
            for qt in range(4):
                d = 128 + (c*4+qt)*4
                a(f"  v_permlane16_swap_b32 v{d}, v{d+2}")
                a(f"  v_permlane16_swap_b32 v{d+1}, v{d+3}")
        align8()
        for c in range(2):
            for qt in range(4):
                d = 128 + (c*4+qt)*4
                for k in range(4):
                    a(f"  v_accvgpr_write_b32 a{A_Q+(qt*4+2*half+c)*4+k}, v{d+k}")
    if half == 0 or not OPT['hx']:
        a("  s_nop 7"); align8(); qepi1(); a("  s_nop 0"); qepi2()
stamp()
stamp(2)
if OPT['pad']:
    a(f"  s_lshl_b32 s{S_T}, s{S_ODD}, 2")
    a(f"  s_or_b32 s{S_T}, s{S_T}, s{S_W}")
    a(f"  s_cmp_eq_u32 s{S_T}, 7")
    a("  s_cbranch_scc1 L_walk")
    a.label("L_walk_ret")
a(f"  s_lshl_b32 s{S_T}, s{S_W}, 13")
a(f"  v_add_u32 v{V_T0}, s{S_T}, v{V_L16}")
a("  s_waitcnt lgkmcnt(0)")
a("  s_barrier")
hw = [f"  ds_write_b128 v{V_T0}, v[{V_H+k*4}:{V_H+k*4+3}] offset:{k*1024}" for k in range(8)]
kd = capture(lambda: (k_tile_dma(0), k_tile_dma(1))) if not OPT['klate'] else []
if OPT['hx']:
    e1 = capture(qepi1)
    a("  s_nop 3"); align8()
    for k in range(8):
        a(hw[k])
        for l in e1[4*k:4*k+4]: a(l)
    e1 = e1[32:]
    for l in kd:
        a(l)
        if 'buffer_' in l or 'm0' in l:
            for _ in range(3): a(e1.pop(0))
    for l in e1: a(l)
else:
    for l in hw: a(l)
    k_tile_dma(0); k_tile_dma(1)
a("  s_waitcnt lgkmcnt(0)")
a("  s_barrier")
a("; ---- FFN2 partial")
stamp(2)
b_reload(True, wait=False)
if OPT['hx']: qepi2()
a(f"  s_mov_b32 s{S_VOFF}, s{S_KV0}")
a(f"  s_cmp_lg_u32 s{S_ODD}, 0")
a("  s_cbranch_scc0 L_ffn2_even" if OPT['ool'] else "  s_cbranch_scc1 L_ffn2_odd")
def attn_init():
    L = [f"  s_add_u32 s{S_VOFF}, s{S_KV0}, {2*16384}"]
    L += [f"  v_mov_b32 v{V_L+i}, 0" for i in range(12)]
    L += [f"  v_and_b32 v{V_T0}, {15 if OPT['one1'] else 3}, v{V_LANE}", f"  v_cmp_eq_u32 vcc, 0, v{V_T0}", f"  v_mov_b32 v{V_T0}, 0x3f803f80", "  s_nop 0",
          f"  v_cndmask_b32 v{V_ONES}, 0, v{V_T0}, vcc"] + [f"  v_mov_b32 v{V_ONES+i}, v{V_ONES}" for i in range(1, 4)]
    if NSUM == 4:
        L += ["  s_nop 1"] + [f"  v_mov_b32_dpp v{V_L+i}, v{V_ONES} quad_perm:[1,0,3,2] row_mask:0xf bank_mask:0xf" for i in range(4)]
    return L
HI_CVT = capture(lambda: store_partial(0, 1, dst=160, defer=True, sreg=S_SP))
HI_CVT = [l for l in HI_CVT if 'v_cvt' in l]
WO_SET = capture(lambda: set_stream('wo', 0)) + [f"  s_mov_b32 s{S_SV_POFF}, s{S_POFF}"]
A_INIT = [l for l in attn_init() if 's_nop' not in l]
def ffn2(nf):
    gpos[0] = 48; N = 48 + 2*nf
    vq = [f"S{k}" for k in range(49, 55) for _ in range(4)] + ['K']*(0 if OPT['klate'] else 8)
    kj = ((57, 58) if nf == 8 else (53, 54)) if OPT['klate'] else ()
    vj = (59, 60) if (nf == 8 and OPT['klate']) else (57, 58)
    def yg(tag): return len(vq) - 1 - max(i for i, t in enumerate(vq) if t == tag)
    st0 = None
    stj = (59, 60) if nf == 8 else (55, 56)
    j = 48
    ns0 = nstamp[0]
    while j < N:
        if j in (48, 50, 48 + nf, 50 + nf): stamp(2)
        if j == 48 + nf: st0 = store_partial(0, 0, dst=128, defer=True, sreg=S_SP)
        if nf == 8 and j == 49: set_stream('w2', 1)
        if j == 50:
            n = 6 if nf == 8 else 3
            gemm_call(n)
            for k in range(n): vq.extend([f"S{j+k+7}"]*4)
            j += n; continue
        kw = dict(first=(j - 48) % nf < 2, vmw=(yg(f"S{j+2}") if j + 2 < N else 63), noread=(j + 2 >= N))
        if j + 7 < N: tags = [f"S{j+7}"]*4
        elif j in vj:
            kw['vm'] = [[f"  s_add_u32 m0, s{S_VM0}, {(j-vj[0])*16384}", v_dma(0)], [v_dma(1)], [v_dma(2)], [v_dma(3)]]
            if j == vj[1]: kw['xvm'] = [(5, f"  s_add_u32 s{S_VOFF}, s{S_VOFF}, 16384")]
            tags = ['V']*4
        elif j in kj:
            kw['vm'] = [[f"  s_add_u32 m0, s{S_KM0}, {kslot(j-kj[0])*16384}", k_dma(0)], [k_dma(1)], [k_dma(2)], [k_dma(3)]]
            kw['xvm'] = [(15, f"  s_add_u32 s{S_KOFF}, s{S_KOFF}, 16384")]
            tags = ['K']*4
        elif j in stj and OPT['early']:
            kw['vm'] = [[x] for x in st0[4*(j-stj[0]):4*(j-stj[0])+4]]; tags = ['st']*4
        else: kw['vm'] = []; tags = []
        if OPT['hfill'] and j == N - 2:
            kw2 = dict(vm=[], vmw=63, noread=True)
            w0 = kw['vmw']
            prog = capture(lambda: (gemm_inl(**kw), gemm_inl(**kw2)))
            prog = [l for l in prog if 's_waitcnt' not in l]
            a(f"  s_waitcnt vmcnt({w0}) lgkmcnt(0)")
            emit_sched(prog + A_INIT + WO_SET + HI_CVT[:16], f'ffn2 end {nf}')
            break
        gemm_inl(**kw); vq.extend(tags); j += 1
_ns = nstamp[0]
_i = len(a.lines)
a.label("L_ffn2_even")
ffn2(8)
nstamp[0] = _ns
a("  s_branch L_ffn2_done")
EVEN_CODE = []
if OPT['ool']:
    EVEN_CODE = a.lines[_i:]; del a.lines[_i:]
iodd = len(a.lines)
a.label("L_ffn2_odd")
ffn2(6)
a.label("L_ffn2_done")
stamp(2)
a("  s_waitcnt vmcnt(12) lgkmcnt(0)")
a("  s_barrier")
stamp(2)
stamp(); stamp(4)
if OPT['stamps']:
    a("  s_memrealtime s[38:39]")
    a("  s_waitcnt lgkmcnt(0)")
QORD = [(kt, qt) for qt in range(4) for kt in range(2)]
def maxq(qt):
    x = s_reg(0, 0, qt); y = s_reg(0, 1, qt); m = V_NEGM + qt*4
    a(f"  v_max3_f32 v{m}, v{x}, v{x+1}, v{x+2}")
    a(f"  v_max3_f32 v{m+1}, v{x+3}, v{y}, v{y+1}")
    a(f"  v_max3_f32 v{m}, v{m}, v{y+2}, v{y+3}")
    a(f"  v_max_f32 v{m}, v{m}, v{m+1}")
    xlane_reduce(m, 'v_max_f32', m+1)
    for k in range(3, -1, -1): a(f"  v_sub_f32 v{m+k}, 0, v{m}")
    for kt in range(2):
        for r in range(4):
            s_ = s_reg(0, kt, qt) + r
            a(f"  v_add_f32 v{s_}, v{s_}, v{m}")
def head_common():
    L = qk_mfmas(1, order=QORD, src=A_V)
    for qt in range(4): L += sm_ops(0, qt)
    L += [k_read(2, i >> 2, i & 3) for i in range(8)] + capture(lambda: k_tile_dma(4))
    L += qk_mfmas(0, order=QORD)
    for qt in range(4): L += sm_ops(1, qt)
    L += [k_read(3, i >> 2, i & 3) for i in range(8)] + capture(lambda: v_tile_dma(2))
    return L
KR01 = [k_read(0, i >> 2, i & 3) for i in range(8)] + [k_read(1, i >> 2, i & 3, A_V) for i in range(8)]
prog = KR01 + HI_CVT[(16 if OPT['hfill'] else 0):]
prog += capture(lambda: (k_tile_dma(2), k_tile_dma(3))) + ["  s_waitcnt vmcnt(16)", "  s_barrier"]
for k in range(OPT['hst']):
    prog.append(f"  s_add_u32 s{S_SP}, s{S_PBASE}, {k*4096}")
    prog += [f"  buffer_store_dwordx4 v[{128+(k*4+qt)*4}:{131+(k*4+qt)*4}], v{V_L16}, s[{SRD_WS}:{SRD_WS+3}], s{S_SP} offen offset:{qt*1024} sc1" for qt in range(4)]
if OPT['m16']:
    prog += qk_mfmas(0, zero=True, order=[(0, qt) for qt in range(4)])
    if not OPT['hfill']: prog += A_INIT
    def max16(qt):
        x = s_reg(0, 0, qt); m = V_NEGM + qt*4
        a(f"  v_max3_f32 v{m}, v{x}, v{x+1}, v{x+2}")
        a(f"  v_max_f32 v{m}, v{m}, v{x+3}")
        xlane_reduce(m, 'v_max_f32', m+1)
        for k in range(3, -1, -1): a(f"  v_sub_f32 v{m+k}, 0, v{m}")
    for qt in range(4): prog += capture(lambda: max16(qt))
    prog += qk_mfmas(0, order=QORD)
else:
    prog += qk_mfmas(0, zero=True, order=QORD)
    if not OPT['hfill']: prog += A_INIT
    for qt in range(4): prog += capture(lambda: maxq(qt))
prog += head_common()
if not OPT['hfill']: prog += WO_SET
emit_sched(prog, 'head', vmgap=OPT['hgap'])
stamp(4)
a(f"  s_mov_b32 s{S_LOOP}, 7")
a(f"  s_and_b32 s{S_EV}, s{S_R}, 3")
a(f"  s_mov_b32 s{S_EI}, 0")
a(f"  s_waitcnt vmcnt({12 + 4*OPT['hst']})")
a("  s_branch L_p2")
segs.append(('pre', i0, len(a.lines)))
a(f".p2align {OPT['lal']}")
if OPT['pad']:
    a.label("L_padL"); a("  s_branch L_pad0"); a("  s_nop 0")
il = len(a.lines)
a.label("L_loop")
for p in range(8, 16):
    if p == 10: a.label("L_p2")
    if p % 2 == 0: barrier_T(16)
    else:
        if OPT['e64']: a("  s_nop 0")
        a("  s_waitcnt lgkmcnt(0)")
    if OPT['stg'] and p & 1:
        period(p, endop=f"  s_sub_u32 s{S_EV}, s{S_EV}, 1")
        a(f"  s_cbranch_scc1 L_ev{p}")
        a.label(f"L_evr{p}")
    else: period(p)
a(f"  s_sub_u32 s{S_LOOP}, s{S_LOOP}, 1")
a(f"  s_cmp_eq_u32 s{S_LOOP}, 0")
a("  s_cbranch_scc1 L_tail")
itail = len(a.lines)
a(f"  s_cmp_lg_u32 s{S_REDO}, 0")
a("  s_cbranch_scc1 L_loop")
if OPT['alt']:
    a(f"  s_cmp_lt_u32 s{S_LOOP}, 3")
    a("  s_cbranch_scc1 L_bk3")
    a(f"  s_xor_b32 s{S_T}, s{S_LOOP}, s{S_ODD}")
    a(f"  s_bitcmp1_b32 s{S_T}, 0")
    a("  s_cbranch_scc0 L_loop")
    a(f"  s_cmp_lt_u32 s{S_LOOP}, 5")
    a("  s_cbranch_scc1 L_bk1")
    for hb in range(2):
        if hb:
            a.label("L_bk1")
            for l in PFG['mb']: a(l.replace('v255', f'v{V_T0}'))
        for k in (2*hb, 2*hb+1):
            a(f"  s_add_u32 s{S_T}, s{S_PBASE}, {(k & 1)*4096 + (k >> 1)*HSTR}")
            for qt in range(4):
                d = 128 + (k*4+qt)*4
                a(f"  buffer_store_dwordx4 v[{d}:{d+3}], v{V_L16}, s[{SRD_WS}:{SRD_WS+3}], s{S_T} offen offset:{qt*1024} sc1")
        a("  s_branch L_loop")
    a.label("L_bk3")
if OPT['bsh']:
    idx = 0
    for e, n_ in enumerate((6, 5, 5)):
        a(f"  s_cmp_lg_u32 s{S_LOOP}, {5-e}")
        a(f"  s_cbranch_scc1 L_bk{e}")
        if e == 2:
            for l in PFG['mb']: a(l.replace('v255', f'v{V_T0}'))
        for z in range(idx, idx + n_):
            k, qt = z >> 2, z & 3
            if z == idx or qt == 0: a(f"  s_add_u32 s{S_T}, s{S_PBASE}, {(k & 1)*4096 + (k >> 1)*HSTR}")
            a(f"  buffer_store_dwordx4 v[{128+4*z}:{131+4*z}], v{V_L16}, s[{SRD_WS}:{SRD_WS+3}], s{S_T} offen offset:{qt*1024} sc1")
        idx += n_
        a("  s_branch L_loop")
        a.label(f"L_bk{e}")
for k in range(OPT['hst'], 0 if (OPT['stg'] or OPT['alt'] or OPT['bsh']) else 4):
    a(f"  s_cmp_lg_u32 s{S_LOOP}, {6-k}")
    a(f"  s_cbranch_scc1 L_bk{k}")
    if k == 3 and OPT['mbl']:
        for l in PFG['mb']: a(l.replace('v255', f'v{V_T0}'))
    a(f"  s_add_u32 s{S_T}, s{S_PBASE}, {(k & 1)*4096 + (k >> 1)*HSTR}")
    if OPT['w2sw']:
        a(f"  s_and_b32 s{S_T+1}, s{S_R}, 1")
        a(f"  s_mul_i32 s{S_T+1}, s{S_T+1}, {HSTR}")
        a(f"  s_xor_b32 s{S_T}, s{S_T}, s{S_T+1}")
    for qt in range(4):
        d = 128 + (k*4+qt)*4
        a(f"  buffer_store_dwordx4 v[{d}:{d+3}], v{V_L16}, s[{SRD_WS}:{SRD_WS+3}], s{S_T} offen offset:{qt*1024} sc1")
    a("  s_branch L_loop")
    a.label(f"L_bk{k}")
a(f"  s_lshl_b32 s{S_T}, s{S_R}, 2")
a(f"  s_cmp_lg_u32 s{S_LOOP}, 1")
a("  s_cbranch_scc1 L_bk4")
a(f"  v_mov_b32 v{V_T0}, 0")
a(f"  buffer_load_dword v{V_POLL}, v{V_T0}, s[{SRD_D}:{SRD_D+3}], s{S_T} offen sc1")
if OPT['cp2']:
    a(f"  s_getpc_b64 s[{SRD_X}:{SRD_X+1}]")
    a.label("L_pc2")
    a(f"  s_mov_b32 s{SRD_X+2}, L_code_end-L_pc2")
    a(f"  s_lshr_b32 s{S_T}, s2, 3")
    a(f"  s_lshl_b32 s{S_T}, s{S_T}, 2")
    a(f"  s_add_u32 s{S_T}, s{S_T}, s{S_W}")
    a(f"  s_lshl_b32 s{S_T}, s{S_T}, 8")
    a(f"  v_lshlrev_b32 v{V_T1}, 2, v{V_LANE}")
    a(f"  buffer_load_dword v128, v{V_T1}, s[{SRD_X}:{SRD_X+3}], s{S_T} offen")
    if OPT['cp2'] == 2:
        for l in PFG['wo']: a(l.replace('v253', f'v{V_T1}').replace('v254', 'v129'))
a("  s_branch L_loop")
a.label("L_bk4")
if OPT['pt']:
    a(f"  v_lshlrev_b32 v{V_T1}, 7, v{V_LANE}")
    for k in range(2):
        a(f"  s_add_u32 s{S_T+1}, s{S_PBASE}, {PART_KIND + k*8192}")
        a(f"  buffer_load_dword v{130+k}, v{V_T1}, s[{SRD_WS}:{SRD_WS+3}], s{S_T+1} offen{' sc1' if OPT['pt'] == 2 else ''}")
a(f"  s_lshl_b32 s{S_T+1}, s{S_W}, 4")
a(f"  s_or_b32 s{S_T+1}, s{S_T+1}, s{S_LOOP}")
a(f"  s_cmp_lg_u32 s{S_T+1}, 2")
a("  s_cbranch_scc1 L_loop")
a(f"  v_mov_b32 v{V_T0}, 1")
a(f"  v_lshlrev_b32 v{V_T1}, 2, v{V_LANE}")
a(f"  buffer_atomic_add v{V_T0}, v{V_T1}, s[{SRD_D}:{SRD_D+3}], s{S_T} offen sc1")
a("  s_branch L_loop")
if OPT['stg']:
    for p in (9, 11, 13, 15):
        a.label(f"L_ev{p}")
        a(f"  s_call_b64 s[{S_RET}:{S_RET+1}], L_evt")
        a(f"  s_branch L_evr{p}")
    a.label("L_evt")
    a(f"  s_mov_b32 s{S_EV}, {OPT['stg'] + 2}")
    a(f"  s_add_u32 s{S_EI}, s{S_EI}, 1")
    for k in range(4):
        if k < 3:
            a(f"  s_cmp_lg_u32 s{S_EI}, {k+1}")
            a(f"  s_cbranch_scc1 L_evk{k}")
        else:
            a(f"  s_mov_b32 s{S_EV}, 1000")
            for l in PFG['mb']: a(l.replace('v255', f'v{V_T0}'))
        a(f"  s_add_u32 s{S_T}, s{S_PBASE}, {(k & 1)*4096 + (k >> 1)*HSTR}")
        for qt in range(4):
            d = 128 + (k*4+qt)*4
            a(f"  buffer_store_dwordx4 v[{d}:{d+3}], v{V_L16}, s[{SRD_WS}:{SRD_WS+3}], s{S_T} offen offset:{qt*1024} sc1")
        a(f"  s_setpc_b64 s[{S_RET}:{S_RET+1}]")
        if k < 3: a.label(f"L_evk{k}")
segs.append(('loop2', il, len(a.lines)))
it = len(a.lines)
if OPT['tal']: a(f".p2align {OPT['tal']}")
a.label("L_tail")
stamp(4)
a(f"  v_readfirstlane_b32 s{S_T}, v{V_POLL}")
a("  s_nop 3")
a(f"  s_cmp_ge_u32 s{S_T}, 8")
a("  s_cbranch_scc1 L_spin1_done")
a(f"  v_mov_b32 v{V_T0}, 0")
a(f"  s_lshl_b32 s{S_T+2}, s{S_R}, 2")
spin("L_spin1", SRD_D, V_T0, f"s{S_T+2}", 8)
if OPT['sib']:
    a(f"  s_lshr_b32 s{S_T}, s{S_PBASE}, 16")
    a(f"  s_xor_b32 s{S_T}, s{S_T}, 1")
    a(f"  s_lshl_b32 s{S_T}, s{S_T}, 7")
    a(f"  s_add_u32 s{S_T}, s{S_T}, {MBOX}")
    a(f"  v_mov_b32 v{V_T0}, 4")
    a(f"  buffer_load_dword v{V_L+2}, v{V_T0}, s[{SRD_WS}:{SRD_WS+3}], s{S_T} offen sc1")
gl = [part_load(0, b_ >> 3, b_ & 7, 128 + 4*b_) for b_ in range(16)]
for p in range(56, 63):
    if p % 2 == 0: barrier_T()
    else: a("  s_waitcnt lgkmcnt(0)")
    if p in (56, 58, 60, 61): period(p, dma=[gl.pop(0) for _ in range(4)])
    elif p == 62:
        ex = []
        for pos in (4, 5):
            pl = produce_list(pos); ex += [pl[:4], [pl[4]], [], [pl[5]], [], [pl[6]], [], [pl[7]]]
        period(p, last=True, extra=[[]]*16 + ex)
    else: period(p)
stamp(4)
if OPT['sib']: a(f"  v_readfirstlane_b32 s{S_SIB}, v{V_L+2}")
a("  s_waitcnt lgkmcnt(0)")
THR = 0x53800000 if not OPT['force_redo'] else 0x3f000000
prog = v_half(31, 0) + produce_list(0) + produce_list(1)
prog += pv_half(30, 1, A_K) + sum_pair(30, 2)
prog += [f"  s_mov_b32 s{S_SP}, {THR:#x}", f"  s_mov_b64 vcc, 0"]
for qt in (3, 2, 1, 0): prog += sm_ops(63, qt)
prog += v_half(31, 1, A_K) + ["  s_barrier"] + produce_list(2)
prog += sum_pair(31, 3) + sum_pair(31, 2)
for qt in (1, 0, 3, 2):
    lr = (ls_reg(qt) + (qt < 2)) if qt in SUMQT else V_L + qt
    if qt not in SUMQT: prog += capture(lambda: xlane_reduce(V_L+qt, 'v_add_f32', V_L+2+qt))
    elif OPT['one1']: prog += capture(lambda: xlane_reduce(lr, 'v_add_f32', lr+1))
    prog += [f"  v_cmp_ngt_f32 s[{S_T+2}:{S_T+3}], s{S_SP}, v{lr}", f"  s_or_b64 vcc, vcc, s[{S_T+2}:{S_T+3}]",
             f"  v_rcp_f32 v{V_NEGM+2*qt}, v{lr}"]
FLG = [f"  s_cmp_lg_u64 vcc, 0", f"  s_cselect_b32 s{S_T}, 1, 0", f"  v_mov_b32 v56, s{S_T}", f"  ds_write_b32 v{V_T1}, v56"]
prog += [f"  s_lshl_b32 s{S_T+1}, s{S_W}, 2", f"  s_add_u32 s{S_T+1}, s{S_T+1}, {RB+3*16384}",
         f"  v_and_b32 v{V_T1}, 3, v{V_LANE}", f"  v_lshlrev_b32 v{V_T1}, 12, v{V_T1}", f"  v_add_u32 v{V_T1}, s{S_T+1}, v{V_T1}"]
if not OPT['ochk']: prog += FLG
prog += [f"  s_lshl_b32 s{S_T}, s{S_W}, 14", f"  v_add_u32 v{V_T0}, s{S_T}, v{V_L16}"]
gpos[0] = 8
if OPT['af']:
    prog += [f"  v_add_u32 v{60+nt}, {3*16384}, v{V_AA+nt}" for nt in range(4)] + ["  s_waitcnt vmcnt(12)"]
    af = capture(a_first)
    for nt in range(4): af = [l.replace(f", v{V_AA+4+nt} ", f", v{60+nt} ") for l in af]
    prog += af
prog += pv_half(31, 0) + pv_half(31, 1, A_K)
def norm(c, qt, pk):
    t = qt * 12; L = []
    L += [f"  v_accvgpr_read_b32 v{t+k}, a{A_O+((2*c)*4+qt)*4+k}" for k in range(4)]
    L += [f"  v_accvgpr_read_b32 v{t+4+k}, a{A_O+((2*c+1)*4+qt)*4+k}" for k in range(4)]
    if pk: L += [f"  v_pk_mul_f32 v[{t+2*k}:{t+2*k+1}], v[{t+2*k}:{t+2*k+1}], v[{V_NEGM+2*qt}:{V_NEGM+2*qt+1}] op_sel_hi:[1,0]" for k in range(4)]
    else: L += [f"  v_mul_f32 v{t+k}, v{t+k}, v{V_NEGM+2*qt}" for k in range(8)]
    L += [f"  v_cvt_pk_bf16_f32 v{t+8+k}, v{t+2*k}, v{t+2*k+1}" for k in range(4)]
    L += [f"  ds_write_b128 v{V_T0}, v[{t+8}:{t+11}] offset:{(c*4+qt)*1024}"]
    return L
def ochk(c, qt):
    return mf(52, V_ONES, qt*12+8, None if (c, qt) == (0, 0) else 52)
NOV = OPT['nov']
todo = [(c, qt) for c in range(4) for qt in range(4)]
if OPT['ochk']:
    NOV = min(NOV, 4)
for c, qt in todo[:NOV]: prog += norm(c, qt, False)
if OPT['ochk']: prog += [ochk(c, qt) for c, qt in todo[:NOV]]
a('; ---- attention tail, row sums, range check, normalisation')
emit_sched(prog, 'tail')
stamp(); stamp(4)
if OPT['stamps']:
    a(f"  s_memrealtime s[{S_RET}:{S_RET+1}]")
    a("  s_waitcnt lgkmcnt(0)")
    a(f"  s_mov_b32 s39, s{S_RET}")
gpos[0] = 8
for nt in range(4): a(f"  v_add_u32 v{V_AA+4+nt}, {3*16384}, v{V_AA+nt}")
if not OPT['af']:
    a("  s_waitcnt vmcnt(12)")
    a_first()
pend_ = None
align8()
for c, qt in todo[NOV:]:
    L_ = norm(c, qt, True)
    if pend_: L_.insert(1, pend_)
    for l in L_: a(l)
    pend_ = ochk(c, qt) if OPT['ochk'] else None
if OPT['ochk']:
    a("  s_nop 0")
    a(pend_)
    a("  s_nop 7")
    a(f"  v_cmp_u_f32 s[{S_T+2}:{S_T+3}], v53, v53")
    a("  s_nop 2")
    a(f"  s_or_b64 vcc, vcc, s[{S_T+2}:{S_T+3}]")
    for l in FLG: a(l)
a("  s_waitcnt lgkmcnt(0)")
a("  s_barrier")
a(f"  s_add_u32 s{S_T}, s{S_VM0}, {3*16384}")
a(f"  v_mov_b32 v{V_T0}, s{S_T}")
a(f"  ds_read_b128 v[0:3], v{V_T0}")
b_reload(False, wait=False)
a("  s_waitcnt lgkmcnt(8)")
a("  v_or_b32 v0, v0, v1")
a("  v_or3_b32 v0, v0, v2, v3")
a("  s_nop 0")
a(f"  v_readfirstlane_b32 s{S_T}, v0")
a(f"  s_andn2_b32 s{S_T}, s{S_T}, s{S_REDO}")
if not OPT['noredo']: a("  s_cbranch_scc1 L_redo")
produce_slot(3); produce_slot(4)
a(f"  s_lshl_b32 s{S_T}, s{S_W}, 1")
a(f"  s_sub_u32 s{S_OWN}, s{S_G}, s{S_T}")
if OPT['sib']:
    a(f"  s_getreg_b32 s{S_T}, hwreg(HW_REG_XCC_ID, 0, 4)")
    a(f"  s_xor_b32 s{S_T+1}, s{S_OWN}, 1")
    a(f"  s_cmp_eq_u32 s{S_T}, s{S_SIB}")
    a(f"  s_cselect_b32 s{S_SIB}, s{S_T+1}, 99")
stamp()
gemm_first(); gemm_call(7); set_stream('wo', 1); gemm_call(7)
LOQ = [192, 196, 200, 204, 216, 220, 224, 228]
if OPT['own']:
    for k in range(4): a(f"  v_mov_b32 v{248+k}, 0")
    a("  s_nop 1")
    for k in range(4): a(f"  v_mfma_f32_32x32x16_bf16 a[{16*k}:{16*k+15}], v[248:251], v[248:251], 0")
st0 = store_partial(1, 0, dst=LOQ, defer=True, sreg=S_SP)
a(f"  s_mov_b32 s{SRD_X}, s{P_X}")
a(f"  s_mov_b32 s{SRD_X+1}, s{P_X+1}")
a(f"  s_mov_b32 s{SRD_X+2}, {2048*512*2}")
GL, XL, SL = 128, 248, 64
S_MB, S_DONE, S_M, S_NEW = S_KOFF, S_VOFF, S_LOOP, S_KM0
a(f"  s_lshr_b32 s{S_MB}, s{S_PBASE}, {WGSH}")
a(f"  s_lshl_b32 s{S_MB}, s{S_MB}, 7")
a(f"  s_add_u32 s{S_MB}, s{S_MB}, {MBOX}")
a(f"  s_add_u32 s{S_XO}, s{S_XO}, s{S_HSW}")
a(f"  s_xor_b32 s{S_HSW}, s{S_XO}, 128")
if OPT['fst']:
    a(f"  v_and_b32 v{V_ZERO}, 15, v{V_LANE}")
    a(f"  v_lshlrev_b32 v{V_ZERO}, 2, v{V_ZERO}")
else: a(f"  v_mov_b32 v{V_ZERO}, 0")
a(f"  v_and_b32 v{V_T0}, 15, v{V_LANE}")
a(f"  v_lshlrev_b32 v{V_T0}, 10, v{V_T0}")
if OPT['o4']:
    a(f"  v_and_b32 v{V_T1}, 16, v{V_LANE}")
    a(f"  v_lshl_add_u32 v{V_T0}, v{V_T1}, 1, v{V_T0}")
    a(f"  v_bfe_u32 v{V_T1}, v{V_LANE}, 5, 1")
    a(f"  v_lshl_add_u32 v{V_XO}, v{V_T1}, 4, v{V_T0}")
else:
    a(f"  v_lshrrev_b32 v{V_T1}, 4, v{V_LANE}")
    a(f"  v_lshl_add_u32 v{V_XO}, v{V_T1}, 3, v{V_T0}")
POLL = f"  buffer_load_dword v{V_POLL}, v{V_ZERO}, s[{SRD_WS}:{SRD_WS+3}], s{S_MB} offen sc1"
XLD = [f"  buffer_load_dwordx2 v[{XL+2*k}:{XL+2*k+1}], v{V_XO}, s[{SRD_X}:{SRD_X+3}], s{S_HSW if k >> 1 else S_XO} offen offset:{(k&1)*32}" for k in range(4)]
if OPT['o4']: XLD = [f"  buffer_load_dwordx4 v[{XL+4*i}:{XL+4*i+3}], v{V_XO}, s[{SRD_X}:{SRD_X+3}], s{S_HSW if i else S_XO} offen" for i in range(2)]
if OPT['xvol'] & 2:
    a(f"  s_bitcmp1_b32 s{S_W}, 0")
    a(f"  s_cselect_b32 s{S_FB}, 0x40000000, s{S_FB}")
S_SIG = S_KV0
a(f"  s_mov_b32 s{SRD_D}, s{P_WS}")
a(f"  s_mov_b32 s{SRD_D+1}, s{P_WS+1}")
a(f"  s_lshl_b32 s{S_SIG}, s{S_R}, 10")
a(f"  s_add_u32 s{S_SIG}, s{S_SIG}, {MBOX}")
a(f"  s_add_u32 s{S_T}, s{S_SIG}, 1024")
a(f"  s_cmp_eq_u32 s{S_W}, 0")
a(f"  s_cselect_b32 s{SRD_D+2}, s{S_T}, 0")
a(f"  s_lshl_b32 s{S_M}, 1, s{S_G}")
a(f"  v_mov_b32 v{V_T0}, s{S_M}")
a(f"  v_lshlrev_b32 v{V_T1}, 7, v{V_LANE}")
SIG = SIG2 = f"  buffer_atomic_add v{V_T0}, v{V_T1}, s[{SRD_D}:{SRD_D+3}], s{S_SIG} offen sc1"
if OPT['fst']:
    a(f"  v_lshl_add_u32 v{V_T1}, s{S_G}, 2, v{V_T1}")
    SIG = f"  buffer_store_dword v{V_T0}, v{V_T1}, s[{SRD_D}:{SRD_D+3}], s{S_SIG} offen sc1"
    SIG2 = f"  buffer_store_dword v{V_T0}, v{V_T1}, s[{SRD_D}:{SRD_D+3}], s{S_SIG} offen offset:32 sc1"
def getmask(sreg):
    if OPT['fst']:
        a(f"  v_cmp_ne_u32 vcc, 0, v{V_POLL}")
        a("  s_nop 3")
        a(f"  s_and_b32 s{sreg}, vcc_lo, 0xffff")
    else:
        a(f"  v_readfirstlane_b32 s{sreg}, v{V_POLL}")
SEL = 236
sel = [f"  v_lshrrev_b32 v{V_ONE_LO}, 4, v{V_LANE}", f"  v_bfe_u32 v{V_ONE_HI}, v{V_LANE}, 2, 2",
       f"  v_cmp_eq_u32 vcc, v{V_ONE_LO}, v{V_ONE_HI}", f"  v_and_b32 v{V_ONE_LO}, 1, v{V_LANE}", f"  v_lshlrev_b32 v{V_ONE_LO}, 4, v{V_ONE_LO}",
       f"  v_mov_b32 v{V_ONE_HI}, 0x3f80", f"  v_lshlrev_b32 v{V_ONE_HI}, v{V_ONE_LO}, v{V_ONE_HI}", f"  v_cndmask_b32 v{V_ONE_HI}, 0, v{V_ONE_HI}, vcc",
       f"  v_and_b32 v{V_ONE_LO}, 2, v{V_LANE}", f"  v_cmp_eq_u32 vcc, 0, v{V_ONE_LO}", f"  v_mov_b32 v{SEL}, 0", f"  v_mov_b32 v{SEL+1}, 0",
       f"  v_cndmask_b32 v{SEL+2}, 0, v{V_ONE_HI}, vcc", f"  v_cndmask_b32 v{SEL+3}, v{V_ONE_HI}, v{SEL}, vcc", f"  v_mov_b32 v{SEL+4}, 0", f"  v_mov_b32 v{SEL+5}, 0"]
def msum(base, acc, bt='v'):
    return [mf(acc + 4*h, SEL + 2 - 2*h, base + 4*s_, None if s_ == 0 else acc + 4*h, 'v', 'v', bt) for s_ in range(8) for h in range(2)]
SL = 0
def redirect(b_):
    return [f"  s_bitcmp1_b32 s{S_NEW}, {b_}", f"  s_cselect_b32 s{S_T+1}, s{S_FB}, 0x40000000",
            f"  s_add_u32 s{S_T+2}, s{S_T+1}, {PART_KIND + ((b_ & 7) << WGSH) + (b_ >> 3)*HSTR}",
            f"  buffer_load_dwordx4 a[{SL+4*b_}:{SL+4*b_+3}], v{V_L16}, s[{SRD_WS}:{SRD_WS+3}], s{S_T+2} offen sc1"]
vq = [f"slot{k}" for k in range(7) for _ in range(4)]
st0 = list(st0)
def trickle():
    if OPT['trk']:
        a(st0.pop(0)); vq.append('st')
trickle()
gemm_first(); vq += ['slot7']*4 + ['slot8']*4
if OPT['trk']:
    for k in range(3):
        trickle(); gemm_call(2); vq += [f"slot{9+2*k}"]*4 + [f"slot{10+2*k}"]*4
    if OPT['trk'] == 2: trickle()
    gemm_call(1); vq += ['slot15']*4
else:
    gemm_call(7); vq += [f"slot{k}" for k in range(9, 16) for _ in range(4)]
if OPT['e1']:
    a(POLL); vq.append('poll1')
def younger(tag): return len(vq) - 1 - max(i for i, t in enumerate(vq) if t == tag)
a(f"  s_mov_b32 s{S_DONE}, 0")
for j in range(9, 16):
    vm = []; tags = []; xv = None
    w_ = younger(f"slot{j+2}") if j < 14 else 63
    if j in (9, 10):
        vm = [[x] for x in st0[:4]]; tags = ['st']*len(vm); st0 = st0[4:]
    if j == 11 and not OPT['xl']: vm = [[x] for x in XLD]; tags = ['x']*len(XLD)
    if OPT['e1'] and j in (12, 13):
        if j == 12:
            w_ = younger('poll1')
            xv = [(4, f"  v_readfirstlane_b32 s{S_NEW}, v{V_POLL}"), (8, f"  s_and_b32 s{S_DONE}, s{S_NEW}, 0xff")]
        vm = [redirect(4*(j-12)+k) for k in range(4)]; tags = ['e1']*4
    if j == 14: vm = [[""], [""], [""], [POLL]]; tags = ['poll']
    if j == 15 and OPT['ilv']:
        prog = capture(lambda: (gemm_inl(vm=[], vmw=63, noread=True), store_partial(1, 1)))
        prog = [l for l in prog if 's_waitcnt' not in l]
        a("  s_nop 3")
        out, t = schedule(prog, vmgap=40)
        for l in out: a(l)
        a("  s_nop 1")
        break
    gemm_inl(vm=vm, vmw=w_, noread=(j >= 14), fillv=(sel if j == 14 else None), xvm=xv)
    vq += tags
stamp(5)
if not OPT['ilv']: store_partial(1, 1)
stamp(); stamp(5)
GA, T = 16, 48
OWNQ = 64
if OPT['own']:
    a(f"  s_cmp_gt_u32 s{S_OWN}, 1")
    a("  s_cbranch_scc1 L_own_done")
    a(f"  v_add_u32 v{V_BA}, s{S_VM0}, v{V_L16}")
    a(f"  s_cmp_eq_u32 s{S_OWN}, 1")
    a("  s_cbranch_scc1 L_own1")
    for c in range(2):
        if c: a.label("L_own1")
        if OPT['sib']:
            o = 1 - c
            a(f"  s_cmp_eq_u32 s{S_SIB}, 99")
            a(f"  s_cbranch_scc1 L_nosib{c}")
            a(f"  s_add_u32 s{S_T}, s{S_PBASE}, {PART_KIND + o*4096}")
            a(f"  s_add_u32 s{S_T+1}, s{S_T}, 8192")
            for qt in range(4):
                x = V_ACC + ((2*o)*4+qt)*4
                a(f"  buffer_store_dwordx4 v[{LOQ[4*o+qt]}:{LOQ[4*o+qt]+3}], v{V_L16}, s[{SRD_WS}:{SRD_WS+3}], s{S_T} offen offset:{qt*1024}")
                a(f"  buffer_store_dwordx4 v[{x}:{x+3}], v{V_L16}, s[{SRD_WS}:{SRD_WS+3}], s{S_T+1} offen offset:{qt*1024}")
            a.label(f"L_nosib{c}")
        for qt in range(4):
            a(f"  ds_write_b128 v{V_BA}, v[{LOQ[4*c+qt]}:{LOQ[4*c+qt]+3}] offset:{qt*1024}")
            x = V_ACC + ((2*c)*4+qt)*4
            a(f"  ds_write_b128 v{V_BA}, v[{x}:{x+3}] offset:{16384+qt*1024}")
        if c == 0: a("  s_branch L_own_w")
    a.label("L_own_w")
    if OPT['sib']:
        a(f"  s_cmp_eq_u32 s{S_SIB}, 99")
        a("  s_cbranch_scc1 L_own_done")
        a("  s_waitcnt vmcnt(0)")
    a.label("L_own_done")
    a(f"  s_lshr_b32 s{S_T}, s{S_G}, 1")
    a(f"  s_lshl_b32 s{S_T}, s{S_T}, 2")
    a(f"  s_add_u32 s{S_T}, s{S_T}, s{S_W}")
    a(f"  s_lshl_b32 s{S_T}, s{S_T}, 10")
    a(f"  s_add_u32 s{S_T}, s{S_T}, {RB}")
    a("  s_waitcnt lgkmcnt(0)")
    a(f"  v_add_u32 v{V_BA}, s{S_T}, v{V_L16}")
a("  s_waitcnt vmcnt(8)")
a("  s_barrier")
a(SIG)
if OPT['own']:
    a(f"  ds_read_b128 v[{OWNQ}:{OWNQ+3}], v{V_BA}")
    a(f"  ds_read_b128 v[{OWNQ+4}:{OWNQ+7}], v{V_BA} offset:16384")
getmask(S_NEW)
a(f"  v_lshlrev_b32 v{V_T0}, 8, v{V_T0}")
a("  s_nop 2")
if OPT['own']:
    a(f"  s_mul_i32 s{S_M}, s{S_M}, 0x101")
    a(f"  s_or_b32 s{S_DONE}, s{S_DONE}, s{S_M}")
    a(f"  s_mov_b32 s{S_M}, s{S_NEW}")
else:
    a(f"  s_or_b32 s{S_NEW}, s{S_NEW}, s{S_M}")
    a(f"  s_lshl_b32 s{S_M}, s{S_M}, 8")
    a(f"  s_or_b32 s{S_M}, s{S_M}, s{S_NEW}")
W1 = list(range(8, 15)) if OPT['e1'] else list(range(7))
W2 = ([15] if OPT['e1'] else list(range(7, 16))) if OPT['r2'] else []
S_SBM, S_SBO = S_FOFF, S_ROT7
if OPT['sib']:
    a(f"  s_xor_b32 s{S_T}, s{S_G}, 1")
    a(f"  s_lshl_b32 s{S_SBO}, s{S_T}, 16")
    a(f"  s_add_u32 s{S_SBO}, s{S_SBO}, s{S_FB}")
    a(f"  s_lshl_b32 s{S_T}, 0x101, s{S_T}")
    a(f"  s_cmp_eq_u32 s{S_SIB}, 99")
    a(f"  s_cselect_b32 s{S_SBM}, 0, s{S_T}")
    a(f"  s_andn2_b32 s{S_NEW}, s{S_NEW}, s{S_SBM}")
    for k in range(8): a(f"  v_mov_b32 v{OWNQ+8+k}, 0")
a(f"  s_and_b32 s{S_NEW}, s{S_NEW}, {sum(1 << b_ for b_ in W1 + W2):#x}")
a(f"  s_or_b32 s{S_DONE}, s{S_DONE}, s{S_NEW}")
fl = []
for s_ in W1:
    r_ = redirect(s_); fl += [r_[:2], r_[2:]]
def silu(acc):
    L = [f"  v_mul_f32 v{acc+e}, v{acc+e}, v{V_RSO}" for e in range(8)]
    def rp(r): return [f"  v_cvt_pk_bf16_f32 v{T+(r&2)//2}, v{r}, v{r+1}", f"  v_lshlrev_b32 v{r}, 16, v{T+(r&2)//2}", f"  v_and_b32 v{r+1}, 0xffff0000, v{T+(r&2)//2}"]
    for j in range(4): L += rp(acc+2*j)
    L += [f"  v_mul_f32 v{T+4+e}, 0xbfb8aa3b, v{acc+e}" for e in range(8)]
    L += [f"  v_exp_f32 v{T+4+e}, v{T+4+e}" for e in range(8)]
    L += [f"  v_add_f32 v{T+4+e}, 1.0, v{T+4+e}" for e in range(8)]
    L += [f"  v_rcp_f32 v{T+4+e}, v{T+4+e}" for e in range(8)]
    L += [f"  v_mul_f32 v{acc+e}, v{acc+e}, v{T+4+e}" for e in range(8)]
    for j in range(4): L += rp(acc+2*j)
    return L
s0 = silu(GA)
for g, l in enumerate(msum(GL, GA) + msum(GL + 32, GA + 8)):
    a(l)
    if g < len(fl):
        for x in fl[g]: a(x)
    if g >= 23:
        a(s0.pop(0)); a(s0.pop(0))
for b_ in W2:
    for l in redirect(b_): a(l)
    for _ in range(5):
        if s0: a(s0.pop(0))
s1 = silu(GA + 8)
if OPT['sv'] >= 1:
    for l in s0: a(l)
    s0 = []
if OPT['sv'] >= 2:
    for l in s1: a(l)
    s1 = []
stamp(5)
a(f"  s_waitcnt vmcnt({8 + len(W2)})")
a("  s_barrier")
a(SIG2)
stamp(5)
def fround(first=False):
    if not first:
        if OPT['pslp']: a(f"  s_sleep {OPT['pslp']}")
        a(POLL)
        a("  s_waitcnt vmcnt(0)")
        getmask(S_M)
        a("  s_nop 3")
    a(f"  s_call_b64 s[{S_RET}:{S_RET+1}], L_round")
fround(True)
if OPT['xl']:
    for l in XLD: a(l)
XU = 72
def SAr(i): return 8*i
pre_ = []
for i in range(2):
    pre_ += [mf(SAr(i) + 4*h, SEL + 2 - 2*h, OWNQ + 4*i, None) for h in range(2)]
    pre_ += [f"  v_permlane16_swap_b32 v{XL+4*i}, v{XL+4*i+2}", f"  v_permlane16_swap_b32 v{XL+4*i+1}, v{XL+4*i+3}"]
    for j in range(4):
        xr = XL + 4*i + j
        pre_ += [f"  v_lshlrev_b32 v{XU+8*i+2*j}, 16, v{xr}", f"  v_and_b32 v{XU+8*i+2*j+1}, 0xffff0000, v{xr}"]
a("  s_waitcnt lgkmcnt(0)")
emit_sched(s0 + s1 + pre_, 'silu')
stamp(5)
a(f"  s_mov_b32 s{SRD_D}, s{P_OUT}")
a(f"  s_mov_b32 s{SRD_D+1}, s{P_OUT+1}")
a(f"  s_mov_b32 s{SRD_D+2}, {2048*512*2}")
a(f"  s_mov_b32 s{S_CNT}, {OPT['spin']}")
def ost4(i): return f"  buffer_store_dwordx4 v[{XL+4*i}:{XL+4*i+3}], v{V_XO}, s[{SRD_D}:{SRD_D+3}], s{S_HSW if i else S_XO} offen"
def fin_m(i):
    SA = SAr(i)
    return [mf(SA + 4*h, SEL + 2 - 2*h, SL + i*32 + 4*s_, SA + 4*h, 'v', 'v', 'a') for h in range(2) for s_ in range(8)]
def fin_v(i):
    SA = SAr(i); L = []
    for h in range(2):
        t = T + 4*i + 2*h
        rp = lambda r, t_: [f"  v_cvt_pk_bf16_f32 v{t_}, v{r}, v{r+1}", f"  v_lshlrev_b32 v{r}, 16, v{t_}", f"  v_and_b32 v{r+1}, 0xffff0000, v{t_}"]
        if OPT['ffma']:
            L += [f"  v_fma_f32 v{SA+4*h+e}, v{SA+4*h+e}, v{GA+8*i+4*h+e}, v{XU+8*i+4*h+e}" for e in range(4)]
        else:
            for j in range(2): L += rp(SA+4*h+2*j, t+j)
            L += [f"  v_mul_f32 v{SA+4*h+e}, v{SA+4*h+e}, v{GA+8*i+4*h+e}" for e in range(4)]
            for j in range(2): L += rp(SA+4*h+2*j, t+j)
            L += [f"  v_add_f32 v{SA+4*h+e}, v{SA+4*h+e}, v{XU+8*i+4*h+e}" for e in range(4)]
        L += [f"  v_cvt_pk_bf16_f32 v{XL+4*i+2*h+j}, v{SA+4*h+2*j}, v{SA+4*h+2*j+1}" for j in range(2)]
    L += [f"  v_permlane16_swap_b32 v{XL+4*i}, v{XL+4*i+2}", f"  v_permlane16_swap_b32 v{XL+4*i+1}, v{XL+4*i+3}"]
    return L
for i in range(2):
    a.label(f"L_sp{i}")
    a(f"  s_cmp_eq_u32 s{S_DONE}, 0xffff")
    a(f"  s_cbranch_scc1 {'L_both' if i == 0 else 'L_sp1_done'}")
    a(f"  s_bfe_u32 s{S_T+3}, s{S_DONE}, {(8 << 16) | (8*i)}")
    fround()
    if i == 0:
        a(f"  s_cmp_eq_u32 s{S_T+3}, 0xff")
        a(f"  s_cbranch_scc1 L_sp{i}_done")
    a(f"  s_sub_u32 s{S_CNT}, s{S_CNT}, 1")
    a(f"  s_cbranch_scc0 L_sp{i}")
    a(f"  s_mov_b32 s{S_CNT}, 0")
    if OPT['pad']:
        a(f"  s_branch L_sp{i}_done")
        a.label(f"L_st{i}"); a(f"  s_branch {'L_st1' if i == 0 else 'L_padB'}")
    a.label(f"L_sp{i}_done")
    if i == 0: emit_sched(fin_m(0) + fin_v(0), 'fin0')
    else:
        a("  s_waitcnt vmcnt(0)")
        emit_sched([ost4(0)] + fin_m(1) + fin_v(1) + [ost4(1)], 'fin1')
a("  s_branch L_fin")
ib = len(a.lines)
if OPT['pad']:
    a.label("L_padB"); a("  s_branch L_padR")
a.label("L_both")
a("  s_waitcnt vmcnt(0)")
emit_sched(fin_m(0) + fin_m(1) + fin_v(0) + [ost4(0)] + fin_v(1) + [ost4(1)], 'both')
a.label("L_fin")
stamp(); stamp(5)
if OPT['stamps']:
    a("  s_waitcnt vmcnt(0)")
    stamp(0)
    a(f"  s_memrealtime s[{S_T}:{S_T+1}]")
    a("  s_waitcnt lgkmcnt(0)")
    n = nstamp[0]
    for i in range(n):
        a(f"  v_writelane_b32 v0, s{S_STAMP+2*i}, {i}")
    a(f"  v_writelane_b32 v0, s{S_T}, 15")
    a(f"  v_writelane_b32 v0, s74, 14")
    a(f"  v_writelane_b32 v0, s38, 12")
    a(f"  v_writelane_b32 v0, s39, 13")
    a(f"  s_lshl_b32 s{S_T}, s2, 2")
    a(f"  s_add_u32 s{S_T}, s{S_T}, s{S_W}")
    a(f"  s_lshl_b32 s{S_T}, s{S_T}, 6")
    a(f"  s_add_u32 s{S_T}, s{S_T}, {STAMP_OFF}")
    a(f"  v_lshlrev_b32 v1, 2, v{V_LANE}")
    a(f"  v_cmp_gt_u32 vcc, 16, v{V_LANE}")
    a(f"  s_and_saveexec_b64 s[{S_T+2}:{S_T+3}], vcc")
    a(f"  buffer_store_dword v0, v1, s[{SRD_WS}:{SRD_WS+3}], s{S_T} offen")
a.label("L_end")
a("  s_endpgm")
segs.append(('tail', 'tailjoin', (il, itail, it, len(a.lines))))
ir = len(a.lines)
if OPT['pad']:
    a.label("L_padR"); a("  s_mov_b64 exec, -1"); a("  s_branch L_walk_ret")
a.label("L_round")
a(f"  s_andn2_b32 s{S_NEW}, s{S_M}, s{S_DONE}")
a(f"  s_or_b32 s{S_DONE}, s{S_DONE}, s{S_M}")
if OPT['sib']:
    a(f"  s_and_b32 s{S_T}, s{S_NEW}, s{S_SBM}")
    a("  s_cbranch_scc0 L_rsib")
    a(f"  s_or_b32 s{S_DONE}, s{S_DONE}, s{S_SBM}")
    a(f"  s_andn2_b32 s{S_NEW}, s{S_NEW}, s{S_SBM}")
    for i in range(2):
        a(f"  s_add_u32 s{S_T}, s{S_SBO}, {PART_KIND + i*8192}")
        a(f"  buffer_load_dwordx4 v[{OWNQ+8+4*i}:{OWNQ+11+4*i}], v{V_L16}, s[{SRD_WS}:{SRD_WS+3}], s{S_T} offen{['', ' nt', ' sc0'][OPT['sib']-1]}")
    a.label("L_rsib")
for h in range(4):
    a(f"  s_and_b32 s{S_T}, s{S_NEW}, {0xf << (4*h)}")
    a(f"  s_cbranch_scc0 L_rs{h}")
    for b_ in range(4*h, 4*h+4):
        pl = part_load(1, b_ >> 3, b_ & 7, SL + b_*4, 'a')
        a(pl[0])
        a(f"  s_bitcmp1_b32 s{S_NEW}, {b_}")
        a(f"  s_cselect_b64 exec, -1, 0")
        a(pl[1])
    a("  s_mov_b64 exec, -1")
    a.label(f"L_rs{h}")
a(f"  s_setpc_b64 s[{S_RET}:{S_RET+1}]")
_i = len(a.lines)
a.lines.extend(W3_CODE)
segs.append(('w3', _i, len(a.lines)))
if OPT['pad']:
    a.label("L_walk"); a("  s_mov_b64 exec, 0"); a("  s_branch L_padL")
_i = len(a.lines)
a.lines.extend(EVEN_CODE)
if EVEN_CODE: segs.append(('even', _i, len(a.lines)))
a("; ---- fallback: true row max over all keys, then repeat the attention")
a.label("L_redo")
a("  s_waitcnt lgkmcnt(0)")
a(f"  s_mov_b32 s{S_REDO}, 1")
a(f"  s_mov_b32 s{S_KOFF}, s{S_KV0}")
a(f"  s_mov_b32 s{S_LOOP}, 32")
a(f"  v_mov_b32 v{V_T0}, 0xff800000")
for qt in range(4): a(f"  v_mov_b32 v{V_NEGM+qt*4}, v{V_T0}")
a.label("L_redo_loop")
a("  s_waitcnt vmcnt(0) lgkmcnt(0)")
a("  s_barrier")
k_tile_dma(0)
a("  s_waitcnt vmcnt(0)")
a("  s_barrier")
for u in range(2):
    for i in range(8): a(k_read(u, i >> 2, i & 3))
    a("  s_waitcnt lgkmcnt(0)")
    for l in qk_mfmas(0, zero=True): a(l)
    a("  s_nop 7")
    for qt in range(4):
        m = V_NEGM + qt*4
        for kt in range(2):
            x = s_reg(0, kt, qt)
            a(f"  v_max3_f32 v{m}, v{x}, v{x+1}, v{m}")
            a(f"  v_max3_f32 v{m}, v{x+2}, v{x+3}, v{m}")
a(f"  s_sub_u32 s{S_LOOP}, s{S_LOOP}, 1")
a(f"  s_cmp_lg_u32 s{S_LOOP}, 0")
a("  s_cbranch_scc1 L_redo_loop")
for qt in range(4):
    m = V_NEGM + qt*4
    xlane_reduce(m, 'v_max_f32', m+1)
    a(f"  v_xor_b32 v{m}, 0x80000000, v{m}")
    for k in range(1, 4): a(f"  v_mov_b32 v{m+k}, v{m}")
a("  s_barrier")
a(f"  s_mov_b32 s{S_KOFF}, s{S_KV0}")
a(f"  s_mov_b32 s{S_VOFF}, s{S_KV0}")
for t in range(4): k_tile_dma(t)
for t in range(2): v_tile_dma(t)
a(f"  s_mov_b32 s{S_POFF}, s{S_SV_POFF}")
a("  s_waitcnt vmcnt(0)")
a("  s_barrier")
zero_o()
for l in attn_init(): a(l)
emit_sched(KR01 + ["  s_barrier"] + qk_mfmas(0, order=QORD) + head_common(), 'redo head')
a(f"  s_mov_b32 s{S_LOOP}, 7")
a("  s_branch L_p2")
segs.append(('redo', ir, len(a.lines)))
a(f".p2align {OPT['gal']}")
ig = len(a.lines)
for pos in range(12):
    a.label(f"L_gemm{pos}")
    gemm_step(pos, False, pos in CKPT)
    if pos not in CKPT: continue
    if pos < 11: a("  s_cbranch_scc1 L_gemm_ret")
    else: a("  s_cbranch_scc0 L_gemm0")
a.label("L_gemm_ret")
a(f"  s_setpc_b64 s[{S_RET}:{S_RET+1}]")
segs.append(('gemm2', ig, len(a.lines)))
a.label("L_code_end")

a('.section .rodata,"a"')
a(".p2align 6")
a(kernel_desc(NAME + "_kernel", 512, 102, 256))

errs = []
for s in segs:
    if s[1] == 'tailjoin':
        il_, itail_, it_, end_ = s[2]
        errs += hazard.check(a.lines[il_:itail_] + a.lines[it_:end_], 'tail')
    elif s[0].endswith('2'):
        errs += hazard.check(a.lines[s[1]:s[2]] * 2, s[0])
    else:
        errs += hazard.check(a.lines[s[1]:s[2]], s[0])
for e in errs[:40]: print("HAZ", e)
if OPT['pad']:
    import subprocess
    tmp = a.text().replace("s_branch L_pad0", "s_branch L_padB")
    r_ = subprocess.run(["llvm-mc", "-triple=amdgcn-amd-amdhsa", "-mcpu=gfx950", "--show-encoding"], input=tmp, capture_output=True, text=True)
    assert r_.returncode == 0, r_.stderr[:500]
    sizes = [len(m.split(',')) for m in _re.findall(r'encoding: \[([^\]]*)\]', r_.stdout)]
    out = []; addr = None; k = 0; npad = 0; active = False; want = None; prev_m = False
    for l in a.lines:
        t = l.split(';')[0].strip()
        if t == NAME + "_kernel:": addr = 0x300
        if t in ("L_walk_ret:", "L_tail:"): active = True
        if t == "L_padL:": want = None
        if t == "L_sp0:" or (t == "L_loop:" and OPT['pad'] < 2): active = False; want = None
        if t == "L_p2:" and OPT['pad'] >= 2: want = addr
        isins = bool(t) and not t.endswith(':') and not t.startswith('.')
        if addr is not None and t.startswith('.p2align'):
            al = 1 << int(t.split()[1]); addr = (addr + al - 1) // al * al
        if isins and addr is not None:
            if want is not None and addr >= want and (prev_m or addr - want >= 40):
                out.append(f"L_pad{npad}:"); out.append(f"  s_cbranch_execz L_pad{npad+1}"); npad += 1; addr += 4; want = None
                if not prev_m or 'accvgpr' in t:
                    out.append("  s_nop 0"); addr += 4
            nxt = addr + sizes[k]
            if active and (nxt >> 12) != (addr >> 12): want = (nxt >> 12) << 12
            addr = nxt; prev_m = t.startswith('v_mfma')
        if isins: k += 1
        out.append(l)
    assert k == len(sizes), (k, len(sizes))
    a.lines = [l.replace(f"L_pad{npad}", "L_st0") if l.endswith(f" L_pad{npad}") else l for l in out]
    print("  pads:", npad)
open(sys.argv[1], 'w').write(a.text())
print("written", sys.argv[1], len(a.lines), "lines;", len(errs), "hazard msgs")
```

```python
import sys, math
from asmlib import *
import hazard
from sched import schedule

NAME = "recurrent_scan__gqa_block_cached__dense_activation_relu__prompt"
OPT = dict(stamps=0, mimic_d=1, nsum=2, force_redo=0, pf=0, ng=2, rot=1, late=4, tlb=0, spin=200000, dot=1, xnobar=0, xnodma=0, xnost=0, noredo=0, pol=0, cpos=0, n1=8, w1pf=0, slp=0, xk=0, xv=0, xe=0, xa=0, xs=16, snake=1, nov=6, flip=0, early=0, ilv=0, stf=0, mbl=1, e64=0, xl=0, cp2=1, cp3=0, hsw=0, hx=1, o4=1, klate=1, rt=0, trk=0, e1=0, r2=0, own=1, pt=0, sib=0, xsz=1, lnd=0, pre=0, sl=0, rm=15, one1=0, hfill=1, m16=0, of=0, hst=0, hgap=64, ffma=1, sv=0, lay=1, skew=0, fst=0, pslp=0, w3=4, w2sw=0, stg=0, alt=0, kvr=0, ck=1, xvol=0, ln2=0, spA=0, spB=0, af=1, ochk=1, ool=1, al=1, fx=0, dp=2, pref=0, gd=0, tal=0, lal=12, gal=12, pad=2, gst=1, pair=1, qsw=0, bsh=0)
for x in sys.argv[2:]:
    k, v = x.split('='); OPT[k] = int(v)

POL = {0: '', 1: ' nt', 2: ' sc1', 3: ' sc0', 4: ' sc0 sc1', 5: ' sc1 nt'}[OPT['pol']]
a = Asm()
segs = []

S_W, S_G, S_R = 4, 5, 6
S_RET = 8
S_CNT, S_CSLOT, S_PSLOT, S_POFF, S_STA, S_STB = 10, 11, 12, 13, 14, 15
P_X, P_K, P_V, P_WQ, P_WO, P_W1, P_W2, P_WS, P_DBG, P_OUT = 16, 18, 20, 22, 24, 28, 30, 36, 34, 32
S_PLO, S_PHI = 38, 39
S_BOFF, S_BEND, S_FOFF, S_PLEN, S_ROT16, S_ROT7, S_ODD = 3, 7, 26, 27, 100, 101, 15
SRD_W, SRD_K, SRD_V, SRD_WS, SRD_X = 40, 44, 48, 52, 56
S_KOFF, S_VOFF, S_LOOP, S_KM0, S_VM0, S_PBASE, S_REDO = 60, 61, 62, 63, 64, 65, 66
S_SV_POFF, S_KV0 = 68, 69
S_SP = 94
S_OWN = 68
S_SIB = 15
S_EV, S_EI = 26, 101
S_HSW = 67
S_T = 70
S_STAMP = 76

V_ACC, V_A, V_B = 0, 64, 96
V_S, V_P, V_NEGM, V_L, V_LS, V_ONES = 0, 64, 96, 112, 116, 124
V_H = 176
V_PROW, V_PSWZ, V_BA, V_LANE, V_L16, V_T0, V_T1 = 208, 209, 210, 212, 213, 214, 215
V_KA, V_VA, V_KD, V_VD, V_PD, V_AA = 216, 220, 228, 232, 236, 240
A_O, A_Q, A_K, A_V = 0, 128, 192, 224
RB = 65536
LAY = OPT['lay']
HSTR = (8 << 20) if LAY else 8192
WGSH = 15 if LAY else 16
NS = 6
PART_KIND = 16 << 20
STAMP_OFF = 48 << 20
MBOX = 40 << 20
SRD_D = 96
S_FB, S_XO = 11, 12
V_XO = 211
PBUF = [[64, 68, 72, 76], [80, 84, 88, 92], [192, 196, 200, 204], [208, 244, 248, 252]]
V_POLL = 234
V_RSO, V_RS = 235, 160
import struct
CSH = struct.unpack('<I', struct.pack('<f', (128 ** -0.5) * math.log2(math.e)))[0]
V_ONE_LO, V_ONE_HI, V_ZERO = 232, 233, 209

nstamp = [0]
def stamp(lvl=1):
    if OPT['stamps'] == lvl or (OPT['stamps'] and lvl == 0):
        i = nstamp[0]
        if i >= 9: return
        nstamp[0] += 1
        a(f"  s_mem{'real' if OPT['rt'] else ''}time s[{S_STAMP+2*i}:{S_STAMP+2*i+1}]")

def align8():
    if OPT['al'] == 1: a(".p2align 3")
    if OPT['al'] == 2:
        a(".p2align 3"); a("  s_nop 0")
def capture(fn):
    i = len(a.lines); fn(); L = a.lines[i:]; del a.lines[i:]
    return [l for l in L if l.strip() and not l.strip().startswith('s_nop') and not l.strip().startswith(';') and not l.strip().startswith('.')]
import re as _re
def isize(l):
    t = l.split(';')[0].strip(); op = t.split()[0]
    if op.startswith(('v_mfma', 'ds_', 'buffer_', 'v_cvt_pk', 'v_accvgpr_read', 'v_accvgpr_write', 'v_max3', 'v_fma_', 'v_lshl_add', 'v_pk_', 'v_mad', 'v_bfe', 'v_and_or', 'v_or3', 's_mem')): return 8
    if op.endswith(('_e64', '_dpp')): return 8
    if op.startswith('v_cmp') and not t.split()[1].startswith('vcc'): return 8
    if op in ('s_nop', 's_waitcnt', 's_barrier'): return 4
    for tok in _re.split(r'[,\s]+', t)[1:]:
        if _re.fullmatch(r'-?(0x[0-9a-f]+|\d+)', tok):
            v = int(tok, 0)
            if v < -16 or v > 64: return 8
    return 4
PROMO = ('v_exp_f32', 'v_add_f32', 'v_mul_f32', 'v_mov_b32', 'v_max_f32', 'v_sub_f32', 'v_rcp_f32', 'v_lshlrev_b32', 'v_and_b32', 'v_add_u32')
def fix_align(L):
    L = list(L); ph = 0
    for i, l in enumerate(L):
        sz = isize(l)
        if sz == 8 and ph == 4 and i and L[i-1].split()[0] in PROMO and isize(L[i-1]) == 4:
            op = L[i-1].split()[0]
            L[i-1] = L[i-1].replace(op, op + '_e64', 1); ph = 0
        ph = (ph + sz) % 8
    return L
def emit_sched(prog, name, **kw):
    out, t = schedule(prog, **kw)
    if OPT['fx'] & {'head': 1, 'tail': 2}.get(name, 4):
        a(".p2align 3"); out = fix_align(out)
    for l in out: a(l)
    print(f"  sched {name}: {len(out)} instrs, est {t} cycles")
def mf(d, A, B, C, dt='v', at='v', bt='v'):
    c = '0' if C is None else f"{dt}[{C}:{C+3}]"
    return f"  v_mfma_f32_16x16x32_bf16 {dt}[{d}:{d+3}], {at}[{A}:{A+3}], {bt}[{B}:{B+3}], {c}"

def prod_m0(pos):
    return [f"  s_add_u32 m0, s{S_VM0}, {pos*16384}"]
def prod_dma(n):
    return f"  buffer_load_dwordx4 v{V_PD+n}, s[{SRD_W}:{SRD_W+3}], s{S_POFF} offen offset:{n*1024}{POL} lds"
def prod_adv():
    return [f"  s_add_u32 s{S_POFF}, s{S_POFF}, s{S_STA}",
            f"  s_cmp_eq_u32 s{S_POFF}, s{S_PLEN}",
            f"  s_cselect_b32 s{S_POFF}, 0, s{S_POFF}"]
def produce_list(pos):
    return prod_m0(pos) + prod_adv() + [prod_dma(n) for n in range(4)]
def produce_slot(pos):
    for l in produce_list(pos): a(l)

def set_stream(kind, half=0):
    if kind == 'null':
        a(f"  s_mov_b32 s{SRD_W+2}, 0"); return
    if half == 1:
        for n in range(4): a(f"  v_xor_b32 v{V_PD+n}, 128, v{V_PD+n}")
        return
    ptr, size, stride = dict(w1=(P_W1, 512*1792*2, 3584), wq=(P_WQ, 512*4096*2, 8192), w2=(P_W2, 1792*512*2, 1024),
                             wo=(P_WO, 4096*512*2, 1024), v=(P_V, 8*2048*128*2, 0))[kind]
    a(f"  s_mov_b32 s{SRD_W}, s{ptr}")
    a(f"  s_mov_b32 s{SRD_W+1}, s{ptr+1}")
    a(f"  s_mov_b32 s{SRD_W+2}, {size}")
    a(f"  s_mov_b32 s{S_T}, {stride}")
    a(f"  v_mad_u32_u24 v{V_PD}, v{V_PROW}, s{S_T}, v{V_PSWZ}")
    src, gsft, wsft = dict(w1=(S_FOFF, 1, 7), wq=(S_G, 10, 8), w2=(S_FOFF, 10, 8), wo=(S_G, 19, 8))[kind]
    a(f"  s_lshl_b32 s{S_T}, s{src}, {gsft}")
    a(f"  s_lshl_b32 s{S_T+1}, s{S_W}, {wsft}")
    a(f"  s_add_u32 s{S_T}, s{S_T}, s{S_T+1}")
    if kind != 'w1': a(f"  s_add_u32 s{S_T}, s{S_T}, s{S_HSW}")
    if kind == 'wq' and OPT['qsw']:
        a(f"  s_lshl_b32 s{S_T+1}, s{S_ODD}, 7")
        a(f"  s_add_u32 s{S_T}, s{S_T}, s{S_T+1}")
    if kind == 'w2' and OPT['w2sw']:
        a(f"  s_and_b32 s{S_T+1}, s{S_R}, 1")
        a(f"  s_lshl_b32 s{S_T+1}, s{S_T+1}, 7")
        a(f"  s_add_u32 s{S_T}, s{S_T}, s{S_T+1}")
    a(f"  v_add_u32 v{V_PD}, s{S_T}, v{V_PD}")
    for n in range(1, 4): a(f"  v_add_u32 v{V_PD+n}, {n*(8*stride-1024)}, v{V_PD}")
    a(f"  s_mov_b32 s{S_STA}, {32*stride}")
    if kind == 'w1':
        a(f"  s_lshl_b32 s{S_T}, s{S_ODD}, 2")
        a(f"  s_or_b32 s{S_T}, s{S_T}, s{S_W}")
        a(f"  s_cmp_eq_u32 s{S_T}, 7")
        a(f"  s_cselect_b32 s{SRD_W+2}, 0, s{SRD_W+2}")
    if kind == 'w2':
        a(f"  s_lshl_b32 s{S_T}, s{S_ODD}, 16")
        a(f"  s_sub_u32 s{S_PLEN}, {8*32*stride}, s{S_T}")
    else: a(f"  s_mov_b32 s{S_PLEN}, {16*32*stride}")
    a(f"  s_mul_i32 s{S_POFF}, s{S_ROT7 if kind == 'w2' else S_ROT16}, {32*stride}")
    a(f"  s_sub_u32 s{S_POFF}, s{S_POFF}, s{S_STA}")

def b_adv():
    return [f"  s_add_u32 s{S_BOFF}, s{S_BOFF}, 4096",
            f"  s_cmp_eq_u32 s{S_BOFF}, s{S_BEND}",
            f"  s_cselect_b32 s{S_BOFF}, 0, s{S_BOFF}",
            f"  v_add_u32 v{V_BA}, s{S_BOFF}, v{V_L16}"]
def rpos(i): return (2 + i) % NS
def fA(k): return ('v', V_A + 16*k) if k < 2 else ('a', A_K + 16*(k-2))
def fB(k): return ('v', V_B + 16*k) if k < 2 else ('a', A_V + 16*(k-2))
def a_read(i, nt, rd):
    t, b = fA(i & 3); d = b + nt*4 + rd*2; slot = rpos(i)
    return f"  ds_read_b64_tr_b16 {t}[{d}:{d+1}], v{V_AA+nt+4*(slot//3)} offset:{(slot%3)*16384+rd*2048}"
def b_read(i, qt):
    t, b = fB(i & 3); d = b + qt*4
    return f"  ds_read_b128 {t}[{d}:{d+3}], v{V_BA} offset:{qt*1024}"

def gemm_step(i, first=False, loop=None, vm=None, vmw=16, noread=False, fillv=None, xvm=None):
    if OPT['gd'] and loop is not None and vm is None and not first:
        a(f"  s_waitcnt lgkmcnt(4)")
        rd_ = [b_read(i+2, qt) for qt in range(4)] + [a_read(i+2, nt, rd) for nt in range(4) for rd in range(2)]
        mem = []; ex = [[] for _ in range(16)]
        for g in range(16): mem.append(prod_dma(g >> 2) if g % 4 == 3 else rd_.pop(0))
        pa = prod_adv(); ba = b_adv()
        ex[0] += [pa[0]]; ex[1] += pa[1:]; ex[2] += prod_m0(rpos(i+1)) + ["  s_waitcnt lgkmcnt(3)"]
        ex[4] += [f"  s_waitcnt vmcnt({vmw+1})"]
        ex[5] += [ba[0]]; ex[6] += [ba[1]]; ex[8] += [ba[2]]; ex[9] += [ba[3]]
        if loop: ex[13].append(f"  s_sub_u32 s{S_CNT}, s{S_CNT}, 1")
        g = 0; s0 = i & 2
        for nt in (2*(i & 1), 2*(i & 1) + 1):
            for q_ in range(4):
                qt = 3 - q_ if nt & 1 else q_
                acc = V_ACC + (nt*4+qt)*4
                for u_ in range(2):
                    u = u_ ^ (q_ & 1)
                    (ta, ba_), (tb, bb) = fA(s0+u), fB(s0+u)
                    a(mf(acc, ba_+nt*4, bb+qt*4, acc, 'v', ta, tb))
                    a(mem[g])
                    for l in ex[g]: a(l)
                    g += 1
        return
    a(f"  s_waitcnt vmcnt({vmw}) lgkmcnt(0)")
    mem = [b_read(i+2, qt) for qt in range(4)] + [a_read(i+2, nt, rd) for nt in range(4) for rd in range(2)] + [prod_dma(n) for n in range(4)]
    ex = [[] for _ in range(16)]
    ba = b_adv(); pa = prod_adv()
    for k in range(4): ex[k].append(ba[k])
    if vm is None:
        for k in range(3): ex[4+k].append(pa[k])
        ex[7] += prod_m0(rpos(i+1))
    else:
        for k in range(4):
            mem[12+k] = vm[k][-1] if k < len(vm) else ""
            if k < len(vm): ex[11+k-(1 if k == 0 else 0)] += vm[k][:-1]
    if noread:
        for k in range(12): mem[k] = ""
        for k in range(4): ex[k] = []
    if xvm:
        for g_, l in xvm: ex[g_].append(l)
    if fillv:
        for k, l in enumerate(fillv): ex[k].append(l)
    if loop: ex[11].append(f"  s_sub_u32 s{S_CNT}, s{S_CNT}, 1")
    g = 0; s0 = i & 2
    for nt in (2*(i & 1), 2*(i & 1) + 1):
        for q_ in range(4):
            qt = 3 - q_ if nt & 1 else q_
            acc = V_ACC + (nt*4+qt)*4
            for u_ in range(2):
                u = u_ ^ (q_ & 1)
                (ta, ba_), (tb, bb) = fA(s0+u), fB(s0+u)
                a(mf(acc, ba_+nt*4, bb+qt*4, None if (first and u_ == 0) else acc, 'v', ta, tb))
                a(mem[g])
                for l in ex[g]: a(l)
                g += 1

gpos = [0]
CKPT = {8, 3, 0, 7, 4, 10, 11} if OPT['ck'] else set(range(12))
def gemm_call(n):
    assert (gpos[0] + n - 1) % 12 in CKPT, (gpos[0], n)
    nck = sum(1 for k in range(n) if (gpos[0] + k) % 12 in CKPT)
    a(f"  s_mov_b32 s{S_CNT}, {nck-1}")
    a(f"  s_call_b64 s[{S_RET}:{S_RET+1}], L_gemm{gpos[0] % 12}")
    gpos[0] += n
def gemm_inl(**kw):
    gemm_step(gpos[0] % 12, **kw); gpos[0] += 1
def gemm_first():
    gemm_inl(first=True); gemm_inl(first=True)
def b_reload(ffn2, wait=True):
    if wait: a("  s_waitcnt lgkmcnt(0)")
    a(f"  s_lshl_b32 s{S_BOFF}, s{S_ROT7 if ffn2 else S_ROT16}, 12")
    if ffn2: a(f"  s_lshr_b32 s{S_BEND}, s{S_PLEN}, 3")
    else: a(f"  s_mov_b32 s{S_BEND}, {16*4096}")
    a(f"  v_add_u32 v{V_BA}, s{S_BOFF}, v{V_L16}")
    for k in range(2):
        for qt in range(4): a(b_read(gpos[0] + k, qt))
        for l in b_adv(): a(l)
def a_first():
    for k in range(2):
        for nt in range(4):
            for rd in range(2): a(a_read(gpos[0] + k, nt, rd))

def store_partial(kind, half, dst=None, defer=False, sreg=S_T):
    a("  s_nop 5")
    a(f"  s_add_u32 s{sreg}, s{S_PBASE}, {kind*PART_KIND + half*HSTR}")
    a(f"  s_add_u32 s{sreg+1}, s{sreg}, 4096")
    if kind == 1 and OPT['own']:
        for c in range(2):
            a(f"  s_cmp_eq_u32 s{S_OWN}, {c}")
            a(f"  s_cselect_b32 s{sreg+c}, 0x40000000, s{sreg+c}")
            if OPT['sib']:
                a(f"  s_cmp_eq_u32 s{S_SIB}, {c}")
                a(f"  s_cselect_b32 s{sreg+c}, 0x40000000, s{sreg+c}")
    if kind == 1 and OPT['xvol'] & 1: a(f"  s_mov_b32 s{sreg+1}, 0x40000000")
    if kind == 1 and OPT['xvol'] & 4:
        a(f"  s_mov_b32 s{sreg+1}, 0x40000000"); a(f"  s_mov_b32 s{sreg}, 0x40000000")
    st = []
    align8()
    for c in range(2):
        for qt in range(4):
            x = V_ACC + ((2*c)*4+qt)*4; y = V_ACC + ((2*c+1)*4+qt)*4
            d = x if dst is None else (dst[c*4+qt] if isinstance(dst, list) else dst + (c*4+qt)*4)
            a(f"  v_cvt_pk_bf16_f32 v{d}, v{x}, v{x+1}")
            a(f"  v_cvt_pk_bf16_f32 v{d+1}, v{x+2}, v{x+3}")
            a(f"  v_cvt_pk_bf16_f32 v{d+2}, v{y}, v{y+1}")
            a(f"  v_cvt_pk_bf16_f32 v{d+3}, v{y+2}, v{y+3}")
            l = f"  buffer_store_dwordx4 v[{d}:{d+3}], v{V_L16}, s[{SRD_WS}:{SRD_WS+3}], s{sreg+c} offen offset:{qt*1024} {['sc1', 'sc0 sc1', 'sc1 nt'][OPT['stf']]}"
            if defer: st.append(l)
            else: a(l)
    if not defer: a("  s_nop 1")
    return st

def spin(label, srd, voff, soff, target):
    a(f"  s_mov_b32 s{S_T+1}, {OPT['spin']}")
    a.label(label)
    a(f"  buffer_load_dword v{V_POLL}, v{voff}, s[{srd}:{srd+3}], {soff} offen sc1")
    a("  s_waitcnt vmcnt(0)")
    a(f"  v_readfirstlane_b32 s{S_T}, v{V_POLL}")
    a(f"  s_sub_u32 s{S_T+1}, s{S_T+1}, 1")
    a(f"  s_cbranch_scc1 {label}_done")
    a(f"  s_cmp_lt_u32 s{S_T}, {target}")
    a(f"  s_cbranch_scc1 {label}")
    a.label(label + "_done")

def part_load(kind, i, src, d, t='v'):
    return [f"  s_add_u32 s{S_T+2}, s{S_FB}, {kind*PART_KIND + (src << WGSH) + i*HSTR}",
            f"  buffer_load_dwordx4 {t}[{d}:{d+3}], v{V_L16}, s[{SRD_WS}:{SRD_WS+3}], s{S_T+2} offen sc1"]
def part_sum(base, acc, T, vm0=None):
    for s_ in range(8):
        if vm0 is not None and s_ % 2 == 0: a(f"  s_waitcnt vmcnt({vm0-s_-1})")
        d = base + s_*4
        for j in range(4):
            lo, hi = acc+2*j, acc+2*j+1
            if s_ == 0:
                a(f"  v_lshlrev_b32 v{lo}, 16, v{d+j}")
                a(f"  v_and_b32 v{hi}, 0xffff0000, v{d+j}")
            elif OPT['dot']:
                a(f"  v_dot2c_f32_bf16 v{lo}, v{d+j}, v{V_ONE_LO}")
                a(f"  v_dot2c_f32_bf16 v{hi}, v{d+j}, v{V_ONE_HI}")
            else:
                t = T + 2*(j & 1)
                a(f"  v_lshlrev_b32 v{t}, 16, v{d+j}")
                a(f"  v_and_b32 v{t+1}, 0xffff0000, v{d+j}")
                a(f"  v_pk_add_f32 v[{lo}:{hi}], v[{lo}:{hi}], v[{t}:{t+1}]")
    if OPT['dot']: a("  s_nop 2")
def rnd_pair(r, T):
    a(f"  v_cvt_pk_bf16_f32 v{T}, v{r}, v{r+1}")
    a(f"  v_lshlrev_b32 v{r}, 16, v{T}")
    a(f"  v_and_b32 v{r+1}, 0xffff0000, v{T}")

def kslot(t): return (t + 2) & 3
def k_read(unit, kt, ds, dst=A_K):
    off = kslot(unit >> 1)*16384 + (unit & 1)*8192 + kt*4096
    d = dst + (kt*4+ds)*4
    return f"  ds_read_b128 a[{d}:{d+3}], v{V_KA+ds} offset:{off}"
def v_read(unit, dt, rd, dst=A_V):
    off = ((unit >> 1) & 3)*16384 + (unit & 1)*8192 + rd*4096
    d = dst + dt*4 + rd*2
    return f"  ds_read_b64_tr_b16 a[{d}:{d+1}], v{V_VA+dt} offset:{off}"
def k_dma(n):
    return f"  buffer_load_dwordx4 v{V_KD+n}, s[{SRD_K}:{SRD_K+3}], s{S_KOFF} offen offset:{n*1024}{POL} lds"
def v_dma(n):
    return f"  buffer_load_dwordx4 v{V_VD+(n&1)}, s[{SRD_V}:{SRD_V+3}], s{S_VOFF} offen offset:{n*1024}{POL} lds"
def k_tile_dma(t):
    a(f"  s_add_u32 m0, s{S_KM0}, {kslot(t)*16384}")
    a(f"  s_nop 0")
    for n in range(4): a(k_dma(n))
    a(f"  s_add_u32 s{S_KOFF}, s{S_KOFF}, 16384")
    if OPT['kvr']: a(f"  s_and_b32 s{S_KOFF}, s{S_KOFF}, 0x7ffff")
def v_tile_dma(t):
    a(f"  s_add_u32 m0, s{S_VM0}, {(t&3)*16384}")
    a(f"  s_nop 0")
    for n in range(4): a(v_dma(n))
    a(f"  s_add_u32 s{S_VOFF}, s{S_VOFF}, 16384")

NSUM = OPT['nsum']
SUMQT = {0: [], 2: [2, 3], 4: [0, 1, 2, 3]}[NSUM]
TORDER = [(0,0),(0,2),(0,1),(0,3),(1,0),(1,2),(1,1),(1,3)]
def s_reg(b, kt, qt): return V_S + b*32 + (kt*4+qt)*4
def qk_mfmas(b, zero=False, order=None, src=A_K):
    L = []
    QKO = [(0,0),(0,1),(0,2),(0,3),(1,3),(1,2),(1,1),(1,0)] if OPT['snake'] else TORDER
    for ti, (kt, qt) in enumerate(order or QKO):
        d = s_reg(b, kt, qt)
        for i_ in range(4):
            ds = 3 - i_ if (OPT['snake'] and ti & 1) else i_
            C = d if i_ else (None if zero else V_NEGM + qt*4)
            L.append(mf(d, src+(kt*4+ds)*4, A_Q+(qt*4+ds)*4, C, 'v', 'a', 'a'))
    return L
def ls_reg(qt):
    return V_LS + (qt & 1)*4
def pv_half(T, h, src=A_V):
    L = []; k = 0
    for d_ in range(4):
        dt = 4*h + d_
        for qt in (range(3, -1, -1) if d_ % 2 == 0 else range(4)):
            d = A_O + (dt*4+qt)*4
            for u in ((0, 1) if k % 2 == 0 else (1, 0)):
                L.append(mf(d, src+(d_*2+u)*4, PBUF[(2*T+u) & 3][qt], d, 'a', 'a', 'v'))
            k += 1
    return L
def v_half(T, h, dst=A_V):
    L = []
    for f in range(8):
        dt = 4*h + (f >> 1); u = f & 1
        for rd in range(2):
            off = (T & 3)*16384 + u*8192 + rd*4096
            d = dst + f*4 + rd*2
            L.append(f"  ds_read_b64_tr_b16 a[{d}:{d+1}], v{V_VA+dt} offset:{off}")
    return L
def sum_pair(T, qt):
    L = [mf(ls_reg(qt), V_ONES, PBUF[(2*T+u) & 3][qt], ls_reg(qt)) for u in range(2)]
    if NSUM == 4: L += [mf(ls_reg(qt), V_L, PBUF[(2*T+u) & 3][qt-2], ls_reg(qt)) for u in range(2)]
    return L
def sm_ops(p, qt):
    L = []
    for kt in range(2):
        for r in range(4):
            s_ = s_reg(p & 1, kt, qt) + r
            L.append(f"  v_exp_f32 v{s_}, v{s_}")
            if qt not in SUMQT: L.append(f"  v_add_f32 v{V_L+qt}, v{V_L+qt}, v{s_}")
            if r & 1: L.append(f"  v_cvt_pk_bf16_f32 v{PBUF[p & 3][qt]+kt*2+(r>>1)}, v{s_-1}, v{s_}")
    return L

def period(p, last=False, extra=None, dma=None, endop=None):
    b = p & 1; T = p >> 1
    M = qk_mfmas(b ^ 1) + pv_half(T-1, b) + sum_pair(T-1, 3-b)
    ng = len(M)
    pre = [[] for _ in range(ng)]
    mem = [None]*ng
    cap = [0 if (g < 64 and g % 2 == 0) else 2 for g in range(ng)]
    exps = [(kt, qt, r) for kt, qt in TORDER for r in range(4)]
    for i, l in enumerate(v_half(T-1, b)):
        mem[2*i+1] = l; cap[2*i+1] = 1
    kpos, dpos = {0: ([0,1,2,4,5,6,8,9], [3,7,11,15]), 1: ([0,2,3,4,6,7,8,10], [1,5,9,13]), 2: ([0,1,3,4,5,7,8,9], [2,6,10,14]),
                  3: ([0,1,2,3,4,5,6,7], [8,10,12,14]), 4: ([0,2,4,6,8,9,10,11], [1,3,5,7]), 5: ([0,1,3,4,6,7,9,10], [2,5,8,11])}[OPT['dp']]
    if last:
        for i, l in enumerate(v_half(T-1, 1, A_K)):
            mem[33+2*i] = l; cap[33+2*i] = 1
    else:
        for i, j in enumerate(kpos):
            mem[33+2*j] = k_read(p+2, i >> 2, i & 3); cap[33+2*j] = 1
        for n, j in enumerate(dpos):
            mem[33+2*j] = k_dma(n) if b == 0 else v_dma(n); cap[33+2*j] = 0
        if dma is not None:
            for n, j in enumerate(dpos):
                mem[33+2*j] = dma[n][-1]; pre[32+2*j] += dma[n][:-1]
        elif b == 0:
            pre[32].append(f"  s_add_u32 m0, s{S_KM0}, {kslot(T)*16384}")
            if OPT['kvr']: pre[36].append(f"  s_and_b32 s{S_KOFF}, s{S_KOFF}, 0x7ffff")
            pre[ng-2].append(f"  s_add_u32 s{S_KOFF}, s{S_KOFF}, 16384")
        else:
            pre[32].append(f"  s_add_u32 m0, s{S_VM0}, {((T+2)&3)*16384}")
            if OPT['kvr']: pre[36].append(f"  s_and_b32 s{S_VOFF}, s{S_VOFF}, 0x7ffff")
            pre[ng-2].append(f"  s_add_u32 s{S_VOFF}, s{S_VOFF}, 16384")
    if extra:
        for k, l in enumerate(extra): pre[2*k] += l
    if endop: pre[ng-1].append(endop)
    pre[30].append("  s_waitcnt lgkmcnt(3)")
    nk = sum(1 for g in range(32, 54) if mem[g] and mem[g].lstrip().startswith('ds_'))
    pre[54].append(f"  s_waitcnt lgkmcnt({nk})")
    q = []
    for g in range(ng):
        a(M[g])
        for l in pre[g]: a(l)
        if mem[g]: a(mem[g])
        if g < 64 and g % 2 == 0:
            kt, qt, r = exps[g//2]
            s = s_reg(b, kt, qt) + r
            four = sum(1 for l in pre[g] if 's_waitcnt' in l or l.rstrip().endswith(', 0'))
            E = '_e64' if OPT['e64'] else ''
            a(f"  v_exp_f32{E if four % 2 == 0 else ''} v{s}, v{s}")
            if qt not in SUMQT: q.append(f"  v_add_f32{E} v{V_L+qt}, v{V_L+qt}, v{s}")
            if r & 1: q.append(f"  v_cvt_pk_bf16_f32 v{PBUF[p & 3][qt]+kt*2+(r>>1)}, v{s-1}, v{s}")
        else:
            n = cap[g] if g < ng-1 else 99
            if OPT['pref'] and g < 32:
                want = 'v_add' if g % 4 == 1 else 'v_cvt'
                k = next((i for i, l in enumerate(q) if want in l), None)
                if k is not None: q.insert(0, q.pop(k))
                elif g % 4 == 1 and OPT['pref'] == 2: n = 0
            if OPT['pref'] and g == 64: n = min(n, 1)
            while n > 0 and q:
                a(q.pop(0)); n -= 1
    assert not q

def barrier_T(n=8):
    a(f"  s_waitcnt vmcnt({n}) lgkmcnt(0)")
    if not OPT['xnobar']: a("  s_barrier")

def xlane_reduce(reg, op, tmp):
    a(f"  v_mov_b32 v{tmp}, v{reg}")
    a("  s_nop 1")
    a(f"  v_permlane32_swap_b32 v{reg}, v{tmp}")
    a(f"  {op} v{reg}, v{reg}, v{tmp}")
    a(f"  v_mov_b32 v{tmp}, v{reg}")
    a("  s_nop 1")
    a(f"  v_permlane16_swap_b32 v{reg}, v{tmp}")
    a(f"  {op} v{reg}, v{reg}, v{tmp}")

def prefetch_groups():
    J, O = S_T+4, S_T
    X = SRD_X
    cnt = [0]
    def srd(ptr, size):
        return [f"  s_mov_b32 s{X}, s{ptr}", f"  s_mov_b32 s{X+1}, s{ptr+1}", f"  s_mov_b32 s{X+2}, {size}"]
    def ld(v, off=0):
        cnt[0] += 1
        return [f"  buffer_load_dword a{A_Q+cnt[0]}, v{v}, s[{X}:{X+3}], s{O} offen offset:{off}"]
    NG = OPT['ng']; NW = 128 // NG
    G = {}
    jj = [f"  s_and_b32 s{O}, s{S_R}, {32//NG-1}", f"  s_lshl_b32 s{O}, s{O}, 2", f"  s_add_u32 s{O}, s{O}, s{S_W}"]
    rows = 4*NG
    L = jj + [f"  s_mul_i32 s{O}, s{O}, {rows*8192}", f"  s_lshl_b32 s{O+1}, s{S_G}, 10", f"  s_add_u32 s{O}, s{O}, s{O+1}",
              f"  v_and_b32 v249, 7, v{V_LANE}", f"  v_lshlrev_b32 v249, 7, v249", f"  v_lshl_add_u32 v249, v{V_PROW}, 13, v249"] + srd(P_WQ, 512*4096*2) + ld(249)
    for k in range(1, (rows + 7)//8):
        L += [f"  s_add_u32 s{O}, s{O}, {8*8192}"] + ld(249)
    G['wq'] = L
    G['w2'] = jj + [f"  s_mul_i32 s{O}, s{O}, {2048*NG}", f"  s_lshl_b32 s{O+1}, s{S_FOFF}, 10", f"  s_add_u32 s{O}, s{O}, s{O+1}",
                    f"  v_mul_u32_u24 v250, {32*NG}, v{V_LANE}"] + srd(P_W2, 512*1792*2) + ld(250)
    L = [f"  v_lshlrev_b32 v251, 6, v{V_LANE}", f"  s_and_b32 s{O}, s{S_R}, 3", f"  s_lshl_b32 s{O}, s{O}, 14", f"  s_add_u32 s{O}, s{O}, s{S_KV0}"]
    G['kv'] = L + srd(P_K, 4 << 20) + ld(251) + srd(P_V, 4 << 20) + ld(251)
    G['ws'] = [f"  v_and_b32 v252, 1, v{V_LANE}", f"  v_lshlrev_b32 v252, 24, v252", f"  s_mov_b32 s{O}, s{S_PBASE}"] + srd(P_WS, 64 << 20) + ld(252)
    G['mb'] = [f"  v_and_b32 v255, 31, v{V_LANE}", f"  v_lshlrev_b32 v255, 2, v255", f"  v_mov_b32 v{V_POLL}, 0",
               f"  s_lshr_b32 s{O}, s{S_PBASE}, {WGSH}", f"  s_lshl_b32 s{O}, s{O}, 7", f"  s_add_u32 s{O}, s{O}, {MBOX}",
               f"  buffer_store_dword v{V_POLL}, v255, s[{SRD_WS}:{SRD_WS+3}], s{O} offen sc1"]
    L = jj + [f"  s_mul_i32 s{O}, s{O}, {4096*NG}", f"  s_lshl_b32 s{O+1}, s{S_G}, 19", f"  s_add_u32 s{O}, s{O}, s{O+1}",
              f"  v_lshlrev_b32 v253, {6 if NG == 1 else 7}, v{V_LANE}"] + srd(P_WO, 4 << 20)
    L += [f"  buffer_load_dword v254, v253, s[{X}:{X+3}], s{O} offen"]
    if NG == 4: L += [f"  s_add_u32 s{O}, s{O}, 8192", f"  buffer_load_dword v255, v253, s[{X}:{X+3}], s{O} offen"]
    G['wo'] = L
    return G
def nloads(L): return sum(1 for l in L if l.lstrip().startswith('buffer_'))

hdr = open('cdna_kernels/%s.s.ref' % NAME).read().split('\n')
for l in hdr:
    if l.startswith('; Override') or '@launch' in l or l.startswith('; grid=ceil'): continue
    if l.startswith(';'): a(l)
    else: break
a("; @launch grid=(256,1,1) block=(256,1,1) lds=163840")
a('.amdgcn_target "amdgcn-amd-amdhsa--gfx950"')
a(""";
;   2. FFN1 (a 256/192-column slice of w1), Q projection, FFN2 partial (split-K over the 8 workgroups of a row block)
;   3. flash attention over all 2048 keys.  Softmax reference point: row max of the first 32 keys, fed in as the MFMA
;      accumulator start value.  Run-time check afterwards (row sum >= 2^40 / NaN, or any non-finite output value):
;      L_redo computes the TRUE row max over all keys and the attention is repeated with it.
;   4. output projection partial; the 8 workgroups of a row block exchange bf16 partials through d_ws
;""")
a(".text")
a(kernel_header(NAME + "_kernel"))
i0 = len(a.lines)
NG = OPT['ng']; LG = {1: 0, 2: 1, 4: 2, 8: 3}[NG]
L = V_LANE
C_ = SRD_V
a(f"""
  s_cmp_ge_u32 s2, 256
  s_cbranch_scc1 L_end
  s_load_dwordx16 s[16:31], s[0:1], 0
  s_load_dwordx2 s[{P_WS}:{P_WS+1}], s[0:1], 80
  s_load_dwordx4 s[{P_OUT}:{P_OUT+3}], s[0:1], 64
  s_getpc_b64 s[{C_}:{C_+1}]
L_pc:
  s_lshr_b32 s{S_T+1}, s2, 3
  s_mov_b32 s{C_+2}, L_code_end-L_pc
  s_mov_b32 s{C_+3}, 0x20000
  s_lshl_b32 s{S_T+2}, s{S_T+1}, 11
  v_lshlrev_b32 v2, 3, v0
""")
CPF = f"  buffer_load_dword a{A_Q}, v2, s[{C_}:{C_+3}], s{S_T+2} offen"
a(CPF)
stamp(0)
if OPT['stamps']: a("  s_memrealtime s[74:75]")
if OPT['ln2']:
    XADDR = f"""  v_lshrrev_b32 v4, 6, v0
  v_bfe_u32 v5, v0, 3, 3
  v_lshl_add_u32 v4, v4, 4, v5
  v_lshlrev_b32 v4, 10, v4
  v_and_b32 v5, 7, v0
  v_lshl_add_u32 v{V_T0}, v5, 4, v4
  s_add_u32 s{S_SP+1}, s{S_SP}, 8192"""
    OPT['xs'] = 8
else:
    XADDR = f"""  v_lshrrev_b32 v4, 2, v0
  v_lshlrev_b32 v4, 10, v4
  v_and_b32 v5, 3, v0
  v_lshl_add_u32 v{V_T0}, v5, 4, v4"""
if OPT['pair']:
    MAP1 = f"  s_lshr_b32 s{S_T}, s2, 1\n  s_xor_b32 s{S_T}, s{S_T}, s2\n  s_and_b32 s{S_T}, s{S_T}, 1"
    MAP2 = f"  s_and_b32 s{S_G}, s2, 6"
else:
    MAP1 = f"  s_bfe_u32 s{S_T}, s2, {(LG << 16) | (3-LG)}"
    MAP2 = f"  s_and_b32 s{S_G}, s2, {8//NG-1}\n  s_lshl_b32 s{S_G}, s{S_G}, {LG}"
a(f"""
  s_lshr_b32 s{S_ROT16}, s{S_T+1}, {LG}
{MAP1}
  s_lshl_b32 s{S_T}, s{S_T}, {5-LG}
  s_add_u32 s{S_R}, s{S_ROT16}, s{S_T}
  s_lshl_b32 s{S_SP}, s{S_R}, 16
{XADDR}
  s_mov_b32 s{SRD_X+2}, {2048*512*2}
  s_mov_b32 s{SRD_X+3}, 0x20000
{MAP2}
  s_and_b32 s{S_T+3}, s{S_T+1}, {NG-1}
  s_add_u32 s{S_G}, s{S_G}, s{S_T+3}
  s_mov_b32 s{SRD_W+3}, 0x20000
""")
def xloads(j0, j1):
    for j in range(j0, j1):
        if OPT['ln2']: a(f"  buffer_load_dwordx4 v[{4*j+64}:{4*j+67}], v{V_T0}, s[{SRD_X}:{SRD_X+3}], s{S_SP+(j>>3)} offen offset:{(j&7)*128}")
        else: a(f"  buffer_load_dwordx4 v[{4*j+64}:{4*j+67}], v{V_T0}, s[{SRD_X}:{SRD_X+3}], s{S_SP} offen offset:{j*64}")
def xfirst():
    a("  s_waitcnt lgkmcnt(0)")
    a(f"  s_mov_b32 s{SRD_X}, s{P_X}")
    a(f"  s_mov_b32 s{SRD_X+1}, s{P_X+1}")
    stamp(7)
    if OPT['tlb'] & 1: a(f"  s_load_dword s{S_SP+1}, s[{P_W1}:{P_W1+1}], 0")
    if OPT['tlb'] & 2:
        a(f"  s_mov_b32 s{SRD_W}, s{P_W1}"); a(f"  s_mov_b32 s{SRD_W+1}, s{P_W1+1}"); a(f"  s_mov_b32 s{SRD_W+2}, 4")
        a(f"  buffer_load_dword a{A_Q+1}, v{V_T0}, s[{SRD_W}:{SRD_W+3}], 0 offen")
    xloads(0, OPT['xs'])
    stamp(7)
a(f"""
  v_lshrrev_b32 v1, 6, v0
  v_and_b32 v{V_LANE}, 63, v0
  s_mov_b32 s{S_REDO}, 0
  v_readfirstlane_b32 s{S_W}, v1
  s_and_b32 s{S_HSW}, s{S_R}, {OPT['hsw']}
  s_lshl_b32 s{S_HSW}, s{S_HSW}, 7
  s_and_b32 s{S_ODD}, s2, 1
  s_xor_b32 s{S_ODD}, s{S_ODD}, {OPT['flip']}
  s_mul_i32 s{S_T}, s{S_ROT16}, 43
  s_lshr_b32 s{S_T}, s{S_T}, 8
  s_mul_i32 s{S_T}, s{S_T}, 6
  s_sub_u32 s{S_T}, s{S_ROT16}, s{S_T}
  s_and_b32 s{S_ROT7}, s{S_ROT16}, 7
  s_cmp_lg_u32 s{S_ODD}, 0
  s_cselect_b32 s{S_ROT7}, s{S_T}, s{S_ROT7}
  s_lshl_b32 s{S_ROT16}, s{S_ROT16}, {max(LG-1,0)}
  s_and_b32 s{S_ROT16}, s{S_ROT16}, {OPT['rm']}
  v_lshrrev_b32 v3, 3, v{L}
  v_and_b32 v3, {4 if OPT['xsz'] else 0}, v3
  v_xor_b32 v3, v3, v{L}
  v_lshlrev_b32 v{V_L16}, 4, v3
  v_lshrrev_b32 v{V_PROW}, 3, v{L}
  v_lshrrev_b32 v1, 4, v{L}            ; G
  v_lshlrev_b32 v2, 1, v1              ; G<<1
  v_and_b32 v3, 7, v{L}
  v_xor_b32 v3, v3, v2
  v_lshlrev_b32 v{V_PSWZ}, 4, v3
  s_lshl_b32 s{S_KM0}, s{S_W}, 12
  s_add_u32 s{S_VM0}, s{S_KM0}, {RB}
""")
xfirst()
a(f"""
  s_lshr_b32 s{S_T}, s{S_G}, 2
  s_mul_i32 s{S_FOFF}, s{S_T}, 896
  s_lshl_b32 s{S_T}, s{S_ODD}, 9
  s_add_u32 s{S_FOFF}, s{S_FOFF}, s{S_T}
  s_lshl_b32 s{S_T}, s{S_ODD}, 6
  s_sub_u32 s{S_T}, 256, s{S_T}
  s_and_b32 s{S_T+1}, s{S_G}, 1
  s_mul_i32 s{S_T}, s{S_T}, s{S_T+1}
  s_add_u32 s{S_FOFF}, s{S_FOFF}, s{S_T}
""")
PFG = prefetch_groups()
set_stream('w1')
a(f"""
  v_and_b32 v6, 15, v{L}
  v_lshrrev_b32 v8, 2, v6
  v_lshl_add_u32 v8, v1, 2, v8         ; row = 4G + (i>>2)
  v_and_b32 v9, 3, v6
  v_lshlrev_b32 v9, 3, v9              ; (i&3)*8
  v_lshl_add_u32 v10, v8, 7, v9
  v_add_u32 v10, s{S_VM0}, v10
  v_bfe_u32 v11, v8, 1, 2
""")
for nt in range(4):
    a(f"  v_xor_b32 v12, {nt}, v11")
    a(f"  v_lshl_add_u32 v{V_AA+nt}, v12, 5, v10")
    a(f"  v_add_u32 v{V_AA+4+nt}, {3*16384}, v{V_AA+nt}")
a(f"""
  v_lshrrev_b32 v8, {3 if OPT['ln2'] else 2}, v{L}
  v_and_b32 v9, 1, v{L}
  v_mul_u32_u24 v9, {36 if OPT['xsz'] else 32}, v9
  v_xor_b32 v8, v9, v8
  v_lshlrev_b32 v8, 4, v8
  v_bfe_u32 v9, v{L}, 1, 1
  v_lshl_add_u32 v8, v9, 3, v8
  s_lshl_b32 s{S_T}, s{S_W}, 10
  v_add_u32 v{V_T1}, s{S_T}, v8
""")
if OPT['ln2']:
    a(f"  v_and_b32 v9, 4, v{L}")
    a(f"  v_lshl_add_u32 v{V_T1}, v9, 10, v{V_T1}")
def zero_o():
    for i in range(4): a(f"  v_mov_b32 v{204+i}, 0")
    a("  s_nop 1")
    for i in range(8): a(f"  v_mfma_f32_32x32x16_bf16 a[{A_O+16*i}:{A_O+16*i+15}], v[204:207], v[204:207], 0")
def setup_late():
    G_, G2, I_, t7, t8, t9, t10, t11, t12 = 129, 130, 134, 135, 136, 137, 138, 139, 140
    a(f"""
  s_lshl_b32 s{S_T}, s{S_G}, 19
  s_add_u32 s{SRD_K}, s{P_K}, s{S_T}
  s_addc_u32 s{SRD_K+1}, s{P_K+1}, 0
  s_mov_b32 s{SRD_K+2}, 0x80000
  s_mov_b32 s{SRD_K+3}, 0x20000
  s_add_u32 s{SRD_V}, s{P_V}, s{S_T}
  s_addc_u32 s{SRD_V+1}, s{P_V+1}, 0
  s_mov_b32 s{SRD_V+2}, 0x80000
  s_mov_b32 s{SRD_V+3}, 0x20000
  s_mov_b32 s{SRD_WS}, s{P_WS}
  s_mov_b32 s{SRD_WS+1}, s{P_WS+1}
  s_mov_b32 s{SRD_WS+2}, {64<<20}
  s_mov_b32 s{SRD_WS+3}, 0x20000
  s_and_b32 s{S_KV0}, s{S_R}, {OPT['kvr']}
  s_lshl_b32 s{S_KV0}, s{S_KV0}, {17 if OPT['kvr'] == 3 else 18}
  s_add_u32 s{S_KV0}, s{S_KV0}, s{S_KM0}
  s_mov_b32 s{S_KOFF}, s{S_KV0}
  s_lshl_b32 s{S_PBASE}, s{S_R}, 3
  s_add_u32 s{S_PBASE}, s{S_PBASE}, s{S_G}
  s_lshl_b32 s{S_PBASE}, s{S_PBASE}, {WGSH}
  s_and_b32 s{S_T}, s{S_R}, {3 if OPT['skew'] else 0}
  s_add_u32 s{S_T}, s{S_T}, s{S_W}
  s_and_b32 s{S_T}, s{S_T}, 3
  s_lshl_b32 s{S_T}, s{S_T}, {WGSH-2}
  s_add_u32 s{S_PBASE}, s{S_PBASE}, s{S_T}
  v_lshrrev_b32 v{G_}, 4, v{L}
  v_lshlrev_b32 v{G2}, 1, v{G_}
  v_and_b32 v{I_}, 15, v{L}
  v_xor_b32 v{t7}, v{I_}, v{G_}
  v_lshlrev_b32 v{t7}, 4, v{t7}
  v_lshl_add_u32 v{V_KD}, v{G_}, 8, v{t7}
""")
    for n in range(1, 4): a(f"  v_xor_b32 v{V_KD+n}, {64*n}, v{V_KD}")
    a(f"""
  ; V dma: G*256 + ((i ^ ((4*(n&1)+G)<<1))*16)
  v_xor_b32 v{t8}, v{I_}, v{G2}
  v_lshlrev_b32 v{t8}, 4, v{t8}
  v_lshl_add_u32 v{V_VD}, v{G_}, 8, v{t8}
  v_xor_b32 v{V_VD+1}, 128, v{V_VD}
  v_and_b32 v{t8}, 2, v{G2}
  v_lshrrev_b32 v{t9}, 1, v{G_}
  v_or_b32 v{t8}, v{t8}, v{t9}
  v_xor_b32 v{t8}, v{t8}, v{I_}
  v_lshlrev_b32 v{t8}, 4, v{t8}
  v_lshl_add_u32 v{V_KA}, v{I_}, 8, v{t8}
  s_lshl_b32 s{S_T}, s{S_ODD}, 7
  s_and_b32 s{S_T}, s{S_T}, {128 if OPT['qsw'] else 0}
  s_xor_b32 s{S_T}, s{S_T}, s{S_HSW}
  v_xor_b32 v{V_KA}, s{S_T}, v{V_KA}
""")
    for ds in range(1, 4): a(f"  v_xor_b32 v{V_KA+ds}, {64*ds}, v{V_KA}")
    a(f"""
  v_lshrrev_b32 v{t8}, 2, v{I_}
  v_lshl_add_u32 v{t8}, v{G_}, 2, v{t8}
  v_and_b32 v{t9}, 3, v{I_}
  v_lshlrev_b32 v{t9}, 3, v{t9}
  v_lshl_add_u32 v{t10}, v{t8}, 8, v{t9}
  v_add_u32 v{t10}, {RB}, v{t10}
  v_and_b32 v{t11}, 7, v{t8}
  v_lshl_add_u32 v{V_VA}, v{t11}, 5, v{t10}
""")
    for dt in range(1, 8): a(f"  v_xor_b32 v{V_VA+dt}, {32*dt}, v{V_VA}")
    a(f"""
  s_mov_b32 s{SRD_D}, s{P_DBG}
  s_mov_b32 s{SRD_D+1}, s{P_DBG+1}
  s_lshl_b32 s{SRD_D+2}, s{S_R}, 2
  s_add_u32 s{SRD_D+2}, s{SRD_D+2}, 4
  s_mov_b32 s{SRD_D+3}, 0x20000
  ; final: read base = r*512K + (g>>1)*16K + (g&1)*4K + w*1024 ; x/out soffset = (64r+16w)*1024 + (g>>1)*256 + (g&1)*64
  s_lshl_b32 s{S_FB}, s{S_R}, {WGSH+3}
  s_lshr_b32 s{S_T}, s{S_G}, 1
  s_lshl_b32 s{S_T}, s{S_T}, 2
  s_and_b32 s{S_T+1}, s{S_G}, 1
  s_add_u32 s{S_T+1}, s{S_T+1}, s{S_T}
  s_and_b32 s{S_T}, s{S_R}, {3 if OPT['skew'] else 0}
  s_lshl_b32 s{S_T}, s{S_T}, 1
  s_add_u32 s{S_T}, s{S_T}, s{S_G}
  s_and_b32 s{S_T}, s{S_T}, 7
  s_lshl_b32 s{S_T}, s{S_T}, 12
  s_add_u32 s{S_FB}, s{S_FB}, s{S_T}
  s_lshl_b32 s{S_T}, s{S_W}, 10
  s_add_u32 s{S_FB}, s{S_FB}, s{S_T}
  s_lshl_b32 s{S_XO}, s{S_R}, 16
  s_lshl_b32 s{S_T}, s{S_W}, 14
  s_add_u32 s{S_XO}, s{S_XO}, s{S_T}
  s_lshl_b32 s{S_T}, s{S_T+1}, 6
  s_add_u32 s{S_XO}, s{S_XO}, s{S_T}
""")
    zero_o()
if not OPT['sl']: setup_late()
a("; ---- LayerNorm")
def dreg(e): return e if e < 64 else 64 + e
pfsel = [k for b_, k in ((1, 'w2'), (2, 'kv'), (4, 'ws')) if OPT['pf'] & b_] + ([] if OPT['mbl'] else ['mb'])
groups = []
for s_ in range(NS-1):
    pl = produce_list(rpos(s_))
    groups += [pl[:5], [pl[5]], [pl[6]], [pl[7]]]
for k in pfsel: groups.append(PFG[k])
NPF = sum(nloads(PFG[k]) for k in pfsel)
SUM, SQ = 192, 196
MU, MB = 200, 202
a(f"  v_and_b32 v8, 3, v{L}")
if OPT['ln2']:
    a(f"  v_lshrrev_b32 v9, 3, v{L}"); a("  v_lshlrev_b32 v9, 2, v9")
else: a(f"  v_and_b32 v9, 60, v{L}")
a(f"  v_lshl_add_u32 v8, v8, 12, v9")
a(f"  s_lshl_b32 s{S_T}, s{S_W}, 6")
a(f"  s_add_u32 s{S_T}, s{S_T}, {RB+1*16384}")
a(f"  v_add_u32 v{V_BA}, s{S_T}, v8")
a(f"  s_add_u32 s{S_T}, s{S_VM0}, {1*16384}")
a(f"  v_lshl_add_u32 v{V_RSO}, v6, 2, s{S_T}")
stamp(7)
PRE = OPT['pre']
for g_ in groups[:PRE]:
    for l in g_: a(l)
groups = groups[PRE:]
xloads(OPT['xs'], 16)
stamp(7)
if OPT['stamps'] == 7:
    for k in (16, 15, 8, 0):
        a(f"  s_waitcnt vmcnt({k})"); stamp(7)
def ln_two_halves():
    vq = [f"x{j}" for j in range(8)] + [f"S{k>>2}" for k in range(PRE)] + [f"x{j}" for j in range(8, 16)]
    gi = [PRE]; rest = list(groups)
    def yg(tag): return len(vq) - 1 - max(i for i, t in enumerate(vq) if t == tag)
    def spr():
        if rest:
            for l in rest.pop(0): a(l)
            vq.append(f"S{gi[0]>>2}"); gi[0] += 1
    for h in range(2):
        nA = OPT['spA'] if h == 0 else 0
        for j in range(8*h, 8*h+8):
            a(f"  s_waitcnt vmcnt({yg(f'x{j}')})")
            if j in (0, 8, 15): stamp(3)
            if (j & 7) < nA: spr()
            for i in range(4*j, 4*j+4):
                a(f"  v_lshlrev_b32 v{dreg(2*i)}, 16, v{64+i}")
                a(f"  v_and_b32 v{dreg(2*i+1)}, 0xffff0000, v{64+i}")
            for i in range(4*j, 4*j+4):
                e = dreg(2*i); t = SUM + 2*(i & 1); q = SQ + 2*(i & 1); ii = i & 31
                if ii < 2: a(f"  v_pk_add_f32 v[{t}:{t+1}], v[{e}:{e+1}], v[{dreg(2*i+4)}:{dreg(2*i+4)+1}]")
                elif ii >= 4: a(f"  v_pk_add_f32 v[{t}:{t+1}], v[{t}:{t+1}], v[{e}:{e+1}]")
                if ii < 2: a(f"  v_pk_mul_f32 v[{q}:{q+1}], v[{e}:{e+1}], v[{e}:{e+1}]")
                else: a(f"  v_pk_fma_f32 v[{q}:{q+1}], v[{e}:{e+1}], v[{e}:{e+1}], v[{q}:{q+1}]")
        stamp(3)
        for r in (SUM, SQ): a(f"  v_pk_add_f32 v[{r}:{r+1}], v[{r}:{r+1}], v[{r+2}:{r+3}]")
        for r in (SUM, SQ): a(f"  v_add_f32 v{r}, v{r}, v{r+1}")
        a("  s_nop 0")
        for qp in ("quad_perm:[1,0,3,2]", "quad_perm:[2,3,0,1]", "row_half_mirror"):
            for r in (SUM, SQ): a(f"  v_add_f32_dpp v{r}, v{r}, v{r} {qp} row_mask:0xf bank_mask:0xf")
            a("  s_nop 0")
        a(f"  v_mul_f32 v{MU}, 0x3b000000, v{SUM}")
        a(f"  v_cvt_pk_bf16_f32 v{MB}, v{MU}, v{MU}")
        a(f"  v_and_b32 v{MB}, 0xffff0000, v{MB}")
        st_ = f"""  v_mul_f32 v{SQ}, 0x3b000000, v{SQ}
  v_fma_f32 v{SQ}, -v{MU}, v{MU}, v{SQ}
  v_max_f32 v{SQ}, 0, v{SQ}
  v_cvt_pk_bf16_f32 v{SQ}, v{SQ}, v{SQ}
  v_and_b32 v{SQ}, 0xffff0000, v{SQ}
  v_add_f32 v{SQ}, 0x3727c5ac, v{SQ}
  v_cvt_pk_bf16_f32 v{SQ}, v{SQ}, v{SQ}
  v_and_b32 v{SQ}, 0xffff0000, v{SQ}
  v_sqrt_f32 v{SQ}, v{SQ}
  v_cvt_pk_bf16_f32 v{SQ}, v{SQ}, v{SQ}
  v_and_b32 v{SQ}, 0xffff0000, v{SQ}
  v_rcp_f32 v{MU+1}, v{SQ}
  ds_write_b32 v{V_BA}, v{MU+1} offset:{32*h}""".split('\n')
        for j in range(8*h, 8*h+8):
            if (h == 0 and (j & 7) < OPT['spB']) or h == 1: spr()
            for k in range(4):
                e = dreg(2*(4*j+k))
                a(f"  v_pk_add_f32 v[{e}:{e+1}], v[{e}:{e+1}], v[{MB}:{MB+1}] op_sel_hi:[1,0] neg_lo:[0,1] neg_hi:[0,1]")
            if st_: a(st_.pop(0))
            for k in range(4):
                i = 4*j + k; e = dreg(2*i)
                a(f"  v_cvt_pk_bf16_f32 v{64+i}, v{e}, v{e+1}")
                if k == 1 and st_: a(st_.pop(0))
            a(f"  ds_write_b64 v{V_T1}, v[{64+4*j}:{65+4*j}] offset:{(j&7)*8192+h*128}")
            a(f"  ds_write_b64 v{V_T1}, v[{66+4*j}:{67+4*j}] offset:{(j&7)*8192+h*128+256}")
        if h == 0: stamp(3)
    while rest: spr()
    stamp(3)
    a(f"  s_waitcnt vmcnt({yg('S1')}) lgkmcnt(0)")
def ln_one():
    for j in range(16):
        a(f"  s_waitcnt vmcnt({15 - j + min(j, OPT['n1']) + (PRE if j < OPT['xs'] else 0)})")
        if j in (0, 8, 15): stamp(3)
        if j < OPT['n1']:
            for l in groups[j]: a(l)
        for i in range(4*j, 4*j+4):
            a(f"  v_lshlrev_b32 v{dreg(2*i)}, 16, v{64+i}")
            a(f"  v_and_b32 v{dreg(2*i+1)}, 0xffff0000, v{64+i}")
        for i in range(4*j, 4*j+4):
            e = dreg(2*i); t = SUM + 2*(i & 1); q = SQ + 2*(i & 1)
            if i < 2: a(f"  v_pk_add_f32 v[{t}:{t+1}], v[{e}:{e+1}], v[{dreg(2*i+4)}:{dreg(2*i+4)+1}]")
            elif i >= 4: a(f"  v_pk_add_f32 v[{t}:{t+1}], v[{t}:{t+1}], v[{e}:{e+1}]")
            if i < 2: a(f"  v_pk_mul_f32 v[{q}:{q+1}], v[{e}:{e+1}], v[{e}:{e+1}]")
            else: a(f"  v_pk_fma_f32 v[{q}:{q+1}], v[{e}:{e+1}], v[{e}:{e+1}], v[{q}:{q+1}]")
    sprinkle = groups[OPT['n1']:]
    stamp(3)
    for r in (SUM, SQ): a(f"  v_pk_add_f32 v[{r}:{r+1}], v[{r}:{r+1}], v[{r+2}:{r+3}]")
    for r in (SUM, SQ): a(f"  v_add_f32 v{r}, v{r}, v{r+1}")
    a("  s_nop 0")
    for qp in ("[1,0,3,2]", "[2,3,0,1]"):
        for r in (SUM, SQ): a(f"  v_add_f32_dpp v{r}, v{r}, v{r} quad_perm:{qp} row_mask:0xf bank_mask:0xf")
        a("  s_nop 0")
    a(f"""
  v_mul_f32 v{MU}, 0x3b000000, v{SUM}
  v_cvt_pk_bf16_f32 v{MB}, v{MU}, v{MU}
  v_and_b32 v{MB}, 0xffff0000, v{MB}
""")
    stats = f"""  v_mul_f32 v{SQ}, 0x3b000000, v{SQ}
  v_fma_f32 v{SQ}, -v{MU}, v{MU}, v{SQ}
  v_max_f32 v{SQ}, 0, v{SQ}
  v_cvt_pk_bf16_f32 v{SQ}, v{SQ}, v{SQ}
  v_and_b32 v{SQ}, 0xffff0000, v{SQ}
  v_add_f32 v{SQ}, 0x3727c5ac, v{SQ}
  v_cvt_pk_bf16_f32 v{SQ}, v{SQ}, v{SQ}
  v_and_b32 v{SQ}, 0xffff0000, v{SQ}
  v_sqrt_f32 v{SQ}, v{SQ}
  v_cvt_pk_bf16_f32 v{SQ}, v{SQ}, v{SQ}
  v_and_b32 v{SQ}, 0xffff0000, v{SQ}
  v_rcp_f32 v{SQ}, v{SQ}
  ds_write_b32 v{V_BA}, v{SQ}""".split('\n')
    for j in range(16):
        if j in (0, 8): stamp(3)
        if j >= OPT['late'] and sprinkle:
            for l in sprinkle.pop(0): a(l)
        for k in range(4):
            e = dreg(2*(4*j+k))
            a(f"  v_pk_add_f32 v[{e}:{e+1}], v[{e}:{e+1}], v[{MB}:{MB+1}] op_sel_hi:[1,0] neg_lo:[0,1] neg_hi:[0,1]")
        if j < len(stats): a(stats[j])
        for k in range(4):
            i = 4*j + k; e = dreg(2*i)
            a(f"  v_cvt_pk_bf16_f32 v{64+i}, v{e}, v{e+1}")
        a(f"  ds_write_b64 v{V_T1}, v[{64+4*j}:{65+4*j}] offset:{j*4096}")
        a(f"  ds_write_b64 v{V_T1}, v[{66+4*j}:{67+4*j}] offset:{j*4096+256}")
    for g_ in sprinkle:
        for l in g_: a(l)
    stamp(3)
    if OPT['gst']:
        a("  s_branch L_gst"); a.label("L_gst_ret")
    a(f"  s_waitcnt vmcnt({4*(NS-3)+NPF}) lgkmcnt(0)")
(ln_two_halves if OPT['ln2'] else ln_one)()
a_first()
a("  s_barrier")
stamp(3)
stamp()
for qt in range(4): a(f"  ds_read_b32 v{V_RS+qt}, v{V_RSO} offset:{qt*64}")
a(f"  s_lshl_b32 s{S_T}, s{S_W}, 6")
a(f"  v_add_u32 v{V_RSO}, s{S_T}, v{V_RSO}")
a(f"  ds_read_b32 v{V_RSO}, v{V_RSO}")
b_reload(False, wait=False)
a("  s_waitcnt lgkmcnt(8)")
produce_slot(rpos(5)); produce_slot(rpos(6))
a(f"  s_mov_b32 s{S_T}, {CSH:#x}")
for qt in range(4): a(f"  v_mul_f32 v{V_RS+qt}, s{S_T}, v{V_RS+qt}")
a("; ---- FFN1")
stamp(8)
if OPT['w3'] == 4:
    a(f"  s_cmp_lg_u32 s{SRD_W+2}, 0")
    a("  s_cbranch_scc0 L_w3")
    _i = len(a.lines)
    a.label("L_w3")
    set_stream('wq', 0)
    a("  s_waitcnt vmcnt(0) lgkmcnt(0)")
    for k in range(16, 22): produce_slot(rpos(k))
    gpos[0] = 16
    a("  s_waitcnt vmcnt(16)")
    a_first()
    a("  s_waitcnt lgkmcnt(0)")
    produce_slot(rpos(22))
    gpos[0] = 0
    a("  s_branch L_qstart")
    W3_CODE = a.lines[_i:]; del a.lines[_i:]
if OPT['w3'] == 3:
    a(f"  s_cmp_lg_u32 s{SRD_W+2}, 0")
    a("  s_cbranch_scc1 L_w3n")
    a(f"  s_add_u32 s{S_BOFF}, s{S_BOFF}, {9*4096}")
    a(f"  s_and_b32 s{S_BOFF}, s{S_BOFF}, 0xffff")
    a(f"  v_add_u32 v{V_BA}, s{S_BOFF}, v{V_L16}")
    a("  s_branch L_w3j")
    a.label("L_w3n")
gemm_first()
if OPT['w3'] in (1, 2):
    a(f"  s_cmp_lg_u32 s{SRD_W+2}, 0")
    a("  s_cbranch_scc1 L_w3n")
    X = SRD_X
    a(f"  s_mov_b32 s{X}, s{P_WQ}"); a(f"  s_mov_b32 s{X+1}, s{P_WQ+1}"); a(f"  s_mov_b32 s{X+2}, {512*4096*2}")
    a(f"  s_and_b32 s{S_T}, s{S_R}, 15")
    a(f"  s_lshl_b32 s{S_T+1}, s{S_T}, 18")
    a(f"  s_lshl_b32 s{S_T+2}, s{S_G}, 10")
    a(f"  s_add_u32 s{S_T+1}, s{S_T+1}, s{S_T+2}")
    a(f"  v_and_b32 v128, 7, v{V_LANE}"); a("  v_lshlrev_b32 v128, 7, v128"); a(f"  v_lshl_add_u32 v128, v{V_PROW}, 13, v128")
    for k in range(4):
        a(f"  buffer_load_dword v{130+k}, v128, s[{X}:{X+3}], s{S_T+1} offen")
        a(f"  s_add_u32 s{S_T+1}, s{S_T+1}, {8*8192}")
    if OPT['w3'] >= 2:
        a(f"  s_mov_b32 s{X}, s{P_W2}"); a(f"  s_mov_b32 s{X+1}, s{P_W2+1}"); a(f"  s_mov_b32 s{X+2}, {512*1792*2}")
        a(f"  s_mul_i32 s{S_T+1}, s{S_T}, {12*1024}")
        a(f"  s_lshl_b32 s{S_T+2}, s{S_FOFF}, 10")
        a(f"  s_add_u32 s{S_T+1}, s{S_T+1}, s{S_T+2}")
        a(f"  v_lshlrev_b32 v129, 7, v{V_LANE}")
        a(f"  buffer_load_dword v134, v129, s[{X}:{X+3}], s{S_T+1} offen")
        a(f"  s_add_u32 s{S_T+1}, s{S_T+1}, 4096")
        a(f"  buffer_load_dword v135, v129, s[{X}:{X+3}], s{S_T+1} offen")
    a(f"  s_add_u32 s{S_BOFF}, s{S_BOFF}, {7*4096}")
    a(f"  s_and_b32 s{S_BOFF}, s{S_BOFF}, 0xffff")
    a(f"  v_add_u32 v{V_BA}, s{S_BOFF}, v{V_L16}")
    a("  s_waitcnt vmcnt(0)")
    a("  s_branch L_w3j")
    a.label("L_w3n")
gemm_call(7)
if OPT['w3'] in (1, 2, 3): a.label("L_w3j")
stamp(8); set_stream('wq', 0)
if OPT['sl']:
    gemm_call(OPT['sl']); setup_late(); gemm_call(7 - OPT['sl'])
else: gemm_call(7)
stamp(8)
a("  s_nop 7"); align8()
for c in range(2):
    for qt in range(4):
        x = V_ACC + ((2*c)*4+qt)*4; y = V_ACC + ((2*c+1)*4+qt)*4
        d = V_H + (c*4+qt)*4
        for k, s in enumerate((x, x+2, y, y+2)):
            a(f"  v_cvt_pk_bf16_f32 v{d+k}, v{s}, v{s+1}")
        for k in range(4):
            a(f"  v_pk_max_i16 v{d+k}, v{d+k}, 0")
a("; ---- Q projection")
a.label("L_qstart")
for half in range(2):
    if half == 1 and OPT['cp3']:
        a(f"  s_getpc_b64 s[{SRD_X}:{SRD_X+1}]")
        a.label("L_pc3")
        a(f"  s_mov_b32 s{SRD_X+2}, L_tail-L_pc3")
        a(f"  s_lshr_b32 s{S_T}, s2, 3")
        a(f"  s_lshl_b32 s{S_T}, s{S_T}, 2")
        a(f"  s_add_u32 s{S_T}, s{S_T}, s{S_W}")
        a(f"  s_lshl_b32 s{S_T}, s{S_T}, 8")
        a(f"  v_lshlrev_b32 v{V_T1}, 2, v{V_LANE}")
        a(f"  buffer_load_dword v255, v{V_T1}, s[{SRD_X}:{SRD_X+3}], s{S_T} offen")
    stamp(8)
    gemm_first(); gemm_call(7)
    if half == 0:
        stamp(8)
        set_stream('wq', 1); gemm_call(7); stamp(8)
    else:
        set_stream('w2', 0); gemm_call(6)
        a(f"  s_lshl_b32 s{S_T}, s{S_ODD}, 7")
        for n in range(4): a(f"  v_xor_b32 v{V_PD+n}, s{S_T}, v{V_PD+n}")
        gemm_call(1); stamp(8)
    def qepi1():
        for c in range(2):
            for qt in range(4):
                x = V_ACC + ((2*c)*4+qt)*4; y = V_ACC + ((2*c+1)*4+qt)*4
                rp = V_RS + (qt & 2); md = "op_sel:[0,1] op_sel_hi:[1,1]" if qt & 1 else "op_sel_hi:[1,0]"
                for s in (x, x+2, y, y+2):
                    a(f"  v_pk_mul_f32 v[{s}:{s+1}], v[{s}:{s+1}], v[{rp}:{rp+1}] {md}")
                d = 128 + (c*4+qt)*4
                for k, s in enumerate((x, x+2, y, y+2)):
                    a(f"  v_cvt_pk_bf16_f32 v{d+k}, v{s}, v{s+1}")
    def qepi2():
        for c in range(2):
            for qt in range(4):
                d = 128 + (c*4+qt)*4
                a(f"  v_permlane16_swap_b32 v{d}, v{d+2}")
                a(f"  v_permlane16_swap_b32 v{d+1}, v{d+3}")
        align8()
        for c in range(2):
            for qt in range(4):
                d = 128 + (c*4+qt)*4
                for k in range(4):
                    a(f"  v_accvgpr_write_b32 a{A_Q+(qt*4+2*half+c)*4+k}, v{d+k}")
    if half == 0 or not OPT['hx']:
        a("  s_nop 7"); align8(); qepi1(); a("  s_nop 0"); qepi2()
stamp()
stamp(2)
if OPT['pad']:
    a(f"  s_lshl_b32 s{S_T}, s{S_ODD}, 2")
    a(f"  s_or_b32 s{S_T}, s{S_T}, s{S_W}")
    a(f"  s_cmp_eq_u32 s{S_T}, 7")
    a("  s_cbranch_scc1 L_walk")
    a.label("L_walk_ret")
a(f"  s_lshl_b32 s{S_T}, s{S_W}, 13")
a(f"  v_add_u32 v{V_T0}, s{S_T}, v{V_L16}")
a("  s_waitcnt lgkmcnt(0)")
a("  s_barrier")
hw = [f"  ds_write_b128 v{V_T0}, v[{V_H+k*4}:{V_H+k*4+3}] offset:{k*1024}" for k in range(8)]
kd = capture(lambda: (k_tile_dma(0), k_tile_dma(1))) if not OPT['klate'] else []
if OPT['hx']:
    e1 = capture(qepi1)
    a("  s_nop 3"); align8()
    for k in range(8):
        a(hw[k])
        for l in e1[4*k:4*k+4]: a(l)
    e1 = e1[32:]
    for l in kd:
        a(l)
        if 'buffer_' in l or 'm0' in l:
            for _ in range(3): a(e1.pop(0))
    for l in e1: a(l)
else:
    for l in hw: a(l)
    k_tile_dma(0); k_tile_dma(1)
a("  s_waitcnt lgkmcnt(0)")
a("  s_barrier")
a("; ---- FFN2 partial")
stamp(2)
b_reload(True, wait=False)
if OPT['hx']: qepi2()
a(f"  s_mov_b32 s{S_VOFF}, s{S_KV0}")
a(f"  s_cmp_lg_u32 s{S_ODD}, 0")
a("  s_cbranch_scc0 L_ffn2_even" if OPT['ool'] else "  s_cbranch_scc1 L_ffn2_odd")
def attn_init():
    L = [f"  s_add_u32 s{S_VOFF}, s{S_KV0}, {2*16384}"]
    L += [f"  v_mov_b32 v{V_L+i}, 0" for i in range(12)]
    L += [f"  v_and_b32 v{V_T0}, {15 if OPT['one1'] else 3}, v{V_LANE}", f"  v_cmp_eq_u32 vcc, 0, v{V_T0}", f"  v_mov_b32 v{V_T0}, 0x3f803f80", "  s_nop 0",
          f"  v_cndmask_b32 v{V_ONES}, 0, v{V_T0}, vcc"] + [f"  v_mov_b32 v{V_ONES+i}, v{V_ONES}" for i in range(1, 4)]
    if NSUM == 4:
        L += ["  s_nop 1"] + [f"  v_mov_b32_dpp v{V_L+i}, v{V_ONES} quad_perm:[1,0,3,2] row_mask:0xf bank_mask:0xf" for i in range(4)]
    return L
HI_CVT = capture(lambda: store_partial(0, 1, dst=160, defer=True, sreg=S_SP))
HI_CVT = [l for l in HI_CVT if 'v_cvt' in l]
WO_SET = capture(lambda: set_stream('wo', 0)) + [f"  s_mov_b32 s{S_SV_POFF}, s{S_POFF}"]
A_INIT = [l for l in attn_init() if 's_nop' not in l]
def ffn2(nf):
    gpos[0] = 48; N = 48 + 2*nf
    vq = [f"S{k}" for k in range(49, 55) for _ in range(4)] + ['K']*(0 if OPT['klate'] else 8)
    kj = ((57, 58) if nf == 8 else (53, 54)) if OPT['klate'] else ()
    vj = (59, 60) if (nf == 8 and OPT['klate']) else (57, 58)
    def yg(tag): return len(vq) - 1 - max(i for i, t in enumerate(vq) if t == tag)
    st0 = None
    stj = (59, 60) if nf == 8 else (55, 56)
    j = 48
    ns0 = nstamp[0]
    while j < N:
        if j in (48, 50, 48 + nf, 50 + nf): stamp(2)
        if j == 48 + nf: st0 = store_partial(0, 0, dst=128, defer=True, sreg=S_SP)
        if nf == 8 and j == 49: set_stream('w2', 1)
        if j == 50:
            n = 6 if nf == 8 else 3
            gemm_call(n)
            for k in range(n): vq.extend([f"S{j+k+7}"]*4)
            j += n; continue
        kw = dict(first=(j - 48) % nf < 2, vmw=(yg(f"S{j+2}") if j + 2 < N else 63), noread=(j + 2 >= N))
        if j + 7 < N: tags = [f"S{j+7}"]*4
        elif j in vj:
            kw['vm'] = [[f"  s_add_u32 m0, s{S_VM0}, {(j-vj[0])*16384}", v_dma(0)], [v_dma(1)], [v_dma(2)], [v_dma(3)]]
            if j == vj[1]: kw['xvm'] = [(5, f"  s_add_u32 s{S_VOFF}, s{S_VOFF}, 16384")]
            tags = ['V']*4
        elif j in kj:
            kw['vm'] = [[f"  s_add_u32 m0, s{S_KM0}, {kslot(j-kj[0])*16384}", k_dma(0)], [k_dma(1)], [k_dma(2)], [k_dma(3)]]
            kw['xvm'] = [(15, f"  s_add_u32 s{S_KOFF}, s{S_KOFF}, 16384")]
            tags = ['K']*4
        elif j in stj and OPT['early']:
            kw['vm'] = [[x] for x in st0[4*(j-stj[0]):4*(j-stj[0])+4]]; tags = ['st']*4
        else: kw['vm'] = []; tags = []
        if OPT['hfill'] and j == N - 2:
            kw2 = dict(vm=[], vmw=63, noread=True)
            w0 = kw['vmw']
            prog = capture(lambda: (gemm_inl(**kw), gemm_inl(**kw2)))
            prog = [l for l in prog if 's_waitcnt' not in l]
            a(f"  s_waitcnt vmcnt({w0}) lgkmcnt(0)")
            emit_sched(prog + A_INIT + WO_SET + HI_CVT[:16], f'ffn2 end {nf}')
            break
        gemm_inl(**kw); vq.extend(tags); j += 1
_ns = nstamp[0]
_i = len(a.lines)
a.label("L_ffn2_even")
ffn2(8)
nstamp[0] = _ns
a("  s_branch L_ffn2_done")
EVEN_CODE = []
if OPT['ool']:
    EVEN_CODE = a.lines[_i:]; del a.lines[_i:]
iodd = len(a.lines)
a.label("L_ffn2_odd")
ffn2(6)
a.label("L_ffn2_done")
stamp(2)
a("  s_waitcnt vmcnt(12) lgkmcnt(0)")
a("  s_barrier")
stamp(2)
stamp(); stamp(4)
if OPT['stamps']:
    a("  s_memrealtime s[38:39]")
    a("  s_waitcnt lgkmcnt(0)")
QORD = [(kt, qt) for qt in range(4) for kt in range(2)]
def maxq(qt):
    x = s_reg(0, 0, qt); y = s_reg(0, 1, qt); m = V_NEGM + qt*4
    a(f"  v_max3_f32 v{m}, v{x}, v{x+1}, v{x+2}")
    a(f"  v_max3_f32 v{m+1}, v{x+3}, v{y}, v{y+1}")
    a(f"  v_max3_f32 v{m}, v{m}, v{y+2}, v{y+3}")
    a(f"  v_max_f32 v{m}, v{m}, v{m+1}")
    xlane_reduce(m, 'v_max_f32', m+1)
    for k in range(3, -1, -1): a(f"  v_sub_f32 v{m+k}, 0, v{m}")
    for kt in range(2):
        for r in range(4):
            s_ = s_reg(0, kt, qt) + r
            a(f"  v_add_f32 v{s_}, v{s_}, v{m}")
def head_common():
    L = qk_mfmas(1, order=QORD, src=A_V)
    for qt in range(4): L += sm_ops(0, qt)
    L += [k_read(2, i >> 2, i & 3) for i in range(8)] + capture(lambda: k_tile_dma(4))
    L += qk_mfmas(0, order=QORD)
    for qt in range(4): L += sm_ops(1, qt)
    L += [k_read(3, i >> 2, i & 3) for i in range(8)] + capture(lambda: v_tile_dma(2))
    return L
KR01 = [k_read(0, i >> 2, i & 3) for i in range(8)] + [k_read(1, i >> 2, i & 3, A_V) for i in range(8)]
prog = KR01 + HI_CVT[(16 if OPT['hfill'] else 0):]
prog += capture(lambda: (k_tile_dma(2), k_tile_dma(3))) + ["  s_waitcnt vmcnt(16)", "  s_barrier"]
for k in range(OPT['hst']):
    prog.append(f"  s_add_u32 s{S_SP}, s{S_PBASE}, {k*4096}")
    prog += [f"  buffer_store_dwordx4 v[{128+(k*4+qt)*4}:{131+(k*4+qt)*4}], v{V_L16}, s[{SRD_WS}:{SRD_WS+3}], s{S_SP} offen offset:{qt*1024} sc1" for qt in range(4)]
if OPT['m16']:
    prog += qk_mfmas(0, zero=True, order=[(0, qt) for qt in range(4)])
    if not OPT['hfill']: prog += A_INIT
    def max16(qt):
        x = s_reg(0, 0, qt); m = V_NEGM + qt*4
        a(f"  v_max3_f32 v{m}, v{x}, v{x+1}, v{x+2}")
        a(f"  v_max_f32 v{m}, v{m}, v{x+3}")
        xlane_reduce(m, 'v_max_f32', m+1)
        for k in range(3, -1, -1): a(f"  v_sub_f32 v{m+k}, 0, v{m}")
    for qt in range(4): prog += capture(lambda: max16(qt))
    prog += qk_mfmas(0, order=QORD)
else:
    prog += qk_mfmas(0, zero=True, order=QORD)
    if not OPT['hfill']: prog += A_INIT
    for qt in range(4): prog += capture(lambda: maxq(qt))
prog += head_common()
if not OPT['hfill']: prog += WO_SET
emit_sched(prog, 'head', vmgap=OPT['hgap'])
stamp(4)
a(f"  s_mov_b32 s{S_LOOP}, 7")
a(f"  s_and_b32 s{S_EV}, s{S_R}, 3")
a(f"  s_mov_b32 s{S_EI}, 0")
a(f"  s_waitcnt vmcnt({12 + 4*OPT['hst']})")
a("  s_branch L_p2")
segs.append(('pre', i0, len(a.lines)))
a(f".p2align {OPT['lal']}")
if OPT['pad']:
    a.label("L_padL"); a("  s_branch L_pad0"); a("  s_nop 0")
il = len(a.lines)
a.label("L_loop")
for p in range(8, 16):
    if p == 10: a.label("L_p2")
    if p % 2 == 0: barrier_T(16)
    else:
        if OPT['e64']: a("  s_nop 0")
        a("  s_waitcnt lgkmcnt(0)")
    if OPT['stg'] and p & 1:
        period(p, endop=f"  s_sub_u32 s{S_EV}, s{S_EV}, 1")
        a(f"  s_cbranch_scc1 L_ev{p}")
        a.label(f"L_evr{p}")
    else: period(p)
a(f"  s_sub_u32 s{S_LOOP}, s{S_LOOP}, 1")
a(f"  s_cmp_eq_u32 s{S_LOOP}, 0")
a("  s_cbranch_scc1 L_tail")
itail = len(a.lines)
a(f"  s_cmp_lg_u32 s{S_REDO}, 0")
a("  s_cbranch_scc1 L_loop")
if OPT['alt']:
    a(f"  s_cmp_lt_u32 s{S_LOOP}, 3")
    a("  s_cbranch_scc1 L_bk3")
    a(f"  s_xor_b32 s{S_T}, s{S_LOOP}, s{S_ODD}")
    a(f"  s_bitcmp1_b32 s{S_T}, 0")
    a("  s_cbranch_scc0 L_loop")
    a(f"  s_cmp_lt_u32 s{S_LOOP}, 5")
    a("  s_cbranch_scc1 L_bk1")
    for hb in range(2):
        if hb:
            a.label("L_bk1")
            for l in PFG['mb']: a(l.replace('v255', f'v{V_T0}'))
        for k in (2*hb, 2*hb+1):
            a(f"  s_add_u32 s{S_T}, s{S_PBASE}, {(k & 1)*4096 + (k >> 1)*HSTR}")
            for qt in range(4):
                d = 128 + (k*4+qt)*4
                a(f"  buffer_store_dwordx4 v[{d}:{d+3}], v{V_L16}, s[{SRD_WS}:{SRD_WS+3}], s{S_T} offen offset:{qt*1024} sc1")
        a("  s_branch L_loop")
    a.label("L_bk3")
if OPT['bsh']:
    idx = 0
    for e, n_ in enumerate((6, 5, 5)):
        a(f"  s_cmp_lg_u32 s{S_LOOP}, {5-e}")
        a(f"  s_cbranch_scc1 L_bk{e}")
        if e == 2:
            for l in PFG['mb']: a(l.replace('v255', f'v{V_T0}'))
        for z in range(idx, idx + n_):
            k, qt = z >> 2, z & 3
            if z == idx or qt == 0: a(f"  s_add_u32 s{S_T}, s{S_PBASE}, {(k & 1)*4096 + (k >> 1)*HSTR}")
            a(f"  buffer_store_dwordx4 v[{128+4*z}:{131+4*z}], v{V_L16}, s[{SRD_WS}:{SRD_WS+3}], s{S_T} offen offset:{qt*1024} sc1")
        idx += n_
        a("  s_branch L_loop")
        a.label(f"L_bk{e}")
for k in range(OPT['hst'], 0 if (OPT['stg'] or OPT['alt'] or OPT['bsh']) else 4):
    a(f"  s_cmp_lg_u32 s{S_LOOP}, {6-k}")
    a(f"  s_cbranch_scc1 L_bk{k}")
    if k == 3 and OPT['mbl']:
        for l in PFG['mb']: a(l.replace('v255', f'v{V_T0}'))
    a(f"  s_add_u32 s{S_T}, s{S_PBASE}, {(k & 1)*4096 + (k >> 1)*HSTR}")
    if OPT['w2sw']:
        a(f"  s_and_b32 s{S_T+1}, s{S_R}, 1")
        a(f"  s_mul_i32 s{S_T+1}, s{S_T+1}, {HSTR}")
        a(f"  s_xor_b32 s{S_T}, s{S_T}, s{S_T+1}")
    for qt in range(4):
        d = 128 + (k*4+qt)*4
        a(f"  buffer_store_dwordx4 v[{d}:{d+3}], v{V_L16}, s[{SRD_WS}:{SRD_WS+3}], s{S_T} offen offset:{qt*1024} sc1")
    a("  s_branch L_loop")
    a.label(f"L_bk{k}")
a(f"  s_lshl_b32 s{S_T}, s{S_R}, 2")
a(f"  s_cmp_lg_u32 s{S_LOOP}, 1")
a("  s_cbranch_scc1 L_bk4")
a(f"  v_mov_b32 v{V_T0}, 0")
a(f"  buffer_load_dword v{V_POLL}, v{V_T0}, s[{SRD_D}:{SRD_D+3}], s{S_T} offen sc1")
if OPT['cp2']:
    a(f"  s_getpc_b64 s[{SRD_X}:{SRD_X+1}]")
    a.label("L_pc2")
    a(f"  s_mov_b32 s{SRD_X+2}, L_code_end-L_pc2")
    a(f"  s_lshr_b32 s{S_T}, s2, 3")
    a(f"  s_lshl_b32 s{S_T}, s{S_T}, 2")
    a(f"  s_add_u32 s{S_T}, s{S_T}, s{S_W}")
    a(f"  s_lshl_b32 s{S_T}, s{S_T}, 8")
    a(f"  v_lshlrev_b32 v{V_T1}, 2, v{V_LANE}")
    a(f"  buffer_load_dword v128, v{V_T1}, s[{SRD_X}:{SRD_X+3}], s{S_T} offen")
    if OPT['cp2'] == 3:
        a(f"  s_cmp_lg_u32 s{S_ODD}, 0")
        a("  s_cbranch_scc1 L_loop")
    if OPT['cp2'] >= 2:
        for l in PFG['wo']: a(l.replace('v253', f'v{V_T1}').replace('v254', 'v129'))
a("  s_branch L_loop")
a.label("L_bk4")
if OPT['pt']:
    a(f"  v_lshlrev_b32 v{V_T1}, 7, v{V_LANE}")
    for k in range(2):
        a(f"  s_add_u32 s{S_T+1}, s{S_PBASE}, {PART_KIND + k*8192}")
        a(f"  buffer_load_dword v{130+k}, v{V_T1}, s[{SRD_WS}:{SRD_WS+3}], s{S_T+1} offen{' sc1' if OPT['pt'] == 2 else ''}")
a(f"  s_lshl_b32 s{S_T+1}, s{S_W}, 4")
a(f"  s_or_b32 s{S_T+1}, s{S_T+1}, s{S_LOOP}")
a(f"  s_cmp_lg_u32 s{S_T+1}, 2")
a("  s_cbranch_scc1 L_loop")
a(f"  v_mov_b32 v{V_T0}, 1")
a(f"  v_lshlrev_b32 v{V_T1}, 2, v{V_LANE}")
a(f"  buffer_atomic_add v{V_T0}, v{V_T1}, s[{SRD_D}:{SRD_D+3}], s{S_T} offen sc1")
a("  s_branch L_loop")
if OPT['stg']:
    for p in (9, 11, 13, 15):
        a.label(f"L_ev{p}")
        a(f"  s_call_b64 s[{S_RET}:{S_RET+1}], L_evt")
        a(f"  s_branch L_evr{p}")
    a.label("L_evt")
    a(f"  s_mov_b32 s{S_EV}, {OPT['stg'] + 2}")
    a(f"  s_add_u32 s{S_EI}, s{S_EI}, 1")
    for k in range(4):
        if k < 3:
            a(f"  s_cmp_lg_u32 s{S_EI}, {k+1}")
            a(f"  s_cbranch_scc1 L_evk{k}")
        else:
            a(f"  s_mov_b32 s{S_EV}, 1000")
            for l in PFG['mb']: a(l.replace('v255', f'v{V_T0}'))
        a(f"  s_add_u32 s{S_T}, s{S_PBASE}, {(k & 1)*4096 + (k >> 1)*HSTR}")
        for qt in range(4):
            d = 128 + (k*4+qt)*4
            a(f"  buffer_store_dwordx4 v[{d}:{d+3}], v{V_L16}, s[{SRD_WS}:{SRD_WS+3}], s{S_T} offen offset:{qt*1024} sc1")
        a(f"  s_setpc_b64 s[{S_RET}:{S_RET+1}]")
        if k < 3: a.label(f"L_evk{k}")
segs.append(('loop2', il, len(a.lines)))
it = len(a.lines)
if OPT['tal']: a(f".p2align {OPT['tal']}")
a.label("L_tail")
stamp(4)
a(f"  v_readfirstlane_b32 s{S_T}, v{V_POLL}")
a("  s_nop 3")
a(f"  s_cmp_ge_u32 s{S_T}, 8")
a("  s_cbranch_scc1 L_spin1_done")
a(f"  v_mov_b32 v{V_T0}, 0")
a(f"  s_lshl_b32 s{S_T+2}, s{S_R}, 2")
spin("L_spin1", SRD_D, V_T0, f"s{S_T+2}", 8)
if OPT['sib']:
    a(f"  s_lshr_b32 s{S_T}, s{S_PBASE}, 16")
    a(f"  s_xor_b32 s{S_T}, s{S_T}, 1")
    a(f"  s_lshl_b32 s{S_T}, s{S_T}, 7")
    a(f"  s_add_u32 s{S_T}, s{S_T}, {MBOX}")
    a(f"  v_mov_b32 v{V_T0}, 4")
    a(f"  buffer_load_dword v{V_L+2}, v{V_T0}, s[{SRD_WS}:{SRD_WS+3}], s{S_T} offen sc1")
gl = [part_load(0, b_ >> 3, b_ & 7, 128 + 4*b_) for b_ in range(16)]
for p in range(56, 63):
    if p % 2 == 0: barrier_T()
    else: a("  s_waitcnt lgkmcnt(0)")
    if p in (56, 58, 60, 61): period(p, dma=[gl.pop(0) for _ in range(4)])
    elif p == 62:
        ex = []
        for pos in (4, 5):
            pl = produce_list(pos); ex += [pl[:4], [pl[4]], [], [pl[5]], [], [pl[6]], [], [pl[7]]]
        period(p, last=True, extra=[[]]*16 + ex)
    else: period(p)
stamp(4)
if OPT['sib']: a(f"  v_readfirstlane_b32 s{S_SIB}, v{V_L+2}")
a("  s_waitcnt lgkmcnt(0)")
THR = 0x53800000 if not OPT['force_redo'] else 0x3f000000
prog = v_half(31, 0) + produce_list(0) + produce_list(1)
prog += pv_half(30, 1, A_K) + sum_pair(30, 2)
prog += [f"  s_mov_b32 s{S_SP}, {THR:#x}", f"  s_mov_b64 vcc, 0"]
for qt in (3, 2, 1, 0): prog += sm_ops(63, qt)
prog += v_half(31, 1, A_K) + ["  s_barrier"] + produce_list(2)
prog += sum_pair(31, 3) + sum_pair(31, 2)
for qt in (1, 0, 3, 2):
    lr = (ls_reg(qt) + (qt < 2)) if qt in SUMQT else V_L + qt
    if qt not in SUMQT: prog += capture(lambda: xlane_reduce(V_L+qt, 'v_add_f32', V_L+2+qt))
    elif OPT['one1']: prog += capture(lambda: xlane_reduce(lr, 'v_add_f32', lr+1))
    prog += [f"  v_cmp_ngt_f32 s[{S_T+2}:{S_T+3}], s{S_SP}, v{lr}", f"  s_or_b64 vcc, vcc, s[{S_T+2}:{S_T+3}]",
             f"  v_rcp_f32 v{V_NEGM+2*qt}, v{lr}"]
FLG = [f"  s_cmp_lg_u64 vcc, 0", f"  s_cselect_b32 s{S_T}, 1, 0", f"  v_mov_b32 v56, s{S_T}", f"  ds_write_b32 v{V_T1}, v56"]
prog += [f"  s_lshl_b32 s{S_T+1}, s{S_W}, 2", f"  s_add_u32 s{S_T+1}, s{S_T+1}, {RB+3*16384}",
         f"  v_and_b32 v{V_T1}, 3, v{V_LANE}", f"  v_lshlrev_b32 v{V_T1}, 12, v{V_T1}", f"  v_add_u32 v{V_T1}, s{S_T+1}, v{V_T1}"]
if not OPT['ochk']: prog += FLG
prog += [f"  s_lshl_b32 s{S_T}, s{S_W}, 14", f"  v_add_u32 v{V_T0}, s{S_T}, v{V_L16}"]
gpos[0] = 8
if OPT['af']:
    prog += [f"  v_add_u32 v{60+nt}, {3*16384}, v{V_AA+nt}" for nt in range(4)] + ["  s_waitcnt vmcnt(12)"]
    af = capture(a_first)
    for nt in range(4): af = [l.replace(f", v{V_AA+4+nt} ", f", v{60+nt} ") for l in af]
    prog += af
prog += pv_half(31, 0) + pv_half(31, 1, A_K)
def norm(c, qt, pk):
    t = qt * 12; L = []
    L += [f"  v_accvgpr_read_b32 v{t+k}, a{A_O+((2*c)*4+qt)*4+k}" for k in range(4)]
    L += [f"  v_accvgpr_read_b32 v{t+4+k}, a{A_O+((2*c+1)*4+qt)*4+k}" for k in range(4)]
    if pk: L += [f"  v_pk_mul_f32 v[{t+2*k}:{t+2*k+1}], v[{t+2*k}:{t+2*k+1}], v[{V_NEGM+2*qt}:{V_NEGM+2*qt+1}] op_sel_hi:[1,0]" for k in range(4)]
    else: L += [f"  v_mul_f32 v{t+k}, v{t+k}, v{V_NEGM+2*qt}" for k in range(8)]
    L += [f"  v_cvt_pk_bf16_f32 v{t+8+k}, v{t+2*k}, v{t+2*k+1}" for k in range(4)]
    L += [f"  ds_write_b128 v{V_T0}, v[{t+8}:{t+11}] offset:{(c*4+qt)*1024}"]
    return L
def ochk(c, qt):
    return mf(52, V_ONES, qt*12+8, None if (c, qt) == (0, 0) else 52)
NOV = OPT['nov']
todo = [(c, qt) for c in range(4) for qt in range(4)]
if OPT['ochk']:
    NOV = min(NOV, 4)
for c, qt in todo[:NOV]: prog += norm(c, qt, False)
if OPT['ochk']: prog += [ochk(c, qt) for c, qt in todo[:NOV]]
a('; ---- attention tail, row sums, range check, normalisation')
emit_sched(prog, 'tail')
stamp(); stamp(4)
if OPT['stamps']:
    a(f"  s_memrealtime s[{S_RET}:{S_RET+1}]")
    a("  s_waitcnt lgkmcnt(0)")
    a(f"  s_mov_b32 s39, s{S_RET}")
gpos[0] = 8
for nt in range(4): a(f"  v_add_u32 v{V_AA+4+nt}, {3*16384}, v{V_AA+nt}")
if not OPT['af']:
    a("  s_waitcnt vmcnt(12)")
    a_first()
pend_ = None
align8()
for c, qt in todo[NOV:]:
    L_ = norm(c, qt, True)
    if pend_: L_.insert(1, pend_)
    for l in L_: a(l)
    pend_ = ochk(c, qt) if OPT['ochk'] else None
if OPT['ochk']:
    a("  s_nop 0")
    a(pend_)
    a("  s_nop 7")
    a(f"  v_cmp_u_f32 s[{S_T+2}:{S_T+3}], v53, v53")
    a("  s_nop 2")
    a(f"  s_or_b64 vcc, vcc, s[{S_T+2}:{S_T+3}]")
    for l in FLG: a(l)
a("  s_waitcnt lgkmcnt(0)")
a("  s_barrier")
a(f"  s_add_u32 s{S_T}, s{S_VM0}, {3*16384}")
a(f"  v_mov_b32 v{V_T0}, s{S_T}")
a(f"  ds_read_b128 v[0:3], v{V_T0}")
b_reload(False, wait=False)
a("  s_waitcnt lgkmcnt(8)")
a("  v_or_b32 v0, v0, v1")
a("  v_or3_b32 v0, v0, v2, v3")
a("  s_nop 0")
a(f"  v_readfirstlane_b32 s{S_T}, v0")
a(f"  s_andn2_b32 s{S_T}, s{S_T}, s{S_REDO}")
if not OPT['noredo']: a("  s_cbranch_scc1 L_redo")
produce_slot(3); produce_slot(4)
a(f"  s_lshl_b32 s{S_T}, s{S_W}, 1")
a(f"  s_sub_u32 s{S_OWN}, s{S_G}, s{S_T}")
if OPT['sib']:
    a(f"  s_getreg_b32 s{S_T}, hwreg(HW_REG_XCC_ID, 0, 4)")
    a(f"  s_xor_b32 s{S_T+1}, s{S_OWN}, 1")
    a(f"  s_cmp_eq_u32 s{S_T}, s{S_SIB}")
    a(f"  s_cselect_b32 s{S_SIB}, s{S_T+1}, 99")
stamp()
gemm_first(); gemm_call(7); set_stream('wo', 1); gemm_call(7)
LOQ = [192, 196, 200, 204, 216, 220, 224, 228]
if OPT['own']:
    for k in range(4): a(f"  v_mov_b32 v{248+k}, 0")
    a("  s_nop 1")
    for k in range(4): a(f"  v_mfma_f32_32x32x16_bf16 a[{16*k}:{16*k+15}], v[248:251], v[248:251], 0")
st0 = store_partial(1, 0, dst=LOQ, defer=True, sreg=S_SP)
a(f"  s_mov_b32 s{SRD_X}, s{P_X}")
a(f"  s_mov_b32 s{SRD_X+1}, s{P_X+1}")
a(f"  s_mov_b32 s{SRD_X+2}, {2048*512*2}")
GL, XL, SL = 128, 248, 64
S_MB, S_DONE, S_M, S_NEW = S_KOFF, S_VOFF, S_LOOP, S_KM0
a(f"  s_lshr_b32 s{S_MB}, s{S_PBASE}, {WGSH}")
a(f"  s_lshl_b32 s{S_MB}, s{S_MB}, 7")
a(f"  s_add_u32 s{S_MB}, s{S_MB}, {MBOX}")
a(f"  s_add_u32 s{S_XO}, s{S_XO}, s{S_HSW}")
a(f"  s_xor_b32 s{S_HSW}, s{S_XO}, 128")
if OPT['fst']:
    a(f"  v_and_b32 v{V_ZERO}, 15, v{V_LANE}")
    a(f"  v_lshlrev_b32 v{V_ZERO}, 2, v{V_ZERO}")
else: a(f"  v_mov_b32 v{V_ZERO}, 0")
a(f"  v_and_b32 v{V_T0}, 15, v{V_LANE}")
a(f"  v_lshlrev_b32 v{V_T0}, 10, v{V_T0}")
if OPT['o4']:
    a(f"  v_and_b32 v{V_T1}, 16, v{V_LANE}")
    a(f"  v_lshl_add_u32 v{V_T0}, v{V_T1}, 1, v{V_T0}")
    a(f"  v_bfe_u32 v{V_T1}, v{V_LANE}, 5, 1")
    a(f"  v_lshl_add_u32 v{V_XO}, v{V_T1}, 4, v{V_T0}")
else:
    a(f"  v_lshrrev_b32 v{V_T1}, 4, v{V_LANE}")
    a(f"  v_lshl_add_u32 v{V_XO}, v{V_T1}, 3, v{V_T0}")
POLL = f"  buffer_load_dword v{V_POLL}, v{V_ZERO}, s[{SRD_WS}:{SRD_WS+3}], s{S_MB} offen sc1"
XLD = [f"  buffer_load_dwordx2 v[{XL+2*k}:{XL+2*k+1}], v{V_XO}, s[{SRD_X}:{SRD_X+3}], s{S_HSW if k >> 1 else S_XO} offen offset:{(k&1)*32}" for k in range(4)]
if OPT['o4']: XLD = [f"  buffer_load_dwordx4 v[{XL+4*i}:{XL+4*i+3}], v{V_XO}, s[{SRD_X}:{SRD_X+3}], s{S_HSW if i else S_XO} offen" for i in range(2)]
if OPT['xvol'] & 2:
    a(f"  s_bitcmp1_b32 s{S_W}, 0")
    a(f"  s_cselect_b32 s{S_FB}, 0x40000000, s{S_FB}")
S_SIG = S_KV0
a(f"  s_mov_b32 s{SRD_D}, s{P_WS}")
a(f"  s_mov_b32 s{SRD_D+1}, s{P_WS+1}")
a(f"  s_lshl_b32 s{S_SIG}, s{S_R}, 10")
a(f"  s_add_u32 s{S_SIG}, s{S_SIG}, {MBOX}")
a(f"  s_add_u32 s{S_T}, s{S_SIG}, 1024")
a(f"  s_cmp_eq_u32 s{S_W}, 0")
a(f"  s_cselect_b32 s{SRD_D+2}, s{S_T}, 0")
a(f"  s_lshl_b32 s{S_M}, 1, s{S_G}")
a(f"  v_mov_b32 v{V_T0}, s{S_M}")
a(f"  v_lshlrev_b32 v{V_T1}, 7, v{V_LANE}")
SIG = SIG2 = f"  buffer_atomic_add v{V_T0}, v{V_T1}, s[{SRD_D}:{SRD_D+3}], s{S_SIG} offen sc1"
if OPT['fst']:
    a(f"  v_lshl_add_u32 v{V_T1}, s{S_G}, 2, v{V_T1}")
    SIG = f"  buffer_store_dword v{V_T0}, v{V_T1}, s[{SRD_D}:{SRD_D+3}], s{S_SIG} offen sc1"
    SIG2 = f"  buffer_store_dword v{V_T0}, v{V_T1}, s[{SRD_D}:{SRD_D+3}], s{S_SIG} offen offset:32 sc1"
def getmask(sreg):
    if OPT['fst']:
        a(f"  v_cmp_ne_u32 vcc, 0, v{V_POLL}")
        a("  s_nop 3")
        a(f"  s_and_b32 s{sreg}, vcc_lo, 0xffff")
    else:
        a(f"  v_readfirstlane_b32 s{sreg}, v{V_POLL}")
SEL = 236
sel = [f"  v_lshrrev_b32 v{V_ONE_LO}, 4, v{V_LANE}", f"  v_bfe_u32 v{V_ONE_HI}, v{V_LANE}, 2, 2",
       f"  v_cmp_eq_u32 vcc, v{V_ONE_LO}, v{V_ONE_HI}", f"  v_and_b32 v{V_ONE_LO}, 1, v{V_LANE}", f"  v_lshlrev_b32 v{V_ONE_LO}, 4, v{V_ONE_LO}",
       f"  v_mov_b32 v{V_ONE_HI}, 0x3f80", f"  v_lshlrev_b32 v{V_ONE_HI}, v{V_ONE_LO}, v{V_ONE_HI}", f"  v_cndmask_b32 v{V_ONE_HI}, 0, v{V_ONE_HI}, vcc",
       f"  v_and_b32 v{V_ONE_LO}, 2, v{V_LANE}", f"  v_cmp_eq_u32 vcc, 0, v{V_ONE_LO}", f"  v_mov_b32 v{SEL}, 0", f"  v_mov_b32 v{SEL+1}, 0",
       f"  v_cndmask_b32 v{SEL+2}, 0, v{V_ONE_HI}, vcc", f"  v_cndmask_b32 v{SEL+3}, v{V_ONE_HI}, v{SEL}, vcc", f"  v_mov_b32 v{SEL+4}, 0", f"  v_mov_b32 v{SEL+5}, 0"]
def msum(base, acc, bt='v'):
    return [mf(acc + 4*h, SEL + 2 - 2*h, base + 4*s_, None if s_ == 0 else acc + 4*h, 'v', 'v', bt) for s_ in range(8) for h in range(2)]
SL = 0
def redirect(b_):
    return [f"  s_bitcmp1_b32 s{S_NEW}, {b_}", f"  s_cselect_b32 s{S_T+1}, s{S_FB}, 0x40000000",
            f"  s_add_u32 s{S_T+2}, s{S_T+1}, {PART_KIND + ((b_ & 7) << WGSH) + (b_ >> 3)*HSTR}",
            f"  buffer_load_dwordx4 a[{SL+4*b_}:{SL+4*b_+3}], v{V_L16}, s[{SRD_WS}:{SRD_WS+3}], s{S_T+2} offen sc1"]
vq = [f"slot{k}" for k in range(7) for _ in range(4)]
st0 = list(st0)
def trickle():
    if OPT['trk']:
        a(st0.pop(0)); vq.append('st')
trickle()
gemm_first(); vq += ['slot7']*4 + ['slot8']*4
if OPT['trk']:
    for k in range(3):
        trickle(); gemm_call(2); vq += [f"slot{9+2*k}"]*4 + [f"slot{10+2*k}"]*4
    if OPT['trk'] == 2: trickle()
    gemm_call(1); vq += ['slot15']*4
else:
    gemm_call(7); vq += [f"slot{k}" for k in range(9, 16) for _ in range(4)]
if OPT['e1']:
    a(POLL); vq.append('poll1')
def younger(tag): return len(vq) - 1 - max(i for i, t in enumerate(vq) if t == tag)
a(f"  s_mov_b32 s{S_DONE}, 0")
for j in range(9, 16):
    vm = []; tags = []; xv = None
    w_ = younger(f"slot{j+2}") if j < 14 else 63
    if j in (9, 10):
        vm = [[x] for x in st0[:4]]; tags = ['st']*len(vm); st0 = st0[4:]
    if j == 11 and not OPT['xl']: vm = [[x] for x in XLD]; tags = ['x']*len(XLD)
    if OPT['e1'] and j in (12, 13):
        if j == 12:
            w_ = younger('poll1')
            xv = [(4, f"  v_readfirstlane_b32 s{S_NEW}, v{V_POLL}"), (8, f"  s_and_b32 s{S_DONE}, s{S_NEW}, 0xff")]
        vm = [redirect(4*(j-12)+k) for k in range(4)]; tags = ['e1']*4
    if j == 14: vm = [[""], [""], [""], [POLL]]; tags = ['poll']
    if j == 15 and OPT['ilv']:
        prog = capture(lambda: (gemm_inl(vm=[], vmw=63, noread=True), store_partial(1, 1)))
        prog = [l for l in prog if 's_waitcnt' not in l]
        a("  s_nop 3")
        out, t = schedule(prog, vmgap=40)
        for l in out: a(l)
        a("  s_nop 1")
        break
    gemm_inl(vm=vm, vmw=w_, noread=(j >= 14), fillv=(sel if j == 14 else None), xvm=xv)
    vq += tags
stamp(5)
if not OPT['ilv']: store_partial(1, 1)
stamp(); stamp(5)
GA, T = 16, 48
OWNQ = 64
if OPT['own']:
    a(f"  s_cmp_gt_u32 s{S_OWN}, 1")
    a("  s_cbranch_scc1 L_own_done")
    a(f"  v_add_u32 v{V_BA}, s{S_VM0}, v{V_L16}")
    a(f"  s_cmp_eq_u32 s{S_OWN}, 1")
    a("  s_cbranch_scc1 L_own1")
    for c in range(2):
        if c: a.label("L_own1")
        if OPT['sib']:
            o = 1 - c
            a(f"  s_cmp_eq_u32 s{S_SIB}, 99")
            a(f"  s_cbranch_scc1 L_nosib{c}")
            a(f"  s_add_u32 s{S_T}, s{S_PBASE}, {PART_KIND + o*4096}")
            a(f"  s_add_u32 s{S_T+1}, s{S_T}, 8192")
            for qt in range(4):
                x = V_ACC + ((2*o)*4+qt)*4
                a(f"  buffer_store_dwordx4 v[{LOQ[4*o+qt]}:{LOQ[4*o+qt]+3}], v{V_L16}, s[{SRD_WS}:{SRD_WS+3}], s{S_T} offen offset:{qt*1024}")
                a(f"  buffer_store_dwordx4 v[{x}:{x+3}], v{V_L16}, s[{SRD_WS}:{SRD_WS+3}], s{S_T+1} offen offset:{qt*1024}")
            a.label(f"L_nosib{c}")
        for qt in range(4):
            a(f"  ds_write_b128 v{V_BA}, v[{LOQ[4*c+qt]}:{LOQ[4*c+qt]+3}] offset:{qt*1024}")
            x = V_ACC + ((2*c)*4+qt)*4
            a(f"  ds_write_b128 v{V_BA}, v[{x}:{x+3}] offset:{16384+qt*1024}")
        if c == 0: a("  s_branch L_own_w")
    a.label("L_own_w")
    if OPT['sib']:
        a(f"  s_cmp_eq_u32 s{S_SIB}, 99")
        a("  s_cbranch_scc1 L_own_done")
        a("  s_waitcnt vmcnt(0)")
    a.label("L_own_done")
    a(f"  s_lshr_b32 s{S_T}, s{S_G}, 1")
    a(f"  s_lshl_b32 s{S_T}, s{S_T}, 2")
    a(f"  s_add_u32 s{S_T}, s{S_T}, s{S_W}")
    a(f"  s_lshl_b32 s{S_T}, s{S_T}, 10")
    a(f"  s_add_u32 s{S_T}, s{S_T}, {RB}")
    a("  s_waitcnt lgkmcnt(0)")
    a(f"  v_add_u32 v{V_BA}, s{S_T}, v{V_L16}")
a("  s_waitcnt vmcnt(8)")
a("  s_barrier")
a(SIG)
if OPT['own']:
    a(f"  ds_read_b128 v[{OWNQ}:{OWNQ+3}], v{V_BA}")
    a(f"  ds_read_b128 v[{OWNQ+4}:{OWNQ+7}], v{V_BA} offset:16384")
getmask(S_NEW)
a(f"  v_lshlrev_b32 v{V_T0}, 8, v{V_T0}")
a("  s_nop 2")
if OPT['own']:
    a(f"  s_mul_i32 s{S_M}, s{S_M}, 0x101")
    a(f"  s_or_b32 s{S_DONE}, s{S_DONE}, s{S_M}")
    a(f"  s_mov_b32 s{S_M}, s{S_NEW}")
else:
    a(f"  s_or_b32 s{S_NEW}, s{S_NEW}, s{S_M}")
    a(f"  s_lshl_b32 s{S_M}, s{S_M}, 8")
    a(f"  s_or_b32 s{S_M}, s{S_M}, s{S_NEW}")
W1 = list(range(8, 15)) if OPT['e1'] else list(range(7))
W2 = ([15] if OPT['e1'] else list(range(7, 16))) if OPT['r2'] else []
S_SBM, S_SBO = S_FOFF, S_ROT7
if OPT['sib']:
    a(f"  s_xor_b32 s{S_T}, s{S_G}, 1")
    a(f"  s_lshl_b32 s{S_SBO}, s{S_T}, 16")
    a(f"  s_add_u32 s{S_SBO}, s{S_SBO}, s{S_FB}")
    a(f"  s_lshl_b32 s{S_T}, 0x101, s{S_T}")
    a(f"  s_cmp_eq_u32 s{S_SIB}, 99")
    a(f"  s_cselect_b32 s{S_SBM}, 0, s{S_T}")
    a(f"  s_andn2_b32 s{S_NEW}, s{S_NEW}, s{S_SBM}")
    for k in range(8): a(f"  v_mov_b32 v{OWNQ+8+k}, 0")
a(f"  s_and_b32 s{S_NEW}, s{S_NEW}, {sum(1 << b_ for b_ in W1 + W2):#x}")
a(f"  s_or_b32 s{S_DONE}, s{S_DONE}, s{S_NEW}")
fl = []
for s_ in W1:
    r_ = redirect(s_); fl += [r_[:2], r_[2:]]
def silu(acc):
    L = [f"  v_mul_f32 v{acc+e}, v{acc+e}, v{V_RSO}" for e in range(8)]
    def rp(r): return [f"  v_cvt_pk_bf16_f32 v{T+(r&2)//2}, v{r}, v{r+1}", f"  v_lshlrev_b32 v{r}, 16, v{T+(r&2)//2}", f"  v_and_b32 v{r+1}, 0xffff0000, v{T+(r&2)//2}"]
    for j in range(4): L += rp(acc+2*j)
    L += [f"  v_mul_f32 v{T+4+e}, 0xbfb8aa3b, v{acc+e}" for e in range(8)]
    L += [f"  v_exp_f32 v{T+4+e}, v{T+4+e}" for e in range(8)]
    L += [f"  v_add_f32 v{T+4+e}, 1.0, v{T+4+e}" for e in range(8)]
    L += [f"  v_rcp_f32 v{T+4+e}, v{T+4+e}" for e in range(8)]
    L += [f"  v_mul_f32 v{acc+e}, v{acc+e}, v{T+4+e}" for e in range(8)]
    for j in range(4): L += rp(acc+2*j)
    return L
s0 = silu(GA)
for g, l in enumerate(msum(GL, GA) + msum(GL + 32, GA + 8)):
    a(l)
    if g < len(fl):
        for x in fl[g]: a(x)
    if g >= 23:
        a(s0.pop(0)); a(s0.pop(0))
for b_ in W2:
    for l in redirect(b_): a(l)
    for _ in range(5):
        if s0: a(s0.pop(0))
s1 = silu(GA + 8)
if OPT['sv'] >= 1:
    for l in s0: a(l)
    s0 = []
if OPT['sv'] >= 2:
    for l in s1: a(l)
    s1 = []
stamp(5)
a(f"  s_waitcnt vmcnt({8 + len(W2)})")
a("  s_barrier")
a(SIG2)
stamp(5)
def fround(first=False):
    if not first:
        if OPT['pslp']: a(f"  s_sleep {OPT['pslp']}")
        a(POLL)
        a("  s_waitcnt vmcnt(0)")
        getmask(S_M)
        a("  s_nop 3")
    a(f"  s_call_b64 s[{S_RET}:{S_RET+1}], L_round")
fround(True)
if OPT['xl']:
    for l in XLD: a(l)
XU = 72
def SAr(i): return 8*i
pre_ = []
for i in range(2):
    pre_ += [mf(SAr(i) + 4*h, SEL + 2 - 2*h, OWNQ + 4*i, None) for h in range(2)]
    pre_ += [f"  v_permlane16_swap_b32 v{XL+4*i}, v{XL+4*i+2}", f"  v_permlane16_swap_b32 v{XL+4*i+1}, v{XL+4*i+3}"]
    for j in range(4):
        xr = XL + 4*i + j
        pre_ += [f"  v_lshlrev_b32 v{XU+8*i+2*j}, 16, v{xr}", f"  v_and_b32 v{XU+8*i+2*j+1}, 0xffff0000, v{xr}"]
a("  s_waitcnt lgkmcnt(0)")
emit_sched(s0 + s1 + pre_, 'silu')
stamp(5)
a(f"  s_mov_b32 s{SRD_D}, s{P_OUT}")
a(f"  s_mov_b32 s{SRD_D+1}, s{P_OUT+1}")
a(f"  s_mov_b32 s{SRD_D+2}, {2048*512*2}")
a(f"  s_mov_b32 s{S_CNT}, {OPT['spin']}")
def ost4(i): return f"  buffer_store_dwordx4 v[{XL+4*i}:{XL+4*i+3}], v{V_XO}, s[{SRD_D}:{SRD_D+3}], s{S_HSW if i else S_XO} offen"
def fin_m(i):
    SA = SAr(i)
    return [mf(SA + 4*h, SEL + 2 - 2*h, SL + i*32 + 4*s_, SA + 4*h, 'v', 'v', 'a') for h in range(2) for s_ in range(8)]
def fin_v(i):
    SA = SAr(i); L = []
    for h in range(2):
        t = T + 4*i + 2*h
        rp = lambda r, t_: [f"  v_cvt_pk_bf16_f32 v{t_}, v{r}, v{r+1}", f"  v_lshlrev_b32 v{r}, 16, v{t_}", f"  v_and_b32 v{r+1}, 0xffff0000, v{t_}"]
        if OPT['ffma']:
            L += [f"  v_fma_f32 v{SA+4*h+e}, v{SA+4*h+e}, v{GA+8*i+4*h+e}, v{XU+8*i+4*h+e}" for e in range(4)]
        else:
            for j in range(2): L += rp(SA+4*h+2*j, t+j)
            L += [f"  v_mul_f32 v{SA+4*h+e}, v{SA+4*h+e}, v{GA+8*i+4*h+e}" for e in range(4)]
            for j in range(2): L += rp(SA+4*h+2*j, t+j)
            L += [f"  v_add_f32 v{SA+4*h+e}, v{SA+4*h+e}, v{XU+8*i+4*h+e}" for e in range(4)]
        L += [f"  v_cvt_pk_bf16_f32 v{XL+4*i+2*h+j}, v{SA+4*h+2*j}, v{SA+4*h+2*j+1}" for j in range(2)]
    L += [f"  v_permlane16_swap_b32 v{XL+4*i}, v{XL+4*i+2}", f"  v_permlane16_swap_b32 v{XL+4*i+1}, v{XL+4*i+3}"]
    return L
for i in range(2):
    a.label(f"L_sp{i}")
    a(f"  s_cmp_eq_u32 s{S_DONE}, 0xffff")
    a(f"  s_cbranch_scc1 {'L_both' if i == 0 else 'L_sp1_done'}")
    a(f"  s_bfe_u32 s{S_T+3}, s{S_DONE}, {(8 << 16) | (8*i)}")
    fround()
    if i == 0:
        a(f"  s_cmp_eq_u32 s{S_T+3}, 0xff")
        a(f"  s_cbranch_scc1 L_sp{i}_done")
    a(f"  s_sub_u32 s{S_CNT}, s{S_CNT}, 1")
    a(f"  s_cbranch_scc0 L_sp{i}")
    a(f"  s_mov_b32 s{S_CNT}, 0")
    if OPT['pad']:
        a(f"  s_branch L_sp{i}_done")
        a.label(f"L_st{i}"); a(f"  s_branch {'L_st1' if i == 0 else 'L_padB'}")
    a.label(f"L_sp{i}_done")
    if i == 0: emit_sched(fin_m(0) + fin_v(0), 'fin0')
    else:
        a("  s_waitcnt vmcnt(0)")
        emit_sched([ost4(0)] + fin_m(1) + fin_v(1) + [ost4(1)], 'fin1')
a("  s_branch L_fin")
ib = len(a.lines)
if OPT['pad']:
    a.label("L_padB"); a("  s_branch L_padR")
a.label("L_both")
a("  s_waitcnt vmcnt(0)")
emit_sched(fin_m(0) + fin_m(1) + fin_v(0) + [ost4(0)] + fin_v(1) + [ost4(1)], 'both')
a.label("L_fin")
stamp(); stamp(5)
if OPT['stamps']:
    a("  s_waitcnt vmcnt(0)")
    stamp(0)
    a(f"  s_memrealtime s[{S_T}:{S_T+1}]")
    a("  s_waitcnt lgkmcnt(0)")
    n = nstamp[0]
    for i in range(n):
        a(f"  v_writelane_b32 v0, s{S_STAMP+2*i}, {i}")
    a(f"  v_writelane_b32 v0, s{S_T}, 15")
    a(f"  v_writelane_b32 v0, s74, 14")
    a(f"  v_writelane_b32 v0, s38, 12")
    a(f"  v_writelane_b32 v0, s39, 13")
    a(f"  s_lshl_b32 s{S_T}, s2, 2")
    a(f"  s_add_u32 s{S_T}, s{S_T}, s{S_W}")
    a(f"  s_lshl_b32 s{S_T}, s{S_T}, 6")
    a(f"  s_add_u32 s{S_T}, s{S_T}, {STAMP_OFF}")
    a(f"  v_lshlrev_b32 v1, 2, v{V_LANE}")
    a(f"  v_cmp_gt_u32 vcc, 16, v{V_LANE}")
    a(f"  s_and_saveexec_b64 s[{S_T+2}:{S_T+3}], vcc")
    a(f"  buffer_store_dword v0, v1, s[{SRD_WS}:{SRD_WS+3}], s{S_T} offen")
a.label("L_end")
a("  s_endpgm")
segs.append(('tail', 'tailjoin', (il, itail, it, len(a.lines))))
ir = len(a.lines)
if OPT['pad']:
    a.label("L_padR"); a("  s_mov_b64 exec, -1"); a("  s_branch L_walk_ret")
a.label("L_round")
a(f"  s_andn2_b32 s{S_NEW}, s{S_M}, s{S_DONE}")
a(f"  s_or_b32 s{S_DONE}, s{S_DONE}, s{S_M}")
if OPT['sib']:
    a(f"  s_and_b32 s{S_T}, s{S_NEW}, s{S_SBM}")
    a("  s_cbranch_scc0 L_rsib")
    a(f"  s_or_b32 s{S_DONE}, s{S_DONE}, s{S_SBM}")
    a(f"  s_andn2_b32 s{S_NEW}, s{S_NEW}, s{S_SBM}")
    for i in range(2):
        a(f"  s_add_u32 s{S_T}, s{S_SBO}, {PART_KIND + i*8192}")
        a(f"  buffer_load_dwordx4 v[{OWNQ+8+4*i}:{OWNQ+11+4*i}], v{V_L16}, s[{SRD_WS}:{SRD_WS+3}], s{S_T} offen{['', ' nt', ' sc0'][OPT['sib']-1]}")
    a.label("L_rsib")
for h in range(4):
    a(f"  s_and_b32 s{S_T}, s{S_NEW}, {0xf << (4*h)}")
    a(f"  s_cbranch_scc0 L_rs{h}")
    for b_ in range(4*h, 4*h+4):
        pl = part_load(1, b_ >> 3, b_ & 7, SL + b_*4, 'a')
        a(pl[0])
        a(f"  s_bitcmp1_b32 s{S_NEW}, {b_}")
        a(f"  s_cselect_b64 exec, -1, 0")
        a(pl[1])
    a("  s_mov_b64 exec, -1")
    a.label(f"L_rs{h}")
a(f"  s_setpc_b64 s[{S_RET}:{S_RET+1}]")
_i = len(a.lines)
a.lines.extend(W3_CODE)
segs.append(('w3', _i, len(a.lines)))
if OPT['pad']:
    a.label("L_walk"); a("  s_mov_b64 exec, 0"); a("  s_branch L_padL")
_i = len(a.lines)
a.lines.extend(EVEN_CODE)
if EVEN_CODE: segs.append(('even', _i, len(a.lines)))
a("; ---- fallback: true row max over all keys, then repeat the attention")
a.label("L_redo")
a("  s_waitcnt lgkmcnt(0)")
a(f"  s_mov_b32 s{S_REDO}, 1")
a(f"  s_mov_b32 s{S_KOFF}, s{S_KV0}")
a(f"  s_mov_b32 s{S_LOOP}, 32")
a(f"  v_mov_b32 v{V_T0}, 0xff800000")
for qt in range(4): a(f"  v_mov_b32 v{V_NEGM+qt*4}, v{V_T0}")
a.label("L_redo_loop")
a("  s_waitcnt vmcnt(0) lgkmcnt(0)")
a("  s_barrier")
k_tile_dma(0)
a("  s_waitcnt vmcnt(0)")
a("  s_barrier")
for u in range(2):
    for i in range(8): a(k_read(u, i >> 2, i & 3))
    a("  s_waitcnt lgkmcnt(0)")
    for l in qk_mfmas(0, zero=True): a(l)
    a("  s_nop 7")
    for qt in range(4):
        m = V_NEGM + qt*4
        for kt in range(2):
            x = s_reg(0, kt, qt)
            a(f"  v_max3_f32 v{m}, v{x}, v{x+1}, v{m}")
            a(f"  v_max3_f32 v{m}, v{x+2}, v{x+3}, v{m}")
a(f"  s_sub_u32 s{S_LOOP}, s{S_LOOP}, 1")
a(f"  s_cmp_lg_u32 s{S_LOOP}, 0")
a("  s_cbranch_scc1 L_redo_loop")
for qt in range(4):
    m = V_NEGM + qt*4
    xlane_reduce(m, 'v_max_f32', m+1)
    a(f"  v_xor_b32 v{m}, 0x80000000, v{m}")
    for k in range(1, 4): a(f"  v_mov_b32 v{m+k}, v{m}")
a("  s_barrier")
a(f"  s_mov_b32 s{S_KOFF}, s{S_KV0}")
a(f"  s_mov_b32 s{S_VOFF}, s{S_KV0}")
for t in range(4): k_tile_dma(t)
for t in range(2): v_tile_dma(t)
a(f"  s_mov_b32 s{S_POFF}, s{S_SV_POFF}")
a("  s_waitcnt vmcnt(0)")
a("  s_barrier")
zero_o()
for l in attn_init(): a(l)
emit_sched(KR01 + ["  s_barrier"] + qk_mfmas(0, order=QORD) + head_common(), 'redo head')
a(f"  s_mov_b32 s{S_LOOP}, 7")
a("  s_branch L_p2")
segs.append(('redo', ir, len(a.lines)))
a(f".p2align {OPT['gal']}")
if OPT['gst']:
    a.label("L_gst"); a("  s_branch L_gst_ret"); a("  s_nop 0")
ig = len(a.lines)
ORD = list(range(12)) if OPT['gst'] < 2 else [2, 3, 4, 5, 6, 7, 8, 9, 10, 11, 0, 1]
for pos in ORD:
    a.label(f"L_gemm{pos}")
    gemm_step(pos, False, pos in CKPT)
    if pos == ORD[-1]:
        a(f"  s_cbranch_scc0 L_gemm{ORD[0]}" if pos in CKPT else f"  s_branch L_gemm{ORD[0]}")
    elif pos in CKPT: a("  s_cbranch_scc1 L_gemm_ret")
a.label("L_gemm_ret")
a(f"  s_setpc_b64 s[{S_RET}:{S_RET+1}]")
segs.append(('gemm2', ig, len(a.lines)))
a.label("L_code_end")

a('.section .rodata,"a"')
a(".p2align 6")
a(kernel_desc(NAME + "_kernel", 512, 102, 256))

errs = []
for s in segs:
    if s[1] == 'tailjoin':
        il_, itail_, it_, end_ = s[2]
        errs += hazard.check(a.lines[il_:itail_] + a.lines[it_:end_], 'tail')
    elif s[0].endswith('2'):
        errs += hazard.check(a.lines[s[1]:s[2]] * 2, s[0])
    else:
        errs += hazard.check(a.lines[s[1]:s[2]], s[0])
for e in errs[:40]: print("HAZ", e)
if OPT['pad']:
    import subprocess
    tmp = a.text().replace("s_branch L_pad0", "s_branch L_padB")
    r_ = subprocess.run(["llvm-mc", "-triple=amdgcn-amd-amdhsa", "-mcpu=gfx950", "--show-encoding"], input=tmp, capture_output=True, text=True)
    assert r_.returncode == 0, r_.stderr[:500]
    sizes = [len(m.split(',')) for m in _re.findall(r'encoding: \[([^\]]*)\]', r_.stdout)]
    out = []; addr = None; k = 0; npad = 0; active = False; want = None; prev_m = False
    for l in a.lines:
        t = l.split(';')[0].strip()
        if t == NAME + "_kernel:": addr = 0x300
        if t in ("L_walk_ret:", "L_tail:"): active = True
        if t == "L_padL:": want = None
        if t == "L_sp0:" or (t == "L_loop:" and OPT['pad'] < 2): active = False; want = None
        if t == "L_p2:" and OPT['pad'] >= 2: want = addr
        isins = bool(t) and not t.endswith(':') and not t.startswith('.')
        if addr is not None and t.startswith('.p2align'):
            al = 1 << int(t.split()[1]); addr = (addr + al - 1) // al * al
        if isins and addr is not None:
            if want is not None and addr >= want and (prev_m or addr - want >= 40):
                out.append(f"L_pad{npad}:"); out.append(f"  s_cbranch_execz L_pad{npad+1}"); npad += 1; addr += 4; want = None
                if not prev_m or 'accvgpr' in t:
                    out.append("  s_nop 0"); addr += 4
            nxt = addr + sizes[k]
            if active and (nxt >> 12) != (addr >> 12): want = (nxt >> 12) << 12
            addr = nxt; prev_m = t.startswith('v_mfma')
        if isins: k += 1
        out.append(l)
    assert k == len(sizes), (k, len(sizes))
    a.lines = [l.replace(f"L_pad{npad}", "L_st0") if l.endswith(f" L_pad{npad}") else l for l in out]
    print("  pads:", npad)
open(sys.argv[1], 'w').write(a.text())
print("written", sys.argv[1], len(a.lines), "lines;", len(errs), "hazard msgs")
```

```python
import sys, math
from asmlib import *
import hazard
from sched import schedule

NAME = "recurrent_scan__gqa_block_cached__dense_activation_relu__prompt"
OPT = dict(stamps=0, mimic_d=1, nsum=2, force_redo=0, pf=0, ng=2, rot=1, late=4, tlb=0, spin=200000, dot=1, xnobar=0, xnodma=0, xnost=0, noredo=0, pol=0, cpos=0, n1=8, w1pf=0, slp=0, xk=0, xv=0, xe=0, xa=0, xs=16, snake=1, nov=6, flip=0, early=0, ilv=0, stf=0, mbl=1, e64=0, xl=0, cp2=1, cp3=0, hsw=0, hx=1, o4=1, klate=1, rt=0, trk=0, e1=0, r2=0, own=1, pt=0, sib=0, xsz=1, lnd=0, pre=0, sl=0, rm=15, one1=0, hfill=1, m16=0, of=0, hst=0, hgap=64, ffma=1, sv=0, lay=1, skew=0, fst=0, pslp=0, w3=4, w2sw=0, stg=0, alt=0, kvr=0, ck=1, xvol=0, ln2=0, spA=0, spB=0, af=1, ochk=1, ool=1, al=1, fx=0, dp=2, pref=0, gd=0, tal=0, lal=12, gal=12, pad=2, gst=1, pair=1, qsw=0, ew=0, bsh=0)
for x in sys.argv[2:]:
    k, v = x.split('='); OPT[k] = int(v)

POL = {0: '', 1: ' nt', 2: ' sc1', 3: ' sc0', 4: ' sc0 sc1', 5: ' sc1 nt'}[OPT['pol']]
a = Asm()
segs = []

S_W, S_G, S_R = 4, 5, 6
S_RET = 8
S_CNT, S_CSLOT, S_PSLOT, S_POFF, S_STA, S_STB = 10, 11, 12, 13, 14, 15
P_X, P_K, P_V, P_WQ, P_WO, P_W1, P_W2, P_WS, P_DBG, P_OUT = 16, 18, 20, 22, 24, 28, 30, 36, 34, 32
S_PLO, S_PHI = 38, 39
S_BOFF, S_BEND, S_FOFF, S_PLEN, S_ROT16, S_ROT7, S_ODD = 3, 7, 26, 27, 100, 101, 15
SRD_W, SRD_K, SRD_V, SRD_WS, SRD_X = 40, 44, 48, 52, 56
S_KOFF, S_VOFF, S_LOOP, S_KM0, S_VM0, S_PBASE, S_REDO = 60, 61, 62, 63, 64, 65, 66
S_SV_POFF, S_KV0 = 68, 69
S_SP = 94
S_OWN = 68
S_SIB = 15
S_EV, S_EI = 26, 101
S_HSW = 67
S_T = 70
S_STAMP = 76

V_ACC, V_A, V_B = 0, 64, 96
V_S, V_P, V_NEGM, V_L, V_LS, V_ONES = 0, 64, 96, 112, 116, 124
V_H = 176
V_PROW, V_PSWZ, V_BA, V_LANE, V_L16, V_T0, V_T1 = 208, 209, 210, 212, 213, 214, 215
V_KA, V_VA, V_KD, V_VD, V_PD, V_AA = 216, 220, 228, 232, 236, 240
A_O, A_Q, A_K, A_V = 0, 128, 192, 224
RB = 65536
LAY = OPT['lay']
HSTR = (8 << 20) if LAY else 8192
WGSH = 15 if LAY else 16
NS = 6
PART_KIND = 16 << 20
STAMP_OFF = 48 << 20
MBOX = 40 << 20
SRD_D = 96
S_FB, S_XO = 11, 12
V_XO = 211
PBUF = [[64, 68, 72, 76], [80, 84, 88, 92], [192, 196, 200, 204], [208, 244, 248, 252]]
V_POLL = 234
V_RSO, V_RS = 235, 160
import struct
CSH = struct.unpack('<I', struct.pack('<f', (128 ** -0.5) * math.log2(math.e)))[0]
V_ONE_LO, V_ONE_HI, V_ZERO = 232, 233, 209

nstamp = [0]
def stamp(lvl=1):
    if not OPT['stamps']: return
    if OPT['stamps'] == lvl or (OPT['stamps'] and lvl == 0):
        i = nstamp[0]
        if i >= 9: return
        nstamp[0] += 1
        a(f"  s_mem{'real' if OPT['rt'] else ''}time s[{S_STAMP+2*i}:{S_STAMP+2*i+1}]")

def align8():
    if OPT['al'] == 1: a(".p2align 3")
    if OPT['al'] == 2:
        a(".p2align 3"); a("  s_nop 0")
def capture(fn):
    i = len(a.lines); fn(); L = a.lines[i:]; del a.lines[i:]
    return [l for l in L if l.strip() and not l.strip().startswith('s_nop') and not l.strip().startswith(';') and not l.strip().startswith('.')]
import re as _re
def isize(l):
    t = l.split(';')[0].strip(); op = t.split()[0]
    if op.startswith(('v_mfma', 'ds_', 'buffer_', 'v_cvt_pk', 'v_accvgpr_read', 'v_accvgpr_write', 'v_max3', 'v_fma_', 'v_lshl_add', 'v_pk_', 'v_mad', 'v_bfe', 'v_and_or', 'v_or3', 's_mem')): return 8
    if op.endswith(('_e64', '_dpp')): return 8
    if op.startswith('v_cmp') and not t.split()[1].startswith('vcc'): return 8
    if op in ('s_nop', 's_waitcnt', 's_barrier'): return 4
    for tok in _re.split(r'[,\s]+', t)[1:]:
        if _re.fullmatch(r'-?(0x[0-9a-f]+|\d+)', tok):
            v = int(tok, 0)
            if v < -16 or v > 64: return 8
    return 4
PROMO = ('v_exp_f32', 'v_add_f32', 'v_mul_f32', 'v_mov_b32', 'v_max_f32', 'v_sub_f32', 'v_rcp_f32', 'v_lshlrev_b32', 'v_and_b32', 'v_add_u32')
def fix_align(L):
    L = list(L); ph = 0
    for i, l in enumerate(L):
        sz = isize(l)
        if sz == 8 and ph == 4 and i and L[i-1].split()[0] in PROMO and isize(L[i-1]) == 4:
            op = L[i-1].split()[0]
            L[i-1] = L[i-1].replace(op, op + '_e64', 1); ph = 0
        ph = (ph + sz) % 8
    return L
def emit_sched(prog, name, **kw):
    out, t = schedule(prog, **kw)
    if OPT['fx'] & {'head': 1, 'tail': 2}.get(name, 4):
        a(".p2align 3"); out = fix_align(out)
    for l in out: a(l)
    print(f"  sched {name}: {len(out)} instrs, est {t} cycles")
def mf(d, A, B, C, dt='v', at='v', bt='v'):
    c = '0' if C is None else f"{dt}[{C}:{C+3}]"
    return f"  v_mfma_f32_16x16x32_bf16 {dt}[{d}:{d+3}], {at}[{A}:{A+3}], {bt}[{B}:{B+3}], {c}"

def prod_m0(pos):
    return [f"  s_add_u32 m0, s{S_VM0}, {pos*16384}"]
def prod_dma(n):
    return f"  buffer_load_dwordx4 v{V_PD+n}, s[{SRD_W}:{SRD_W+3}], s{S_POFF} offen offset:{n*1024}{POL} lds"
def prod_adv():
    return [f"  s_add_u32 s{S_POFF}, s{S_POFF}, s{S_STA}",
            f"  s_cmp_eq_u32 s{S_POFF}, s{S_PLEN}",
            f"  s_cselect_b32 s{S_POFF}, 0, s{S_POFF}"]
def produce_list(pos):
    return prod_m0(pos) + prod_adv() + [prod_dma(n) for n in range(4)]
def produce_slot(pos):
    for l in produce_list(pos): a(l)

def set_stream(kind, half=0):
    if kind == 'null':
        a(f"  s_mov_b32 s{SRD_W+2}, 0"); return
    if half == 1:
        for n in range(4): a(f"  v_xor_b32 v{V_PD+n}, 128, v{V_PD+n}")
        return
    ptr, size, stride = dict(w1=(P_W1, 512*1792*2, 3584), wq=(P_WQ, 512*4096*2, 8192), w2=(P_W2, 1792*512*2, 1024),
                             wo=(P_WO, 4096*512*2, 1024), v=(P_V, 8*2048*128*2, 0))[kind]
    a(f"  s_mov_b32 s{SRD_W}, s{ptr}")
    a(f"  s_mov_b32 s{SRD_W+1}, s{ptr+1}")
    a(f"  s_mov_b32 s{SRD_W+2}, {size}")
    a(f"  s_mov_b32 s{S_T}, {stride}")
    a(f"  v_mad_u32_u24 v{V_PD}, v{V_PROW}, s{S_T}, v{V_PSWZ}")
    src, gsft, wsft = dict(w1=(S_FOFF, 1, 7), wq=(S_G, 10, 8), w2=(S_FOFF, 10, 8), wo=(S_G, 19, 8))[kind]
    a(f"  s_lshl_b32 s{S_T}, s{src}, {gsft}")
    a(f"  s_lshl_b32 s{S_T+1}, s{S_W}, {wsft}")
    a(f"  s_add_u32 s{S_T}, s{S_T}, s{S_T+1}")
    if kind != 'w1': a(f"  s_add_u32 s{S_T}, s{S_T}, s{S_HSW}")
    if kind == 'wq' and OPT['qsw']:
        a(f"  s_lshl_b32 s{S_T+1}, s{S_ODD}, 7")
        a(f"  s_add_u32 s{S_T}, s{S_T}, s{S_T+1}")
    if kind == 'w2' and OPT['w2sw']:
        a(f"  s_and_b32 s{S_T+1}, s{S_R}, 1")
        a(f"  s_lshl_b32 s{S_T+1}, s{S_T+1}, 7")
        a(f"  s_add_u32 s{S_T}, s{S_T}, s{S_T+1}")
    a(f"  v_add_u32 v{V_PD}, s{S_T}, v{V_PD}")
    for n in range(1, 4): a(f"  v_add_u32 v{V_PD+n}, {n*(8*stride-1024)}, v{V_PD}")
    a(f"  s_mov_b32 s{S_STA}, {32*stride}")
    if kind == 'w1':
        a(f"  s_lshl_b32 s{S_T}, s{S_ODD}, 2")
        a(f"  s_or_b32 s{S_T}, s{S_T}, s{S_W}")
        a(f"  s_cmp_eq_u32 s{S_T}, 7")
        a(f"  s_cselect_b32 s{SRD_W+2}, 0, s{SRD_W+2}")
    if kind == 'w2':
        a(f"  s_lshl_b32 s{S_T}, s{S_ODD}, 16")
        a(f"  s_sub_u32 s{S_PLEN}, {8*32*stride}, s{S_T}")
    else: a(f"  s_mov_b32 s{S_PLEN}, {16*32*stride}")
    a(f"  s_mul_i32 s{S_POFF}, s{S_ROT7 if kind == 'w2' else S_ROT16}, {32*stride}")
    a(f"  s_sub_u32 s{S_POFF}, s{S_POFF}, s{S_STA}")

def b_adv():
    return [f"  s_add_u32 s{S_BOFF}, s{S_BOFF}, 4096",
            f"  s_cmp_eq_u32 s{S_BOFF}, s{S_BEND}",
            f"  s_cselect_b32 s{S_BOFF}, 0, s{S_BOFF}",
            f"  v_add_u32 v{V_BA}, s{S_BOFF}, v{V_L16}"]
def rpos(i): return (2 + i) % NS
def fA(k): return ('v', V_A + 16*k) if k < 2 else ('a', A_K + 16*(k-2))
def fB(k): return ('v', V_B + 16*k) if k < 2 else ('a', A_V + 16*(k-2))
def a_read(i, nt, rd):
    t, b = fA(i & 3); d = b + nt*4 + rd*2; slot = rpos(i)
    return f"  ds_read_b64_tr_b16 {t}[{d}:{d+1}], v{V_AA+nt+4*(slot//3)} offset:{(slot%3)*16384+rd*2048}"
def b_read(i, qt):
    t, b = fB(i & 3); d = b + qt*4
    return f"  ds_read_b128 {t}[{d}:{d+3}], v{V_BA} offset:{qt*1024}"

def gemm_step(i, first=False, loop=None, vm=None, vmw=16, noread=False, fillv=None, xvm=None):
    if OPT['gd'] and loop is not None and vm is None and not first:
        a(f"  s_waitcnt lgkmcnt(4)")
        rd_ = [b_read(i+2, qt) for qt in range(4)] + [a_read(i+2, nt, rd) for nt in range(4) for rd in range(2)]
        mem = []; ex = [[] for _ in range(16)]
        for g in range(16): mem.append(prod_dma(g >> 2) if g % 4 == 3 else rd_.pop(0))
        pa = prod_adv(); ba = b_adv()
        ex[0] += [pa[0]]; ex[1] += pa[1:]; ex[2] += prod_m0(rpos(i+1)) + ["  s_waitcnt lgkmcnt(3)"]
        ex[4] += [f"  s_waitcnt vmcnt({vmw+1})"]
        ex[5] += [ba[0]]; ex[6] += [ba[1]]; ex[8] += [ba[2]]; ex[9] += [ba[3]]
        if loop: ex[13].append(f"  s_sub_u32 s{S_CNT}, s{S_CNT}, 1")
        g = 0; s0 = i & 2
        for nt in (2*(i & 1), 2*(i & 1) + 1):
            for q_ in range(4):
                qt = 3 - q_ if nt & 1 else q_
                acc = V_ACC + (nt*4+qt)*4
                for u_ in range(2):
                    u = u_ ^ (q_ & 1)
                    (ta, ba_), (tb, bb) = fA(s0+u), fB(s0+u)
                    a(mf(acc, ba_+nt*4, bb+qt*4, acc, 'v', ta, tb))
                    a(mem[g])
                    for l in ex[g]: a(l)
                    g += 1
        return
    a(f"  s_waitcnt vmcnt({vmw}) lgkmcnt(0)")
    mem = [b_read(i+2, qt) for qt in range(4)] + [a_read(i+2, nt, rd) for nt in range(4) for rd in range(2)] + [prod_dma(n) for n in range(4)]
    ex = [[] for _ in range(16)]
    ba = b_adv(); pa = prod_adv()
    for k in range(4): ex[k].append(ba[k])
    if vm is None:
        for k in range(3): ex[4+k].append(pa[k])
        ex[7] += prod_m0(rpos(i+1))
    else:
        for k in range(4):
            mem[12+k] = vm[k][-1] if k < len(vm) else ""
            if k < len(vm): ex[11+k-(1 if k == 0 else 0)] += vm[k][:-1]
    if noread:
        for k in range(12): mem[k] = ""
        for k in range(4): ex[k] = []
    if xvm:
        for g_, l in xvm: ex[g_].append(l)
    if fillv:
        for k, l in enumerate(fillv): ex[k].append(l)
    if loop: ex[11].append(f"  s_sub_u32 s{S_CNT}, s{S_CNT}, 1")
    g = 0; s0 = i & 2
    for nt in (2*(i & 1), 2*(i & 1) + 1):
        for q_ in range(4):
            qt = 3 - q_ if nt & 1 else q_
            acc = V_ACC + (nt*4+qt)*4
            for u_ in range(2):
                u = u_ ^ (q_ & 1)
                (ta, ba_), (tb, bb) = fA(s0+u), fB(s0+u)
                a(mf(acc, ba_+nt*4, bb+qt*4, None if (first and u_ == 0) else acc, 'v', ta, tb))
                a(mem[g])
                for l in ex[g]: a(l)
                g += 1

gpos = [0]
CKPT = {8, 3, 0, 7, 4, 10, 11} if OPT['ck'] else set(range(12))
def gemm_call(n):
    assert (gpos[0] + n - 1) % 12 in CKPT, (gpos[0], n)
    nck = sum(1 for k in range(n) if (gpos[0] + k) % 12 in CKPT)
    a(f"  s_mov_b32 s{S_CNT}, {nck-1}")
    a(f"  s_call_b64 s[{S_RET}:{S_RET+1}], L_gemm{gpos[0] % 12}")
    gpos[0] += n
def gemm_inl(**kw):
    gemm_step(gpos[0] % 12, **kw); gpos[0] += 1
def gemm_first():
    gemm_inl(first=True); gemm_inl(first=True)
def b_reload(ffn2, wait=True):
    if wait: a("  s_waitcnt lgkmcnt(0)")
    a(f"  s_lshl_b32 s{S_BOFF}, s{S_ROT7 if ffn2 else S_ROT16}, 12")
    if ffn2: a(f"  s_lshr_b32 s{S_BEND}, s{S_PLEN}, 3")
    else: a(f"  s_mov_b32 s{S_BEND}, {16*4096}")
    a(f"  v_add_u32 v{V_BA}, s{S_BOFF}, v{V_L16}")
    for k in range(2):
        for qt in range(4): a(b_read(gpos[0] + k, qt))
        for l in b_adv(): a(l)
def a_first():
    for k in range(2):
        for nt in range(4):
            for rd in range(2): a(a_read(gpos[0] + k, nt, rd))

def store_partial(kind, half, dst=None, defer=False, sreg=S_T):
    a("  s_nop 5")
    a(f"  s_add_u32 s{sreg}, s{S_PBASE}, {kind*PART_KIND + half*HSTR}")
    a(f"  s_add_u32 s{sreg+1}, s{sreg}, 4096")
    if kind == 1 and OPT['own']:
        for c in range(2):
            a(f"  s_cmp_eq_u32 s{S_OWN}, {c}")
            a(f"  s_cselect_b32 s{sreg+c}, 0x40000000, s{sreg+c}")
            if OPT['sib']:
                a(f"  s_cmp_eq_u32 s{S_SIB}, {c}")
                a(f"  s_cselect_b32 s{sreg+c}, 0x40000000, s{sreg+c}")
    if kind == 1 and OPT['xvol'] & 1: a(f"  s_mov_b32 s{sreg+1}, 0x40000000")
    if kind == 1 and OPT['xvol'] & 4:
        a(f"  s_mov_b32 s{sreg+1}, 0x40000000"); a(f"  s_mov_b32 s{sreg}, 0x40000000")
    st = []
    align8()
    for c in range(2):
        for qt in range(4):
            x = V_ACC + ((2*c)*4+qt)*4; y = V_ACC + ((2*c+1)*4+qt)*4
            d = x if dst is None else (dst[c*4+qt] if isinstance(dst, list) else dst + (c*4+qt)*4)
            a(f"  v_cvt_pk_bf16_f32 v{d}, v{x}, v{x+1}")
            a(f"  v_cvt_pk_bf16_f32 v{d+1}, v{x+2}, v{x+3}")
            a(f"  v_cvt_pk_bf16_f32 v{d+2}, v{y}, v{y+1}")
            a(f"  v_cvt_pk_bf16_f32 v{d+3}, v{y+2}, v{y+3}")
            l = f"  buffer_store_dwordx4 v[{d}:{d+3}], v{V_L16}, s[{SRD_WS}:{SRD_WS+3}], s{sreg+c} offen offset:{qt*1024} {['sc1', 'sc0 sc1', 'sc1 nt'][OPT['stf']]}"
            if defer: st.append(l)
            else: a(l)
    if not defer: a("  s_nop 1")
    return st

def spin(label, srd, voff, soff, target):
    a(f"  s_mov_b32 s{S_T+1}, {OPT['spin']}")
    a.label(label)
    a(f"  buffer_load_dword v{V_POLL}, v{voff}, s[{srd}:{srd+3}], {soff} offen sc1")
    a("  s_waitcnt vmcnt(0)")
    a(f"  v_readfirstlane_b32 s{S_T}, v{V_POLL}")
    a(f"  s_sub_u32 s{S_T+1}, s{S_T+1}, 1")
    a(f"  s_cbranch_scc1 {label}_done")
    a(f"  s_cmp_lt_u32 s{S_T}, {target}")
    a(f"  s_cbranch_scc1 {label}")
    a.label(label + "_done")

def part_load(kind, i, src, d, t='v'):
    return [f"  s_add_u32 s{S_T+2}, s{S_FB}, {kind*PART_KIND + (src << WGSH) + i*HSTR}",
            f"  buffer_load_dwordx4 {t}[{d}:{d+3}], v{V_L16}, s[{SRD_WS}:{SRD_WS+3}], s{S_T+2} offen sc1"]
def part_sum(base, acc, T, vm0=None):
    for s_ in range(8):
        if vm0 is not None and s_ % 2 == 0: a(f"  s_waitcnt vmcnt({vm0-s_-1})")
        d = base + s_*4
        for j in range(4):
            lo, hi = acc+2*j, acc+2*j+1
            if s_ == 0:
                a(f"  v_lshlrev_b32 v{lo}, 16, v{d+j}")
                a(f"  v_and_b32 v{hi}, 0xffff0000, v{d+j}")
            elif OPT['dot']:
                a(f"  v_dot2c_f32_bf16 v{lo}, v{d+j}, v{V_ONE_LO}")
                a(f"  v_dot2c_f32_bf16 v{hi}, v{d+j}, v{V_ONE_HI}")
            else:
                t = T + 2*(j & 1)
                a(f"  v_lshlrev_b32 v{t}, 16, v{d+j}")
                a(f"  v_and_b32 v{t+1}, 0xffff0000, v{d+j}")
                a(f"  v_pk_add_f32 v[{lo}:{hi}], v[{lo}:{hi}], v[{t}:{t+1}]")
    if OPT['dot']: a("  s_nop 2")
def rnd_pair(r, T):
    a(f"  v_cvt_pk_bf16_f32 v{T}, v{r}, v{r+1}")
    a(f"  v_lshlrev_b32 v{r}, 16, v{T}")
    a(f"  v_and_b32 v{r+1}, 0xffff0000, v{T}")

def kslot(t): return (t + 2) & 3
def k_read(unit, kt, ds, dst=A_K):
    off = kslot(unit >> 1)*16384 + (unit & 1)*8192 + kt*4096
    d = dst + (kt*4+ds)*4
    return f"  ds_read_b128 a[{d}:{d+3}], v{V_KA+ds} offset:{off}"
def v_read(unit, dt, rd, dst=A_V):
    off = ((unit >> 1) & 3)*16384 + (unit & 1)*8192 + rd*4096
    d = dst + dt*4 + rd*2
    return f"  ds_read_b64_tr_b16 a[{d}:{d+1}], v{V_VA+dt} offset:{off}"
def k_dma(n):
    return f"  buffer_load_dwordx4 v{V_KD+n}, s[{SRD_K}:{SRD_K+3}], s{S_KOFF} offen offset:{n*1024}{POL} lds"
def v_dma(n):
    return f"  buffer_load_dwordx4 v{V_VD+(n&1)}, s[{SRD_V}:{SRD_V+3}], s{S_VOFF} offen offset:{n*1024}{POL} lds"
def k_tile_dma(t):
    a(f"  s_add_u32 m0, s{S_KM0}, {kslot(t)*16384}")
    a(f"  s_nop 0")
    for n in range(4): a(k_dma(n))
    a(f"  s_add_u32 s{S_KOFF}, s{S_KOFF}, 16384")
    if OPT['kvr']: a(f"  s_and_b32 s{S_KOFF}, s{S_KOFF}, 0x7ffff")
def v_tile_dma(t):
    a(f"  s_add_u32 m0, s{S_VM0}, {(t&3)*16384}")
    a(f"  s_nop 0")
    for n in range(4): a(v_dma(n))
    a(f"  s_add_u32 s{S_VOFF}, s{S_VOFF}, 16384")

NSUM = OPT['nsum']
SUMQT = {0: [], 2: [2, 3], 4: [0, 1, 2, 3]}[NSUM]
TORDER = [(0,0),(0,2),(0,1),(0,3),(1,0),(1,2),(1,1),(1,3)]
def s_reg(b, kt, qt): return V_S + b*32 + (kt*4+qt)*4
def qk_mfmas(b, zero=False, order=None, src=A_K):
    L = []
    QKO = [(0,0),(0,1),(0,2),(0,3),(1,3),(1,2),(1,1),(1,0)] if OPT['snake'] else TORDER
    for ti, (kt, qt) in enumerate(order or QKO):
        d = s_reg(b, kt, qt)
        for i_ in range(4):
            ds = 3 - i_ if (OPT['snake'] and ti & 1) else i_
            C = d if i_ else (None if zero else V_NEGM + qt*4)
            L.append(mf(d, src+(kt*4+ds)*4, A_Q+(qt*4+ds)*4, C, 'v', 'a', 'a'))
    return L
def ls_reg(qt):
    return V_LS + (qt & 1)*4
def pv_half(T, h, src=A_V):
    L = []; k = 0
    for d_ in range(4):
        dt = 4*h + d_
        for qt in (range(3, -1, -1) if d_ % 2 == 0 else range(4)):
            d = A_O + (dt*4+qt)*4
            for u in ((0, 1) if k % 2 == 0 else (1, 0)):
                L.append(mf(d, src+(d_*2+u)*4, PBUF[(2*T+u) & 3][qt], d, 'a', 'a', 'v'))
            k += 1
    return L
def v_half(T, h, dst=A_V):
    L = []
    for f in range(8):
        dt = 4*h + (f >> 1); u = f & 1
        for rd in range(2):
            off = (T & 3)*16384 + u*8192 + rd*4096
            d = dst + f*4 + rd*2
            L.append(f"  ds_read_b64_tr_b16 a[{d}:{d+1}], v{V_VA+dt} offset:{off}")
    return L
def sum_pair(T, qt):
    L = [mf(ls_reg(qt), V_ONES, PBUF[(2*T+u) & 3][qt], ls_reg(qt)) for u in range(2)]
    if NSUM == 4: L += [mf(ls_reg(qt), V_L, PBUF[(2*T+u) & 3][qt-2], ls_reg(qt)) for u in range(2)]
    return L
def sm_ops(p, qt):
    L = []
    for kt in range(2):
        for r in range(4):
            s_ = s_reg(p & 1, kt, qt) + r
            L.append(f"  v_exp_f32 v{s_}, v{s_}")
            if qt not in SUMQT: L.append(f"  v_add_f32 v{V_L+qt}, v{V_L+qt}, v{s_}")
            if r & 1: L.append(f"  v_cvt_pk_bf16_f32 v{PBUF[p & 3][qt]+kt*2+(r>>1)}, v{s_-1}, v{s_}")
    return L

def period(p, last=False, extra=None, dma=None, endop=None):
    b = p & 1; T = p >> 1
    M = qk_mfmas(b ^ 1) + pv_half(T-1, b) + sum_pair(T-1, 3-b)
    ng = len(M)
    pre = [[] for _ in range(ng)]
    mem = [None]*ng
    cap = [0 if (g < 64 and g % 2 == 0) else 2 for g in range(ng)]
    exps = [(kt, qt, r) for kt, qt in TORDER for r in range(4)]
    for i, l in enumerate(v_half(T-1, b)):
        mem[2*i+1] = l; cap[2*i+1] = 1
    kpos, dpos = {0: ([0,1,2,4,5,6,8,9], [3,7,11,15]), 1: ([0,2,3,4,6,7,8,10], [1,5,9,13]), 2: ([0,1,3,4,5,7,8,9], [2,6,10,14]),
                  3: ([0,1,2,3,4,5,6,7], [8,10,12,14]), 4: ([0,2,4,6,8,9,10,11], [1,3,5,7]), 5: ([0,1,3,4,6,7,9,10], [2,5,8,11])}[OPT['dp']]
    if last:
        for i, l in enumerate(v_half(T-1, 1, A_K)):
            mem[33+2*i] = l; cap[33+2*i] = 1
    else:
        for i, j in enumerate(kpos):
            mem[33+2*j] = k_read(p+2, i >> 2, i & 3); cap[33+2*j] = 1
        for n, j in enumerate(dpos):
            mem[33+2*j] = k_dma(n) if b == 0 else v_dma(n); cap[33+2*j] = 0
        if dma is not None:
            for n, j in enumerate(dpos):
                mem[33+2*j] = dma[n][-1]; pre[32+2*j] += dma[n][:-1]
        elif b == 0:
            pre[32].append(f"  s_add_u32 m0, s{S_KM0}, {kslot(T)*16384}")
            if OPT['kvr']: pre[36].append(f"  s_and_b32 s{S_KOFF}, s{S_KOFF}, 0x7ffff")
            pre[ng-2].append(f"  s_add_u32 s{S_KOFF}, s{S_KOFF}, 16384")
        else:
            pre[32].append(f"  s_add_u32 m0, s{S_VM0}, {((T+2)&3)*16384}")
            if OPT['kvr']: pre[36].append(f"  s_and_b32 s{S_VOFF}, s{S_VOFF}, 0x7ffff")
            pre[ng-2].append(f"  s_add_u32 s{S_VOFF}, s{S_VOFF}, 16384")
    if extra:
        for k, l in enumerate(extra): pre[2*k] += l
    if endop: pre[ng-1].append(endop)
    pre[30].append("  s_waitcnt lgkmcnt(3)")
    nk = sum(1 for g in range(32, 54) if mem[g] and mem[g].lstrip().startswith('ds_'))
    pre[54].append(f"  s_waitcnt lgkmcnt({nk})")
    q = []
    for g in range(ng):
        a(M[g])
        for l in pre[g]: a(l)
        if mem[g]: a(mem[g])
        if g < 64 and g % 2 == 0:
            kt, qt, r = exps[g//2]
            s = s_reg(b, kt, qt) + r
            four = sum(1 for l in pre[g] if 's_waitcnt' in l or l.rstrip().endswith(', 0'))
            E = '_e64' if OPT['e64'] else ''
            a(f"  v_exp_f32{E if four % 2 == 0 else ''} v{s}, v{s}")
            if qt not in SUMQT: q.append(f"  v_add_f32{E} v{V_L+qt}, v{V_L+qt}, v{s}")
            if r & 1: q.append(f"  v_cvt_pk_bf16_f32 v{PBUF[p & 3][qt]+kt*2+(r>>1)}, v{s-1}, v{s}")
        else:
            n = cap[g] if g < ng-1 else 99
            if OPT['pref'] and g < 32:
                want = 'v_add' if g % 4 == 1 else 'v_cvt'
                k = next((i for i, l in enumerate(q) if want in l), None)
                if k is not None: q.insert(0, q.pop(k))
                elif g % 4 == 1 and OPT['pref'] == 2: n = 0
            if OPT['pref'] and g == 64: n = min(n, 1)
            while n > 0 and q:
                a(q.pop(0)); n -= 1
    assert not q

def barrier_T(n=8):
    a(f"  s_waitcnt vmcnt({n}) lgkmcnt(0)")
    if not OPT['xnobar']: a("  s_barrier")

def xlane_reduce(reg, op, tmp):
    a(f"  v_mov_b32 v{tmp}, v{reg}")
    a("  s_nop 1")
    a(f"  v_permlane32_swap_b32 v{reg}, v{tmp}")
    a(f"  {op} v{reg}, v{reg}, v{tmp}")
    a(f"  v_mov_b32 v{tmp}, v{reg}")
    a("  s_nop 1")
    a(f"  v_permlane16_swap_b32 v{reg}, v{tmp}")
    a(f"  {op} v{reg}, v{reg}, v{tmp}")

def prefetch_groups():
    J, O = S_T+4, S_T
    X = SRD_X
    cnt = [0]
    def srd(ptr, size):
        return [f"  s_mov_b32 s{X}, s{ptr}", f"  s_mov_b32 s{X+1}, s{ptr+1}", f"  s_mov_b32 s{X+2}, {size}"]
    def ld(v, off=0):
        cnt[0] += 1
        return [f"  buffer_load_dword a{A_Q+cnt[0]}, v{v}, s[{X}:{X+3}], s{O} offen offset:{off}"]
    NG = OPT['ng']; NW = 128 // NG
    G = {}
    jj = [f"  s_and_b32 s{O}, s{S_R}, {32//NG-1}", f"  s_lshl_b32 s{O}, s{O}, 2", f"  s_add_u32 s{O}, s{O}, s{S_W}"]
    rows = 4*NG
    L = jj + [f"  s_mul_i32 s{O}, s{O}, {rows*8192}", f"  s_lshl_b32 s{O+1}, s{S_G}, 10", f"  s_add_u32 s{O}, s{O}, s{O+1}",
              f"  v_and_b32 v249, 7, v{V_LANE}", f"  v_lshlrev_b32 v249, 7, v249", f"  v_lshl_add_u32 v249, v{V_PROW}, 13, v249"] + srd(P_WQ, 512*4096*2) + ld(249)
    for k in range(1, (rows + 7)//8):
        L += [f"  s_add_u32 s{O}, s{O}, {8*8192}"] + ld(249)
    G['wq'] = L
    G['w2'] = jj + [f"  s_mul_i32 s{O}, s{O}, {2048*NG}", f"  s_lshl_b32 s{O+1}, s{S_FOFF}, 10", f"  s_add_u32 s{O}, s{O}, s{O+1}",
                    f"  v_mul_u32_u24 v250, {32*NG}, v{V_LANE}"] + srd(P_W2, 512*1792*2) + ld(250)
    L = [f"  v_lshlrev_b32 v251, 6, v{V_LANE}", f"  s_and_b32 s{O}, s{S_R}, 3", f"  s_lshl_b32 s{O}, s{O}, 14", f"  s_add_u32 s{O}, s{O}, s{S_KV0}"]
    G['kv'] = L + srd(P_K, 4 << 20) + ld(251) + srd(P_V, 4 << 20) + ld(251)
    G['ws'] = [f"  v_and_b32 v252, 1, v{V_LANE}", f"  v_lshlrev_b32 v252, 24, v252", f"  s_mov_b32 s{O}, s{S_PBASE}"] + srd(P_WS, 64 << 20) + ld(252)
    G['mb'] = [f"  v_and_b32 v255, 31, v{V_LANE}", f"  v_lshlrev_b32 v255, 2, v255", f"  v_mov_b32 v{V_POLL}, 0",
               f"  s_lshr_b32 s{O}, s{S_PBASE}, {WGSH}", f"  s_lshl_b32 s{O}, s{O}, 7", f"  s_add_u32 s{O}, s{O}, {MBOX}",
               f"  buffer_store_dword v{V_POLL}, v255, s[{SRD_WS}:{SRD_WS+3}], s{O} offen sc1"]
    L = jj + [f"  s_mul_i32 s{O}, s{O}, {4096*NG}", f"  s_lshl_b32 s{O+1}, s{S_G}, 19", f"  s_add_u32 s{O}, s{O}, s{O+1}",
              f"  v_lshlrev_b32 v253, {6 if NG == 1 else 7}, v{V_LANE}"] + srd(P_WO, 4 << 20)
    L += [f"  buffer_load_dword v254, v253, s[{X}:{X+3}], s{O} offen"]
    if NG == 4: L += [f"  s_add_u32 s{O}, s{O}, 8192", f"  buffer_load_dword v255, v253, s[{X}:{X+3}], s{O} offen"]
    G['wo'] = L
    return G
def nloads(L): return sum(1 for l in L if l.lstrip().startswith('buffer_'))

hdr = open('cdna_kernels/%s.s.ref' % NAME).read().split('\n')
for l in hdr:
    if l.startswith('; Override') or '@launch' in l or l.startswith('; grid=ceil'): continue
    if l.startswith(';'): a(l)
    else: break
a("; @launch grid=(256,1,1) block=(256,1,1) lds=163840")
a('.amdgcn_target "amdgcn-amd-amdhsa--gfx950"')
a(""";
;   2. FFN1 (a 256/192-column slice of w1), Q projection, FFN2 partial (split-K over the 8 workgroups of a row block)
;   3. flash attention over all 2048 keys.  Softmax reference point: row max of the first 32 keys, fed in as the MFMA
;      accumulator start value.  Run-time check afterwards (row sum >= 2^40 / NaN, or any non-finite output value):
;      L_redo computes the TRUE row max over all keys and the attention is repeated with it.
;   4. output projection partial; the 8 workgroups of a row block exchange bf16 partials through d_ws
; Weights stream L2 -> LDS by LDS-DMA through a private 6-slot ring per wave; K/V through 4-slot shared rings.
; L_pad*/L_st*: a wave that is idle early hops (EXEC=0, branches only) over the code pages that run later.
;""")
a(".text")
a(kernel_header(NAME + "_kernel"))
i0 = len(a.lines)
NG = OPT['ng']; LG = {1: 0, 2: 1, 4: 2, 8: 3}[NG]
L = V_LANE
C_ = SRD_V
a(f"""
  s_cmp_ge_u32 s2, 256
  s_cbranch_scc1 L_end
  s_load_dwordx16 s[16:31], s[0:1], 0
  s_load_dwordx2 s[{P_WS}:{P_WS+1}], s[0:1], 80
  s_load_dwordx4 s[{P_OUT}:{P_OUT+3}], s[0:1], 64
  s_getpc_b64 s[{C_}:{C_+1}]
L_pc:
  s_lshr_b32 s{S_T+1}, s2, 3
  s_mov_b32 s{C_+2}, L_code_end-L_pc
  s_mov_b32 s{C_+3}, 0x20000
  s_lshl_b32 s{S_T+2}, s{S_T+1}, 11
  v_lshlrev_b32 v2, 3, v0
""")
CPF = f"  buffer_load_dword a{A_Q}, v2, s[{C_}:{C_+3}], s{S_T+2} offen"
a(CPF)
stamp(0)
if OPT['stamps']: a("  s_memrealtime s[74:75]")
if OPT['ln2']:
    XADDR = f"""  v_lshrrev_b32 v4, 6, v0
  v_bfe_u32 v5, v0, 3, 3
  v_lshl_add_u32 v4, v4, 4, v5
  v_lshlrev_b32 v4, 10, v4
  v_and_b32 v5, 7, v0
  v_lshl_add_u32 v{V_T0}, v5, 4, v4
  s_add_u32 s{S_SP+1}, s{S_SP}, 8192"""
    OPT['xs'] = 8
else:
    XADDR = f"""  v_lshrrev_b32 v4, 2, v0
  v_lshlrev_b32 v4, 10, v4
  v_and_b32 v5, 3, v0
  v_lshl_add_u32 v{V_T0}, v5, 4, v4"""
if OPT['pair']:
    MAP1 = f"  s_lshr_b32 s{S_T}, s2, 1\n  s_xor_b32 s{S_T}, s{S_T}, s2\n  s_and_b32 s{S_T}, s{S_T}, 1"
    MAP2 = f"  s_and_b32 s{S_G}, s2, 6"
else:
    MAP1 = f"  s_bfe_u32 s{S_T}, s2, {(LG << 16) | (3-LG)}"
    MAP2 = f"  s_and_b32 s{S_G}, s2, {8//NG-1}\n  s_lshl_b32 s{S_G}, s{S_G}, {LG}"
a(f"""
  s_lshr_b32 s{S_ROT16}, s{S_T+1}, {LG}
{MAP1}
  s_lshl_b32 s{S_T}, s{S_T}, {5-LG}
  s_add_u32 s{S_R}, s{S_ROT16}, s{S_T}
  s_lshl_b32 s{S_SP}, s{S_R}, 16
{XADDR}
  s_mov_b32 s{SRD_X+2}, {2048*512*2}
  s_mov_b32 s{SRD_X+3}, 0x20000
{MAP2}
  s_and_b32 s{S_T+3}, s{S_T+1}, {NG-1}
  s_add_u32 s{S_G}, s{S_G}, s{S_T+3}
  s_mov_b32 s{SRD_W+3}, 0x20000
""")
def xloads(j0, j1):
    for j in range(j0, j1):
        if OPT['ln2']: a(f"  buffer_load_dwordx4 v[{4*j+64}:{4*j+67}], v{V_T0}, s[{SRD_X}:{SRD_X+3}], s{S_SP+(j>>3)} offen offset:{(j&7)*128}")
        else: a(f"  buffer_load_dwordx4 v[{4*j+64}:{4*j+67}], v{V_T0}, s[{SRD_X}:{SRD_X+3}], s{S_SP} offen offset:{j*64}")
def xfirst():
    a("  s_waitcnt lgkmcnt(0)")
    a(f"  s_mov_b32 s{SRD_X}, s{P_X}")
    a(f"  s_mov_b32 s{SRD_X+1}, s{P_X+1}")
    stamp(7)
    if OPT['tlb'] & 1: a(f"  s_load_dword s{S_SP+1}, s[{P_W1}:{P_W1+1}], 0")
    if OPT['tlb'] & 2:
        a(f"  s_mov_b32 s{SRD_W}, s{P_W1}"); a(f"  s_mov_b32 s{SRD_W+1}, s{P_W1+1}"); a(f"  s_mov_b32 s{SRD_W+2}, 4")
        a(f"  buffer_load_dword a{A_Q+1}, v{V_T0}, s[{SRD_W}:{SRD_W+3}], 0 offen")
    xloads(0, OPT['xs'])
    stamp(7)
a(f"""
  v_lshrrev_b32 v1, 6, v0
  v_and_b32 v{V_LANE}, 63, v0
  s_mov_b32 s{S_REDO}, 0
  v_readfirstlane_b32 s{S_W}, v1
  s_and_b32 s{S_HSW}, s{S_R}, {OPT['hsw']}
  s_lshl_b32 s{S_HSW}, s{S_HSW}, 7
  s_and_b32 s{S_ODD}, s2, 1
  s_xor_b32 s{S_ODD}, s{S_ODD}, {OPT['flip']}
  s_mul_i32 s{S_T}, s{S_ROT16}, 43
  s_lshr_b32 s{S_T}, s{S_T}, 8
  s_mul_i32 s{S_T}, s{S_T}, 6
  s_sub_u32 s{S_T}, s{S_ROT16}, s{S_T}
  s_and_b32 s{S_ROT7}, s{S_ROT16}, 7
  s_cmp_lg_u32 s{S_ODD}, 0
  s_cselect_b32 s{S_ROT7}, s{S_T}, s{S_ROT7}
  s_lshl_b32 s{S_ROT16}, s{S_ROT16}, {max(LG-1,0)}
  s_and_b32 s{S_ROT16}, s{S_ROT16}, {OPT['rm']}
  v_lshrrev_b32 v3, 3, v{L}
  v_and_b32 v3, {4 if OPT['xsz'] else 0}, v3
  v_xor_b32 v3, v3, v{L}
  v_lshlrev_b32 v{V_L16}, 4, v3
  v_lshrrev_b32 v{V_PROW}, 3, v{L}
  v_lshrrev_b32 v1, 4, v{L}            ; G
  v_lshlrev_b32 v2, 1, v1              ; G<<1
  v_and_b32 v3, 7, v{L}
  v_xor_b32 v3, v3, v2
  v_lshlrev_b32 v{V_PSWZ}, 4, v3
  s_lshl_b32 s{S_KM0}, s{S_W}, 12
  s_add_u32 s{S_VM0}, s{S_KM0}, {RB}
""")
xfirst()
a(f"""
  s_lshr_b32 s{S_T}, s{S_G}, 2
  s_mul_i32 s{S_FOFF}, s{S_T}, 896
  s_lshl_b32 s{S_T}, s{S_ODD}, 9
  s_add_u32 s{S_FOFF}, s{S_FOFF}, s{S_T}
  s_lshl_b32 s{S_T}, s{S_ODD}, 6
  s_sub_u32 s{S_T}, 256, s{S_T}
  s_and_b32 s{S_T+1}, s{S_G}, 1
  s_mul_i32 s{S_T}, s{S_T}, s{S_T+1}
  s_add_u32 s{S_FOFF}, s{S_FOFF}, s{S_T}
""")
PFG = prefetch_groups()
set_stream('w1')
a(f"""
  v_and_b32 v6, 15, v{L}
  v_lshrrev_b32 v8, 2, v6
  v_lshl_add_u32 v8, v1, 2, v8         ; row = 4G + (i>>2)
  v_and_b32 v9, 3, v6
  v_lshlrev_b32 v9, 3, v9              ; (i&3)*8
  v_lshl_add_u32 v10, v8, 7, v9
  v_add_u32 v10, s{S_VM0}, v10
  v_bfe_u32 v11, v8, 1, 2
""")
for nt in range(4):
    a(f"  v_xor_b32 v12, {nt}, v11")
    a(f"  v_lshl_add_u32 v{V_AA+nt}, v12, 5, v10")
    a(f"  v_add_u32 v{V_AA+4+nt}, {3*16384}, v{V_AA+nt}")
a(f"""
  v_lshrrev_b32 v8, {3 if OPT['ln2'] else 2}, v{L}
  v_and_b32 v9, 1, v{L}
  v_mul_u32_u24 v9, {36 if OPT['xsz'] else 32}, v9
  v_xor_b32 v8, v9, v8
  v_lshlrev_b32 v8, 4, v8
  v_bfe_u32 v9, v{L}, 1, 1
  v_lshl_add_u32 v8, v9, 3, v8
  s_lshl_b32 s{S_T}, s{S_W}, 10
  v_add_u32 v{V_T1}, s{S_T}, v8
""")
if OPT['ln2']:
    a(f"  v_and_b32 v9, 4, v{L}")
    a(f"  v_lshl_add_u32 v{V_T1}, v9, 10, v{V_T1}")
def zero_o():
    for i in range(4): a(f"  v_mov_b32 v{204+i}, 0")
    a("  s_nop 1")
    for i in range(8): a(f"  v_mfma_f32_32x32x16_bf16 a[{A_O+16*i}:{A_O+16*i+15}], v[204:207], v[204:207], 0")
def setup_late():
    G_, G2, I_, t7, t8, t9, t10, t11, t12 = 129, 130, 134, 135, 136, 137, 138, 139, 140
    a(f"""
  s_lshl_b32 s{S_T}, s{S_G}, 19
  s_add_u32 s{SRD_K}, s{P_K}, s{S_T}
  s_addc_u32 s{SRD_K+1}, s{P_K+1}, 0
  s_mov_b32 s{SRD_K+2}, 0x80000
  s_mov_b32 s{SRD_K+3}, 0x20000
  s_add_u32 s{SRD_V}, s{P_V}, s{S_T}
  s_addc_u32 s{SRD_V+1}, s{P_V+1}, 0
  s_mov_b32 s{SRD_V+2}, 0x80000
  s_mov_b32 s{SRD_V+3}, 0x20000
  s_mov_b32 s{SRD_WS}, s{P_WS}
  s_mov_b32 s{SRD_WS+1}, s{P_WS+1}
  s_mov_b32 s{SRD_WS+2}, {64<<20}
  s_mov_b32 s{SRD_WS+3}, 0x20000
  s_and_b32 s{S_KV0}, s{S_R}, {OPT['kvr']}
  s_lshl_b32 s{S_KV0}, s{S_KV0}, {17 if OPT['kvr'] == 3 else 18}
  s_add_u32 s{S_KV0}, s{S_KV0}, s{S_KM0}
  s_mov_b32 s{S_KOFF}, s{S_KV0}
  s_lshl_b32 s{S_PBASE}, s{S_R}, 3
  s_add_u32 s{S_PBASE}, s{S_PBASE}, s{S_G}
  s_lshl_b32 s{S_PBASE}, s{S_PBASE}, {WGSH}
  s_and_b32 s{S_T}, s{S_R}, {3 if OPT['skew'] else 0}
  s_add_u32 s{S_T}, s{S_T}, s{S_W}
  s_and_b32 s{S_T}, s{S_T}, 3
  s_lshl_b32 s{S_T}, s{S_T}, {WGSH-2}
  s_add_u32 s{S_PBASE}, s{S_PBASE}, s{S_T}
  v_lshrrev_b32 v{G_}, 4, v{L}
  v_lshlrev_b32 v{G2}, 1, v{G_}
  v_and_b32 v{I_}, 15, v{L}
  v_xor_b32 v{t7}, v{I_}, v{G_}
  v_lshlrev_b32 v{t7}, 4, v{t7}
  v_lshl_add_u32 v{V_KD}, v{G_}, 8, v{t7}
""")
    for n in range(1, 4): a(f"  v_xor_b32 v{V_KD+n}, {64*n}, v{V_KD}")
    a(f"""
  ; V dma: G*256 + ((i ^ ((4*(n&1)+G)<<1))*16)
  v_xor_b32 v{t8}, v{I_}, v{G2}
  v_lshlrev_b32 v{t8}, 4, v{t8}
  v_lshl_add_u32 v{V_VD}, v{G_}, 8, v{t8}
  v_xor_b32 v{V_VD+1}, 128, v{V_VD}
  v_and_b32 v{t8}, 2, v{G2}
  v_lshrrev_b32 v{t9}, 1, v{G_}
  v_or_b32 v{t8}, v{t8}, v{t9}
  v_xor_b32 v{t8}, v{t8}, v{I_}
  v_lshlrev_b32 v{t8}, 4, v{t8}
  v_lshl_add_u32 v{V_KA}, v{I_}, 8, v{t8}
  s_lshl_b32 s{S_T}, s{S_ODD}, 7
  s_and_b32 s{S_T}, s{S_T}, {128 if OPT['qsw'] else 0}
  s_xor_b32 s{S_T}, s{S_T}, s{S_HSW}
  v_xor_b32 v{V_KA}, s{S_T}, v{V_KA}
""")
    for ds in range(1, 4): a(f"  v_xor_b32 v{V_KA+ds}, {64*ds}, v{V_KA}")
    a(f"""
  v_lshrrev_b32 v{t8}, 2, v{I_}
  v_lshl_add_u32 v{t8}, v{G_}, 2, v{t8}
  v_and_b32 v{t9}, 3, v{I_}
  v_lshlrev_b32 v{t9}, 3, v{t9}
  v_lshl_add_u32 v{t10}, v{t8}, 8, v{t9}
  v_add_u32 v{t10}, {RB}, v{t10}
  v_and_b32 v{t11}, 7, v{t8}
  v_lshl_add_u32 v{V_VA}, v{t11}, 5, v{t10}
""")
    for dt in range(1, 8): a(f"  v_xor_b32 v{V_VA+dt}, {32*dt}, v{V_VA}")
    a(f"""
  s_mov_b32 s{SRD_D}, s{P_DBG}
  s_mov_b32 s{SRD_D+1}, s{P_DBG+1}
  s_lshl_b32 s{SRD_D+2}, s{S_R}, 2
  s_add_u32 s{SRD_D+2}, s{SRD_D+2}, 4
  s_mov_b32 s{SRD_D+3}, 0x20000
  ; final: read base = r*512K + (g>>1)*16K + (g&1)*4K + w*1024 ; x/out soffset = (64r+16w)*1024 + (g>>1)*256 + (g&1)*64
  s_lshl_b32 s{S_FB}, s{S_R}, {WGSH+3}
  s_lshr_b32 s{S_T}, s{S_G}, 1
  s_lshl_b32 s{S_T}, s{S_T}, 2
  s_and_b32 s{S_T+1}, s{S_G}, 1
  s_add_u32 s{S_T+1}, s{S_T+1}, s{S_T}
  s_and_b32 s{S_T}, s{S_R}, {3 if OPT['skew'] else 0}
  s_lshl_b32 s{S_T}, s{S_T}, 1
  s_add_u32 s{S_T}, s{S_T}, s{S_G}
  s_and_b32 s{S_T}, s{S_T}, 7
  s_lshl_b32 s{S_T}, s{S_T}, 12
  s_add_u32 s{S_FB}, s{S_FB}, s{S_T}
  s_lshl_b32 s{S_T}, s{S_W}, 10
  s_add_u32 s{S_FB}, s{S_FB}, s{S_T}
  s_lshl_b32 s{S_XO}, s{S_R}, 16
  s_lshl_b32 s{S_T}, s{S_W}, 14
  s_add_u32 s{S_XO}, s{S_XO}, s{S_T}
  s_lshl_b32 s{S_T}, s{S_T+1}, 6
  s_add_u32 s{S_XO}, s{S_XO}, s{S_T}
""")
    zero_o()
if not OPT['sl']: setup_late()
a("; ---- LayerNorm")
def dreg(e): return e if e < 64 else 64 + e
pfsel = [k for b_, k in ((1, 'w2'), (2, 'kv'), (4, 'ws')) if OPT['pf'] & b_] + ([] if OPT['mbl'] else ['mb'])
groups = []
for s_ in range(NS-1):
    pl = produce_list(rpos(s_))
    groups += [pl[:5], [pl[5]], [pl[6]], [pl[7]]]
for k in pfsel: groups.append(PFG[k])
NPF = sum(nloads(PFG[k]) for k in pfsel)
SUM, SQ = 192, 196
MU, MB = 200, 202
a(f"  v_and_b32 v8, 3, v{L}")
if OPT['ln2']:
    a(f"  v_lshrrev_b32 v9, 3, v{L}"); a("  v_lshlrev_b32 v9, 2, v9")
else: a(f"  v_and_b32 v9, 60, v{L}")
a(f"  v_lshl_add_u32 v8, v8, 12, v9")
a(f"  s_lshl_b32 s{S_T}, s{S_W}, 6")
a(f"  s_add_u32 s{S_T}, s{S_T}, {RB+1*16384}")
a(f"  v_add_u32 v{V_BA}, s{S_T}, v8")
a(f"  s_add_u32 s{S_T}, s{S_VM0}, {1*16384}")
a(f"  v_lshl_add_u32 v{V_RSO}, v6, 2, s{S_T}")
stamp(7)
PRE = OPT['pre']
for g_ in groups[:PRE]:
    for l in g_: a(l)
groups = groups[PRE:]
xloads(OPT['xs'], 16)
stamp(7)
if OPT['stamps'] == 7:
    for k in (16, 15, 8, 0):
        a(f"  s_waitcnt vmcnt({k})"); stamp(7)
def ln_two_halves():
    vq = [f"x{j}" for j in range(8)] + [f"S{k>>2}" for k in range(PRE)] + [f"x{j}" for j in range(8, 16)]
    gi = [PRE]; rest = list(groups)
    def yg(tag): return len(vq) - 1 - max(i for i, t in enumerate(vq) if t == tag)
    def spr():
        if rest:
            for l in rest.pop(0): a(l)
            vq.append(f"S{gi[0]>>2}"); gi[0] += 1
    for h in range(2):
        nA = OPT['spA'] if h == 0 else 0
        for j in range(8*h, 8*h+8):
            a(f"  s_waitcnt vmcnt({yg(f'x{j}')})")
            if j in (0, 8, 15): stamp(3)
            if (j & 7) < nA: spr()
            for i in range(4*j, 4*j+4):
                a(f"  v_lshlrev_b32 v{dreg(2*i)}, 16, v{64+i}")
                a(f"  v_and_b32 v{dreg(2*i+1)}, 0xffff0000, v{64+i}")
            for i in range(4*j, 4*j+4):
                e = dreg(2*i); t = SUM + 2*(i & 1); q = SQ + 2*(i & 1); ii = i & 31
                if ii < 2: a(f"  v_pk_add_f32 v[{t}:{t+1}], v[{e}:{e+1}], v[{dreg(2*i+4)}:{dreg(2*i+4)+1}]")
                elif ii >= 4: a(f"  v_pk_add_f32 v[{t}:{t+1}], v[{t}:{t+1}], v[{e}:{e+1}]")
                if ii < 2: a(f"  v_pk_mul_f32 v[{q}:{q+1}], v[{e}:{e+1}], v[{e}:{e+1}]")
                else: a(f"  v_pk_fma_f32 v[{q}:{q+1}], v[{e}:{e+1}], v[{e}:{e+1}], v[{q}:{q+1}]")
        stamp(3)
        for r in (SUM, SQ): a(f"  v_pk_add_f32 v[{r}:{r+1}], v[{r}:{r+1}], v[{r+2}:{r+3}]")
        for r in (SUM, SQ): a(f"  v_add_f32 v{r}, v{r}, v{r+1}")
        a("  s_nop 0")
        for qp in ("quad_perm:[1,0,3,2]", "quad_perm:[2,3,0,1]", "row_half_mirror"):
            for r in (SUM, SQ): a(f"  v_add_f32_dpp v{r}, v{r}, v{r} {qp} row_mask:0xf bank_mask:0xf")
            a("  s_nop 0")
        a(f"  v_mul_f32 v{MU}, 0x3b000000, v{SUM}")
        a(f"  v_cvt_pk_bf16_f32 v{MB}, v{MU}, v{MU}")
        a(f"  v_and_b32 v{MB}, 0xffff0000, v{MB}")
        st_ = f"""  v_mul_f32 v{SQ}, 0x3b000000, v{SQ}
  v_fma_f32 v{SQ}, -v{MU}, v{MU}, v{SQ}
  v_max_f32 v{SQ}, 0, v{SQ}
  v_cvt_pk_bf16_f32 v{SQ}, v{SQ}, v{SQ}
  v_and_b32 v{SQ}, 0xffff0000, v{SQ}
  v_add_f32 v{SQ}, 0x3727c5ac, v{SQ}
  v_cvt_pk_bf16_f32 v{SQ}, v{SQ}, v{SQ}
  v_and_b32 v{SQ}, 0xffff0000, v{SQ}
  v_sqrt_f32 v{SQ}, v{SQ}
  v_cvt_pk_bf16_f32 v{SQ}, v{SQ}, v{SQ}
  v_and_b32 v{SQ}, 0xffff0000, v{SQ}
  v_rcp_f32 v{MU+1}, v{SQ}
  ds_write_b32 v{V_BA}, v{MU+1} offset:{32*h}""".split('\n')
        for j in range(8*h, 8*h+8):
            if (h == 0 and (j & 7) < OPT['spB']) or h == 1: spr()
            for k in range(4):
                e = dreg(2*(4*j+k))
                a(f"  v_pk_add_f32 v[{e}:{e+1}], v[{e}:{e+1}], v[{MB}:{MB+1}] op_sel_hi:[1,0] neg_lo:[0,1] neg_hi:[0,1]")
            if st_: a(st_.pop(0))
            for k in range(4):
                i = 4*j + k; e = dreg(2*i)
                a(f"  v_cvt_pk_bf16_f32 v{64+i}, v{e}, v{e+1}")
                if k == 1 and st_: a(st_.pop(0))
            a(f"  ds_write_b64 v{V_T1}, v[{64+4*j}:{65+4*j}] offset:{(j&7)*8192+h*128}")
            a(f"  ds_write_b64 v{V_T1}, v[{66+4*j}:{67+4*j}] offset:{(j&7)*8192+h*128+256}")
        if h == 0: stamp(3)
    while rest: spr()
    stamp(3)
    a(f"  s_waitcnt vmcnt({yg('S1')}) lgkmcnt(0)")
def ln_one():
    for j in range(16):
        a(f"  s_waitcnt vmcnt({15 - j + min(j, OPT['n1']) + (PRE if j < OPT['xs'] else 0)})")
        if j in (0, 8, 15): stamp(3)
        if j < OPT['n1']:
            for l in groups[j]: a(l)
        for i in range(4*j, 4*j+4):
            a(f"  v_lshlrev_b32 v{dreg(2*i)}, 16, v{64+i}")
            a(f"  v_and_b32 v{dreg(2*i+1)}, 0xffff0000, v{64+i}")
        for i in range(4*j, 4*j+4):
            e = dreg(2*i); t = SUM + 2*(i & 1); q = SQ + 2*(i & 1)
            if i < 2: a(f"  v_pk_add_f32 v[{t}:{t+1}], v[{e}:{e+1}], v[{dreg(2*i+4)}:{dreg(2*i+4)+1}]")
            elif i >= 4: a(f"  v_pk_add_f32 v[{t}:{t+1}], v[{t}:{t+1}], v[{e}:{e+1}]")
            if i < 2: a(f"  v_pk_mul_f32 v[{q}:{q+1}], v[{e}:{e+1}], v[{e}:{e+1}]")
            else: a(f"  v_pk_fma_f32 v[{q}:{q+1}], v[{e}:{e+1}], v[{e}:{e+1}], v[{q}:{q+1}]")
    sprinkle = groups[OPT['n1']:]
    stamp(3)
    for r in (SUM, SQ): a(f"  v_pk_add_f32 v[{r}:{r+1}], v[{r}:{r+1}], v[{r+2}:{r+3}]")
    for r in (SUM, SQ): a(f"  v_add_f32 v{r}, v{r}, v{r+1}")
    a("  s_nop 0")
    for qp in ("[1,0,3,2]", "[2,3,0,1]"):
        for r in (SUM, SQ): a(f"  v_add_f32_dpp v{r}, v{r}, v{r} quad_perm:{qp} row_mask:0xf bank_mask:0xf")
        a("  s_nop 0")
    a(f"""
  v_mul_f32 v{MU}, 0x3b000000, v{SUM}
  v_cvt_pk_bf16_f32 v{MB}, v{MU}, v{MU}
  v_and_b32 v{MB}, 0xffff0000, v{MB}
""")
    stats = f"""  v_mul_f32 v{SQ}, 0x3b000000, v{SQ}
  v_fma_f32 v{SQ}, -v{MU}, v{MU}, v{SQ}
  v_max_f32 v{SQ}, 0, v{SQ}
  v_cvt_pk_bf16_f32 v{SQ}, v{SQ}, v{SQ}
  v_and_b32 v{SQ}, 0xffff0000, v{SQ}
  v_add_f32 v{SQ}, 0x3727c5ac, v{SQ}
  v_cvt_pk_bf16_f32 v{SQ}, v{SQ}, v{SQ}
  v_and_b32 v{SQ}, 0xffff0000, v{SQ}
  v_sqrt_f32 v{SQ}, v{SQ}
  v_cvt_pk_bf16_f32 v{SQ}, v{SQ}, v{SQ}
  v_and_b32 v{SQ}, 0xffff0000, v{SQ}
  v_rcp_f32 v{SQ}, v{SQ}
  ds_write_b32 v{V_BA}, v{SQ}""".split('\n')
    for j in range(16):
        if j in (0, 8): stamp(3)
        if j >= OPT['late'] and sprinkle:
            for l in sprinkle.pop(0): a(l)
        for k in range(4):
            e = dreg(2*(4*j+k))
            a(f"  v_pk_add_f32 v[{e}:{e+1}], v[{e}:{e+1}], v[{MB}:{MB+1}] op_sel_hi:[1,0] neg_lo:[0,1] neg_hi:[0,1]")
        if j < len(stats): a(stats[j])
        for k in range(4):
            i = 4*j + k; e = dreg(2*i)
            a(f"  v_cvt_pk_bf16_f32 v{64+i}, v{e}, v{e+1}")
        a(f"  ds_write_b64 v{V_T1}, v[{64+4*j}:{65+4*j}] offset:{j*4096}")
        a(f"  ds_write_b64 v{V_T1}, v[{66+4*j}:{67+4*j}] offset:{j*4096+256}")
    for g_ in sprinkle:
        for l in g_: a(l)
    stamp(3)
    if OPT['gst']:
        if OPT['ew']:
            a(f"  s_mov_b32 s{S_CNT}, s{S_W}"); a(f"  s_cmp_eq_u32 s{S_ODD}, 0"); a("  s_cbranch_scc1 L_walk1")
        a("  s_branch L_gst"); a.label("L_gst_ret")
    a(f"  s_waitcnt vmcnt({4*(NS-3)+NPF}) lgkmcnt(0)")
(ln_two_halves if OPT['ln2'] else ln_one)()
a_first()
a("  s_barrier")
stamp(3)
stamp()
for qt in range(4): a(f"  ds_read_b32 v{V_RS+qt}, v{V_RSO} offset:{qt*64}")
a(f"  s_lshl_b32 s{S_T}, s{S_W}, 6")
a(f"  v_add_u32 v{V_RSO}, s{S_T}, v{V_RSO}")
a(f"  ds_read_b32 v{V_RSO}, v{V_RSO}")
b_reload(False, wait=False)
a("  s_waitcnt lgkmcnt(8)")
produce_slot(rpos(5)); produce_slot(rpos(6))
a(f"  s_mov_b32 s{S_T}, {CSH:#x}")
for qt in range(4): a(f"  v_mul_f32 v{V_RS+qt}, s{S_T}, v{V_RS+qt}")
a("; ---- FFN1")
stamp(8)
if OPT['w3'] == 4:
    a(f"  s_cmp_lg_u32 s{SRD_W+2}, 0")
    a("  s_cbranch_scc0 L_w3")
    _i = len(a.lines)
    a.label("L_w3")
    set_stream('wq', 0)
    a("  s_waitcnt vmcnt(0) lgkmcnt(0)")
    for k in range(16, 22): produce_slot(rpos(k))
    gpos[0] = 16
    a("  s_waitcnt vmcnt(16)")
    a_first()
    a("  s_waitcnt lgkmcnt(0)")
    produce_slot(rpos(22))
    gpos[0] = 0
    a("  s_branch L_qstart")
    W3_CODE = a.lines[_i:]; del a.lines[_i:]
if OPT['w3'] == 3:
    a(f"  s_cmp_lg_u32 s{SRD_W+2}, 0")
    a("  s_cbranch_scc1 L_w3n")
    a(f"  s_add_u32 s{S_BOFF}, s{S_BOFF}, {9*4096}")
    a(f"  s_and_b32 s{S_BOFF}, s{S_BOFF}, 0xffff")
    a(f"  v_add_u32 v{V_BA}, s{S_BOFF}, v{V_L16}")
    a("  s_branch L_w3j")
    a.label("L_w3n")
gemm_first()
if OPT['w3'] in (1, 2):
    a(f"  s_cmp_lg_u32 s{SRD_W+2}, 0")
    a("  s_cbranch_scc1 L_w3n")
    X = SRD_X
    a(f"  s_mov_b32 s{X}, s{P_WQ}"); a(f"  s_mov_b32 s{X+1}, s{P_WQ+1}"); a(f"  s_mov_b32 s{X+2}, {512*4096*2}")
    a(f"  s_and_b32 s{S_T}, s{S_R}, 15")
    a(f"  s_lshl_b32 s{S_T+1}, s{S_T}, 18")
    a(f"  s_lshl_b32 s{S_T+2}, s{S_G}, 10")
    a(f"  s_add_u32 s{S_T+1}, s{S_T+1}, s{S_T+2}")
    a(f"  v_and_b32 v128, 7, v{V_LANE}"); a("  v_lshlrev_b32 v128, 7, v128"); a(f"  v_lshl_add_u32 v128, v{V_PROW}, 13, v128")
    for k in range(4):
        a(f"  buffer_load_dword v{130+k}, v128, s[{X}:{X+3}], s{S_T+1} offen")
        a(f"  s_add_u32 s{S_T+1}, s{S_T+1}, {8*8192}")
    if OPT['w3'] >= 2:
        a(f"  s_mov_b32 s{X}, s{P_W2}"); a(f"  s_mov_b32 s{X+1}, s{P_W2+1}"); a(f"  s_mov_b32 s{X+2}, {512*1792*2}")
        a(f"  s_mul_i32 s{S_T+1}, s{S_T}, {12*1024}")
        a(f"  s_lshl_b32 s{S_T+2}, s{S_FOFF}, 10")
        a(f"  s_add_u32 s{S_T+1}, s{S_T+1}, s{S_T+2}")
        a(f"  v_lshlrev_b32 v129, 7, v{V_LANE}")
        a(f"  buffer_load_dword v134, v129, s[{X}:{X+3}], s{S_T+1} offen")
        a(f"  s_add_u32 s{S_T+1}, s{S_T+1}, 4096")
        a(f"  buffer_load_dword v135, v129, s[{X}:{X+3}], s{S_T+1} offen")
    a(f"  s_add_u32 s{S_BOFF}, s{S_BOFF}, {7*4096}")
    a(f"  s_and_b32 s{S_BOFF}, s{S_BOFF}, 0xffff")
    a(f"  v_add_u32 v{V_BA}, s{S_BOFF}, v{V_L16}")
    a("  s_waitcnt vmcnt(0)")
    a("  s_branch L_w3j")
    a.label("L_w3n")
gemm_call(7)
if OPT['w3'] in (1, 2, 3): a.label("L_w3j")
stamp(8); set_stream('wq', 0)
if OPT['sl']:
    gemm_call(OPT['sl']); setup_late(); gemm_call(7 - OPT['sl'])
else: gemm_call(7)
stamp(8)
a("  s_nop 7"); align8()
for c in range(2):
    for qt in range(4):
        x = V_ACC + ((2*c)*4+qt)*4; y = V_ACC + ((2*c+1)*4+qt)*4
        d = V_H + (c*4+qt)*4
        for k, s in enumerate((x, x+2, y, y+2)):
            a(f"  v_cvt_pk_bf16_f32 v{d+k}, v{s}, v{s+1}")
        for k in range(4):
            a(f"  v_pk_max_i16 v{d+k}, v{d+k}, 0")
a("; ---- Q projection")
a.label("L_qstart")
for half in range(2):
    if half == 1 and OPT['cp3']:
        a(f"  s_getpc_b64 s[{SRD_X}:{SRD_X+1}]")
        a.label("L_pc3")
        a(f"  s_mov_b32 s{SRD_X+2}, L_tail-L_pc3")
        a(f"  s_lshr_b32 s{S_T}, s2, 3")
        a(f"  s_lshl_b32 s{S_T}, s{S_T}, 2")
        a(f"  s_add_u32 s{S_T}, s{S_T}, s{S_W}")
        a(f"  s_lshl_b32 s{S_T}, s{S_T}, 8")
        a(f"  v_lshlrev_b32 v{V_T1}, 2, v{V_LANE}")
        a(f"  buffer_load_dword v255, v{V_T1}, s[{SRD_X}:{SRD_X+3}], s{S_T} offen")
    stamp(8)
    gemm_first(); gemm_call(7)
    if half == 0:
        stamp(8)
        set_stream('wq', 1); gemm_call(7); stamp(8)
    else:
        set_stream('w2', 0); gemm_call(6)
        a(f"  s_lshl_b32 s{S_T}, s{S_ODD}, 7")
        for n in range(4): a(f"  v_xor_b32 v{V_PD+n}, s{S_T}, v{V_PD+n}")
        gemm_call(1); stamp(8)
    def qepi1():
        for c in range(2):
            for qt in range(4):
                x = V_ACC + ((2*c)*4+qt)*4; y = V_ACC + ((2*c+1)*4+qt)*4
                rp = V_RS + (qt & 2); md = "op_sel:[0,1] op_sel_hi:[1,1]" if qt & 1 else "op_sel_hi:[1,0]"
                for s in (x, x+2, y, y+2):
                    a(f"  v_pk_mul_f32 v[{s}:{s+1}], v[{s}:{s+1}], v[{rp}:{rp+1}] {md}")
                d = 128 + (c*4+qt)*4
                for k, s in enumerate((x, x+2, y, y+2)):
                    a(f"  v_cvt_pk_bf16_f32 v{d+k}, v{s}, v{s+1}")
    def qepi2():
        for c in range(2):
            for qt in range(4):
                d = 128 + (c*4+qt)*4
                a(f"  v_permlane16_swap_b32 v{d}, v{d+2}")
                a(f"  v_permlane16_swap_b32 v{d+1}, v{d+3}")
        align8()
        for c in range(2):
            for qt in range(4):
                d = 128 + (c*4+qt)*4
                for k in range(4):
                    a(f"  v_accvgpr_write_b32 a{A_Q+(qt*4+2*half+c)*4+k}, v{d+k}")
    if half == 0 or not OPT['hx']:
        a("  s_nop 7"); align8(); qepi1(); a("  s_nop 0"); qepi2()
stamp()
stamp(2)
if OPT['pad']:
    a(f"  s_lshl_b32 s{S_T}, s{S_ODD}, 2")
    a(f"  s_or_b32 s{S_T}, s{S_T}, s{S_W}")
    a(f"  s_cmp_eq_u32 s{S_T}, 7")
    a("  s_cbranch_scc1 L_walk")
    a.label("L_walk_ret")
a(f"  s_lshl_b32 s{S_T}, s{S_W}, 13")
a(f"  v_add_u32 v{V_T0}, s{S_T}, v{V_L16}")
a("  s_waitcnt lgkmcnt(0)")
a("  s_barrier")
hw = [f"  ds_write_b128 v{V_T0}, v[{V_H+k*4}:{V_H+k*4+3}] offset:{k*1024}" for k in range(8)]
kd = capture(lambda: (k_tile_dma(0), k_tile_dma(1))) if not OPT['klate'] else []
if OPT['hx']:
    e1 = capture(qepi1)
    a("  s_nop 3"); align8()
    for k in range(8):
        a(hw[k])
        for l in e1[4*k:4*k+4]: a(l)
    e1 = e1[32:]
    for l in kd:
        a(l)
        if 'buffer_' in l or 'm0' in l:
            for _ in range(3): a(e1.pop(0))
    for l in e1: a(l)
else:
    for l in hw: a(l)
    k_tile_dma(0); k_tile_dma(1)
a("  s_waitcnt lgkmcnt(0)")
a("  s_barrier")
a("; ---- FFN2 partial")
stamp(2)
b_reload(True, wait=False)
if OPT['hx']: qepi2()
a(f"  s_mov_b32 s{S_VOFF}, s{S_KV0}")
a(f"  s_cmp_lg_u32 s{S_ODD}, 0")
a("  s_cbranch_scc0 L_ffn2_even" if OPT['ool'] else "  s_cbranch_scc1 L_ffn2_odd")
def attn_init():
    L = [f"  s_add_u32 s{S_VOFF}, s{S_KV0}, {2*16384}"]
    L += [f"  v_mov_b32 v{V_L+i}, 0" for i in range(12)]
    L += [f"  v_and_b32 v{V_T0}, {15 if OPT['one1'] else 3}, v{V_LANE}", f"  v_cmp_eq_u32 vcc, 0, v{V_T0}", f"  v_mov_b32 v{V_T0}, 0x3f803f80", "  s_nop 0",
          f"  v_cndmask_b32 v{V_ONES}, 0, v{V_T0}, vcc"] + [f"  v_mov_b32 v{V_ONES+i}, v{V_ONES}" for i in range(1, 4)]
    if NSUM == 4:
        L += ["  s_nop 1"] + [f"  v_mov_b32_dpp v{V_L+i}, v{V_ONES} quad_perm:[1,0,3,2] row_mask:0xf bank_mask:0xf" for i in range(4)]
    return L
HI_CVT = capture(lambda: store_partial(0, 1, dst=160, defer=True, sreg=S_SP))
HI_CVT = [l for l in HI_CVT if 'v_cvt' in l]
WO_SET = capture(lambda: set_stream('wo', 0)) + [f"  s_mov_b32 s{S_SV_POFF}, s{S_POFF}"]
A_INIT = [l for l in attn_init() if 's_nop' not in l]
def ffn2(nf):
    gpos[0] = 48; N = 48 + 2*nf
    vq = [f"S{k}" for k in range(49, 55) for _ in range(4)] + ['K']*(0 if OPT['klate'] else 8)
    kj = ((57, 58) if nf == 8 else (53, 54)) if OPT['klate'] else ()
    vj = (59, 60) if (nf == 8 and OPT['klate']) else (57, 58)
    def yg(tag): return len(vq) - 1 - max(i for i, t in enumerate(vq) if t == tag)
    st0 = None
    stj = (59, 60) if nf == 8 else (55, 56)
    j = 48
    ns0 = nstamp[0]
    while j < N:
        if j in (48, 50, 48 + nf, 50 + nf): stamp(2)
        if j == 48 + nf: st0 = store_partial(0, 0, dst=128, defer=True, sreg=S_SP)
        if nf == 8 and j == 49: set_stream('w2', 1)
        if j == 50:
            n = 6 if nf == 8 else 3
            gemm_call(n)
            for k in range(n): vq.extend([f"S{j+k+7}"]*4)
            j += n; continue
        kw = dict(first=(j - 48) % nf < 2, vmw=(yg(f"S{j+2}") if j + 2 < N else 63), noread=(j + 2 >= N))
        if j + 7 < N: tags = [f"S{j+7}"]*4
        elif j in vj:
            kw['vm'] = [[f"  s_add_u32 m0, s{S_VM0}, {(j-vj[0])*16384}", v_dma(0)], [v_dma(1)], [v_dma(2)], [v_dma(3)]]
            if j == vj[1]: kw['xvm'] = [(5, f"  s_add_u32 s{S_VOFF}, s{S_VOFF}, 16384")]
            tags = ['V']*4
        elif j in kj:
            kw['vm'] = [[f"  s_add_u32 m0, s{S_KM0}, {kslot(j-kj[0])*16384}", k_dma(0)], [k_dma(1)], [k_dma(2)], [k_dma(3)]]
            kw['xvm'] = [(15, f"  s_add_u32 s{S_KOFF}, s{S_KOFF}, 16384")]
            tags = ['K']*4
        elif j in stj and OPT['early']:
            kw['vm'] = [[x] for x in st0[4*(j-stj[0]):4*(j-stj[0])+4]]; tags = ['st']*4
        else: kw['vm'] = []; tags = []
        if OPT['hfill'] and j == N - 2:
            kw2 = dict(vm=[], vmw=63, noread=True)
            w0 = kw['vmw']
            prog = capture(lambda: (gemm_inl(**kw), gemm_inl(**kw2)))
            prog = [l for l in prog if 's_waitcnt' not in l]
            a(f"  s_waitcnt vmcnt({w0}) lgkmcnt(0)")
            emit_sched(prog + A_INIT + WO_SET + HI_CVT[:16], f'ffn2 end {nf}')
            break
        gemm_inl(**kw); vq.extend(tags); j += 1
_ns = nstamp[0]
_i = len(a.lines)
a.label("L_ffn2_even")
ffn2(8)
nstamp[0] = _ns
a("  s_branch L_ffn2_done")
EVEN_CODE = []
if OPT['ool']:
    EVEN_CODE = a.lines[_i:]; del a.lines[_i:]
iodd = len(a.lines)
a.label("L_ffn2_odd")
ffn2(6)
a.label("L_ffn2_done")
stamp(2)
a("  s_waitcnt vmcnt(12) lgkmcnt(0)")
a("  s_barrier")
stamp(2)
stamp(); stamp(4)
if OPT['stamps']:
    a("  s_memrealtime s[38:39]")
    a("  s_waitcnt lgkmcnt(0)")
QORD = [(kt, qt) for qt in range(4) for kt in range(2)]
def maxq(qt):
    x = s_reg(0, 0, qt); y = s_reg(0, 1, qt); m = V_NEGM + qt*4
    a(f"  v_max3_f32 v{m}, v{x}, v{x+1}, v{x+2}")
    a(f"  v_max3_f32 v{m+1}, v{x+3}, v{y}, v{y+1}")
    a(f"  v_max3_f32 v{m}, v{m}, v{y+2}, v{y+3}")
    a(f"  v_max_f32 v{m}, v{m}, v{m+1}")
    xlane_reduce(m, 'v_max_f32', m+1)
    for k in range(3, -1, -1): a(f"  v_sub_f32 v{m+k}, 0, v{m}")
    for kt in range(2):
        for r in range(4):
            s_ = s_reg(0, kt, qt) + r
            a(f"  v_add_f32 v{s_}, v{s_}, v{m}")
def head_common():
    L = qk_mfmas(1, order=QORD, src=A_V)
    for qt in range(4): L += sm_ops(0, qt)
    L += [k_read(2, i >> 2, i & 3) for i in range(8)] + capture(lambda: k_tile_dma(4))
    L += qk_mfmas(0, order=QORD)
    for qt in range(4): L += sm_ops(1, qt)
    L += [k_read(3, i >> 2, i & 3) for i in range(8)] + capture(lambda: v_tile_dma(2))
    return L
KR01 = [k_read(0, i >> 2, i & 3) for i in range(8)] + [k_read(1, i >> 2, i & 3, A_V) for i in range(8)]
prog = KR01 + HI_CVT[(16 if OPT['hfill'] else 0):]
prog += capture(lambda: (k_tile_dma(2), k_tile_dma(3))) + ["  s_waitcnt vmcnt(16)", "  s_barrier"]
for k in range(OPT['hst']):
    prog.append(f"  s_add_u32 s{S_SP}, s{S_PBASE}, {k*4096}")
    prog += [f"  buffer_store_dwordx4 v[{128+(k*4+qt)*4}:{131+(k*4+qt)*4}], v{V_L16}, s[{SRD_WS}:{SRD_WS+3}], s{S_SP} offen offset:{qt*1024} sc1" for qt in range(4)]
if OPT['m16']:
    prog += qk_mfmas(0, zero=True, order=[(0, qt) for qt in range(4)])
    if not OPT['hfill']: prog += A_INIT
    def max16(qt):
        x = s_reg(0, 0, qt); m = V_NEGM + qt*4
        a(f"  v_max3_f32 v{m}, v{x}, v{x+1}, v{x+2}")
        a(f"  v_max_f32 v{m}, v{m}, v{x+3}")
        xlane_reduce(m, 'v_max_f32', m+1)
        for k in range(3, -1, -1): a(f"  v_sub_f32 v{m+k}, 0, v{m}")
    for qt in range(4): prog += capture(lambda: max16(qt))
    prog += qk_mfmas(0, order=QORD)
else:
    prog += qk_mfmas(0, zero=True, order=QORD)
    if not OPT['hfill']: prog += A_INIT
    for qt in range(4): prog += capture(lambda: maxq(qt))
prog += head_common()
if not OPT['hfill']: prog += WO_SET
emit_sched(prog, 'head', vmgap=OPT['hgap'])
stamp(4)
a(f"  s_mov_b32 s{S_LOOP}, 7")
a(f"  s_and_b32 s{S_EV}, s{S_R}, 3")
a(f"  s_mov_b32 s{S_EI}, 0")
a(f"  s_waitcnt vmcnt({12 + 4*OPT['hst']})")
a("  s_branch L_p2")
segs.append(('pre', i0, len(a.lines)))
a(f".p2align {OPT['lal']}")
if OPT['pad']:
    a.label("L_padL"); a("  s_branch NEXT_L_padL"); a("  s_nop 0")
il = len(a.lines)
a.label("L_loop")
for p in range(8, 16):
    if p == 10: a.label("L_p2")
    if p % 2 == 0: barrier_T(16)
    else:
        if OPT['e64']: a("  s_nop 0")
        a("  s_waitcnt lgkmcnt(0)")
    if OPT['stg'] and p & 1:
        period(p, endop=f"  s_sub_u32 s{S_EV}, s{S_EV}, 1")
        a(f"  s_cbranch_scc1 L_ev{p}")
        a.label(f"L_evr{p}")
    else: period(p)
a(f"  s_sub_u32 s{S_LOOP}, s{S_LOOP}, 1")
a(f"  s_cmp_eq_u32 s{S_LOOP}, 0")
a("  s_cbranch_scc1 L_tail")
itail = len(a.lines)
a(f"  s_cmp_lg_u32 s{S_REDO}, 0")
a("  s_cbranch_scc1 L_loop")
if OPT['alt']:
    a(f"  s_cmp_lt_u32 s{S_LOOP}, 3")
    a("  s_cbranch_scc1 L_bk3")
    a(f"  s_xor_b32 s{S_T}, s{S_LOOP}, s{S_ODD}")
    a(f"  s_bitcmp1_b32 s{S_T}, 0")
    a("  s_cbranch_scc0 L_loop")
    a(f"  s_cmp_lt_u32 s{S_LOOP}, 5")
    a("  s_cbranch_scc1 L_bk1")
    for hb in range(2):
        if hb:
            a.label("L_bk1")
            for l in PFG['mb']: a(l.replace('v255', f'v{V_T0}'))
        for k in (2*hb, 2*hb+1):
            a(f"  s_add_u32 s{S_T}, s{S_PBASE}, {(k & 1)*4096 + (k >> 1)*HSTR}")
            for qt in range(4):
                d = 128 + (k*4+qt)*4
                a(f"  buffer_store_dwordx4 v[{d}:{d+3}], v{V_L16}, s[{SRD_WS}:{SRD_WS+3}], s{S_T} offen offset:{qt*1024} sc1")
        a("  s_branch L_loop")
    a.label("L_bk3")
if OPT['bsh']:
    idx = 0
    for e, n_ in enumerate((6, 5, 5)):
        a(f"  s_cmp_lg_u32 s{S_LOOP}, {5-e}")
        a(f"  s_cbranch_scc1 L_bk{e}")
        if e == 2:
            for l in PFG['mb']: a(l.replace('v255', f'v{V_T0}'))
        for z in range(idx, idx + n_):
            k, qt = z >> 2, z & 3
            if z == idx or qt == 0: a(f"  s_add_u32 s{S_T}, s{S_PBASE}, {(k & 1)*4096 + (k >> 1)*HSTR}")
            a(f"  buffer_store_dwordx4 v[{128+4*z}:{131+4*z}], v{V_L16}, s[{SRD_WS}:{SRD_WS+3}], s{S_T} offen offset:{qt*1024} sc1")
        idx += n_
        a("  s_branch L_loop")
        a.label(f"L_bk{e}")
for k in range(OPT['hst'], 0 if (OPT['stg'] or OPT['alt'] or OPT['bsh']) else 4):
    a(f"  s_cmp_lg_u32 s{S_LOOP}, {6-k}")
    a(f"  s_cbranch_scc1 L_bk{k}")
    if k == 3 and OPT['mbl']:
        for l in PFG['mb']: a(l.replace('v255', f'v{V_T0}'))
    a(f"  s_add_u32 s{S_T}, s{S_PBASE}, {(k & 1)*4096 + (k >> 1)*HSTR}")
    if OPT['w2sw']:
        a(f"  s_and_b32 s{S_T+1}, s{S_R}, 1")
        a(f"  s_mul_i32 s{S_T+1}, s{S_T+1}, {HSTR}")
        a(f"  s_xor_b32 s{S_T}, s{S_T}, s{S_T+1}")
    for qt in range(4):
        d = 128 + (k*4+qt)*4
        a(f"  buffer_store_dwordx4 v[{d}:{d+3}], v{V_L16}, s[{SRD_WS}:{SRD_WS+3}], s{S_T} offen offset:{qt*1024} sc1")
    a("  s_branch L_loop")
    a.label(f"L_bk{k}")
a(f"  s_lshl_b32 s{S_T}, s{S_R}, 2")
a(f"  s_cmp_lg_u32 s{S_LOOP}, 1")
a("  s_cbranch_scc1 L_bk4")
a(f"  v_mov_b32 v{V_T0}, 0")
a(f"  buffer_load_dword v{V_POLL}, v{V_T0}, s[{SRD_D}:{SRD_D+3}], s{S_T} offen sc1")
if OPT['cp2']:
    a(f"  s_getpc_b64 s[{SRD_X}:{SRD_X+1}]")
    a.label("L_pc2")
    a(f"  s_mov_b32 s{SRD_X+2}, L_code_end-L_pc2")
    a(f"  s_lshr_b32 s{S_T}, s2, 3")
    a(f"  s_lshl_b32 s{S_T}, s{S_T}, 2")
    a(f"  s_add_u32 s{S_T}, s{S_T}, s{S_W}")
    a(f"  s_lshl_b32 s{S_T}, s{S_T}, 8")
    a(f"  v_lshlrev_b32 v{V_T1}, 2, v{V_LANE}")
    a(f"  buffer_load_dword v128, v{V_T1}, s[{SRD_X}:{SRD_X+3}], s{S_T} offen")
    if OPT['cp2'] == 3:
        a(f"  s_cmp_lg_u32 s{S_ODD}, 0")
        a("  s_cbranch_scc1 L_loop")
    if OPT['cp2'] >= 2:
        for l in PFG['wo']: a(l.replace('v253', f'v{V_T1}').replace('v254', 'v129'))
a("  s_branch L_loop")
a.label("L_bk4")
if OPT['pt']:
    a(f"  v_lshlrev_b32 v{V_T1}, 7, v{V_LANE}")
    for k in range(2):
        a(f"  s_add_u32 s{S_T+1}, s{S_PBASE}, {PART_KIND + k*8192}")
        a(f"  buffer_load_dword v{130+k}, v{V_T1}, s[{SRD_WS}:{SRD_WS+3}], s{S_T+1} offen{' sc1' if OPT['pt'] == 2 else ''}")
a(f"  s_lshl_b32 s{S_T+1}, s{S_W}, 4")
a(f"  s_or_b32 s{S_T+1}, s{S_T+1}, s{S_LOOP}")
a(f"  s_cmp_lg_u32 s{S_T+1}, 2")
a("  s_cbranch_scc1 L_loop")
a(f"  v_mov_b32 v{V_T0}, 1")
a(f"  v_lshlrev_b32 v{V_T1}, 2, v{V_LANE}")
a(f"  buffer_atomic_add v{V_T0}, v{V_T1}, s[{SRD_D}:{SRD_D+3}], s{S_T} offen sc1")
a("  s_branch L_loop")
if OPT['stg']:
    for p in (9, 11, 13, 15):
        a.label(f"L_ev{p}")
        a(f"  s_call_b64 s[{S_RET}:{S_RET+1}], L_evt")
        a(f"  s_branch L_evr{p}")
    a.label("L_evt")
    a(f"  s_mov_b32 s{S_EV}, {OPT['stg'] + 2}")
    a(f"  s_add_u32 s{S_EI}, s{S_EI}, 1")
    for k in range(4):
        if k < 3:
            a(f"  s_cmp_lg_u32 s{S_EI}, {k+1}")
            a(f"  s_cbranch_scc1 L_evk{k}")
        else:
            a(f"  s_mov_b32 s{S_EV}, 1000")
            for l in PFG['mb']: a(l.replace('v255', f'v{V_T0}'))
        a(f"  s_add_u32 s{S_T}, s{S_PBASE}, {(k & 1)*4096 + (k >> 1)*HSTR}")
        for qt in range(4):
            d = 128 + (k*4+qt)*4
            a(f"  buffer_store_dwordx4 v[{d}:{d+3}], v{V_L16}, s[{SRD_WS}:{SRD_WS+3}], s{S_T} offen offset:{qt*1024} sc1")
        a(f"  s_setpc_b64 s[{S_RET}:{S_RET+1}]")
        if k < 3: a.label(f"L_evk{k}")
segs.append(('loop2', il, len(a.lines)))
it = len(a.lines)
if OPT['tal']: a(f".p2align {OPT['tal']}")
a.label("L_tail")
stamp(4)
a(f"  v_readfirstlane_b32 s{S_T}, v{V_POLL}")
a("  s_nop 3")
a(f"  s_cmp_ge_u32 s{S_T}, 8")
a("  s_cbranch_scc1 L_spin1_done")
a(f"  v_mov_b32 v{V_T0}, 0")
a(f"  s_lshl_b32 s{S_T+2}, s{S_R}, 2")
spin("L_spin1", SRD_D, V_T0, f"s{S_T+2}", 8)
if OPT['sib']:
    a(f"  s_lshr_b32 s{S_T}, s{S_PBASE}, 16")
    a(f"  s_xor_b32 s{S_T}, s{S_T}, 1")
    a(f"  s_lshl_b32 s{S_T}, s{S_T}, 7")
    a(f"  s_add_u32 s{S_T}, s{S_T}, {MBOX}")
    a(f"  v_mov_b32 v{V_T0}, 4")
    a(f"  buffer_load_dword v{V_L+2}, v{V_T0}, s[{SRD_WS}:{SRD_WS+3}], s{S_T} offen sc1")
gl = [part_load(0, b_ >> 3, b_ & 7, 128 + 4*b_) for b_ in range(16)]
for p in range(56, 63):
    if p % 2 == 0: barrier_T()
    else: a("  s_waitcnt lgkmcnt(0)")
    if p in (56, 58, 60, 61): period(p, dma=[gl.pop(0) for _ in range(4)])
    elif p == 62:
        ex = []
        for pos in (4, 5):
            pl = produce_list(pos); ex += [pl[:4], [pl[4]], [], [pl[5]], [], [pl[6]], [], [pl[7]]]
        period(p, last=True, extra=[[]]*16 + ex)
    else: period(p)
stamp(4)
if OPT['sib']: a(f"  v_readfirstlane_b32 s{S_SIB}, v{V_L+2}")
a("  s_waitcnt lgkmcnt(0)")
THR = 0x53800000 if not OPT['force_redo'] else 0x3f000000
prog = v_half(31, 0) + produce_list(0) + produce_list(1)
prog += pv_half(30, 1, A_K) + sum_pair(30, 2)
prog += [f"  s_mov_b32 s{S_SP}, {THR:#x}", f"  s_mov_b64 vcc, 0"]
for qt in (3, 2, 1, 0): prog += sm_ops(63, qt)
prog += v_half(31, 1, A_K) + ["  s_barrier"] + produce_list(2)
prog += sum_pair(31, 3) + sum_pair(31, 2)
for qt in (1, 0, 3, 2):
    lr = (ls_reg(qt) + (qt < 2)) if qt in SUMQT else V_L + qt
    if qt not in SUMQT: prog += capture(lambda: xlane_reduce(V_L+qt, 'v_add_f32', V_L+2+qt))
    elif OPT['one1']: prog += capture(lambda: xlane_reduce(lr, 'v_add_f32', lr+1))
    prog += [f"  v_cmp_ngt_f32 s[{S_T+2}:{S_T+3}], s{S_SP}, v{lr}", f"  s_or_b64 vcc, vcc, s[{S_T+2}:{S_T+3}]",
             f"  v_rcp_f32 v{V_NEGM+2*qt}, v{lr}"]
FLG = [f"  s_cmp_lg_u64 vcc, 0", f"  s_cselect_b32 s{S_T}, 1, 0", f"  v_mov_b32 v56, s{S_T}", f"  ds_write_b32 v{V_T1}, v56"]
prog += [f"  s_lshl_b32 s{S_T+1}, s{S_W}, 2", f"  s_add_u32 s{S_T+1}, s{S_T+1}, {RB+3*16384}",
         f"  v_and_b32 v{V_T1}, 3, v{V_LANE}", f"  v_lshlrev_b32 v{V_T1}, 12, v{V_T1}", f"  v_add_u32 v{V_T1}, s{S_T+1}, v{V_T1}"]
if not OPT['ochk']: prog += FLG
prog += [f"  s_lshl_b32 s{S_T}, s{S_W}, 14", f"  v_add_u32 v{V_T0}, s{S_T}, v{V_L16}"]
gpos[0] = 8
if OPT['af']:
    prog += [f"  v_add_u32 v{60+nt}, {3*16384}, v{V_AA+nt}" for nt in range(4)] + ["  s_waitcnt vmcnt(12)"]
    af = capture(a_first)
    for nt in range(4): af = [l.replace(f", v{V_AA+4+nt} ", f", v{60+nt} ") for l in af]
    prog += af
prog += pv_half(31, 0) + pv_half(31, 1, A_K)
def norm(c, qt, pk):
    t = qt * 12; L = []
    L += [f"  v_accvgpr_read_b32 v{t+k}, a{A_O+((2*c)*4+qt)*4+k}" for k in range(4)]
    L += [f"  v_accvgpr_read_b32 v{t+4+k}, a{A_O+((2*c+1)*4+qt)*4+k}" for k in range(4)]
    if pk: L += [f"  v_pk_mul_f32 v[{t+2*k}:{t+2*k+1}], v[{t+2*k}:{t+2*k+1}], v[{V_NEGM+2*qt}:{V_NEGM+2*qt+1}] op_sel_hi:[1,0]" for k in range(4)]
    else: L += [f"  v_mul_f32 v{t+k}, v{t+k}, v{V_NEGM+2*qt}" for k in range(8)]
    L += [f"  v_cvt_pk_bf16_f32 v{t+8+k}, v{t+2*k}, v{t+2*k+1}" for k in range(4)]
    L += [f"  ds_write_b128 v{V_T0}, v[{t+8}:{t+11}] offset:{(c*4+qt)*1024}"]
    return L
def ochk(c, qt):
    return mf(52, V_ONES, qt*12+8, None if (c, qt) == (0, 0) else 52)
NOV = OPT['nov']
todo = [(c, qt) for c in range(4) for qt in range(4)]
if OPT['ochk']:
    NOV = min(NOV, 4)
for c, qt in todo[:NOV]: prog += norm(c, qt, False)
if OPT['ochk']: prog += [ochk(c, qt) for c, qt in todo[:NOV]]
a('; ---- attention tail, row sums, range check, normalisation')
emit_sched(prog, 'tail')
stamp(); stamp(4)
if OPT['stamps']:
    a(f"  s_memrealtime s[{S_RET}:{S_RET+1}]")
    a("  s_waitcnt lgkmcnt(0)")
    a(f"  s_mov_b32 s39, s{S_RET}")
gpos[0] = 8
for nt in range(4): a(f"  v_add_u32 v{V_AA+4+nt}, {3*16384}, v{V_AA+nt}")
if not OPT['af']:
    a("  s_waitcnt vmcnt(12)")
    a_first()
pend_ = None
align8()
for c, qt in todo[NOV:]:
    L_ = norm(c, qt, True)
    if pend_: L_.insert(1, pend_)
    for l in L_: a(l)
    pend_ = ochk(c, qt) if OPT['ochk'] else None
if OPT['ochk']:
    a("  s_nop 0")
    a(pend_)
    a("  s_nop 7")
    a(f"  v_cmp_u_f32 s[{S_T+2}:{S_T+3}], v53, v53")
    a("  s_nop 2")
    a(f"  s_or_b64 vcc, vcc, s[{S_T+2}:{S_T+3}]")
    for l in FLG: a(l)
a("  s_waitcnt lgkmcnt(0)")
a("  s_barrier")
a(f"  s_add_u32 s{S_T}, s{S_VM0}, {3*16384}")
a(f"  v_mov_b32 v{V_T0}, s{S_T}")
a(f"  ds_read_b128 v[0:3], v{V_T0}")
b_reload(False, wait=False)
a("  s_waitcnt lgkmcnt(8)")
a("  v_or_b32 v0, v0, v1")
a("  v_or3_b32 v0, v0, v2, v3")
a("  s_nop 0")
a(f"  v_readfirstlane_b32 s{S_T}, v0")
a(f"  s_andn2_b32 s{S_T}, s{S_T}, s{S_REDO}")
if not OPT['noredo']: a("  s_cbranch_scc1 L_redo")
produce_slot(3); produce_slot(4)
a(f"  s_lshl_b32 s{S_T}, s{S_W}, 1")
a(f"  s_sub_u32 s{S_OWN}, s{S_G}, s{S_T}")
if OPT['sib']:
    a(f"  s_getreg_b32 s{S_T}, hwreg(HW_REG_XCC_ID, 0, 4)")
    a(f"  s_xor_b32 s{S_T+1}, s{S_OWN}, 1")
    a(f"  s_cmp_eq_u32 s{S_T}, s{S_SIB}")
    a(f"  s_cselect_b32 s{S_SIB}, s{S_T+1}, 99")
stamp()
gemm_first(); gemm_call(7); set_stream('wo', 1); gemm_call(7)
LOQ = [192, 196, 200, 204, 216, 220, 224, 228]
if OPT['own']:
    for k in range(4): a(f"  v_mov_b32 v{248+k}, 0")
    a("  s_nop 1")
    for k in range(4): a(f"  v_mfma_f32_32x32x16_bf16 a[{16*k}:{16*k+15}], v[248:251], v[248:251], 0")
st0 = store_partial(1, 0, dst=LOQ, defer=True, sreg=S_SP)
a(f"  s_mov_b32 s{SRD_X}, s{P_X}")
a(f"  s_mov_b32 s{SRD_X+1}, s{P_X+1}")
a(f"  s_mov_b32 s{SRD_X+2}, {2048*512*2}")
GL, XL, SL = 128, 248, 64
S_MB, S_DONE, S_M, S_NEW = S_KOFF, S_VOFF, S_LOOP, S_KM0
a(f"  s_lshr_b32 s{S_MB}, s{S_PBASE}, {WGSH}")
a(f"  s_lshl_b32 s{S_MB}, s{S_MB}, 7")
a(f"  s_add_u32 s{S_MB}, s{S_MB}, {MBOX}")
a(f"  s_add_u32 s{S_XO}, s{S_XO}, s{S_HSW}")
a(f"  s_xor_b32 s{S_HSW}, s{S_XO}, 128")
if OPT['fst']:
    a(f"  v_and_b32 v{V_ZERO}, 15, v{V_LANE}")
    a(f"  v_lshlrev_b32 v{V_ZERO}, 2, v{V_ZERO}")
else: a(f"  v_mov_b32 v{V_ZERO}, 0")
a(f"  v_and_b32 v{V_T0}, 15, v{V_LANE}")
a(f"  v_lshlrev_b32 v{V_T0}, 10, v{V_T0}")
if OPT['o4']:
    a(f"  v_and_b32 v{V_T1}, 16, v{V_LANE}")
    a(f"  v_lshl_add_u32 v{V_T0}, v{V_T1}, 1, v{V_T0}")
    a(f"  v_bfe_u32 v{V_T1}, v{V_LANE}, 5, 1")
    a(f"  v_lshl_add_u32 v{V_XO}, v{V_T1}, 4, v{V_T0}")
else:
    a(f"  v_lshrrev_b32 v{V_T1}, 4, v{V_LANE}")
    a(f"  v_lshl_add_u32 v{V_XO}, v{V_T1}, 3, v{V_T0}")
POLL = f"  buffer_load_dword v{V_POLL}, v{V_ZERO}, s[{SRD_WS}:{SRD_WS+3}], s{S_MB} offen sc1"
XLD = [f"  buffer_load_dwordx2 v[{XL+2*k}:{XL+2*k+1}], v{V_XO}, s[{SRD_X}:{SRD_X+3}], s{S_HSW if k >> 1 else S_XO} offen offset:{(k&1)*32}" for k in range(4)]
if OPT['o4']: XLD = [f"  buffer_load_dwordx4 v[{XL+4*i}:{XL+4*i+3}], v{V_XO}, s[{SRD_X}:{SRD_X+3}], s{S_HSW if i else S_XO} offen" for i in range(2)]
if OPT['xvol'] & 2:
    a(f"  s_bitcmp1_b32 s{S_W}, 0")
    a(f"  s_cselect_b32 s{S_FB}, 0x40000000, s{S_FB}")
S_SIG = S_KV0
a(f"  s_mov_b32 s{SRD_D}, s{P_WS}")
a(f"  s_mov_b32 s{SRD_D+1}, s{P_WS+1}")
a(f"  s_lshl_b32 s{S_SIG}, s{S_R}, 10")
a(f"  s_add_u32 s{S_SIG}, s{S_SIG}, {MBOX}")
a(f"  s_add_u32 s{S_T}, s{S_SIG}, 1024")
a(f"  s_cmp_eq_u32 s{S_W}, 0")
a(f"  s_cselect_b32 s{SRD_D+2}, s{S_T}, 0")
a(f"  s_lshl_b32 s{S_M}, 1, s{S_G}")
a(f"  v_mov_b32 v{V_T0}, s{S_M}")
a(f"  v_lshlrev_b32 v{V_T1}, 7, v{V_LANE}")
SIG = SIG2 = f"  buffer_atomic_add v{V_T0}, v{V_T1}, s[{SRD_D}:{SRD_D+3}], s{S_SIG} offen sc1"
if OPT['fst']:
    a(f"  v_lshl_add_u32 v{V_T1}, s{S_G}, 2, v{V_T1}")
    SIG = f"  buffer_store_dword v{V_T0}, v{V_T1}, s[{SRD_D}:{SRD_D+3}], s{S_SIG} offen sc1"
    SIG2 = f"  buffer_store_dword v{V_T0}, v{V_T1}, s[{SRD_D}:{SRD_D+3}], s{S_SIG} offen offset:32 sc1"
def getmask(sreg):
    if OPT['fst']:
        a(f"  v_cmp_ne_u32 vcc, 0, v{V_POLL}")
        a("  s_nop 3")
        a(f"  s_and_b32 s{sreg}, vcc_lo, 0xffff")
    else:
        a(f"  v_readfirstlane_b32 s{sreg}, v{V_POLL}")
SEL = 236
sel = [f"  v_lshrrev_b32 v{V_ONE_LO}, 4, v{V_LANE}", f"  v_bfe_u32 v{V_ONE_HI}, v{V_LANE}, 2, 2",
       f"  v_cmp_eq_u32 vcc, v{V_ONE_LO}, v{V_ONE_HI}", f"  v_and_b32 v{V_ONE_LO}, 1, v{V_LANE}", f"  v_lshlrev_b32 v{V_ONE_LO}, 4, v{V_ONE_LO}",
       f"  v_mov_b32 v{V_ONE_HI}, 0x3f80", f"  v_lshlrev_b32 v{V_ONE_HI}, v{V_ONE_LO}, v{V_ONE_HI}", f"  v_cndmask_b32 v{V_ONE_HI}, 0, v{V_ONE_HI}, vcc",
       f"  v_and_b32 v{V_ONE_LO}, 2, v{V_LANE}", f"  v_cmp_eq_u32 vcc, 0, v{V_ONE_LO}", f"  v_mov_b32 v{SEL}, 0", f"  v_mov_b32 v{SEL+1}, 0",
       f"  v_cndmask_b32 v{SEL+2}, 0, v{V_ONE_HI}, vcc", f"  v_cndmask_b32 v{SEL+3}, v{V_ONE_HI}, v{SEL}, vcc", f"  v_mov_b32 v{SEL+4}, 0", f"  v_mov_b32 v{SEL+5}, 0"]
def msum(base, acc, bt='v'):
    return [mf(acc + 4*h, SEL + 2 - 2*h, base + 4*s_, None if s_ == 0 else acc + 4*h, 'v', 'v', bt) for s_ in range(8) for h in range(2)]
SL = 0
def redirect(b_):
    return [f"  s_bitcmp1_b32 s{S_NEW}, {b_}", f"  s_cselect_b32 s{S_T+1}, s{S_FB}, 0x40000000",
            f"  s_add_u32 s{S_T+2}, s{S_T+1}, {PART_KIND + ((b_ & 7) << WGSH) + (b_ >> 3)*HSTR}",
            f"  buffer_load_dwordx4 a[{SL+4*b_}:{SL+4*b_+3}], v{V_L16}, s[{SRD_WS}:{SRD_WS+3}], s{S_T+2} offen sc1"]
vq = [f"slot{k}" for k in range(7) for _ in range(4)]
st0 = list(st0)
def trickle():
    if OPT['trk']:
        a(st0.pop(0)); vq.append('st')
if OPT['trk'] >= 3:
    at = {3: (0, 2, 4, 6, 8), 4: (0, 1, 3, 4, 6, 7), 5: tuple(range(8)), 6: (0, 2, 4, 6), 7: (0, 3, 6), 8: (2, 4, 6, 7, 8)}[OPT['trk']]
    for j in range(9):
        w_ = len(vq) - 1 - max(i for i, t in enumerate(vq) if t == f"slot{j+2}")
        xv = None
        if j in at:
            xv = [(9, st0.pop(0))]; vq.append('st')
        gemm_inl(first=(j < 2), vmw=w_, xvm=xv)
        vq += [f"slot{j+7}"]*4
else:
    trickle()
    gemm_first(); vq += ['slot7']*4 + ['slot8']*4
if OPT['trk'] >= 3: pass
elif OPT['trk']:
    for k in range(3):
        trickle(); gemm_call(2); vq += [f"slot{9+2*k}"]*4 + [f"slot{10+2*k}"]*4
    if OPT['trk'] == 2: trickle()
    gemm_call(1); vq += ['slot15']*4
else:
    gemm_call(7); vq += [f"slot{k}" for k in range(9, 16) for _ in range(4)]
if OPT['e1']:
    a(POLL); vq.append('poll1')
def younger(tag): return len(vq) - 1 - max(i for i, t in enumerate(vq) if t == tag)
a(f"  s_mov_b32 s{S_DONE}, 0")
for j in range(9, 16):
    vm = []; tags = []; xv = None
    w_ = younger(f"slot{j+2}") if j < 14 else 63
    if j in (9, 10):
        vm = [[x] for x in st0[:4]]; tags = ['st']*len(vm); st0 = st0[4:]
    if j == 11 and not OPT['xl']: vm = [[x] for x in XLD]; tags = ['x']*len(XLD)
    if OPT['e1'] and j in (12, 13):
        if j == 12:
            w_ = younger('poll1')
            xv = [(4, f"  v_readfirstlane_b32 s{S_NEW}, v{V_POLL}"), (8, f"  s_and_b32 s{S_DONE}, s{S_NEW}, 0xff")]
        vm = [redirect(4*(j-12)+k) for k in range(4)]; tags = ['e1']*4
    if j == 14: vm = [[""], [""], [""], [POLL]]; tags = ['poll']
    if j == 15 and OPT['ilv']:
        prog = capture(lambda: (gemm_inl(vm=[], vmw=63, noread=True), store_partial(1, 1)))
        prog = [l for l in prog if 's_waitcnt' not in l]
        a("  s_nop 3")
        out, t = schedule(prog, vmgap=40)
        for l in out: a(l)
        a("  s_nop 1")
        break
    gemm_inl(vm=vm, vmw=w_, noread=(j >= 14), fillv=(sel if j == 14 else None), xvm=xv)
    vq += tags
stamp(5)
if not OPT['ilv']: store_partial(1, 1)
stamp(); stamp(5)
GA, T = 16, 48
OWNQ = 64
if OPT['own']:
    a(f"  s_cmp_gt_u32 s{S_OWN}, 1")
    a("  s_cbranch_scc1 L_own_done")
    a(f"  v_add_u32 v{V_BA}, s{S_VM0}, v{V_L16}")
    a(f"  s_cmp_eq_u32 s{S_OWN}, 1")
    a("  s_cbranch_scc1 L_own1")
    for c in range(2):
        if c: a.label("L_own1")
        if OPT['sib']:
            o = 1 - c
            a(f"  s_cmp_eq_u32 s{S_SIB}, 99")
            a(f"  s_cbranch_scc1 L_nosib{c}")
            a(f"  s_add_u32 s{S_T}, s{S_PBASE}, {PART_KIND + o*4096}")
            a(f"  s_add_u32 s{S_T+1}, s{S_T}, 8192")
            for qt in range(4):
                x = V_ACC + ((2*o)*4+qt)*4
                a(f"  buffer_store_dwordx4 v[{LOQ[4*o+qt]}:{LOQ[4*o+qt]+3}], v{V_L16}, s[{SRD_WS}:{SRD_WS+3}], s{S_T} offen offset:{qt*1024}")
                a(f"  buffer_store_dwordx4 v[{x}:{x+3}], v{V_L16}, s[{SRD_WS}:{SRD_WS+3}], s{S_T+1} offen offset:{qt*1024}")
            a.label(f"L_nosib{c}")
        for qt in range(4):
            a(f"  ds_write_b128 v{V_BA}, v[{LOQ[4*c+qt]}:{LOQ[4*c+qt]+3}] offset:{qt*1024}")
            x = V_ACC + ((2*c)*4+qt)*4
            a(f"  ds_write_b128 v{V_BA}, v[{x}:{x+3}] offset:{16384+qt*1024}")
        if c == 0: a("  s_branch L_own_w")
    a.label("L_own_w")
    if OPT['sib']:
        a(f"  s_cmp_eq_u32 s{S_SIB}, 99")
        a("  s_cbranch_scc1 L_own_done")
        a("  s_waitcnt vmcnt(0)")
    a.label("L_own_done")
    a(f"  s_lshr_b32 s{S_T}, s{S_G}, 1")
    a(f"  s_lshl_b32 s{S_T}, s{S_T}, 2")
    a(f"  s_add_u32 s{S_T}, s{S_T}, s{S_W}")
    a(f"  s_lshl_b32 s{S_T}, s{S_T}, 10")
    a(f"  s_add_u32 s{S_T}, s{S_T}, {RB}")
    a("  s_waitcnt lgkmcnt(0)")
    a(f"  v_add_u32 v{V_BA}, s{S_T}, v{V_L16}")
a("  s_waitcnt vmcnt(8)")
a("  s_barrier")
a(SIG)
if OPT['own']:
    a(f"  ds_read_b128 v[{OWNQ}:{OWNQ+3}], v{V_BA}")
    a(f"  ds_read_b128 v[{OWNQ+4}:{OWNQ+7}], v{V_BA} offset:16384")
getmask(S_NEW)
a(f"  v_lshlrev_b32 v{V_T0}, 8, v{V_T0}")
a("  s_nop 2")
if OPT['own']:
    a(f"  s_mul_i32 s{S_M}, s{S_M}, 0x101")
    a(f"  s_or_b32 s{S_DONE}, s{S_DONE}, s{S_M}")
    a(f"  s_mov_b32 s{S_M}, s{S_NEW}")
else:
    a(f"  s_or_b32 s{S_NEW}, s{S_NEW}, s{S_M}")
    a(f"  s_lshl_b32 s{S_M}, s{S_M}, 8")
    a(f"  s_or_b32 s{S_M}, s{S_M}, s{S_NEW}")
W1 = list(range(8, 15)) if OPT['e1'] else list(range(7))
W2 = ([15] if OPT['e1'] else list(range(7, 16))) if OPT['r2'] else []
S_SBM, S_SBO = S_FOFF, S_ROT7
if OPT['sib']:
    a(f"  s_xor_b32 s{S_T}, s{S_G}, 1")
    a(f"  s_lshl_b32 s{S_SBO}, s{S_T}, 16")
    a(f"  s_add_u32 s{S_SBO}, s{S_SBO}, s{S_FB}")
    a(f"  s_lshl_b32 s{S_T}, 0x101, s{S_T}")
    a(f"  s_cmp_eq_u32 s{S_SIB}, 99")
    a(f"  s_cselect_b32 s{S_SBM}, 0, s{S_T}")
    a(f"  s_andn2_b32 s{S_NEW}, s{S_NEW}, s{S_SBM}")
    for k in range(8): a(f"  v_mov_b32 v{OWNQ+8+k}, 0")
a(f"  s_and_b32 s{S_NEW}, s{S_NEW}, {sum(1 << b_ for b_ in W1 + W2):#x}")
a(f"  s_or_b32 s{S_DONE}, s{S_DONE}, s{S_NEW}")
fl = []
for s_ in W1:
    r_ = redirect(s_); fl += [r_[:2], r_[2:]]
def silu(acc):
    L = [f"  v_mul_f32 v{acc+e}, v{acc+e}, v{V_RSO}" for e in range(8)]
    def rp(r): return [f"  v_cvt_pk_bf16_f32 v{T+(r&2)//2}, v{r}, v{r+1}", f"  v_lshlrev_b32 v{r}, 16, v{T+(r&2)//2}", f"  v_and_b32 v{r+1}, 0xffff0000, v{T+(r&2)//2}"]
    for j in range(4): L += rp(acc+2*j)
    L += [f"  v_mul_f32 v{T+4+e}, 0xbfb8aa3b, v{acc+e}" for e in range(8)]
    L += [f"  v_exp_f32 v{T+4+e}, v{T+4+e}" for e in range(8)]
    L += [f"  v_add_f32 v{T+4+e}, 1.0, v{T+4+e}" for e in range(8)]
    L += [f"  v_rcp_f32 v{T+4+e}, v{T+4+e}" for e in range(8)]
    L += [f"  v_mul_f32 v{acc+e}, v{acc+e}, v{T+4+e}" for e in range(8)]
    for j in range(4): L += rp(acc+2*j)
    return L
s0 = silu(GA)
for g, l in enumerate(msum(GL, GA) + msum(GL + 32, GA + 8)):
    a(l)
    if g < len(fl):
        for x in fl[g]: a(x)
    if g >= 23:
        a(s0.pop(0)); a(s0.pop(0))
for b_ in W2:
    for l in redirect(b_): a(l)
    for _ in range(5):
        if s0: a(s0.pop(0))
s1 = silu(GA + 8)
if OPT['sv'] >= 1:
    for l in s0: a(l)
    s0 = []
if OPT['sv'] >= 2:
    for l in s1: a(l)
    s1 = []
stamp(5)
a(f"  s_waitcnt vmcnt({8 + len(W2)})")
a("  s_barrier")
a(SIG2)
stamp(5)
def fround(first=False):
    if not first:
        if OPT['pslp']: a(f"  s_sleep {OPT['pslp']}")
        a(POLL)
        a("  s_waitcnt vmcnt(0)")
        getmask(S_M)
        a("  s_nop 3")
    a(f"  s_call_b64 s[{S_RET}:{S_RET+1}], L_round")
fround(True)
if OPT['xl']:
    for l in XLD: a(l)
XU = 72
def SAr(i): return 8*i
pre_ = []
for i in range(2):
    pre_ += [mf(SAr(i) + 4*h, SEL + 2 - 2*h, OWNQ + 4*i, None) for h in range(2)]
    pre_ += [f"  v_permlane16_swap_b32 v{XL+4*i}, v{XL+4*i+2}", f"  v_permlane16_swap_b32 v{XL+4*i+1}, v{XL+4*i+3}"]
    for j in range(4):
        xr = XL + 4*i + j
        pre_ += [f"  v_lshlrev_b32 v{XU+8*i+2*j}, 16, v{xr}", f"  v_and_b32 v{XU+8*i+2*j+1}, 0xffff0000, v{xr}"]
a("  s_waitcnt lgkmcnt(0)")
emit_sched(s0 + s1 + pre_, 'silu')
stamp(5)
a(f"  s_mov_b32 s{SRD_D}, s{P_OUT}")
a(f"  s_mov_b32 s{SRD_D+1}, s{P_OUT+1}")
a(f"  s_mov_b32 s{SRD_D+2}, {2048*512*2}")
a(f"  s_mov_b32 s{S_CNT}, {OPT['spin']}")
def ost4(i): return f"  buffer_store_dwordx4 v[{XL+4*i}:{XL+4*i+3}], v{V_XO}, s[{SRD_D}:{SRD_D+3}], s{S_HSW if i else S_XO} offen"
def fin_m(i):
    SA = SAr(i)
    return [mf(SA + 4*h, SEL + 2 - 2*h, SL + i*32 + 4*s_, SA + 4*h, 'v', 'v', 'a') for h in range(2) for s_ in range(8)]
def fin_v(i):
    SA = SAr(i); L = []
    for h in range(2):
        t = T + 4*i + 2*h
        rp = lambda r, t_: [f"  v_cvt_pk_bf16_f32 v{t_}, v{r}, v{r+1}", f"  v_lshlrev_b32 v{r}, 16, v{t_}", f"  v_and_b32 v{r+1}, 0xffff0000, v{t_}"]
        if OPT['ffma']:
            L += [f"  v_fma_f32 v{SA+4*h+e}, v{SA+4*h+e}, v{GA+8*i+4*h+e}, v{XU+8*i+4*h+e}" for e in range(4)]
        else:
            for j in range(2): L += rp(SA+4*h+2*j, t+j)
            L += [f"  v_mul_f32 v{SA+4*h+e}, v{SA+4*h+e}, v{GA+8*i+4*h+e}" for e in range(4)]
            for j in range(2): L += rp(SA+4*h+2*j, t+j)
            L += [f"  v_add_f32 v{SA+4*h+e}, v{SA+4*h+e}, v{XU+8*i+4*h+e}" for e in range(4)]
        L += [f"  v_cvt_pk_bf16_f32 v{XL+4*i+2*h+j}, v{SA+4*h+2*j}, v{SA+4*h+2*j+1}" for j in range(2)]
    L += [f"  v_permlane16_swap_b32 v{XL+4*i}, v{XL+4*i+2}", f"  v_permlane16_swap_b32 v{XL+4*i+1}, v{XL+4*i+3}"]
    return L
for i in range(2):
    a.label(f"L_sp{i}")
    a(f"  s_cmp_eq_u32 s{S_DONE}, 0xffff")
    a(f"  s_cbranch_scc1 {'L_both' if i == 0 else 'L_sp1_done'}")
    a(f"  s_bfe_u32 s{S_T+3}, s{S_DONE}, {(8 << 16) | (8*i)}")
    fround()
    if i == 0:
        a(f"  s_cmp_eq_u32 s{S_T+3}, 0xff")
        a(f"  s_cbranch_scc1 L_sp{i}_done")
    a(f"  s_sub_u32 s{S_CNT}, s{S_CNT}, 1")
    a(f"  s_cbranch_scc0 L_sp{i}")
    a(f"  s_mov_b32 s{S_CNT}, 0")
    if OPT['pad']:
        a(f"  s_branch L_sp{i}_done")
        a.label(f"L_st{i}"); a(f"  s_branch NEXT_L_st{i}")
    a.label(f"L_sp{i}_done")
    if i == 0: emit_sched(fin_m(0) + fin_v(0), 'fin0')
    else:
        a("  s_waitcnt vmcnt(0)")
        emit_sched([ost4(0)] + fin_m(1) + fin_v(1) + [ost4(1)], 'fin1')
a("  s_branch L_fin")
ib = len(a.lines)
if OPT['pad']:
    a.label("L_padB"); a("  s_branch NEXT_L_padB")
a.label("L_both")
a("  s_waitcnt vmcnt(0)")
emit_sched(fin_m(0) + fin_m(1) + fin_v(0) + [ost4(0)] + fin_v(1) + [ost4(1)], 'both')
a.label("L_fin")
stamp(); stamp(5)
if OPT['stamps']:
    a("  s_waitcnt vmcnt(0)")
    stamp(0)
    a(f"  s_memrealtime s[{S_T}:{S_T+1}]")
    a("  s_waitcnt lgkmcnt(0)")
    n = nstamp[0]
    for i in range(n):
        a(f"  v_writelane_b32 v0, s{S_STAMP+2*i}, {i}")
    a(f"  v_writelane_b32 v0, s{S_T}, 15")
    a(f"  v_writelane_b32 v0, s74, 14")
    a(f"  v_writelane_b32 v0, s38, 12")
    a(f"  v_writelane_b32 v0, s39, 13")
    a(f"  s_lshl_b32 s{S_T}, s2, 2")
    a(f"  s_add_u32 s{S_T}, s{S_T}, s{S_W}")
    a(f"  s_lshl_b32 s{S_T}, s{S_T}, 6")
    a(f"  s_add_u32 s{S_T}, s{S_T}, {STAMP_OFF}")
    a(f"  v_lshlrev_b32 v1, 2, v{V_LANE}")
    a(f"  v_cmp_gt_u32 vcc, 16, v{V_LANE}")
    a(f"  s_and_saveexec_b64 s[{S_T+2}:{S_T+3}], vcc")
    a(f"  buffer_store_dword v0, v1, s[{SRD_WS}:{SRD_WS+3}], s{S_T} offen")
a.label("L_end")
a("  s_endpgm")
segs.append(('tail', 'tailjoin', (il, itail, it, len(a.lines))))
ir = len(a.lines)
if OPT['pad']:
    a.label("L_padR"); a("  s_branch NEXT_L_padR")
a.label("L_round")
a(f"  s_andn2_b32 s{S_NEW}, s{S_M}, s{S_DONE}")
a(f"  s_or_b32 s{S_DONE}, s{S_DONE}, s{S_M}")
if OPT['sib']:
    a(f"  s_and_b32 s{S_T}, s{S_NEW}, s{S_SBM}")
    a("  s_cbranch_scc0 L_rsib")
    a(f"  s_or_b32 s{S_DONE}, s{S_DONE}, s{S_SBM}")
    a(f"  s_andn2_b32 s{S_NEW}, s{S_NEW}, s{S_SBM}")
    for i in range(2):
        a(f"  s_add_u32 s{S_T}, s{S_SBO}, {PART_KIND + i*8192}")
        a(f"  buffer_load_dwordx4 v[{OWNQ+8+4*i}:{OWNQ+11+4*i}], v{V_L16}, s[{SRD_WS}:{SRD_WS+3}], s{S_T} offen{['', ' nt', ' sc0'][OPT['sib']-1]}")
    a.label("L_rsib")
for h in range(4):
    a(f"  s_and_b32 s{S_T}, s{S_NEW}, {0xf << (4*h)}")
    a(f"  s_cbranch_scc0 L_rs{h}")
    for b_ in range(4*h, 4*h+4):
        pl = part_load(1, b_ >> 3, b_ & 7, SL + b_*4, 'a')
        a(pl[0])
        a(f"  s_bitcmp1_b32 s{S_NEW}, {b_}")
        a(f"  s_cselect_b64 exec, -1, 0")
        a(pl[1])
    a("  s_mov_b64 exec, -1")
    a.label(f"L_rs{h}")
a(f"  s_setpc_b64 s[{S_RET}:{S_RET+1}]")
_i = len(a.lines)
a.lines.extend(W3_CODE)
segs.append(('w3', _i, len(a.lines)))
if OPT['pad']:
    a.label("L_walk"); a(f"  s_mov_b32 s{S_CNT}, 0")
    a.label("L_walk1"); a("  s_mov_b64 exec, 0")
    for c in range(3):
        a(f"  s_cmp_eq_u32 s{S_CNT}, {c}"); a(f"  s_cbranch_scc1 CHAIN{c}")
    a("  s_branch CHAIN3")
    a.label("L_disp"); a("  s_mov_b64 exec, -1")
    if OPT['ew']:
        a(f"  s_cmp_eq_u32 s{S_ODD}, 0"); a("  s_cbranch_scc1 L_gst")
    a(f"  s_add_u32 s{S_CNT}, s{S_CNT}, 1"); a(f"  s_cmp_lt_u32 s{S_CNT}, 4"); a("  s_cbranch_scc1 L_walk1")
    a("  s_branch L_walk_ret")
_i = len(a.lines)
a.lines.extend(EVEN_CODE)
if EVEN_CODE: segs.append(('even', _i, len(a.lines)))
a("; ---- fallback: true row max over all keys, then repeat the attention")
a.label("L_redo")
a("  s_waitcnt lgkmcnt(0)")
a(f"  s_mov_b32 s{S_REDO}, 1")
a(f"  s_mov_b32 s{S_KOFF}, s{S_KV0}")
a(f"  s_mov_b32 s{S_LOOP}, 32")
a(f"  v_mov_b32 v{V_T0}, 0xff800000")
for qt in range(4): a(f"  v_mov_b32 v{V_NEGM+qt*4}, v{V_T0}")
a.label("L_redo_loop")
a("  s_waitcnt vmcnt(0) lgkmcnt(0)")
a("  s_barrier")
k_tile_dma(0)
a("  s_waitcnt vmcnt(0)")
a("  s_barrier")
for u in range(2):
    for i in range(8): a(k_read(u, i >> 2, i & 3))
    a("  s_waitcnt lgkmcnt(0)")
    for l in qk_mfmas(0, zero=True): a(l)
    a("  s_nop 7")
    for qt in range(4):
        m = V_NEGM + qt*4
        for kt in range(2):
            x = s_reg(0, kt, qt)
            a(f"  v_max3_f32 v{m}, v{x}, v{x+1}, v{m}")
            a(f"  v_max3_f32 v{m}, v{x+2}, v{x+3}, v{m}")
a(f"  s_sub_u32 s{S_LOOP}, s{S_LOOP}, 1")
a(f"  s_cmp_lg_u32 s{S_LOOP}, 0")
a("  s_cbranch_scc1 L_redo_loop")
for qt in range(4):
    m = V_NEGM + qt*4
    xlane_reduce(m, 'v_max_f32', m+1)
    a(f"  v_xor_b32 v{m}, 0x80000000, v{m}")
    for k in range(1, 4): a(f"  v_mov_b32 v{m+k}, v{m}")
a("  s_barrier")
a(f"  s_mov_b32 s{S_KOFF}, s{S_KV0}")
a(f"  s_mov_b32 s{S_VOFF}, s{S_KV0}")
for t in range(4): k_tile_dma(t)
for t in range(2): v_tile_dma(t)
a(f"  s_mov_b32 s{S_POFF}, s{S_SV_POFF}")
a("  s_waitcnt vmcnt(0)")
a("  s_barrier")
zero_o()
for l in attn_init(): a(l)
emit_sched(KR01 + ["  s_barrier"] + qk_mfmas(0, order=QORD) + head_common(), 'redo head')
a(f"  s_mov_b32 s{S_LOOP}, 7")
a("  s_branch L_p2")
segs.append(('redo', ir, len(a.lines)))
a(f".p2align {OPT['gal']}")
if OPT['gst']:
    a.label("L_gst"); a("  s_branch L_gst_ret"); a("  s_nop 0")
ig = len(a.lines)
ORD = list(range(12)) if OPT['gst'] < 2 else [2, 3, 4, 5, 6, 7, 8, 9, 10, 11, 0, 1]
for pos in ORD:
    a.label(f"L_gemm{pos}")
    gemm_step(pos, False, pos in CKPT)
    if pos == ORD[-1]:
        a(f"  s_cbranch_scc0 L_gemm{ORD[0]}" if pos in CKPT else f"  s_branch L_gemm{ORD[0]}")
    elif pos in CKPT: a("  s_cbranch_scc1 L_gemm_ret")
a.label("L_gemm_ret")
a(f"  s_setpc_b64 s[{S_RET}:{S_RET+1}]")
segs.append(('gemm2', ig, len(a.lines)))
a.label("L_code_end")

a('.section .rodata,"a"')
a(".p2align 6")
a(kernel_desc(NAME + "_kernel", 512, 102, 256))

errs = []
for s in segs:
    if s[1] == 'tailjoin':
        il_, itail_, it_, end_ = s[2]
        errs += hazard.check(a.lines[il_:itail_] + a.lines[it_:end_], 'tail')
    elif s[0].endswith('2'):
        errs += hazard.check(a.lines[s[1]:s[2]] * 2, s[0])
    else:
        errs += hazard.check(a.lines[s[1]:s[2]], s[0])
for e in errs[:40]: print("HAZ", e)
if OPT['pad']:
    import subprocess
    tmp = _re.sub(r"(NEXT_\w+|CHAIN\d)", "L_padB", a.text())
    r_ = subprocess.run(["llvm-mc", "-triple=amdgcn-amd-amdhsa", "-mcpu=gfx950", "--show-encoding"], input=tmp, capture_output=True, text=True)
    assert r_.returncode == 0, r_.stderr[:500]
    sizes = [len(m.split(',')) for m in _re.findall(r'encoding: \[([^\]]*)\]', r_.stdout)]
    out = []; addr = None; k = 0; npad = 0; active = False; want = None; prev_m = False
    for l in a.lines:
        t = l.split(';')[0].strip()
        if t == NAME + "_kernel:": addr = 0x300
        if t in ("L_walk_ret:", "L_tail:") or (t == "L_gst_ret:" and OPT['ew']): active = True
        if t == "L_ffn2_done:" and OPT['ew']: want = addr - 40
        if t == "L_padL:": want = None
        if t == "L_sp0:" or (t == "L_loop:" and OPT['pad'] < 2): active = False; want = None
        if t == "L_p2:" and OPT['pad'] >= 2: want = addr
        isins = bool(t) and not t.endswith(':') and not t.startswith('.')
        if addr is not None and t.startswith('.p2align'):
            al = 1 << int(t.split()[1]); addr = (addr + al - 1) // al * al
        if isins and addr is not None:
            if want is not None and addr >= want and (prev_m or addr - want >= 40):
                out.append(f"L_pad{npad}:"); out.append(f"  s_cbranch_execz NEXT_L_pad{npad}"); npad += 1; addr += 4; want = None
                if not prev_m or 'accvgpr' in t:
                    out.append("  s_nop 0"); addr += 4
            nxt = addr + sizes[k]
            if active and (nxt >> 12) != (addr >> 12): want = (nxt >> 12) << 12
            addr = nxt; prev_m = t.startswith('v_mfma')
        if isins: k += 1
        out.append(l)
    assert k == len(sizes), (k, len(sizes))
    tg = [f"L_pad{k_}" for k_ in range(npad)] + ["L_padL", "L_st0", "L_st1", "L_padB", "L_padR"]
    sub = {}
    for c in range(4):
        ch = tg[c::4]; sub[f"CHAIN{c}"] = ch[0]
        for x, y in zip(ch, ch[1:] + ["L_disp"]): sub["NEXT_" + x] = y
    a.lines = [_re.sub(r"(NEXT_\w+|CHAIN\d)", lambda m: sub[m.group(1)], l) for l in out]
    print("  pads:", npad)
open(sys.argv[1], 'w').write(a.text())
print("written", sys.argv[1], len(a.lines), "lines;", len(errs), "hazard msgs")
```
